```python
import torch

def _softmax(x, axis=-1):
    return torch.softmax(x, dim=axis)
def _gelu(x):
    return torch.nn.functional.gelu(x, approximate="tanh")
def _silu(x):
    return torch.nn.functional.silu(x)
def _sigmoid(x):
    return torch.sigmoid(x)
def _layernorm(x, axis=-1, eps=1e-5):
    m = x.mean(dim=axis, keepdim=True)
    v = x.var(dim=axis, keepdim=True, unbiased=False)
    return (x - m) / torch.sqrt(v + eps)
def _scatter_add(tgt, idx, src, axis=0):
    return tgt.clone().index_add_(axis, idx, src)
def _segment_sum(src, seg, n):
    out = torch.zeros((n,) + src.shape[1:], dtype=src.dtype)
    return out.index_add_(0, seg, src)
def _pad(x, pw):
    flat = tuple(v for pair in reversed(pw) for v in pair)
    return torch.nn.functional.pad(x, flat)

kernel_name = 'recurrent_scan__sliding_block_cached__mixer_token_mlp__decode'

def setup_inputs():

    _w = (lambda a: (lambda t: t.to(torch.bfloat16) if t.is_floating_point() else t)(torch.as_tensor(a)))
    def _A_setup():
        B, Sq, D = 1, 1, 512
        Hq, Hkv, Sk, Dh = 32, 8, 32768, 128
        assert Hq % Hkv == 0, (Hq, Hkv)
        return {
            "x": _w((lambda *s: torch.randn(*s, dtype=torch.bfloat16) * 0.4)(B, Sq, D)),
            "k_cache": _w((lambda *s: torch.randn(*s, dtype=torch.bfloat16) * 1.6)(B, Hkv, Sk, Dh)),
            "v_cache": _w((lambda *s: torch.randn(*s, dtype=torch.bfloat16) * 1.6)(B, Hkv, Sk, Dh)),
            "wq": _w((lambda *s: torch.randn(*s, dtype=torch.bfloat16) * 1.6)(D, Hq * Dh) * (D ** -0.5)),
            "wo": _w((lambda *s: torch.randn(*s, dtype=torch.bfloat16) * 1.6)(Hq * Dh, D) * ((Hq * Dh) ** -0.5)),
        }
    _A_in = _A_setup()

    def _B_setup():
        B, S, D, F = 1, 1, 512, 1792
        return {
            "x": _w((lambda *s: torch.randn(*s, dtype=torch.bfloat16) * 0.4)(B, S, D)),
            "w1": _w((lambda *s: torch.randn(*s, dtype=torch.bfloat16) * 1.6)(S, F) * (S ** -0.5)),
            "b1": _w((lambda *s: torch.randn(*s, dtype=torch.bfloat16) * 1.6)(F) * 0.02),
            "w2": _w((lambda *s: torch.randn(*s, dtype=torch.bfloat16) * 1.6)(F, S) * (F ** -0.5)),
            "b2": _w((lambda *s: torch.randn(*s, dtype=torch.bfloat16) * 1.6)(S) * 0.02),
        }
    _B_in = _B_setup()

    return {
        "A_x": _A_in["x"],
        "A_k_cache": _A_in["k_cache"],
        "A_v_cache": _A_in["v_cache"],
        "A_wq": _A_in["wq"],
        "A_wo": _A_in["wo"],
        "B_x": _B_in["x"],
        "B_w1": _B_in["w1"],
        "B_b1": _B_in["b1"],
        "B_w2": _B_in["w2"],
        "B_b2": _B_in["b2"],
    }

def reference(A_x, A_k_cache, A_v_cache, A_wq, A_wo, B_x, B_w1, B_b1, B_w2, B_b2):
    def _A_ref(x, k_cache, v_cache, wq, wo):
        B, Sq, D = x.shape
        Hq, Dh = 32, 128
        Hkv, Sk = k_cache.shape[1], k_cache.shape[2]
        W = min(4096, max(256, Sk // 4))
        rep = Hq // Hkv
        q = (lambda x, *d: x.permute(*d))((x @ wq).reshape(B, Sq, Hq, Dh), 0, 2, 1, 3)
        k = (lambda x, n, axis: torch.repeat_interleave(x, n, dim=axis))(k_cache[:, :, Sk - W:, :], rep, axis=1)
        v = (lambda x, n, axis: torch.repeat_interleave(x, n, dim=axis))(v_cache[:, :, Sk - W:, :], rep, axis=1)
        scores = torch.einsum("bhqd,bhkd->bhqk", q, k) * (Dh ** -0.5)
        p = _softmax(scores, axis=-1)
        o = torch.einsum("bhqk,bhkd->bhqd", p, v)
        return (lambda x, *d: x.permute(*d))(o, 0, 2, 1, 3).reshape(B, Sq, Hq * Dh) @ wo

    def _B_ref(x, w1, b1, w2, b2):
        B, S, D = x.shape
        h = _layernorm(x, axis=-1)
        u = torch.einsum("bsd,sf->bdf", h, w1) + b1
        u = _gelu(u)
        y = torch.einsum("bdf,fs->bds", u, w2) + b2
        return (lambda x, *d: x.permute(*d))(y, 0, 2, 1)

    x = A_x
    xn = _layernorm(x, axis=-1)
    s = _A_ref(xn, A_k_cache, A_v_cache, A_wq, A_wo)
    g = _silu(_B_ref(xn, B_w1, B_b1, B_w2, B_b2))
    return x + s * g
```

```python
import sys, struct
NAME = "recurrent_scan__sliding_block_cached__mixer_token_mlp__decode"
opts = dict(a.split("=") if "=" in a else (a, "1") for a in sys.argv[2:])
STAMPS = int(opts.get("stamps", 0))
NT = opts.get("nt", "0") == "1"

L = []
def e(s): L.append("    " + s)
def lab(s): L.append(s + ":")
def c(s): L.append("    ; " + s)
def f2u(x): return struct.unpack("<I", struct.pack("<f", x))[0]
def hx(x): return "0x%08x" % (x & 0xffffffff)

XN = 0
OX = 1024
ML = 1280
YB = 1408
CMB = 2048
KBUF = 12288
VBUF = KBUF + 32768
WQB = VBUF + 32768
WOB = WQB + 16384
LDS_TOTAL = WOB + 16384
EPOCH = 0
MB1 = 4096
MB2 = 65536
MB3 = MB2 + (1 << 20)
WS_USED = MB3 + (1 << 18)
STAMP_OFF = 32 << 20
WS_NREC = (33 << 20) if STAMPS else WS_USED

sWAVE, sG, sC, sP4, sPIV, sA, sB = 3, 4, 5, 6, 7, 8, 9
sTAG = 10
sSPIN = 12
sTMP = 13
sM0 = 14
sOFF = 15
sE, sXP = 42, 43
SRD_K, SRD_V, SRD_WQ, SRD_WO, SRD_W1, SRD_B1, SRD_W2, SRD_WS, SRD_X, SRD_OUT = 44, 48, 52, 56, 60, 64, 68, 72, 76, 80
sB2 = 84
sKOFF = 85
sMASKQ = 86
sMASK0 = 88
sODD = 90
sN1 = 92
sN2 = 94
sH0, sH1 = 96, 97
sST = 98
def srd(b): return "s[%d:%d]" % (b, b + 3)
def sp(b): return "s[%d:%d]" % (b, b + 1)
def v(a, n=1): return "v%d" % a if n == 1 else "v[%d:%d]" % (a, a + n - 1)

vTID, vL, vQ, vN = 0, 1, 2, 3
vKO = 4
vVO = 8
vT0, vT1 = 10, 11
vX = 12
vW1, vB1, vW2 = 16, 20, 24
vF = 28
vD = 36
vS1, vS2, vM, vR = 44, 45, 46, 47
vXN = 48
vTAG = 52
vACC = 54
vG = 56
vXO = 58
vQA = 60
vBF = 64
vO = 64
vLS = 96
vWOF = 100
vH2 = 116
vKF = 128
vVF = 160
vQG = 192
vSC = 224
vP = 232
vONE = 236
vSTP = 240
NVGPR = 256

def stamp(i):
    if not STAMPS: return
    e("s_waitcnt lgkmcnt(0)")
    e("s_memrealtime %s" % sp(sST))
    e("s_waitcnt lgkmcnt(0)")
    e("v_mov_b32 %s, s%d" % (v(vSTP + i), sST))

def dpp_reduce(op, regs, steps):
    for s in steps:
        pad = 2 - (len(regs) - 1)
        if pad > 0: e("s_nop %d" % (pad - 1))
        for r in regs:
            e("%s_dpp %s, %s, %s %s" % (op, v(r), v(r), v(r), s))
ROW = ["row_ror:8 row_mask:0xf bank_mask:0xf", "row_ror:4 row_mask:0xf bank_mask:0xf",
       "row_ror:2 row_mask:0xf bank_mask:0xf", "row_ror:1 row_mask:0xf bank_mask:0xf"]
XROW = ["row_bcast:15 row_mask:0xa bank_mask:0xf", "row_bcast:31 row_mask:0xc bank_mask:0xf"]

def unpack(dst, src):
    e("v_lshlrev_b32 %s, 16, %s" % (v(dst), v(src)))
    e("v_and_b32 %s, 0xffff0000, %s" % (v(dst + 1), v(src)))
def round1(r):
    e("v_cvt_pk_bf16_f32 %s, %s, %s" % (v(r), v(r), v(r)))
    e("v_and_b32 %s, 0xffff0000, %s" % (v(r), v(r)))

ntm = " nt" if NT else ""

def ln_finish(vmean, vvar):
    e("v_max_f32 %s, 0, %s" % (v(vvar), v(vvar)))
    round1(vmean)
    round1(vvar)
    e("v_add_f32 %s, %s, %s" % (v(vvar), hx(f2u(1e-5)), v(vvar)))
    round1(vvar)
    e("v_sqrt_f32 %s, %s" % (v(vvar), v(vvar)))
    e("s_nop 0")
    round1(vvar)
    e("v_rcp_f32 %s, %s" % (v(vvar), v(vvar)))
    e("s_nop 0")

def spin_check(retry_label):
    e("s_sub_u32 s%d, s%d, 1" % (sSPIN, sSPIN))
    e("s_cbranch_scc0 %s" % retry_label)
    e("s_branch L_end")

e("s_cmp_ge_u32 s2, 256")
e("s_cbranch_scc1 L_end")
e("s_load_dwordx16 s[16:31], s[0:1], 0")
e("s_load_dwordx8 s[32:39], s[0:1], 64")
e("s_load_dwordx2 s[40:41], s[0:1], 96")
if STAMPS:
    for i in range(16): e("v_mov_b32 %s, 0" % v(vSTP + i))
    e("s_memrealtime %s" % sp(sST))
e("v_and_b32 %s, 63, v0" % v(vL))
e("v_lshrrev_b32 %s, 6, v0" % v(vT0))
e("v_lshrrev_b32 %s, 4, %s" % (v(vQ), v(vL)))
e("v_readfirstlane_b32 s%d, %s" % (sWAVE, v(vT0)))
e("v_and_b32 %s, 15, %s" % (v(vN), v(vL)))
e("s_and_b32 s%d, s2, 7" % sG)
e("s_lshr_b32 s%d, s2, 3" % sC)
c("SRD constants")
for b, n in ((SRD_K, 1 << 26), (SRD_V, 1 << 26), (SRD_WQ, 1 << 22), (SRD_WO, 1 << 22), (SRD_W1, 3584), (SRD_B1, 3584),
             (SRD_W2, 3584), (SRD_WS, WS_NREC), (SRD_X, 1024), (SRD_OUT, 1024)):
    e("s_mov_b32 s%d, %s" % (b + 2, hx(n)))
    e("s_mov_b32 s%d, 0x00020000" % (b + 3))
c("lane masks")
for r, m in ((sMASKQ, 0x000F000F), (sMASK0, 0x00010001), (sODD, 0xFFFF0000), (sN1, 0xAAAAAAAA), (sN2, 0xCCCCCCCC)):
    e("s_mov_b32 s%d, %s" % (r, hx(m)))
    e("s_mov_b32 s%d, %s" % (r + 1, hx(m)))
e("s_mov_b32 s%d, 0x40000" % sSPIN)
c("p = g*32 + c ; byte offset 4p")
e("s_lshl_b32 s%d, s%d, 5" % (sP4, sG))
e("s_add_u32 s%d, s%d, s%d" % (sP4, sP4, sC))
e("s_lshl_b32 s%d, s%d, 2" % (sP4, sP4))
c("K/V byte offset of this wave's 32 keys")
e("s_lshl_b32 s%d, s%d, 23" % (sKOFF, sG))
e("s_lshl_b32 s%d, s%d, 15" % (sTMP, sC))
e("s_add_u32 s%d, s%d, s%d" % (sKOFF, sKOFF, sTMP))
e("s_lshl_b32 s%d, s%d, 13" % (sTMP, sWAVE))
e("s_add_u32 s%d, s%d, s%d" % (sKOFF, sKOFF, sTMP))
e("s_add_u32 s%d, s%d, %d" % (sKOFF, sKOFF, 7340032))
c("x offset: (l>>2)*64 + (l&3)*8")
e("v_lshrrev_b32 %s, 2, %s" % (v(vT0), v(vL)))
e("v_and_b32 %s, 3, %s" % (v(vT1), v(vL)))
e("v_lshlrev_b32 %s, 6, %s" % (v(vT0), v(vT0)))
e("v_lshl_add_u32 %s, %s, 3, %s" % (v(vT0), v(vT1), v(vT0)))
e("v_lshlrev_b32 %s, 4, v0" % v(vT1))
c("K dma source offsets")
e("v_lshlrev_b32 %s, 2, %s" % (v(vKO), v(vQ)))
e("v_xor_b32 %s, %s, %s" % (v(vKO), v(vKO), v(vN)))
e("v_lshlrev_b32 %s, 4, %s" % (v(vKO), v(vKO)))
e("v_lshl_add_u32 %s, %s, 8, %s" % (v(vKO), v(vQ), v(vKO)))
for i in range(1, 4): e("v_xor_b32 %s, %d, %s" % (v(vKO + i), i << 4, v(vKO)))
c("V dma source offsets")
e("v_lshlrev_b32 %s, 1, %s" % (v(vVO), v(vQ)))
e("v_xor_b32 %s, %s, %s" % (v(vVO), v(vVO), v(vN)))
e("v_lshlrev_b32 %s, 4, %s" % (v(vVO), v(vVO)))
e("v_lshl_add_u32 %s, %s, 8, %s" % (v(vVO), v(vQ), v(vVO)))
e("v_xor_b32 %s, 0x80, %s" % (v(vVO + 1), v(vVO)))
c("wq dma source offset: (l>>1)*8192 + (l&1)*16")
e("v_lshrrev_b32 %s, 1, %s" % (v(vD), v(vL)))
e("v_and_b32 %s, 1, %s" % (v(vD + 1), v(vL)))
e("v_lshlrev_b32 %s, 13, %s" % (v(vD), v(vD)))
e("v_lshl_add_u32 %s, %s, 4, %s" % (v(vD), v(vD + 1), v(vD)))
e("s_lshl_b32 s%d, s%d, 10" % (sOFF, sG))
e("s_lshl_b32 s%d, s%d, 5" % (sTMP, sC))
e("s_add_u32 s%d, s%d, s%d" % (sOFF, sOFF, sTMP))
e("s_waitcnt lgkmcnt(0)")
if STAMPS: e("v_mov_b32 %s, s%d" % (v(vSTP), sST))
for b, p in ((SRD_X, 16), (SRD_WQ, 22), (SRD_W1, 28), (SRD_B1, 30), (SRD_W2, 32)):
    e("s_mov_b64 %s, %s" % (sp(b), sp(p)))
e("buffer_load_dwordx2 %s, %s, %s, 0 offen" % (v(vX, 2), v(vT0), srd(SRD_X)))
e("buffer_load_dwordx2 %s, %s, %s, 0 offen offset:32" % (v(vX + 2, 2), v(vT0), srd(SRD_X)))
e("s_load_dword s%d, s[40:41], %d" % (sE, EPOCH))
e("s_load_dword s%d, s[16:17], s%d" % (sXP, sP4))
e("s_load_dword s%d, s[34:35], 0" % sB2)
e("s_cmp_lg_u32 s%d, 0" % sWAVE)
e("s_cbranch_scc1 L_skipwq")
for i in range(16):
    e("s_mov_b32 m0, %d" % (WQB + i * 1024))
    if i: e("s_add_u32 s%d, s%d, %d" % (sOFF, sOFF, 262144))
    else: e("s_nop 0")
    e("buffer_load_dwordx4 %s, %s, s%d offen%s lds" % (v(vD), srd(SRD_WQ), sOFF, ntm))
lab("L_skipwq")
e("buffer_load_dwordx4 %s, %s, %s, 0 offen" % (v(vW1, 4), v(vT1), srd(SRD_W1)))
e("buffer_load_dwordx4 %s, %s, %s, 0 offen" % (v(vB1, 4), v(vT1), srd(SRD_B1)))
e("buffer_load_dwordx4 %s, %s, %s, 0 offen" % (v(vW2, 4), v(vT1), srd(SRD_W2)))
for b, p in ((SRD_K, 18), (SRD_V, 20), (SRD_WO, 24), (SRD_WS, 40), (SRD_OUT, 36)):
    e("s_mov_b64 %s, %s" % (sp(b), sp(p)))
e("s_lshl_b32 s%d, s%d, 13" % (sM0, sWAVE))
e("s_add_u32 s%d, s%d, 4096" % (sOFF, sKOFF))
e("s_barrier")
for (base, sr, nvar, vo) in ((KBUF, SRD_K, 4, vKO), (VBUF, SRD_V, 2, vVO)):
    for half in range(2):
        e("s_add_u32 m0, s%d, %d" % (sM0, base + half * 4096))
        e("s_nop 0")
        for i in range(4):
            e("buffer_load_dwordx4 %s, %s, s%d offen offset:%d%s lds" % (v(vo + (i % nvar)), srd(sr), sOFF if half else sKOFF, i * 1024, ntm))
c("---- LN1 ----")
e("s_cmp_lg_u32 s%d, 0" % sWAVE)
e("s_cbranch_scc1 L_w123")
e("s_waitcnt vmcnt(35)")
e("s_branch L_ln1")
lab("L_w123")
e("s_waitcnt vmcnt(19)")
lab("L_ln1")
stamp(1)
for i in range(4): unpack(vF + 2 * i, vX + i)
e("v_readfirstlane_b32 s%d, %s" % (sPIV, v(vF)))
e("s_nop 1")
for i in range(8): e("v_subrev_f32 %s, s%d, %s" % (v(vD + i), sPIV, v(vF + i)))
e("v_add_f32 %s, %s, %s" % (v(vS1), v(vD), v(vD + 1)))
e("v_mul_f32 %s, %s, %s" % (v(vS2), v(vD), v(vD)))
e("v_fmac_f32 %s, %s, %s" % (v(vS2), v(vD + 1), v(vD + 1)))
for i in range(2, 8):
    e("v_add_f32 %s, %s, %s" % (v(vS1), v(vS1), v(vD + i)))
    e("v_fmac_f32 %s, %s, %s" % (v(vS2), v(vD + i), v(vD + i)))
dpp_reduce("v_add_f32", [vS1, vS2], ROW + XROW)
e("s_nop 0")
e("v_readlane_b32 s%d, %s, 63" % (sA, v(vS1)))
e("v_readlane_b32 s%d, %s, 63" % (sB, v(vS2)))
e("v_mov_b32 %s, %s" % (v(vT0), hx(f2u(1.0 / 512))))
e("s_nop 0")
e("v_mul_f32 %s, s%d, %s" % (v(vM), sA, v(vT0)))
e("v_mul_f32 %s, s%d, %s" % (v(vR), sB, v(vT0)))
e("v_fma_f32 %s, -%s, %s, %s" % (v(vR), v(vM), v(vM), v(vR)))
e("v_add_f32 %s, s%d, %s" % (v(vM), sPIV, v(vM)))
ln_finish(vM, vR)
for i in range(8): e("v_sub_f32 %s, %s, %s" % (v(vD + i), v(vF + i), v(vM)))
for i in range(4): e("v_cvt_pk_bf16_f32 %s, %s, %s" % (v(vXN + i), v(vD + 2 * i), v(vD + 2 * i + 1)))
for i in range(4): unpack(vD + 2 * i, vXN + i)
for i in range(8): e("v_mul_f32 %s, %s, %s" % (v(vD + i), v(vD + i), v(vR)))
for i in range(4): e("v_cvt_pk_bf16_f32 %s, %s, %s" % (v(vXN + i), v(vD + 2 * i), v(vD + 2 * i + 1)))
c("tags")
e("s_waitcnt lgkmcnt(0)")
e("s_mul_i32 s%d, s%d, 0x9E3779B1" % (sTAG, sE))
e("s_add_u32 s%d, s%d, 0x632BE5AB" % (sTAG, sTAG))
e("s_xor_b32 s%d, s%d, 0x5BD1E995" % (sTAG + 1, sTAG))
e("v_mov_b32 %s, s%d" % (v(vTAG), sTAG))
e("v_mov_b32 %s, s%d" % (v(vTAG + 1), sTAG + 1))
e("s_cmp_lg_u32 s%d, 0" % sWAVE)
e("s_cbranch_scc1 L_ln2")
c("---- wave 0: q projection for 16 columns ----")
e("v_lshlrev_b32 %s, 4, %s" % (v(vT0), v(vL)))
e("ds_write_b128 %s, %s offset:%d" % (v(vT0), v(vXN, 4), XN))
e("v_lshlrev_b32 %s, 4, %s" % (v(vT0), v(vQ)))
e("v_lshlrev_b32 %s, 3, %s" % (v(vT1), v(vL)))
e("v_add_u32 %s, %d, %s" % (v(vT1), WQB, v(vT1)))
e("s_waitcnt lgkmcnt(0)")
for t in range(16):
    e("ds_read_b128 %s, %s offset:%d" % (v(vBF + 4 * t, 4), v(vT0), XN + 64 * t))
c("publish address")
e("s_lshl_b32 s%d, s%d, 4" % (sTMP, sP4))
e("s_add_u32 s%d, s%d, %d" % (sTMP, sTMP, MB1))
e("v_add_u32 %s, s%d, %s" % (v(vT0), sTMP, v(vT0)))
for t in range(16):
    e("s_waitcnt vmcnt(%d)" % (19 + 15 - t))
    e("ds_read_b64_tr_b16 %s, %s offset:%d" % (v(vKF + 4 * t, 2), v(vT1), 1024 * t))
    e("ds_read_b64_tr_b16 %s, %s offset:%d" % (v(vKF + 4 * t + 2, 2), v(vT1), 1024 * t + 512))
    if t:
        e("s_waitcnt lgkmcnt(2)")
        e("v_mfma_f32_16x16x32_bf16 %s, %s, %s, %s" % (v(vQA, 4), v(vKF + 4 * (t - 1), 4), v(vBF + 4 * (t - 1), 4), v(vQA, 4) if t > 1 else "0"))
e("s_waitcnt lgkmcnt(0)")
e("v_mfma_f32_16x16x32_bf16 %s, %s, %s, %s" % (v(vQA, 4), v(vKF + 60, 4), v(vBF + 60, 4), v(vQA, 4)))
e("s_nop 7")
e("v_cvt_pk_bf16_f32 %s, %s, %s" % (v(vD), v(vQA), v(vQA + 1)))
e("v_cvt_pk_bf16_f32 %s, %s, %s" % (v(vD + 1), v(vQA + 2), v(vQA + 3)))
e("v_cndmask_b32 %s, %s, %s, %s" % (v(vQA), v(vTAG), v(vD), sp(sODD)))
e("v_cndmask_b32 %s, %s, %s, %s" % (v(vQA + 1), v(vTAG + 1), v(vD + 1), sp(sODD)))
e("v_cndmask_b32 %s, %s, %s, %s" % (v(vQA + 2), v(vD), v(vTAG), sp(sODD)))
e("v_cndmask_b32 %s, %s, %s, %s" % (v(vQA + 3), v(vD + 1), v(vTAG + 1), sp(sODD)))
e("s_mov_b64 exec, %s" % sp(sMASK0))
e("buffer_store_dwordx4 %s, %s, %s, 0 offen sc1" % (v(vQA, 4), v(vT0), srd(SRD_WS)))
e("s_mov_b64 exec, -1")
stamp(2)
lab("L_ln2")
c("---- LN2 statistics (on xn) ----")
for i in range(4): unpack(vD + 2 * i, vXN + i)
e("v_add_f32 %s, %s, %s" % (v(vS1), v(vD), v(vD + 1)))
e("v_mul_f32 %s, %s, %s" % (v(vS2), v(vD), v(vD)))
e("v_fmac_f32 %s, %s, %s" % (v(vS2), v(vD + 1), v(vD + 1)))
for i in range(2, 8):
    e("v_add_f32 %s, %s, %s" % (v(vS1), v(vS1), v(vD + i)))
    e("v_fmac_f32 %s, %s, %s" % (v(vS2), v(vD + i), v(vD + i)))
dpp_reduce("v_add_f32", [vS1, vS2], ROW + XROW)
e("s_nop 0")
e("v_readlane_b32 s%d, %s, 63" % (sA, v(vS1)))
e("v_readlane_b32 s%d, %s, 63" % (sB, v(vS2)))
c("own two columns: x -> xn")
e("v_mov_b32 %s, s%d" % (v(vT0), sXP))
unpack(vXO, vT0)
e("v_sub_f32 %s, %s, %s" % (v(vD), v(vXO), v(vM)))
e("v_sub_f32 %s, %s, %s" % (v(vD + 1), v(vXO + 1), v(vM)))
e("v_cvt_pk_bf16_f32 %s, %s, %s" % (v(vT0), v(vD), v(vD + 1)))
unpack(vD, vT0)
e("v_mul_f32 %s, %s, %s" % (v(vD), v(vD), v(vR)))
e("v_mul_f32 %s, %s, %s" % (v(vD + 1), v(vD + 1), v(vR)))
e("v_cvt_pk_bf16_f32 %s, %s, %s" % (v(vT0), v(vD), v(vD + 1)))
unpack(vD, vT0)
e("v_mov_b32 %s, %s" % (v(vT0), hx(f2u(1.0 / 512))))
e("v_mul_f32 %s, s%d, %s" % (v(vM), sA, v(vT0)))
e("v_mul_f32 %s, s%d, %s" % (v(vR), sB, v(vT0)))
e("v_fma_f32 %s, -%s, %s, %s" % (v(vR), v(vM), v(vM), v(vR)))
ln_finish(vM, vR)
e("v_sub_f32 %s, %s, %s" % (v(vD), v(vD), v(vM)))
e("v_sub_f32 %s, %s, %s" % (v(vD + 1), v(vD + 1), v(vM)))
e("v_cvt_pk_bf16_f32 %s, %s, %s" % (v(vT0), v(vD), v(vD + 1)))
unpack(vD, vT0)
e("v_mul_f32 %s, %s, %s" % (v(vD), v(vD), v(vR)))
e("v_mul_f32 %s, %s, %s" % (v(vD + 1), v(vD + 1), v(vR)))
e("v_cvt_pk_bf16_f32 %s, %s, %s" % (v(vT0), v(vD), v(vD + 1)))
unpack(vD, vT0)
e("s_nop 0")
e("v_readfirstlane_b32 s%d, %s" % (sH0, v(vD)))
e("v_readfirstlane_b32 s%d, %s" % (sH1, v(vD + 1)))
c("---- B branch: 8 features x 2 columns per thread ----")
e("s_waitcnt vmcnt(16)")
import math
C1 = -2.0 * math.log2(math.e) * math.sqrt(2.0 / math.pi)
C2 = C1 * 0.044715
e("v_mov_b32 %s, 0" % v(vACC))
e("v_mov_b32 %s, 0" % v(vACC + 1))
e("v_mov_b32 %s, %s" % (v(vS1), hx(f2u(C1))))
e("s_mov_b32 s%d, %s" % (sTMP, hx(f2u(C2))))
for k in range(4):
    unpack(vF, vW1 + k)
    unpack(vF + 2, vB1 + k)
    U = vD
    T = vD + 4
    for col, sh in ((0, sH0), (1, sH1)):
        e("v_mul_f32 %s, s%d, %s" % (v(U + 2 * col), sh, v(vF)))
        e("v_mul_f32 %s, s%d, %s" % (v(U + 2 * col + 1), sh, v(vF + 1)))
    for col in range(2): e("v_cvt_pk_bf16_f32 %s, %s, %s" % (v(T + col), v(U + 2 * col), v(U + 2 * col + 1)))
    for col in range(2): unpack(U + 2 * col, T + col)
    for col in range(2):
        e("v_add_f32 %s, %s, %s" % (v(U + 2 * col), v(U + 2 * col), v(vF + 2)))
        e("v_add_f32 %s, %s, %s" % (v(U + 2 * col + 1), v(U + 2 * col + 1), v(vF + 3)))
    for col in range(2): e("v_cvt_pk_bf16_f32 %s, %s, %s" % (v(T + col), v(U + 2 * col), v(U + 2 * col + 1)))
    for col in range(2): unpack(U + 2 * col, T + col)
    for i in range(4): e("v_mul_f32 %s, %s, %s" % (v(T + i), v(U + i), v(U + i)))
    for i in range(4): e("v_fma_f32 %s, %s, s%d, %s" % (v(T + i), v(T + i), sTMP, v(vS1)))
    for i in range(4): e("v_mul_f32 %s, %s, %s" % (v(T + i), v(T + i), v(U + i)))
    for i in range(4): e("v_exp_f32 %s, %s" % (v(T + i), v(T + i)))
    for i in range(4): e("v_add_f32 %s, 1.0, %s" % (v(T + i), v(T + i)))
    for i in range(4): e("v_rcp_f32 %s, %s" % (v(T + i), v(T + i)))
    for i in range(4): e("v_mul_f32 %s, %s, %s" % (v(T + i), v(T + i), v(U + i)))
    for col in range(2): e("v_cvt_pk_bf16_f32 %s, %s, %s" % (v(U + col), v(T + 2 * col), v(T + 2 * col + 1)))
    for col in range(2): e("v_dot2c_f32_bf16 %s, %s, %s" % (v(vACC + col), v(U + col), v(vW2 + k)))
e("s_nop 2")
dpp_reduce("v_add_f32", [vACC, vACC + 1], ROW + XROW)
e("s_lshl_b32 s%d, s%d, 3" % (sTMP, sWAVE))
e("v_mov_b32 %s, s%d" % (v(vT0), sTMP))
e("s_mov_b32 exec_lo, 0"); e("s_mov_b32 exec_hi, 0x80000000")
e("ds_write_b64 %s, %s offset:%d" % (v(vT0), v(vACC, 2), YB))
e("s_mov_b64 exec, -1")
stamp(3)
c("---- address setup for fragment reads ----")
e("v_and_b32 %s, 3, %s" % (v(vT0), v(vN)))
e("v_xor_b32 %s, %s, %s" % (v(vT0), v(vT0), v(vQ)))
e("v_lshrrev_b32 %s, 2, %s" % (v(vT1), v(vN)))
e("v_lshl_add_u32 %s, %s, 2, %s" % (v(vT0), v(vT0), v(vT1)))
e("v_lshlrev_b32 %s, 4, %s" % (v(vT0), v(vT0)))
e("v_lshl_add_u32 %s, %s, 8, %s" % (v(vT0), v(vN), v(vT0)))
e("s_add_u32 s%d, s%d, %d" % (sTMP, sM0, KBUF))
e("v_add_u32 %s, s%d, %s" % (v(vKO), sTMP, v(vT0)))
for t in range(1, 4): e("v_xor_b32 %s, %d, %s" % (v(vKO + t), t << 4, v(vKO)))
e("v_lshl_add_u32 %s, %s, 2, %s" % (v(vT0), v(vQ), v(vT1)))
e("v_and_b32 %s, 7, %s" % (v(vT1), v(vT0)))
e("v_lshlrev_b32 %s, 8, %s" % (v(vT0), v(vT0)))
e("v_lshl_add_u32 %s, %s, 5, %s" % (v(vT0), v(vT1), v(vT0)))
e("v_and_b32 %s, 3, %s" % (v(vT1), v(vN)))
e("v_lshl_add_u32 %s, %s, 3, %s" % (v(vT0), v(vT1), v(vT0)))
e("s_add_u32 s%d, s%d, %d" % (sTMP, sM0, VBUF))
e("v_add_u32 %s, s%d, %s" % (v(vF), sTMP, v(vT0)))
for db in range(1, 8): e("v_xor_b32 %s, %d, %s" % (v(vF + db), db << 5, v(vF)))
e("v_lshlrev_b32 %s, 9, %s" % (v(vT0), v(vN)))
e("v_lshl_add_u32 %s, %s, 7, %s" % (v(vT0), v(vQ), v(vT0)))
e("s_lshl_b32 s%d, s%d, 11" % (sTMP, sG))
e("s_add_u32 s%d, s%d, %d" % (sTMP, sTMP, MB1))
e("v_add_u32 %s, s%d, %s" % (v(vVO), sTMP, v(vT0)))
e("v_mov_b32 %s, 0x3f803f80" % v(vONE))
e("v_mov_b32 %s, 0x3f803f80" % v(vONE + 1))
e("v_mov_b32 %s, 0x3f803f80" % v(vONE + 2))
e("v_mov_b32 %s, 0x3f803f80" % v(vONE + 3))
e("v_lshrrev_b32 %s, 2, %s" % (v(vT0), v(vL)))
e("v_and_b32 %s, 3, %s" % (v(vT1), v(vL)))
e("v_lshlrev_b32 %s, 10, %s" % (v(vT0), v(vT0)))
e("v_lshl_add_u32 %s, %s, 4, %s" % (v(vVO + 1), v(vT1), v(vT0)))
e("s_lshl_b32 s%d, s%d, 19" % (sOFF, sG))
e("s_lshr_b32 s%d, s%d, 2" % (sTMP, sC))
e("s_lshl_b32 s%d, s%d, 16" % (sTMP, sTMP))
e("s_add_u32 s%d, s%d, s%d" % (sOFF, sOFF, sTMP))
e("s_and_b32 s%d, s%d, 3" % (sTMP, sC))
e("s_lshl_b32 s%d, s%d, 8" % (sTMP, sTMP))
e("s_add_u32 s%d, s%d, s%d" % (sOFF, sOFF, sTMP))
e("s_lshl_b32 s%d, s%d, 6" % (sTMP, sWAVE))
e("s_add_u32 s%d, s%d, s%d" % (sOFF, sOFF, sTMP))
c("---- K fragments ----")
e("s_waitcnt vmcnt(8)")
stamp(4)
for T in range(2):
    for t in range(4):
        e("ds_read_b128 %s, %s offset:%d" % (v(vKF + 16 * T + 4 * t, 4), v(vKO + t), 4096 * T))
e("s_mov_b64 exec, %s" % sp(sMASKQ))
for i in range(8):
    e("buffer_load_dwordx4 %s, %s, %s, 0 offen offset:%d sc1" % (v(vQG + 4 * i, 4), v(vVO), srd(SRD_WS), 16 * i))
e("s_mov_b64 exec, -1")
e("s_waitcnt vmcnt(8)")
stamp(5)
for db in range(8):
    for h in range(2):
        e("ds_read_b64_tr_b16 %s, %s offset:%d" % (v(vVF + 4 * db + 2 * h, 2), v(vF + db), 4096 * h))
e("s_branch L_qchk")
lab("L_qretry")
e("s_mov_b64 exec, %s" % sp(sMASKQ))
for i in range(8):
    e("buffer_load_dwordx4 %s, %s, %s, 0 offen offset:%d sc1" % (v(vQG + 4 * i, 4), v(vVO), srd(SRD_WS), 16 * i))
lab("L_qchk")
e("s_mov_b64 exec, %s" % sp(sMASKQ))
e("s_waitcnt vmcnt(0)")
for i in range(8):
    e("v_cmpx_eq_u64 vcc, %s, %s" % (sp(sTAG), v(vQG + 4 * i + (0 if i % 2 == 0 else 2), 2)))
e("s_cmp_eq_u64 exec, %s" % sp(sMASKQ))
e("s_cbranch_scc1 L_qok")
spin_check("L_qretry")
lab("L_qok")
e("s_mov_b64 exec, -1")
stamp(6)
c("wo slab -> LDS")
e("s_lshl_b32 s%d, s%d, 12" % (sTMP, sWAVE))
for i in range(4):
    e("s_add_u32 m0, s%d, %d" % (sTMP, WOB + 1024 * i))
    if i: e("s_add_u32 s%d, s%d, 16384" % (sOFF, sOFF))
    else: e("s_nop 0")
    e("buffer_load_dwordx4 %s, %s, s%d offen%s lds" % (v(vVO + 1), srd(SRD_WO), sOFF, ntm))
e("s_waitcnt lgkmcnt(0)")
for t in range(4):
    for T in range(2):
        e("v_mfma_f32_16x16x32_bf16 %s, %s, %s, %s" % (v(vSC + 4 * T, 4), v(vKF + 16 * T + 4 * t, 4), v(vQG + 8 * t + 2, 4), v(vSC + 4 * T, 4) if t else "0"))
e("s_mov_b32 s%d, %s" % (sA, hx(f2u(128 ** -0.5))))
e("s_mov_b32 s%d, %s" % (sB, hx(f2u(math.log2(math.e)))))
e("s_nop 5")
for i in range(4): e("v_cvt_pk_bf16_f32 %s, %s, %s" % (v(vP + i), v(vSC + 2 * i), v(vSC + 2 * i + 1)))
for i in range(4): unpack(vSC + 2 * i, vP + i)
for i in range(8): e("v_mul_f32 %s, s%d, %s" % (v(vSC + i), sA, v(vSC + i)))
for i in range(4): e("v_cvt_pk_bf16_f32 %s, %s, %s" % (v(vP + i), v(vSC + 2 * i), v(vSC + 2 * i + 1)))
for i in range(4): unpack(vSC + 2 * i, vP + i)
e("v_max3_f32 %s, %s, %s, %s" % (v(vM), v(vSC), v(vSC + 1), v(vSC + 2)))
e("v_max3_f32 %s, %s, %s, %s" % (v(vR), v(vSC + 3), v(vSC + 4), v(vSC + 5)))
e("v_max3_f32 %s, %s, %s, %s" % (v(vM), v(vM), v(vSC + 6), v(vSC + 7)))
e("v_max_f32 %s, %s, %s" % (v(vM), v(vM), v(vR)))
e("v_mov_b32 %s, %s" % (v(vR), v(vM)))
e("s_nop 1")
e("v_permlane32_swap_b32 %s, %s" % (v(vM), v(vR)))
e("v_max_f32 %s, %s, %s" % (v(vM), v(vM), v(vR)))
e("v_mov_b32 %s, %s" % (v(vR), v(vM)))
e("s_nop 1")
e("v_permlane16_swap_b32 %s, %s" % (v(vM), v(vR)))
e("v_max_f32 %s, %s, %s" % (v(vM), v(vM), v(vR)))
e("v_mul_f32 %s, s%d, %s" % (v(vM), sB, v(vM)))
for i in range(8): e("v_fma_f32 %s, %s, s%d, -%s" % (v(vSC + i), v(vSC + i), sB, v(vM)))
for i in range(8): e("v_exp_f32 %s, %s" % (v(vSC + i), v(vSC + i)))
e("s_nop 0")
for i in range(4): e("v_cvt_pk_bf16_f32 %s, %s, %s" % (v(vP + i), v(vSC + 2 * i), v(vSC + 2 * i + 1)))
c("combine write addresses")
e("v_mul_u32_u24 %s, 576, %s" % (v(vT0), v(vN)))
e("s_mul_i32 s%d, s%d, 2304" % (sTMP, sWAVE))
e("v_mfma_f32_16x16x32_bf16 %s, %s, %s, 0" % (v(vLS, 4), v(vONE, 4), v(vP, 4)))
for db in range(8):
    e("v_mfma_f32_16x16x32_bf16 %s, %s, %s, 0" % (v(vO + 4 * db, 4), v(vVF + 4 * db, 4), v(vP, 4)))
e("v_lshl_add_u32 %s, %s, 4, %s" % (v(vT0), v(vQ), v(vT0)))
e("v_add_u32 %s, s%d, %s" % (v(vT0), sTMP, v(vT0)))
e("s_lshl_b32 s%d, s%d, 2" % (sTMP, sWAVE))
e("v_lshl_add_u32 %s, %s, 4, s%d" % (v(vT1), v(vN), sTMP))
e("s_mov_b64 exec, %s" % sp(sMASKQ))
e("v_add_u32 %s, %d, %s" % (v(vT1), ML, v(vT1)))
e("ds_write2_b32 %s, %s, %s offset0:0 offset1:16" % (v(vT1), v(vM), v(vLS)))
for db in range(8):
    if db == 7: e("s_nop 0")
    e("ds_write_b128 %s, %s offset:%d" % (v(vT0), v(vO + 4 * db, 4), CMB + 64 * db))
e("s_mov_b64 exec, -1")
c("combine read addresses (thread: head = wave, dims 2l,2l+1)")
e("s_mul_i32 s%d, s%d, 576" % (sTMP, sWAVE))
e("v_lshl_add_u32 %s, %s, 3, s%d" % (v(vT0), v(vL), sTMP))
e("s_lshl_b32 s%d, s%d, 4" % (sTMP, sWAVE))
e("v_mov_b32 %s, s%d" % (v(vT1), sTMP))
e("v_lshrrev_b32 %s, 3, %s" % (v(vKO), v(vL)))
e("v_and_b32 %s, 7, %s" % (v(vKO + 1), v(vL)))
e("v_lshlrev_b32 %s, 12, %s" % (v(vKO), v(vKO)))
e("v_lshl_add_u32 %s, %s, 4, %s" % (v(vKO), v(vKO + 1), v(vKO)))
e("s_lshl_b32 s%d, s%d, 17" % (sOFF, sG))
e("s_lshl_b32 s%d, s%d, 15" % (sTMP, sWAVE))
e("s_add_u32 s%d, s%d, s%d" % (sOFF, sOFF, sTMP))
e("s_lshl_b32 s%d, s%d, 7" % (sTMP, sC))
e("s_add_u32 s%d, s%d, s%d" % (sOFF, sOFF, sTMP))
e("s_add_u32 s%d, s%d, %d" % (sOFF, sOFF, MB2))
e("s_waitcnt lgkmcnt(0)")
e("s_barrier")
e("ds_read_b128 %s, %s offset:%d" % (v(vF, 4), v(vT1), ML))
e("ds_read_b128 %s, %s offset:%d" % (v(vF + 4, 4), v(vT1), ML + 64))
for w in range(4):
    e("ds_read_b64 %s, %s offset:%d" % (v(vD + 2 * w, 2), v(vT0), CMB + 2304 * w))
e("s_waitcnt lgkmcnt(5)")
e("v_max3_f32 %s, %s, %s, %s" % (v(vM), v(vF), v(vF + 1), v(vF + 2)))
e("v_max_f32 %s, %s, %s" % (v(vM), v(vM), v(vF + 3)))
for w in range(4): e("v_sub_f32 %s, %s, %s" % (v(vF + w), v(vF + w), v(vM)))
for w in range(4): e("v_exp_f32 %s, %s" % (v(vF + w), v(vF + w)))
e("s_waitcnt lgkmcnt(4)")
e("v_mul_f32 %s, %s, %s" % (v(vR), v(vF), v(vF + 4)))
for w in range(1, 4): e("v_fmac_f32 %s, %s, %s" % (v(vR), v(vF + w), v(vF + 4 + w)))
e("v_rcp_f32 %s, %s" % (v(vS1), v(vR)))
e("v_log_f32 %s, %s" % (v(vS2), v(vR)))
e("s_waitcnt lgkmcnt(0)")
e("v_mul_f32 %s, %s, %s" % (v(vQA), v(vF), v(vD)))
e("v_mul_f32 %s, %s, %s" % (v(vQA + 1), v(vF), v(vD + 1)))
for w in range(1, 4):
    e("v_fmac_f32 %s, %s, %s" % (v(vQA), v(vF + w), v(vD + 2 * w)))
    e("v_fmac_f32 %s, %s, %s" % (v(vQA + 1), v(vF + w), v(vD + 2 * w + 1)))
e("v_mul_f32 %s, %s, %s" % (v(vQA), v(vQA), v(vS1)))
e("v_mul_f32 %s, %s, %s" % (v(vQA + 1), v(vQA + 1), v(vS1)))
e("v_add_f32 %s, %s, %s" % (v(vQA + 2), v(vM), v(vS2)))
e("v_mov_b32 %s, %s" % (v(vQA + 3), v(vTAG)))
e("buffer_store_dwordx4 %s, %s, %s, s%d offen sc1" % (v(vQA, 4), v(vKO), srd(SRD_WS), sOFF))
stamp(7)
c("---- hop 2 gather: region ((g*4+hl)*8 + 4*dhalf + w) = g*32 + (c>>2)*4 + w ----")
e("s_lshr_b32 s%d, s%d, 2" % (sTMP, sC))
e("s_lshl_b32 s%d, s%d, 2" % (sTMP, sTMP))
e("s_add_u32 s%d, s%d, s%d" % (sTMP, sTMP, sWAVE))
e("s_lshl_b32 s%d, s%d, 12" % (sTMP, sTMP))
e("s_lshl_b32 s%d, s%d, 17" % (sOFF, sG))
e("s_add_u32 s%d, s%d, s%d" % (sOFF, sOFF, sTMP))
e("s_add_u32 s%d, s%d, %d" % (sOFF, sOFF, MB2))
e("v_lshlrev_b32 %s, 7, %s" % (v(vKO + 1), v(vN)))
e("v_lshl_add_u32 %s, %s, 5, %s" % (v(vKO + 1), v(vQ), v(vKO + 1)))
G2 = vKF
offs2 = [0, 16, 2048, 2064]
for i in range(4):
    e("buffer_load_dwordx4 %s, %s, %s, s%d offen offset:%d sc1" % (v(G2 + 4 * i, 4), v(vKO + 1), srd(SRD_WS), sOFF, offs2[i]))
c("g for own two columns (uniform)")
e("v_mov_b32 %s, 0" % v(vT1))
e("ds_read_b128 %s, %s offset:%d" % (v(vF, 4), v(vT1), YB))
e("ds_read_b128 %s, %s offset:%d" % (v(vF + 4, 4), v(vT1), YB + 16))
e("s_lshl_b32 s%d, s%d, 16" % (sB2, sB2))
e("s_waitcnt lgkmcnt(0)")
e("v_add_f32 %s, %s, %s" % (v(vG), v(vF), v(vF + 2)))
e("v_add_f32 %s, %s, %s" % (v(vG + 1), v(vF + 1), v(vF + 3)))
e("v_add_f32 %s, %s, %s" % (v(vG), v(vG), v(vF + 4)))
e("v_add_f32 %s, %s, %s" % (v(vG + 1), v(vG + 1), v(vF + 5)))
e("v_add_f32 %s, %s, %s" % (v(vG), v(vG), v(vF + 6)))
e("v_add_f32 %s, %s, %s" % (v(vG + 1), v(vG + 1), v(vF + 7)))
e("v_cvt_pk_bf16_f32 %s, %s, %s" % (v(vT1), v(vG), v(vG + 1)))
unpack(vG, vT1)
e("v_add_f32 %s, s%d, %s" % (v(vG), sB2, v(vG)))
e("v_add_f32 %s, s%d, %s" % (v(vG + 1), sB2, v(vG + 1)))
e("v_cvt_pk_bf16_f32 %s, %s, %s" % (v(vT1), v(vG), v(vG + 1)))
unpack(vG, vT1)
e("v_mul_f32 %s, %s, %s" % (v(vF), hx(f2u(-math.log2(math.e))), v(vG)))
e("v_mul_f32 %s, %s, %s" % (v(vF + 1), hx(f2u(-math.log2(math.e))), v(vG + 1)))
e("v_exp_f32 %s, %s" % (v(vF), v(vF)))
e("v_exp_f32 %s, %s" % (v(vF + 1), v(vF + 1)))
e("s_nop 0")
e("v_add_f32 %s, 1.0, %s" % (v(vF), v(vF)))
e("v_add_f32 %s, 1.0, %s" % (v(vF + 1), v(vF + 1)))
e("v_rcp_f32 %s, %s" % (v(vF), v(vF)))
e("v_rcp_f32 %s, %s" % (v(vF + 1), v(vF + 1)))
e("s_nop 0")
e("v_mul_f32 %s, %s, %s" % (v(vG), v(vG), v(vF)))
e("v_mul_f32 %s, %s, %s" % (v(vG + 1), v(vG + 1), v(vF + 1)))
e("v_cvt_pk_bf16_f32 %s, %s, %s" % (v(vT1), v(vG), v(vG + 1)))
unpack(vG, vT1)
c("wo fragments: addr = WOB + w*4096 + row*64 + b*32 + cc*8 ; row = 4q'+(n>>2) (+16h +32s)")
e("v_lshrrev_b32 %s, 2, %s" % (v(vT0), v(vL)))
e("v_and_b32 %s, 3, %s" % (v(vT1), v(vL)))
e("v_lshlrev_b32 %s, 6, %s" % (v(vT0), v(vT0)))
e("v_lshl_add_u32 %s, %s, 3, %s" % (v(vT0), v(vT1), v(vT0)))
e("s_lshl_b32 s%d, s%d, 12" % (sTMP, sWAVE))
e("s_add_u32 s%d, s%d, %d" % (sTMP, sTMP, WOB))
e("v_add_u32 %s, s%d, %s" % (v(vT0), sTMP, v(vT0)))
c("OX write address: ((w>>1)*4+q')*16 + (w&1)*8 ; read address q'*16")
e("s_lshr_b32 s%d, s%d, 1" % (sTMP, sWAVE))
e("s_lshl_b32 s%d, s%d, 6" % (sTMP, sTMP))
e("s_and_b32 s%d, s%d, 1" % (sA, sWAVE))
e("s_lshl_b32 s%d, s%d, 3" % (sA, sA))
e("s_add_u32 s%d, s%d, s%d" % (sTMP, sTMP, sA))
e("v_lshlrev_b32 %s, 4, %s" % (v(vKO + 2), v(vQ)))
e("v_add_u32 %s, s%d, %s" % (v(vKO + 3), sTMP, v(vKO + 2)))
e("s_waitcnt vmcnt(5)")
for b in range(2):
    for s in range(2):
        for h in range(2):
            e("ds_read_b64_tr_b16 %s, %s offset:%d" % (v(vWOF + 8 * b + 4 * s + 2 * h, 2), v(vT0), 32 * b + 2048 * s + 1024 * h))
e("s_branch L_h2chk")
lab("L_h2retry")
e("s_mov_b64 exec, -1")
for i in range(4):
    e("buffer_load_dwordx4 %s, %s, %s, s%d offen offset:%d sc1" % (v(G2 + 4 * i, 4), v(vKO + 1), srd(SRD_WS), sOFF, offs2[i]))
lab("L_h2chk")
e("s_waitcnt vmcnt(0)")
for i in range(4):
    e("v_cmpx_eq_u32 vcc, s%d, %s" % (sTAG, v(G2 + 4 * i + 3)))
e("s_cmp_eq_u64 exec, -1")
e("s_cbranch_scc1 L_h2ok")
spin_check("L_h2retry")
lab("L_h2ok")
stamp(8)
e("v_max_f32 %s, %s, %s" % (v(vM), v(G2 + 2), v(G2 + 10)))
e("s_nop 3")
dpp_reduce("v_max_f32", [vM], ROW)
e("v_sub_f32 %s, %s, %s" % (v(vS1), v(G2 + 2), v(vM)))
e("v_sub_f32 %s, %s, %s" % (v(vS2), v(G2 + 10), v(vM)))
e("v_exp_f32 %s, %s" % (v(vS1), v(vS1)))
e("v_exp_f32 %s, %s" % (v(vS2), v(vS2)))
e("s_nop 0")
Y = vD
e("v_add_f32 %s, %s, %s" % (v(Y + 4), v(vS1), v(vS2)))
src = [G2, G2 + 1, G2 + 4, G2 + 5]
for k in range(4): e("v_mul_f32 %s, %s, %s" % (v(Y + k), v(vS1), v(src[k])))
for k in range(4): e("v_fmac_f32 %s, %s, %s" % (v(Y + k), v(vS2), v(src[k] + 8)))
dpp_reduce("v_add_f32", [Y + 4, Y, Y + 1, Y + 2, Y + 3], ROW)
e("v_rcp_f32 %s, %s" % (v(Y + 4), v(Y + 4)))
e("s_nop 0")
for k in range(4): e("v_mul_f32 %s, %s, %s" % (v(Y + k), v(Y + k), v(Y + 4)))
e("v_cvt_pk_bf16_f32 %s, %s, %s" % (v(vF), v(Y), v(Y + 1)))
e("v_cvt_pk_bf16_f32 %s, %s, %s" % (v(vF + 1), v(Y + 2), v(Y + 3)))
e("s_mov_b64 exec, %s" % sp(sMASK0))
e("ds_write_b64 %s, %s offset:%d" % (v(vKO + 3), v(vF, 2), OX))
e("s_mov_b64 exec, -1")
c("hop 3 publish address: MB3 + colblk*65536 + (g*8 + (c>>2))*1024 + (w*16 + (n>>1)*8 + q'*2 + (n&1))*16")
e("v_lshrrev_b32 %s, 1, %s" % (v(vT0), v(vN)))
e("v_lshlrev_b32 %s, 7, %s" % (v(vT0), v(vT0)))
e("v_lshl_add_u32 %s, %s, 5, %s" % (v(vT0), v(vQ), v(vT0)))
e("v_and_b32 %s, 1, %s" % (v(vT1), v(vN)))
e("v_lshl_add_u32 %s, %s, 4, %s" % (v(vT0), v(vT1), v(vT0)))
e("s_and_b32 s%d, s%d, 3" % (sOFF, sC))
e("s_lshl_b32 s%d, s%d, 16" % (sOFF, sOFF))
e("s_lshl_b32 s%d, s%d, 13" % (sTMP, sG))
e("s_add_u32 s%d, s%d, s%d" % (sOFF, sOFF, sTMP))
e("s_lshr_b32 s%d, s%d, 2" % (sTMP, sC))
e("s_lshl_b32 s%d, s%d, 10" % (sTMP, sTMP))
e("s_add_u32 s%d, s%d, s%d" % (sOFF, sOFF, sTMP))
e("s_lshl_b32 s%d, s%d, 8" % (sTMP, sWAVE))
e("s_add_u32 s%d, s%d, s%d" % (sOFF, sOFF, sTMP))
e("s_add_u32 s%d, s%d, %d" % (sOFF, sOFF, MB3))
e("s_waitcnt lgkmcnt(0)")
e("s_barrier")
e("ds_read_b128 %s, %s offset:%d" % (v(vF, 4), v(vKO + 2), OX))
e("ds_read_b128 %s, %s offset:%d" % (v(vF + 4, 4), v(vKO + 2), OX + 64))
e("s_waitcnt lgkmcnt(1)")
for b in range(2):
    e("v_mfma_f32_16x16x32_bf16 %s, %s, %s, 0" % (v(vSC + 4 * b, 4), v(vWOF + 8 * b, 4), v(vF, 4)))
e("s_waitcnt lgkmcnt(0)")
for b in range(2):
    e("v_mfma_f32_16x16x32_bf16 %s, %s, %s, %s" % (v(vSC + 4 * b, 4), v(vWOF + 8 * b + 4, 4), v(vF + 4, 4), v(vSC + 4 * b, 4)))
e("v_mov_b32 %s, %s" % (v(vQA + 2), v(vTAG)))
e("v_mov_b32 %s, %s" % (v(vQA + 3), v(vTAG + 1)))
e("s_nop 5")
e("v_cndmask_b32 %s, %s, %s, %s" % (v(vD), v(vSC), v(vSC + 2), sp(sN1)))
e("v_cndmask_b32 %s, %s, %s, %s" % (v(vD + 1), v(vSC + 1), v(vSC + 3), sp(sN1)))
e("v_cndmask_b32 %s, %s, %s, %s" % (v(vD + 2), v(vSC + 4), v(vSC + 6), sp(sN1)))
e("v_cndmask_b32 %s, %s, %s, %s" % (v(vD + 3), v(vSC + 5), v(vSC + 7), sp(sN1)))
e("v_cndmask_b32 %s, %s, %s, %s" % (v(vQA), v(vD), v(vD + 2), sp(sN2)))
e("v_cndmask_b32 %s, %s, %s, %s" % (v(vQA + 1), v(vD + 1), v(vD + 3), sp(sN2)))
e("s_mov_b64 exec, %s" % sp(sMASKQ))
e("buffer_store_dwordx4 %s, %s, %s, s%d offen sc1" % (v(vQA, 4), v(vT0), srd(SRD_WS), sOFF))
e("s_mov_b64 exec, -1")
stamp(9)
e("s_cmp_lg_u32 s%d, 0" % sWAVE)
e("s_cbranch_scc1 L_fin")
c("---- final gather (wave 0): pair p: MB3 + (p>>6)*65536 + l*1024 + (p&63)*16 ----")
e("s_lshr_b32 s%d, s%d, 8" % (sOFF, sP4))
e("s_lshl_b32 s%d, s%d, 16" % (sOFF, sOFF))
e("s_and_b32 s%d, s%d, 255" % (sTMP, sP4))
e("s_lshl_b32 s%d, s%d, 2" % (sTMP, sTMP))
e("s_add_u32 s%d, s%d, s%d" % (sOFF, sOFF, sTMP))
e("s_add_u32 s%d, s%d, %d" % (sOFF, sOFF, MB3))
e("v_lshlrev_b32 %s, 10, %s" % (v(vT1), v(vL)))
lab("L_h3retry")
e("buffer_load_dwordx4 %s, %s, %s, s%d offen sc1" % (v(vF, 4), v(vT1), srd(SRD_WS), sOFF))
e("s_waitcnt vmcnt(0)")
e("v_cmp_ne_u64 vcc, %s, %s" % (sp(sTAG), v(vF + 2, 2)))
e("s_cbranch_vccz L_h3ok")
spin_check("L_h3retry")
lab("L_h3ok")
stamp(10)
dpp_reduce("v_add_f32", [vF, vF + 1], ROW + XROW)
e("v_cvt_pk_bf16_f32 %s, %s, %s" % (v(vT0), v(vF), v(vF + 1)))
unpack(vF, vT0)
e("v_mul_f32 %s, %s, %s" % (v(vF), v(vF), v(vG)))
e("v_mul_f32 %s, %s, %s" % (v(vF + 1), v(vF + 1), v(vG + 1)))
e("v_cvt_pk_bf16_f32 %s, %s, %s" % (v(vT0), v(vF), v(vF + 1)))
unpack(vF, vT0)
e("v_add_f32 %s, %s, %s" % (v(vF), v(vF), v(vXO)))
e("v_add_f32 %s, %s, %s" % (v(vF + 1), v(vF + 1), v(vXO + 1)))
e("v_cvt_pk_bf16_f32 %s, %s, %s" % (v(vT0), v(vF), v(vF + 1)))
e("v_mov_b32 %s, 0" % v(vT1))
e("s_mov_b32 exec_lo, 0"); e("s_mov_b32 exec_hi, 0x80000000")
e("buffer_store_dword %s, %s, %s, s%d offen" % (v(vT0), v(vT1), srd(SRD_OUT), sP4))
e("s_cmp_lg_u32 s2, 0")
e("s_cbranch_scc1 L_noep")
e("buffer_store_dword %s, %s, %s, 0 offen offset:%d sc1" % (v(vTAG), v(vT1), srd(SRD_WS), EPOCH))
lab("L_noep")
e("s_mov_b64 exec, -1")
lab("L_fin")
if STAMPS:
    e("s_waitcnt vmcnt(0)")
    stamp(11)
    e("s_lshl_b32 s%d, s2, 2" % sTMP)
    e("s_add_u32 s%d, s%d, s%d" % (sTMP, sTMP, sWAVE))
    e("s_lshl_b32 s%d, s%d, 6" % (sTMP, sTMP))
    e("s_add_u32 s%d, s%d, %d" % (sTMP, sTMP, STAMP_OFF))
    e("v_mov_b32 %s, 0" % v(vT1))
    e("s_mov_b64 exec, 1")
    for i in range(4):
        e("buffer_store_dwordx4 %s, %s, %s, s%d offen offset:%d" % (v(vSTP + 4 * i, 4), v(vT1), srd(SRD_WS), sTMP, 16 * i))
lab("L_end")
e("s_endpgm")

hdr = open("cdna_kernels/%s.s.ref" % NAME).read().split("\n")
head = []
for ln in hdr:
    if ln.startswith("; @launch"):
        head.append("; @launch grid=(256,1,1) block=(256,1,1) lds=%d" % LDS_TOTAL)
    elif ln.startswith(";"):
        head.append(ln)
    else:
        break
out = "\n".join(head) + "\n"
out += '.amdgcn_target "amdgcn-amd-amdhsa--gfx950"\n.text\n.globl %s_kernel\n.p2align 8\n.type %s_kernel,@function\n%s_kernel:\n' % (NAME, NAME, NAME)
out += "\n".join(L) + "\n"
out += '''.section .rodata,"a"
.p2align 6
.amdhsa_kernel %s_kernel
  .amdhsa_next_free_vgpr %d
  .amdhsa_next_free_sgpr 102
  .amdhsa_accum_offset %d
  .amdhsa_group_segment_fixed_size 0
  .amdhsa_kernarg_size 104
  .amdhsa_user_sgpr_count 2
  .amdhsa_user_sgpr_kernarg_segment_ptr 1
  .amdhsa_system_sgpr_workgroup_id_x 1
  .amdhsa_float_denorm_mode_32 3
.end_amdhsa_kernel
''' % (NAME, NVGPR, NVGPR)
open(sys.argv[1], "w").write(out)
```

```python
import sys, struct
NAME = "recurrent_scan__sliding_block_cached__mixer_token_mlp__decode"
opts = dict(a.split("=") if "=" in a else (a, "1") for a in sys.argv[2:])
STAMPS = int(opts.get("stamps", 0))
NT = opts.get("nt", "0") == "1"

L = []
def e(s): L.append("    " + s)
def lab(s): L.append(s + ":")
def c(s): L.append("    ; " + s)
def f2u(x): return struct.unpack("<I", struct.pack("<f", x))[0]
def hx(x): return "0x%08x" % (x & 0xffffffff)

XN = 0
OX = 1024
ML = 1280
YB = 1408
CMB = 2048
KBUF = 12288
VBUF = KBUF + 32768
WQB = VBUF + 32768
WOB = WQB + 16384
LDS_TOTAL = WOB + 16384
EPOCH = 0
MB1 = 4096
MB2 = 65536
MB3 = MB2 + (1 << 20)
WS_USED = MB3 + (1 << 18)
STAMP_OFF = 32 << 20
WS_NREC = (33 << 20) if STAMPS else WS_USED

sWAVE, sG, sC, sP4, sPIV, sA, sB = 3, 4, 5, 6, 7, 8, 9
sTAG = 10
sSPIN = 12
sTMP = 13
sM0 = 14
sOFF = 15
sE, sXP = 42, 43
SRD_K, SRD_V, SRD_WQ, SRD_WO, SRD_W1, SRD_B1, SRD_W2, SRD_WS, SRD_X, SRD_OUT = 44, 48, 52, 56, 60, 64, 68, 72, 76, 80
sB2 = 84
sKOFF = 85
sMASKQ = 86
sMASK0 = 88
sODD = 90
sN1 = 92
sN2 = 94
sH0, sH1 = 96, 97
sST = 98
def srd(b): return "s[%d:%d]" % (b, b + 3)
def sp(b): return "s[%d:%d]" % (b, b + 1)
def v(a, n=1): return "v%d" % a if n == 1 else "v[%d:%d]" % (a, a + n - 1)

vTID, vL, vQ, vN = 0, 1, 2, 3
vKO = 4
vVO = 8
vT0, vT1 = 10, 11
vX = 12
vW1, vB1, vW2 = 16, 20, 24
vF = 28
vD = 36
vS1, vS2, vM, vR = 44, 45, 46, 47
vXN = 48
vTAG = 52
vACC = 54
vG = 56
vXO = 58
vQA = 60
vBF = 64
vO = 64
vLS = 96
vWOF = 100
vH2 = 116
vKF = 128
vVF = 160
vQG = 192
vSC = 224
vP = 232
vONE = 236
vSTP = 240
NVGPR = 256

def stamp(i):
    if not STAMPS: return
    e("s_waitcnt lgkmcnt(0)")
    e("s_memrealtime %s" % sp(sST))
    e("s_waitcnt lgkmcnt(0)")
    e("v_mov_b32 %s, s%d" % (v(vSTP + i), sST))

def dpp_reduce(op, regs, steps):
    for s in steps:
        pad = 2 - (len(regs) - 1)
        if pad > 0: e("s_nop %d" % (pad - 1))
        for r in regs:
            e("%s_dpp %s, %s, %s %s" % (op, v(r), v(r), v(r), s))
ROW = ["row_ror:8 row_mask:0xf bank_mask:0xf", "row_ror:4 row_mask:0xf bank_mask:0xf",
       "row_ror:2 row_mask:0xf bank_mask:0xf", "row_ror:1 row_mask:0xf bank_mask:0xf"]
XROW = ["row_bcast:15 row_mask:0xa bank_mask:0xf", "row_bcast:31 row_mask:0xc bank_mask:0xf"]

def unpack(dst, src):
    e("v_lshlrev_b32 %s, 16, %s" % (v(dst), v(src)))
    e("v_and_b32 %s, 0xffff0000, %s" % (v(dst + 1), v(src)))
def round1(r):
    e("v_cvt_pk_bf16_f32 %s, %s, %s" % (v(r), v(r), v(r)))
    e("v_and_b32 %s, 0xffff0000, %s" % (v(r), v(r)))

ntm = " nt" if NT else ""

def ln_finish(vmean, vvar):
    e("v_max_f32 %s, 0, %s" % (v(vvar), v(vvar)))
    round1(vmean)
    round1(vvar)
    e("v_add_f32 %s, %s, %s" % (v(vvar), hx(f2u(1e-5)), v(vvar)))
    round1(vvar)
    e("v_sqrt_f32 %s, %s" % (v(vvar), v(vvar)))
    e("s_nop 0")
    round1(vvar)
    e("v_rcp_f32 %s, %s" % (v(vvar), v(vvar)))
    e("s_nop 0")

def spin_check(retry_label):
    e("s_sub_u32 s%d, s%d, 1" % (sSPIN, sSPIN))
    e("s_cbranch_scc0 %s" % retry_label)
    e("s_branch L_end")

e("s_cmp_ge_u32 s2, 256")
e("s_cbranch_scc1 L_end")
e("s_load_dwordx16 s[16:31], s[0:1], 0")
e("s_load_dwordx8 s[32:39], s[0:1], 64")
e("s_load_dwordx2 s[40:41], s[0:1], 96")
if STAMPS:
    for i in range(16): e("v_mov_b32 %s, 0" % v(vSTP + i))
    e("s_memrealtime %s" % sp(sST))
e("v_and_b32 %s, 63, v0" % v(vL))
e("v_lshrrev_b32 %s, 6, v0" % v(vT0))
e("v_lshrrev_b32 %s, 4, %s" % (v(vQ), v(vL)))
e("v_readfirstlane_b32 s%d, %s" % (sWAVE, v(vT0)))
e("v_and_b32 %s, 15, %s" % (v(vN), v(vL)))
e("s_and_b32 s%d, s2, 7" % sG)
e("s_lshr_b32 s%d, s2, 3" % sC)
c("SRD constants")
for b, n in ((SRD_K, 1 << 26), (SRD_V, 1 << 26), (SRD_WQ, 1 << 22), (SRD_WO, 1 << 22), (SRD_W1, 3584), (SRD_B1, 3584),
             (SRD_W2, 3584), (SRD_WS, WS_NREC), (SRD_X, 1024), (SRD_OUT, 1024)):
    e("s_mov_b32 s%d, %s" % (b + 2, hx(n)))
    e("s_mov_b32 s%d, 0x00020000" % (b + 3))
c("lane masks")
for r, m in ((sMASKQ, 0x000F000F), (sMASK0, 0x00010001), (sODD, 0xFFFF0000), (sN1, 0xAAAAAAAA), (sN2, 0xCCCCCCCC)):
    e("s_mov_b32 s%d, %s" % (r, hx(m)))
    e("s_mov_b32 s%d, %s" % (r + 1, hx(m)))
e("s_mov_b32 s%d, 0x40000" % sSPIN)
c("p = g*32 + c ; byte offset 4p")
e("s_lshl_b32 s%d, s%d, 5" % (sP4, sG))
e("s_add_u32 s%d, s%d, s%d" % (sP4, sP4, sC))
e("s_lshl_b32 s%d, s%d, 2" % (sP4, sP4))
c("K/V byte offset of this wave's 32 keys")
e("s_lshl_b32 s%d, s%d, 23" % (sKOFF, sG))
e("s_lshl_b32 s%d, s%d, 15" % (sTMP, sC))
e("s_add_u32 s%d, s%d, s%d" % (sKOFF, sKOFF, sTMP))
e("s_lshl_b32 s%d, s%d, 13" % (sTMP, sWAVE))
e("s_add_u32 s%d, s%d, s%d" % (sKOFF, sKOFF, sTMP))
e("s_add_u32 s%d, s%d, %d" % (sKOFF, sKOFF, 7340032))
c("x offset: (l>>2)*64 + (l&3)*8")
e("v_lshrrev_b32 %s, 2, %s" % (v(vT0), v(vL)))
e("v_and_b32 %s, 3, %s" % (v(vT1), v(vL)))
e("v_lshlrev_b32 %s, 6, %s" % (v(vT0), v(vT0)))
e("v_lshl_add_u32 %s, %s, 3, %s" % (v(vT0), v(vT1), v(vT0)))
e("v_lshlrev_b32 %s, 4, v0" % v(vT1))
c("K dma source offsets")
e("v_lshlrev_b32 %s, 2, %s" % (v(vKO), v(vQ)))
e("v_xor_b32 %s, %s, %s" % (v(vKO), v(vKO), v(vN)))
e("v_lshlrev_b32 %s, 4, %s" % (v(vKO), v(vKO)))
e("v_lshl_add_u32 %s, %s, 8, %s" % (v(vKO), v(vQ), v(vKO)))
for i in range(1, 4): e("v_xor_b32 %s, %d, %s" % (v(vKO + i), i << 4, v(vKO)))
c("V dma source offsets")
e("v_lshlrev_b32 %s, 1, %s" % (v(vVO), v(vQ)))
e("v_xor_b32 %s, %s, %s" % (v(vVO), v(vVO), v(vN)))
e("v_lshlrev_b32 %s, 4, %s" % (v(vVO), v(vVO)))
e("v_lshl_add_u32 %s, %s, 8, %s" % (v(vVO), v(vQ), v(vVO)))
e("v_xor_b32 %s, 0x80, %s" % (v(vVO + 1), v(vVO)))
c("wq dma source offset: (l>>1)*8192 + (l&1)*16")
e("v_lshrrev_b32 %s, 1, %s" % (v(vD), v(vL)))
e("v_and_b32 %s, 1, %s" % (v(vD + 1), v(vL)))
e("v_lshlrev_b32 %s, 13, %s" % (v(vD), v(vD)))
e("v_lshl_add_u32 %s, %s, 4, %s" % (v(vD), v(vD + 1), v(vD)))
e("s_lshl_b32 s%d, s%d, 10" % (sOFF, sG))
e("s_lshl_b32 s%d, s%d, 5" % (sTMP, sC))
e("s_add_u32 s%d, s%d, s%d" % (sOFF, sOFF, sTMP))
e("s_waitcnt lgkmcnt(0)")
if STAMPS: e("v_mov_b32 %s, s%d" % (v(vSTP), sST))
stamp(12)
for b, p in ((SRD_X, 16), (SRD_WQ, 22), (SRD_W1, 28), (SRD_B1, 30), (SRD_W2, 32)):
    e("s_mov_b64 %s, %s" % (sp(b), sp(p)))
e("buffer_load_dwordx2 %s, %s, %s, 0 offen" % (v(vX, 2), v(vT0), srd(SRD_X)))
e("buffer_load_dwordx2 %s, %s, %s, 0 offen offset:32" % (v(vX + 2, 2), v(vT0), srd(SRD_X)))
e("s_load_dword s%d, s[40:41], %d" % (sE, EPOCH))
e("s_load_dword s%d, s[16:17], s%d" % (sXP, sP4))
e("s_load_dword s%d, s[34:35], 0" % sB2)
e("s_cmp_lg_u32 s%d, 0" % sWAVE)
e("s_cbranch_scc1 L_skipwq")
for i in range(16):
    e("s_mov_b32 m0, %d" % (WQB + i * 1024))
    if i: e("s_add_u32 s%d, s%d, %d" % (sOFF, sOFF, 262144))
    else: e("s_nop 0")
    e("buffer_load_dwordx4 %s, %s, s%d offen%s lds" % (v(vD), srd(SRD_WQ), sOFF, ntm))
lab("L_skipwq")
e("buffer_load_dwordx4 %s, %s, %s, 0 offen" % (v(vW1, 4), v(vT1), srd(SRD_W1)))
e("buffer_load_dwordx4 %s, %s, %s, 0 offen" % (v(vB1, 4), v(vT1), srd(SRD_B1)))
e("buffer_load_dwordx4 %s, %s, %s, 0 offen" % (v(vW2, 4), v(vT1), srd(SRD_W2)))
for b, p in ((SRD_K, 18), (SRD_V, 20), (SRD_WO, 24), (SRD_WS, 40), (SRD_OUT, 36)):
    e("s_mov_b64 %s, %s" % (sp(b), sp(p)))
e("s_lshl_b32 s%d, s%d, 13" % (sM0, sWAVE))
e("s_add_u32 s%d, s%d, 4096" % (sOFF, sKOFF))
stamp(13)
e("s_barrier")
stamp(14)
for (base, sr, nvar, vo) in ((KBUF, SRD_K, 4, vKO), (VBUF, SRD_V, 2, vVO)):
    for half in range(2):
        e("s_add_u32 m0, s%d, %d" % (sM0, base + half * 4096))
        e("s_nop 0")
        for i in range(4):
            e("buffer_load_dwordx4 %s, %s, s%d offen offset:%d%s lds" % (v(vo + (i % nvar)), srd(sr), sOFF if half else sKOFF, i * 1024, ntm))
c("---- LN1 ----")
stamp(15)
e("s_cmp_lg_u32 s%d, 0" % sWAVE)
e("s_cbranch_scc1 L_w123")
e("s_waitcnt vmcnt(35)")
e("s_branch L_ln1")
lab("L_w123")
e("s_waitcnt vmcnt(19)")
lab("L_ln1")
stamp(1)
for i in range(4): unpack(vF + 2 * i, vX + i)
e("v_readfirstlane_b32 s%d, %s" % (sPIV, v(vF)))
e("s_nop 1")
for i in range(8): e("v_subrev_f32 %s, s%d, %s" % (v(vD + i), sPIV, v(vF + i)))
e("v_add_f32 %s, %s, %s" % (v(vS1), v(vD), v(vD + 1)))
e("v_mul_f32 %s, %s, %s" % (v(vS2), v(vD), v(vD)))
e("v_fmac_f32 %s, %s, %s" % (v(vS2), v(vD + 1), v(vD + 1)))
for i in range(2, 8):
    e("v_add_f32 %s, %s, %s" % (v(vS1), v(vS1), v(vD + i)))
    e("v_fmac_f32 %s, %s, %s" % (v(vS2), v(vD + i), v(vD + i)))
dpp_reduce("v_add_f32", [vS1, vS2], ROW + XROW)
e("s_nop 0")
e("v_readlane_b32 s%d, %s, 63" % (sA, v(vS1)))
e("v_readlane_b32 s%d, %s, 63" % (sB, v(vS2)))
e("v_mov_b32 %s, %s" % (v(vT0), hx(f2u(1.0 / 512))))
e("s_nop 0")
e("v_mul_f32 %s, s%d, %s" % (v(vM), sA, v(vT0)))
e("v_mul_f32 %s, s%d, %s" % (v(vR), sB, v(vT0)))
e("v_fma_f32 %s, -%s, %s, %s" % (v(vR), v(vM), v(vM), v(vR)))
e("v_add_f32 %s, s%d, %s" % (v(vM), sPIV, v(vM)))
ln_finish(vM, vR)
for i in range(8): e("v_sub_f32 %s, %s, %s" % (v(vD + i), v(vF + i), v(vM)))
for i in range(4): e("v_cvt_pk_bf16_f32 %s, %s, %s" % (v(vXN + i), v(vD + 2 * i), v(vD + 2 * i + 1)))
for i in range(4): unpack(vD + 2 * i, vXN + i)
for i in range(8): e("v_mul_f32 %s, %s, %s" % (v(vD + i), v(vD + i), v(vR)))
for i in range(4): e("v_cvt_pk_bf16_f32 %s, %s, %s" % (v(vXN + i), v(vD + 2 * i), v(vD + 2 * i + 1)))
c("tags")
e("s_waitcnt lgkmcnt(0)")
e("s_mul_i32 s%d, s%d, 0x9E3779B1" % (sTAG, sE))
e("s_add_u32 s%d, s%d, 0x632BE5AB" % (sTAG, sTAG))
e("s_xor_b32 s%d, s%d, 0x5BD1E995" % (sTAG + 1, sTAG))
e("v_mov_b32 %s, s%d" % (v(vTAG), sTAG))
e("v_mov_b32 %s, s%d" % (v(vTAG + 1), sTAG + 1))
e("s_cmp_lg_u32 s%d, 0" % sWAVE)
e("s_cbranch_scc1 L_ln2")
c("---- wave 0: q projection for 16 columns ----")
e("v_lshlrev_b32 %s, 4, %s" % (v(vT0), v(vL)))
e("ds_write_b128 %s, %s offset:%d" % (v(vT0), v(vXN, 4), XN))
e("v_lshlrev_b32 %s, 4, %s" % (v(vT0), v(vQ)))
e("v_lshlrev_b32 %s, 3, %s" % (v(vT1), v(vL)))
e("v_add_u32 %s, %d, %s" % (v(vT1), WQB, v(vT1)))
e("s_waitcnt lgkmcnt(0)")
for t in range(16):
    e("ds_read_b128 %s, %s offset:%d" % (v(vBF + 4 * t, 4), v(vT0), XN + 64 * t))
c("publish address")
e("s_lshl_b32 s%d, s%d, 4" % (sTMP, sP4))
e("s_add_u32 s%d, s%d, %d" % (sTMP, sTMP, MB1))
e("v_add_u32 %s, s%d, %s" % (v(vT0), sTMP, v(vT0)))
for t in range(16):
    e("s_waitcnt vmcnt(%d)" % (19 + 15 - t))
    e("ds_read_b64_tr_b16 %s, %s offset:%d" % (v(vKF + 4 * t, 2), v(vT1), 1024 * t))
    e("ds_read_b64_tr_b16 %s, %s offset:%d" % (v(vKF + 4 * t + 2, 2), v(vT1), 1024 * t + 512))
    if t:
        e("s_waitcnt lgkmcnt(2)")
        e("v_mfma_f32_16x16x32_bf16 %s, %s, %s, %s" % (v(vQA, 4), v(vKF + 4 * (t - 1), 4), v(vBF + 4 * (t - 1), 4), v(vQA, 4) if t > 1 else "0"))
e("s_waitcnt lgkmcnt(0)")
e("v_mfma_f32_16x16x32_bf16 %s, %s, %s, %s" % (v(vQA, 4), v(vKF + 60, 4), v(vBF + 60, 4), v(vQA, 4)))
e("s_nop 7")
e("v_cvt_pk_bf16_f32 %s, %s, %s" % (v(vD), v(vQA), v(vQA + 1)))
e("v_cvt_pk_bf16_f32 %s, %s, %s" % (v(vD + 1), v(vQA + 2), v(vQA + 3)))
e("v_cndmask_b32 %s, %s, %s, %s" % (v(vQA), v(vTAG), v(vD), sp(sODD)))
e("v_cndmask_b32 %s, %s, %s, %s" % (v(vQA + 1), v(vTAG + 1), v(vD + 1), sp(sODD)))
e("v_cndmask_b32 %s, %s, %s, %s" % (v(vQA + 2), v(vD), v(vTAG), sp(sODD)))
e("v_cndmask_b32 %s, %s, %s, %s" % (v(vQA + 3), v(vD + 1), v(vTAG + 1), sp(sODD)))
e("s_mov_b64 exec, %s" % sp(sMASK0))
e("buffer_store_dwordx4 %s, %s, %s, 0 offen sc1" % (v(vQA, 4), v(vT0), srd(SRD_WS)))
e("s_mov_b64 exec, -1")
stamp(2)
lab("L_ln2")
c("---- LN2 statistics (on xn) ----")
for i in range(4): unpack(vD + 2 * i, vXN + i)
e("v_add_f32 %s, %s, %s" % (v(vS1), v(vD), v(vD + 1)))
e("v_mul_f32 %s, %s, %s" % (v(vS2), v(vD), v(vD)))
e("v_fmac_f32 %s, %s, %s" % (v(vS2), v(vD + 1), v(vD + 1)))
for i in range(2, 8):
    e("v_add_f32 %s, %s, %s" % (v(vS1), v(vS1), v(vD + i)))
    e("v_fmac_f32 %s, %s, %s" % (v(vS2), v(vD + i), v(vD + i)))
dpp_reduce("v_add_f32", [vS1, vS2], ROW + XROW)
e("s_nop 0")
e("v_readlane_b32 s%d, %s, 63" % (sA, v(vS1)))
e("v_readlane_b32 s%d, %s, 63" % (sB, v(vS2)))
c("own two columns: x -> xn")
e("v_mov_b32 %s, s%d" % (v(vT0), sXP))
unpack(vXO, vT0)
e("v_sub_f32 %s, %s, %s" % (v(vD), v(vXO), v(vM)))
e("v_sub_f32 %s, %s, %s" % (v(vD + 1), v(vXO + 1), v(vM)))
e("v_cvt_pk_bf16_f32 %s, %s, %s" % (v(vT0), v(vD), v(vD + 1)))
unpack(vD, vT0)
e("v_mul_f32 %s, %s, %s" % (v(vD), v(vD), v(vR)))
e("v_mul_f32 %s, %s, %s" % (v(vD + 1), v(vD + 1), v(vR)))
e("v_cvt_pk_bf16_f32 %s, %s, %s" % (v(vT0), v(vD), v(vD + 1)))
unpack(vD, vT0)
e("v_mov_b32 %s, %s" % (v(vT0), hx(f2u(1.0 / 512))))
e("v_mul_f32 %s, s%d, %s" % (v(vM), sA, v(vT0)))
e("v_mul_f32 %s, s%d, %s" % (v(vR), sB, v(vT0)))
e("v_fma_f32 %s, -%s, %s, %s" % (v(vR), v(vM), v(vM), v(vR)))
ln_finish(vM, vR)
e("v_sub_f32 %s, %s, %s" % (v(vD), v(vD), v(vM)))
e("v_sub_f32 %s, %s, %s" % (v(vD + 1), v(vD + 1), v(vM)))
e("v_cvt_pk_bf16_f32 %s, %s, %s" % (v(vT0), v(vD), v(vD + 1)))
unpack(vD, vT0)
e("v_mul_f32 %s, %s, %s" % (v(vD), v(vD), v(vR)))
e("v_mul_f32 %s, %s, %s" % (v(vD + 1), v(vD + 1), v(vR)))
e("v_cvt_pk_bf16_f32 %s, %s, %s" % (v(vT0), v(vD), v(vD + 1)))
unpack(vD, vT0)
e("s_nop 0")
e("v_readfirstlane_b32 s%d, %s" % (sH0, v(vD)))
e("v_readfirstlane_b32 s%d, %s" % (sH1, v(vD + 1)))
c("---- B branch: 8 features x 2 columns per thread ----")
e("s_waitcnt vmcnt(16)")
import math
C1 = -2.0 * math.log2(math.e) * math.sqrt(2.0 / math.pi)
C2 = C1 * 0.044715
e("v_mov_b32 %s, 0" % v(vACC))
e("v_mov_b32 %s, 0" % v(vACC + 1))
e("v_mov_b32 %s, %s" % (v(vS1), hx(f2u(C1))))
e("s_mov_b32 s%d, %s" % (sTMP, hx(f2u(C2))))
for k in range(4):
    unpack(vF, vW1 + k)
    unpack(vF + 2, vB1 + k)
    U = vD
    T = vD + 4
    for col, sh in ((0, sH0), (1, sH1)):
        e("v_mul_f32 %s, s%d, %s" % (v(U + 2 * col), sh, v(vF)))
        e("v_mul_f32 %s, s%d, %s" % (v(U + 2 * col + 1), sh, v(vF + 1)))
    for col in range(2): e("v_cvt_pk_bf16_f32 %s, %s, %s" % (v(T + col), v(U + 2 * col), v(U + 2 * col + 1)))
    for col in range(2): unpack(U + 2 * col, T + col)
    for col in range(2):
        e("v_add_f32 %s, %s, %s" % (v(U + 2 * col), v(U + 2 * col), v(vF + 2)))
        e("v_add_f32 %s, %s, %s" % (v(U + 2 * col + 1), v(U + 2 * col + 1), v(vF + 3)))
    for col in range(2): e("v_cvt_pk_bf16_f32 %s, %s, %s" % (v(T + col), v(U + 2 * col), v(U + 2 * col + 1)))
    for col in range(2): unpack(U + 2 * col, T + col)
    for i in range(4): e("v_mul_f32 %s, %s, %s" % (v(T + i), v(U + i), v(U + i)))
    for i in range(4): e("v_fma_f32 %s, %s, s%d, %s" % (v(T + i), v(T + i), sTMP, v(vS1)))
    for i in range(4): e("v_mul_f32 %s, %s, %s" % (v(T + i), v(T + i), v(U + i)))
    for i in range(4): e("v_exp_f32 %s, %s" % (v(T + i), v(T + i)))
    for i in range(4): e("v_add_f32 %s, 1.0, %s" % (v(T + i), v(T + i)))
    for i in range(4): e("v_rcp_f32 %s, %s" % (v(T + i), v(T + i)))
    for i in range(4): e("v_mul_f32 %s, %s, %s" % (v(T + i), v(T + i), v(U + i)))
    for col in range(2): e("v_cvt_pk_bf16_f32 %s, %s, %s" % (v(U + col), v(T + 2 * col), v(T + 2 * col + 1)))
    for col in range(2): e("v_dot2c_f32_bf16 %s, %s, %s" % (v(vACC + col), v(U + col), v(vW2 + k)))
e("s_nop 2")
dpp_reduce("v_add_f32", [vACC, vACC + 1], ROW + XROW)
e("s_lshl_b32 s%d, s%d, 3" % (sTMP, sWAVE))
e("v_mov_b32 %s, s%d" % (v(vT0), sTMP))
e("s_mov_b32 exec_lo, 0"); e("s_mov_b32 exec_hi, 0x80000000")
e("ds_write_b64 %s, %s offset:%d" % (v(vT0), v(vACC, 2), YB))
e("s_mov_b64 exec, -1")
stamp(3)
c("---- address setup for fragment reads ----")
e("v_and_b32 %s, 3, %s" % (v(vT0), v(vN)))
e("v_xor_b32 %s, %s, %s" % (v(vT0), v(vT0), v(vQ)))
e("v_lshrrev_b32 %s, 2, %s" % (v(vT1), v(vN)))
e("v_lshl_add_u32 %s, %s, 2, %s" % (v(vT0), v(vT0), v(vT1)))
e("v_lshlrev_b32 %s, 4, %s" % (v(vT0), v(vT0)))
e("v_lshl_add_u32 %s, %s, 8, %s" % (v(vT0), v(vN), v(vT0)))
e("s_add_u32 s%d, s%d, %d" % (sTMP, sM0, KBUF))
e("v_add_u32 %s, s%d, %s" % (v(vKO), sTMP, v(vT0)))
for t in range(1, 4): e("v_xor_b32 %s, %d, %s" % (v(vKO + t), t << 4, v(vKO)))
e("v_lshl_add_u32 %s, %s, 2, %s" % (v(vT0), v(vQ), v(vT1)))
e("v_and_b32 %s, 7, %s" % (v(vT1), v(vT0)))
e("v_lshlrev_b32 %s, 8, %s" % (v(vT0), v(vT0)))
e("v_lshl_add_u32 %s, %s, 5, %s" % (v(vT0), v(vT1), v(vT0)))
e("v_and_b32 %s, 3, %s" % (v(vT1), v(vN)))
e("v_lshl_add_u32 %s, %s, 3, %s" % (v(vT0), v(vT1), v(vT0)))
e("s_add_u32 s%d, s%d, %d" % (sTMP, sM0, VBUF))
e("v_add_u32 %s, s%d, %s" % (v(vF), sTMP, v(vT0)))
for db in range(1, 8): e("v_xor_b32 %s, %d, %s" % (v(vF + db), db << 5, v(vF)))
e("v_lshlrev_b32 %s, 9, %s" % (v(vT0), v(vN)))
e("v_lshl_add_u32 %s, %s, 7, %s" % (v(vT0), v(vQ), v(vT0)))
e("s_lshl_b32 s%d, s%d, 11" % (sTMP, sG))
e("s_add_u32 s%d, s%d, %d" % (sTMP, sTMP, MB1))
e("v_add_u32 %s, s%d, %s" % (v(vVO), sTMP, v(vT0)))
e("v_mov_b32 %s, 0x3f803f80" % v(vONE))
e("v_mov_b32 %s, 0x3f803f80" % v(vONE + 1))
e("v_mov_b32 %s, 0x3f803f80" % v(vONE + 2))
e("v_mov_b32 %s, 0x3f803f80" % v(vONE + 3))
e("v_lshrrev_b32 %s, 2, %s" % (v(vT0), v(vL)))
e("v_and_b32 %s, 3, %s" % (v(vT1), v(vL)))
e("v_lshlrev_b32 %s, 10, %s" % (v(vT0), v(vT0)))
e("v_lshl_add_u32 %s, %s, 4, %s" % (v(vVO + 1), v(vT1), v(vT0)))
e("s_lshl_b32 s%d, s%d, 19" % (sOFF, sG))
e("s_lshr_b32 s%d, s%d, 2" % (sTMP, sC))
e("s_lshl_b32 s%d, s%d, 16" % (sTMP, sTMP))
e("s_add_u32 s%d, s%d, s%d" % (sOFF, sOFF, sTMP))
e("s_and_b32 s%d, s%d, 3" % (sTMP, sC))
e("s_lshl_b32 s%d, s%d, 8" % (sTMP, sTMP))
e("s_add_u32 s%d, s%d, s%d" % (sOFF, sOFF, sTMP))
e("s_lshl_b32 s%d, s%d, 6" % (sTMP, sWAVE))
e("s_add_u32 s%d, s%d, s%d" % (sOFF, sOFF, sTMP))
c("---- K fragments ----")
e("s_waitcnt vmcnt(8)")
stamp(4)
for T in range(2):
    for t in range(4):
        e("ds_read_b128 %s, %s offset:%d" % (v(vKF + 16 * T + 4 * t, 4), v(vKO + t), 4096 * T))
e("s_mov_b64 exec, %s" % sp(sMASKQ))
for i in range(8):
    e("buffer_load_dwordx4 %s, %s, %s, 0 offen offset:%d sc1" % (v(vQG + 4 * i, 4), v(vVO), srd(SRD_WS), 16 * i))
e("s_mov_b64 exec, -1")
e("s_waitcnt vmcnt(8)")
stamp(5)
for db in range(8):
    for h in range(2):
        e("ds_read_b64_tr_b16 %s, %s offset:%d" % (v(vVF + 4 * db + 2 * h, 2), v(vF + db), 4096 * h))
e("s_branch L_qchk")
lab("L_qretry")
e("s_mov_b64 exec, %s" % sp(sMASKQ))
for i in range(8):
    e("buffer_load_dwordx4 %s, %s, %s, 0 offen offset:%d sc1" % (v(vQG + 4 * i, 4), v(vVO), srd(SRD_WS), 16 * i))
lab("L_qchk")
e("s_mov_b64 exec, %s" % sp(sMASKQ))
e("s_waitcnt vmcnt(0)")
for i in range(8):
    e("v_cmpx_eq_u64 vcc, %s, %s" % (sp(sTAG), v(vQG + 4 * i + (0 if i % 2 == 0 else 2), 2)))
e("s_cmp_eq_u64 exec, %s" % sp(sMASKQ))
e("s_cbranch_scc1 L_qok")
spin_check("L_qretry")
lab("L_qok")
e("s_mov_b64 exec, -1")
stamp(6)
c("wo slab -> LDS")
e("s_lshl_b32 s%d, s%d, 12" % (sTMP, sWAVE))
for i in range(4):
    e("s_add_u32 m0, s%d, %d" % (sTMP, WOB + 1024 * i))
    if i: e("s_add_u32 s%d, s%d, 16384" % (sOFF, sOFF))
    else: e("s_nop 0")
    e("buffer_load_dwordx4 %s, %s, s%d offen%s lds" % (v(vVO + 1), srd(SRD_WO), sOFF, ntm))
e("s_waitcnt lgkmcnt(0)")
for t in range(4):
    for T in range(2):
        e("v_mfma_f32_16x16x32_bf16 %s, %s, %s, %s" % (v(vSC + 4 * T, 4), v(vKF + 16 * T + 4 * t, 4), v(vQG + 8 * t + 2, 4), v(vSC + 4 * T, 4) if t else "0"))
e("s_mov_b32 s%d, %s" % (sA, hx(f2u(128 ** -0.5))))
e("s_mov_b32 s%d, %s" % (sB, hx(f2u(math.log2(math.e)))))
e("s_nop 5")
for i in range(4): e("v_cvt_pk_bf16_f32 %s, %s, %s" % (v(vP + i), v(vSC + 2 * i), v(vSC + 2 * i + 1)))
for i in range(4): unpack(vSC + 2 * i, vP + i)
for i in range(8): e("v_mul_f32 %s, s%d, %s" % (v(vSC + i), sA, v(vSC + i)))
for i in range(4): e("v_cvt_pk_bf16_f32 %s, %s, %s" % (v(vP + i), v(vSC + 2 * i), v(vSC + 2 * i + 1)))
for i in range(4): unpack(vSC + 2 * i, vP + i)
e("v_max3_f32 %s, %s, %s, %s" % (v(vM), v(vSC), v(vSC + 1), v(vSC + 2)))
e("v_max3_f32 %s, %s, %s, %s" % (v(vR), v(vSC + 3), v(vSC + 4), v(vSC + 5)))
e("v_max3_f32 %s, %s, %s, %s" % (v(vM), v(vM), v(vSC + 6), v(vSC + 7)))
e("v_max_f32 %s, %s, %s" % (v(vM), v(vM), v(vR)))
e("v_mov_b32 %s, %s" % (v(vR), v(vM)))
e("s_nop 1")
e("v_permlane32_swap_b32 %s, %s" % (v(vM), v(vR)))
e("v_max_f32 %s, %s, %s" % (v(vM), v(vM), v(vR)))
e("v_mov_b32 %s, %s" % (v(vR), v(vM)))
e("s_nop 1")
e("v_permlane16_swap_b32 %s, %s" % (v(vM), v(vR)))
e("v_max_f32 %s, %s, %s" % (v(vM), v(vM), v(vR)))
e("v_mul_f32 %s, s%d, %s" % (v(vM), sB, v(vM)))
for i in range(8): e("v_fma_f32 %s, %s, s%d, -%s" % (v(vSC + i), v(vSC + i), sB, v(vM)))
for i in range(8): e("v_exp_f32 %s, %s" % (v(vSC + i), v(vSC + i)))
e("s_nop 0")
for i in range(4): e("v_cvt_pk_bf16_f32 %s, %s, %s" % (v(vP + i), v(vSC + 2 * i), v(vSC + 2 * i + 1)))
c("combine write addresses")
e("v_mul_u32_u24 %s, 576, %s" % (v(vT0), v(vN)))
e("s_mul_i32 s%d, s%d, 2304" % (sTMP, sWAVE))
e("v_mfma_f32_16x16x32_bf16 %s, %s, %s, 0" % (v(vLS, 4), v(vONE, 4), v(vP, 4)))
for db in range(8):
    e("v_mfma_f32_16x16x32_bf16 %s, %s, %s, 0" % (v(vO + 4 * db, 4), v(vVF + 4 * db, 4), v(vP, 4)))
e("v_lshl_add_u32 %s, %s, 4, %s" % (v(vT0), v(vQ), v(vT0)))
e("v_add_u32 %s, s%d, %s" % (v(vT0), sTMP, v(vT0)))
e("s_lshl_b32 s%d, s%d, 2" % (sTMP, sWAVE))
e("v_lshl_add_u32 %s, %s, 4, s%d" % (v(vT1), v(vN), sTMP))
e("s_mov_b64 exec, %s" % sp(sMASKQ))
e("v_add_u32 %s, %d, %s" % (v(vT1), ML, v(vT1)))
e("ds_write2_b32 %s, %s, %s offset0:0 offset1:16" % (v(vT1), v(vM), v(vLS)))
for db in range(8):
    if db == 7: e("s_nop 0")
    e("ds_write_b128 %s, %s offset:%d" % (v(vT0), v(vO + 4 * db, 4), CMB + 64 * db))
e("s_mov_b64 exec, -1")
c("combine read addresses (thread: head = wave, dims 2l,2l+1)")
e("s_mul_i32 s%d, s%d, 576" % (sTMP, sWAVE))
e("v_lshl_add_u32 %s, %s, 3, s%d" % (v(vT0), v(vL), sTMP))
e("s_lshl_b32 s%d, s%d, 4" % (sTMP, sWAVE))
e("v_mov_b32 %s, s%d" % (v(vT1), sTMP))
e("v_lshrrev_b32 %s, 3, %s" % (v(vKO), v(vL)))
e("v_and_b32 %s, 7, %s" % (v(vKO + 1), v(vL)))
e("v_lshlrev_b32 %s, 12, %s" % (v(vKO), v(vKO)))
e("v_lshl_add_u32 %s, %s, 4, %s" % (v(vKO), v(vKO + 1), v(vKO)))
e("s_lshl_b32 s%d, s%d, 17" % (sOFF, sG))
e("s_lshl_b32 s%d, s%d, 15" % (sTMP, sWAVE))
e("s_add_u32 s%d, s%d, s%d" % (sOFF, sOFF, sTMP))
e("s_lshl_b32 s%d, s%d, 7" % (sTMP, sC))
e("s_add_u32 s%d, s%d, s%d" % (sOFF, sOFF, sTMP))
e("s_add_u32 s%d, s%d, %d" % (sOFF, sOFF, MB2))
e("s_waitcnt lgkmcnt(0)")
e("s_barrier")
e("ds_read_b128 %s, %s offset:%d" % (v(vF, 4), v(vT1), ML))
e("ds_read_b128 %s, %s offset:%d" % (v(vF + 4, 4), v(vT1), ML + 64))
for w in range(4):
    e("ds_read_b64 %s, %s offset:%d" % (v(vD + 2 * w, 2), v(vT0), CMB + 2304 * w))
e("s_waitcnt lgkmcnt(5)")
e("v_max3_f32 %s, %s, %s, %s" % (v(vM), v(vF), v(vF + 1), v(vF + 2)))
e("v_max_f32 %s, %s, %s" % (v(vM), v(vM), v(vF + 3)))
for w in range(4): e("v_sub_f32 %s, %s, %s" % (v(vF + w), v(vF + w), v(vM)))
for w in range(4): e("v_exp_f32 %s, %s" % (v(vF + w), v(vF + w)))
e("s_waitcnt lgkmcnt(4)")
e("v_mul_f32 %s, %s, %s" % (v(vR), v(vF), v(vF + 4)))
for w in range(1, 4): e("v_fmac_f32 %s, %s, %s" % (v(vR), v(vF + w), v(vF + 4 + w)))
e("v_rcp_f32 %s, %s" % (v(vS1), v(vR)))
e("v_log_f32 %s, %s" % (v(vS2), v(vR)))
e("s_waitcnt lgkmcnt(0)")
e("v_mul_f32 %s, %s, %s" % (v(vQA), v(vF), v(vD)))
e("v_mul_f32 %s, %s, %s" % (v(vQA + 1), v(vF), v(vD + 1)))
for w in range(1, 4):
    e("v_fmac_f32 %s, %s, %s" % (v(vQA), v(vF + w), v(vD + 2 * w)))
    e("v_fmac_f32 %s, %s, %s" % (v(vQA + 1), v(vF + w), v(vD + 2 * w + 1)))
e("v_mul_f32 %s, %s, %s" % (v(vQA), v(vQA), v(vS1)))
e("v_mul_f32 %s, %s, %s" % (v(vQA + 1), v(vQA + 1), v(vS1)))
e("v_add_f32 %s, %s, %s" % (v(vQA + 2), v(vM), v(vS2)))
e("v_mov_b32 %s, %s" % (v(vQA + 3), v(vTAG)))
e("buffer_store_dwordx4 %s, %s, %s, s%d offen sc1" % (v(vQA, 4), v(vKO), srd(SRD_WS), sOFF))
stamp(7)
c("---- hop 2 gather: region ((g*4+hl)*8 + 4*dhalf + w) = g*32 + (c>>2)*4 + w ----")
e("s_lshr_b32 s%d, s%d, 2" % (sTMP, sC))
e("s_lshl_b32 s%d, s%d, 2" % (sTMP, sTMP))
e("s_add_u32 s%d, s%d, s%d" % (sTMP, sTMP, sWAVE))
e("s_lshl_b32 s%d, s%d, 12" % (sTMP, sTMP))
e("s_lshl_b32 s%d, s%d, 17" % (sOFF, sG))
e("s_add_u32 s%d, s%d, s%d" % (sOFF, sOFF, sTMP))
e("s_add_u32 s%d, s%d, %d" % (sOFF, sOFF, MB2))
e("v_lshlrev_b32 %s, 7, %s" % (v(vKO + 1), v(vN)))
e("v_lshl_add_u32 %s, %s, 5, %s" % (v(vKO + 1), v(vQ), v(vKO + 1)))
G2 = vKF
offs2 = [0, 16, 2048, 2064]
for i in range(4):
    e("buffer_load_dwordx4 %s, %s, %s, s%d offen offset:%d sc1" % (v(G2 + 4 * i, 4), v(vKO + 1), srd(SRD_WS), sOFF, offs2[i]))
c("g for own two columns (uniform)")
e("v_mov_b32 %s, 0" % v(vT1))
e("ds_read_b128 %s, %s offset:%d" % (v(vF, 4), v(vT1), YB))
e("ds_read_b128 %s, %s offset:%d" % (v(vF + 4, 4), v(vT1), YB + 16))
e("s_lshl_b32 s%d, s%d, 16" % (sB2, sB2))
e("s_waitcnt lgkmcnt(0)")
e("v_add_f32 %s, %s, %s" % (v(vG), v(vF), v(vF + 2)))
e("v_add_f32 %s, %s, %s" % (v(vG + 1), v(vF + 1), v(vF + 3)))
e("v_add_f32 %s, %s, %s" % (v(vG), v(vG), v(vF + 4)))
e("v_add_f32 %s, %s, %s" % (v(vG + 1), v(vG + 1), v(vF + 5)))
e("v_add_f32 %s, %s, %s" % (v(vG), v(vG), v(vF + 6)))
e("v_add_f32 %s, %s, %s" % (v(vG + 1), v(vG + 1), v(vF + 7)))
e("v_cvt_pk_bf16_f32 %s, %s, %s" % (v(vT1), v(vG), v(vG + 1)))
unpack(vG, vT1)
e("v_add_f32 %s, s%d, %s" % (v(vG), sB2, v(vG)))
e("v_add_f32 %s, s%d, %s" % (v(vG + 1), sB2, v(vG + 1)))
e("v_cvt_pk_bf16_f32 %s, %s, %s" % (v(vT1), v(vG), v(vG + 1)))
unpack(vG, vT1)
e("v_mul_f32 %s, %s, %s" % (v(vF), hx(f2u(-math.log2(math.e))), v(vG)))
e("v_mul_f32 %s, %s, %s" % (v(vF + 1), hx(f2u(-math.log2(math.e))), v(vG + 1)))
e("v_exp_f32 %s, %s" % (v(vF), v(vF)))
e("v_exp_f32 %s, %s" % (v(vF + 1), v(vF + 1)))
e("s_nop 0")
e("v_add_f32 %s, 1.0, %s" % (v(vF), v(vF)))
e("v_add_f32 %s, 1.0, %s" % (v(vF + 1), v(vF + 1)))
e("v_rcp_f32 %s, %s" % (v(vF), v(vF)))
e("v_rcp_f32 %s, %s" % (v(vF + 1), v(vF + 1)))
e("s_nop 0")
e("v_mul_f32 %s, %s, %s" % (v(vG), v(vG), v(vF)))
e("v_mul_f32 %s, %s, %s" % (v(vG + 1), v(vG + 1), v(vF + 1)))
e("v_cvt_pk_bf16_f32 %s, %s, %s" % (v(vT1), v(vG), v(vG + 1)))
unpack(vG, vT1)
c("wo fragments: addr = WOB + w*4096 + row*64 + b*32 + cc*8 ; row = 4q'+(n>>2) (+16h +32s)")
e("v_lshrrev_b32 %s, 2, %s" % (v(vT0), v(vL)))
e("v_and_b32 %s, 3, %s" % (v(vT1), v(vL)))
e("v_lshlrev_b32 %s, 6, %s" % (v(vT0), v(vT0)))
e("v_lshl_add_u32 %s, %s, 3, %s" % (v(vT0), v(vT1), v(vT0)))
e("s_lshl_b32 s%d, s%d, 12" % (sTMP, sWAVE))
e("s_add_u32 s%d, s%d, %d" % (sTMP, sTMP, WOB))
e("v_add_u32 %s, s%d, %s" % (v(vT0), sTMP, v(vT0)))
c("OX write address: ((w>>1)*4+q')*16 + (w&1)*8 ; read address q'*16")
e("s_lshr_b32 s%d, s%d, 1" % (sTMP, sWAVE))
e("s_lshl_b32 s%d, s%d, 6" % (sTMP, sTMP))
e("s_and_b32 s%d, s%d, 1" % (sA, sWAVE))
e("s_lshl_b32 s%d, s%d, 3" % (sA, sA))
e("s_add_u32 s%d, s%d, s%d" % (sTMP, sTMP, sA))
e("v_lshlrev_b32 %s, 4, %s" % (v(vKO + 2), v(vQ)))
e("v_add_u32 %s, s%d, %s" % (v(vKO + 3), sTMP, v(vKO + 2)))
e("s_waitcnt vmcnt(5)")
for b in range(2):
    for s in range(2):
        for h in range(2):
            e("ds_read_b64_tr_b16 %s, %s offset:%d" % (v(vWOF + 8 * b + 4 * s + 2 * h, 2), v(vT0), 32 * b + 2048 * s + 1024 * h))
e("s_branch L_h2chk")
lab("L_h2retry")
e("s_mov_b64 exec, -1")
for i in range(4):
    e("buffer_load_dwordx4 %s, %s, %s, s%d offen offset:%d sc1" % (v(G2 + 4 * i, 4), v(vKO + 1), srd(SRD_WS), sOFF, offs2[i]))
lab("L_h2chk")
e("s_waitcnt vmcnt(0)")
for i in range(4):
    e("v_cmpx_eq_u32 vcc, s%d, %s" % (sTAG, v(G2 + 4 * i + 3)))
e("s_cmp_eq_u64 exec, -1")
e("s_cbranch_scc1 L_h2ok")
spin_check("L_h2retry")
lab("L_h2ok")
stamp(8)
e("v_max_f32 %s, %s, %s" % (v(vM), v(G2 + 2), v(G2 + 10)))
e("s_nop 3")
dpp_reduce("v_max_f32", [vM], ROW)
e("v_sub_f32 %s, %s, %s" % (v(vS1), v(G2 + 2), v(vM)))
e("v_sub_f32 %s, %s, %s" % (v(vS2), v(G2 + 10), v(vM)))
e("v_exp_f32 %s, %s" % (v(vS1), v(vS1)))
e("v_exp_f32 %s, %s" % (v(vS2), v(vS2)))
e("s_nop 0")
Y = vD
e("v_add_f32 %s, %s, %s" % (v(Y + 4), v(vS1), v(vS2)))
src = [G2, G2 + 1, G2 + 4, G2 + 5]
for k in range(4): e("v_mul_f32 %s, %s, %s" % (v(Y + k), v(vS1), v(src[k])))
for k in range(4): e("v_fmac_f32 %s, %s, %s" % (v(Y + k), v(vS2), v(src[k] + 8)))
dpp_reduce("v_add_f32", [Y + 4, Y, Y + 1, Y + 2, Y + 3], ROW)
e("v_rcp_f32 %s, %s" % (v(Y + 4), v(Y + 4)))
e("s_nop 0")
for k in range(4): e("v_mul_f32 %s, %s, %s" % (v(Y + k), v(Y + k), v(Y + 4)))
e("v_cvt_pk_bf16_f32 %s, %s, %s" % (v(vF), v(Y), v(Y + 1)))
e("v_cvt_pk_bf16_f32 %s, %s, %s" % (v(vF + 1), v(Y + 2), v(Y + 3)))
e("s_mov_b64 exec, %s" % sp(sMASK0))
e("ds_write_b64 %s, %s offset:%d" % (v(vKO + 3), v(vF, 2), OX))
e("s_mov_b64 exec, -1")
c("hop 3 publish address: MB3 + colblk*65536 + (g*8 + (c>>2))*1024 + (w*16 + (n>>1)*8 + q'*2 + (n&1))*16")
e("v_lshrrev_b32 %s, 1, %s" % (v(vT0), v(vN)))
e("v_lshlrev_b32 %s, 7, %s" % (v(vT0), v(vT0)))
e("v_lshl_add_u32 %s, %s, 5, %s" % (v(vT0), v(vQ), v(vT0)))
e("v_and_b32 %s, 1, %s" % (v(vT1), v(vN)))
e("v_lshl_add_u32 %s, %s, 4, %s" % (v(vT0), v(vT1), v(vT0)))
e("s_and_b32 s%d, s%d, 3" % (sOFF, sC))
e("s_lshl_b32 s%d, s%d, 16" % (sOFF, sOFF))
e("s_lshl_b32 s%d, s%d, 13" % (sTMP, sG))
e("s_add_u32 s%d, s%d, s%d" % (sOFF, sOFF, sTMP))
e("s_lshr_b32 s%d, s%d, 2" % (sTMP, sC))
e("s_lshl_b32 s%d, s%d, 10" % (sTMP, sTMP))
e("s_add_u32 s%d, s%d, s%d" % (sOFF, sOFF, sTMP))
e("s_lshl_b32 s%d, s%d, 8" % (sTMP, sWAVE))
e("s_add_u32 s%d, s%d, s%d" % (sOFF, sOFF, sTMP))
e("s_add_u32 s%d, s%d, %d" % (sOFF, sOFF, MB3))
e("s_waitcnt lgkmcnt(0)")
e("s_barrier")
e("ds_read_b128 %s, %s offset:%d" % (v(vF, 4), v(vKO + 2), OX))
e("ds_read_b128 %s, %s offset:%d" % (v(vF + 4, 4), v(vKO + 2), OX + 64))
e("s_waitcnt lgkmcnt(1)")
for b in range(2):
    e("v_mfma_f32_16x16x32_bf16 %s, %s, %s, 0" % (v(vSC + 4 * b, 4), v(vWOF + 8 * b, 4), v(vF, 4)))
e("s_waitcnt lgkmcnt(0)")
for b in range(2):
    e("v_mfma_f32_16x16x32_bf16 %s, %s, %s, %s" % (v(vSC + 4 * b, 4), v(vWOF + 8 * b + 4, 4), v(vF + 4, 4), v(vSC + 4 * b, 4)))
e("v_mov_b32 %s, %s" % (v(vQA + 2), v(vTAG)))
e("v_mov_b32 %s, %s" % (v(vQA + 3), v(vTAG + 1)))
e("s_nop 5")
e("v_cndmask_b32 %s, %s, %s, %s" % (v(vD), v(vSC), v(vSC + 2), sp(sN1)))
e("v_cndmask_b32 %s, %s, %s, %s" % (v(vD + 1), v(vSC + 1), v(vSC + 3), sp(sN1)))
e("v_cndmask_b32 %s, %s, %s, %s" % (v(vD + 2), v(vSC + 4), v(vSC + 6), sp(sN1)))
e("v_cndmask_b32 %s, %s, %s, %s" % (v(vD + 3), v(vSC + 5), v(vSC + 7), sp(sN1)))
e("v_cndmask_b32 %s, %s, %s, %s" % (v(vQA), v(vD), v(vD + 2), sp(sN2)))
e("v_cndmask_b32 %s, %s, %s, %s" % (v(vQA + 1), v(vD + 1), v(vD + 3), sp(sN2)))
e("s_mov_b64 exec, %s" % sp(sMASKQ))
e("buffer_store_dwordx4 %s, %s, %s, s%d offen sc1" % (v(vQA, 4), v(vT0), srd(SRD_WS), sOFF))
e("s_mov_b64 exec, -1")
stamp(9)
e("s_cmp_lg_u32 s%d, 0" % sWAVE)
e("s_cbranch_scc1 L_fin")
c("---- final gather (wave 0): pair p: MB3 + (p>>6)*65536 + l*1024 + (p&63)*16 ----")
e("s_lshr_b32 s%d, s%d, 8" % (sOFF, sP4))
e("s_lshl_b32 s%d, s%d, 16" % (sOFF, sOFF))
e("s_and_b32 s%d, s%d, 255" % (sTMP, sP4))
e("s_lshl_b32 s%d, s%d, 2" % (sTMP, sTMP))
e("s_add_u32 s%d, s%d, s%d" % (sOFF, sOFF, sTMP))
e("s_add_u32 s%d, s%d, %d" % (sOFF, sOFF, MB3))
e("v_lshlrev_b32 %s, 10, %s" % (v(vT1), v(vL)))
lab("L_h3retry")
e("buffer_load_dwordx4 %s, %s, %s, s%d offen sc1" % (v(vF, 4), v(vT1), srd(SRD_WS), sOFF))
e("s_waitcnt vmcnt(0)")
e("v_cmp_ne_u64 vcc, %s, %s" % (sp(sTAG), v(vF + 2, 2)))
e("s_cbranch_vccz L_h3ok")
spin_check("L_h3retry")
lab("L_h3ok")
stamp(10)
dpp_reduce("v_add_f32", [vF, vF + 1], ROW + XROW)
e("v_cvt_pk_bf16_f32 %s, %s, %s" % (v(vT0), v(vF), v(vF + 1)))
unpack(vF, vT0)
e("v_mul_f32 %s, %s, %s" % (v(vF), v(vF), v(vG)))
e("v_mul_f32 %s, %s, %s" % (v(vF + 1), v(vF + 1), v(vG + 1)))
e("v_cvt_pk_bf16_f32 %s, %s, %s" % (v(vT0), v(vF), v(vF + 1)))
unpack(vF, vT0)
e("v_add_f32 %s, %s, %s" % (v(vF), v(vF), v(vXO)))
e("v_add_f32 %s, %s, %s" % (v(vF + 1), v(vF + 1), v(vXO + 1)))
e("v_cvt_pk_bf16_f32 %s, %s, %s" % (v(vT0), v(vF), v(vF + 1)))
e("v_mov_b32 %s, 0" % v(vT1))
e("s_mov_b32 exec_lo, 0"); e("s_mov_b32 exec_hi, 0x80000000")
e("buffer_store_dword %s, %s, %s, s%d offen" % (v(vT0), v(vT1), srd(SRD_OUT), sP4))
e("s_cmp_lg_u32 s2, 0")
e("s_cbranch_scc1 L_noep")
e("buffer_store_dword %s, %s, %s, 0 offen offset:%d sc1" % (v(vTAG), v(vT1), srd(SRD_WS), EPOCH))
lab("L_noep")
e("s_mov_b64 exec, -1")
lab("L_fin")
if STAMPS:
    e("s_waitcnt vmcnt(0)")
    stamp(11)
    e("s_lshl_b32 s%d, s2, 2" % sTMP)
    e("s_add_u32 s%d, s%d, s%d" % (sTMP, sTMP, sWAVE))
    e("s_lshl_b32 s%d, s%d, 6" % (sTMP, sTMP))
    e("s_add_u32 s%d, s%d, %d" % (sTMP, sTMP, STAMP_OFF))
    e("v_mov_b32 %s, 0" % v(vT1))
    e("s_mov_b64 exec, 1")
    for i in range(4):
        e("buffer_store_dwordx4 %s, %s, %s, s%d offen offset:%d" % (v(vSTP + 4 * i, 4), v(vT1), srd(SRD_WS), sTMP, 16 * i))
lab("L_end")
e("s_endpgm")

hdr = open("cdna_kernels/%s.s.ref" % NAME).read().split("\n")
head = []
for ln in hdr:
    if ln.startswith("; @launch"):
        head.append("; @launch grid=(256,1,1) block=(256,1,1) lds=%d" % LDS_TOTAL)
    elif ln.startswith(";"):
        head.append(ln)
    else:
        break
out = "\n".join(head) + "\n"
out += '.amdgcn_target "amdgcn-amd-amdhsa--gfx950"\n.text\n.globl %s_kernel\n.p2align 8\n.type %s_kernel,@function\n%s_kernel:\n' % (NAME, NAME, NAME)
out += "\n".join(L) + "\n"
out += '''.section .rodata,"a"
.p2align 6
.amdhsa_kernel %s_kernel
  .amdhsa_next_free_vgpr %d
  .amdhsa_next_free_sgpr 102
  .amdhsa_accum_offset %d
  .amdhsa_group_segment_fixed_size 0
  .amdhsa_kernarg_size 104
  .amdhsa_user_sgpr_count 2
  .amdhsa_user_sgpr_kernarg_segment_ptr 1
  .amdhsa_system_sgpr_workgroup_id_x 1
  .amdhsa_float_denorm_mode_32 3
.end_amdhsa_kernel
''' % (NAME, NVGPR, NVGPR)
open(sys.argv[1], "w").write(out)
```

```python
import sys, struct, math
NAME = "recurrent_scan__sliding_block_cached__mixer_token_mlp__decode"
opts = dict(a.split("=") if "=" in a else (a, "1") for a in sys.argv[2:])
STAMPS = int(opts.get("stamps", 0))
PAD = int(opts.get("pad", 0))
PREFETCH = int(opts.get("pf", 1))
PREWRITE = int(opts.get("pw", 1))
FASTST = opts.get("fastst", "")
FORCE_SLOW = int(opts.get("slow", 0))
NPIPE = int(opts.get("npipe", 4))
SLEEP = int(opts.get("sleep", 3))
THR = int(opts.get("thr", 6))
LSLEEP = int(opts.get("lsleep", 0))
QWAIT = int(opts.get("qwait", -1))
QD0 = int(opts.get("qd0", 0))
QD1 = int(opts.get("qd1", 8))
QPIPE = int(opts.get("qpipe", 1))
H3LD = opts.get("h3ld", "sc1").replace("+", " ")
H3ST = opts.get("h3st", "sc1").replace("+", " ")
ATOM = int(opts.get("atom", 0))
PRESLEEP = int(opts.get("presleep", 16))

L = []
def e(s): L.append("    " + s)
def lab(s): L.append(s + ":")
def c(s): L.append("    ; " + s)
def f2u(x): return struct.unpack("<I", struct.pack("<f", x))[0]
def hx(x): return "0x%08x" % (x & 0xffffffff)

XN = 0
QL = 1024
MODE = QL + 1088
OX = 2176
ML = 2304
YB = 2432
CMB = 2560
KBUF = 12288
KP, VP = 1040, 1056
VBUF = KBUF + 32 * KP
WQB = VBUF + 32 * VP
WOB = WQB + 16384
LDS_TOTAL = WOB + 16384
EPOCH = 0
MB1A = 1 << 17
MB1B = MB1A + (1 << 17)
MB3 = MB1B + (1 << 17)
MB2A = 1 << 20
MB2B = 2 << 20
WS_USED = 3 << 20
STAMP_OFF = 32 << 20
WS_NREC = (33 << 20) if STAMPS else WS_USED

sWAVE, sG, sC, sP4, sPIV, sA, sB = 3, 4, 5, 6, 7, 8, 9
sTAG = 10
sSPIN, sTMP, sM0, sOFF = 12, 13, 14, 15
sE, sXP = 42, 43
SRD_A, SRD_B, SRD_C, SRD_D, SRD_WS = 44, 48, 52, 56, 60
sB2, sCNT, sAW, sMODE = 64, 65, 66, 67
sMASKQ, sMASK0, sN1, sN2, sN4, sM8 = 68, 70, 72, 74, 76, 78
sH0, sH1 = 80, 81
sT3 = 82
sOFF2, sOFF3, sSTEP = 84, 85, 86
sPC = 88
sST = 98
def srd(b): return "s[%d:%d]" % (b, b + 3)
def sp(b): return "s[%d:%d]" % (b, b + 1)
def v(a, n=1): return "v%d" % a if n == 1 else "v[%d:%d]" % (a, a + n - 1)

vL, vQ, vN, vT0, vT1, vT2 = 1, 2, 3, 4, 5, 6
vSTP = 240
NVGPR = 256

def stamp(i):
    if not STAMPS: return
    e("s_waitcnt lgkmcnt(0)")
    e("s_memrealtime %s" % sp(sST))
    e("s_waitcnt lgkmcnt(0)")
    e("v_mov_b32 %s, s%d" % (v(vSTP + i), sST))

def dpp_reduce(op, regs, steps):
    for s in steps:
        pad = 2 - (len(regs) - 1)
        if pad > 0: e("s_nop %d" % (pad - 1))
        for r in regs:
            e("%s_dpp %s, %s, %s %s" % (op, v(r), v(r), v(r), s))
ROW = ["row_ror:8 row_mask:0xf bank_mask:0xf", "row_ror:4 row_mask:0xf bank_mask:0xf",
       "row_ror:2 row_mask:0xf bank_mask:0xf", "row_ror:1 row_mask:0xf bank_mask:0xf"]
XROW = ["row_bcast:15 row_mask:0xa bank_mask:0xf", "row_bcast:31 row_mask:0xc bank_mask:0xf"]
def unpack(dst, src):
    e("v_lshlrev_b32 %s, 16, %s" % (v(dst), v(src)))
    e("v_and_b32 %s, 0xffff0000, %s" % (v(dst + 1), v(src)))
def round1(r):
    e("v_cvt_pk_bf16_f32 %s, %s, %s" % (v(r), v(r), v(r)))
    e("v_and_b32 %s, 0xffff0000, %s" % (v(r), v(r)))
def round2(r, tmp):
    e("v_cvt_pk_bf16_f32 %s, %s, %s" % (v(tmp), v(r), v(r + 1)))
    unpack(r, tmp)
def ln_finish(vmean, vvar):
    e("v_max_f32 %s, 0, %s" % (v(vvar), v(vvar)))
    round1(vmean)
    round1(vvar)
    e("v_add_f32 %s, %s, %s" % (v(vvar), hx(f2u(1e-5)), v(vvar)))
    round1(vvar)
    e("v_sqrt_f32 %s, %s" % (v(vvar), v(vvar)))
    e("s_nop 0")
    round1(vvar)
    e("v_rcp_f32 %s, %s" % (v(vvar), v(vvar)))
    e("s_nop 0")
def spin_check(retry_label):
    e("s_sub_u32 s%d, s%d, 1" % (sSPIN, sSPIN))
    e("s_cbranch_scc0 %s" % retry_label)
    e("s_branch L_end")
def mksrd(b, p, n):
    e("s_mov_b64 %s, %s" % (sp(b), sp(p)))
    e("s_mov_b32 s%d, %s" % (b + 2, hx(n)))
    e("s_mov_b32 s%d, 0x00020000" % (b + 3))
def mask(r, m):
    e("s_mov_b32 s%d, %s" % (r, hx(m)))
    e("s_mov_b32 s%d, %s" % (r + 1, hx(m)))
def mktag():
    e("s_mul_i32 s%d, s%d, 0x9E3779B1" % (sTAG, sE))
    e("s_add_u32 s%d, s%d, 0x632BE5AB" % (sTAG, sTAG))
fs = (" " + FASTST) if FASTST else ""

lab("L_start")
e("s_cmp_ge_u32 s2, 256")
e("s_cbranch_scc1 L_end")
e("s_load_dwordx16 s[16:31], s[0:1], 0")
e("s_load_dwordx8 s[32:39], s[0:1], 64")
e("s_load_dwordx2 s[40:41], s[0:1], 96")
if STAMPS:
    e("s_memrealtime %s" % sp(sST))
    for i in range(16): e("v_mov_b32 %s, 0" % v(vSTP + i))
if PAD: e("s_memrealtime s[100:101]")
e("v_lshrrev_b32 %s, 6, v0" % v(vT0))
e("v_and_b32 %s, 63, v0" % v(vL))
e("v_readfirstlane_b32 s%d, %s" % (sWAVE, v(vT0)))
e("v_lshrrev_b32 %s, 4, %s" % (v(vQ), v(vL)))
e("v_and_b32 %s, 15, %s" % (v(vN), v(vL)))
e("s_and_b32 s%d, s2, 7" % sG)
e("s_lshr_b32 s%d, s2, 3" % sC)
e("s_mov_b32 s%d, 0x40000" % sSPIN)
e("s_cmp_ge_u32 s%d, 4" % sWAVE)
e("s_cbranch_scc1 L_A")
vX = 8
c("x offset: (l>>2)*64 + (l&3)*8")
e("v_lshrrev_b32 %s, 2, %s" % (v(vT0), v(vL)))
e("v_and_b32 %s, 3, %s" % (v(vT1), v(vL)))
e("v_lshlrev_b32 %s, 6, %s" % (v(vT0), v(vT0)))
e("v_lshl_add_u32 %s, %s, 3, %s" % (v(vT0), v(vT1), v(vT0)))
e("s_lshl_b32 s%d, s%d, 5" % (sP4, sG))
e("s_add_u32 s%d, s%d, s%d" % (sP4, sP4, sC))
e("s_lshl_b32 s%d, s%d, 2" % (sP4, sP4))
e("s_cmp_lg_u32 s%d, 0" % sWAVE)
e("s_cbranch_scc1 L_B0")
c("---- Q wave: issue x and wq loads ----")
e("s_setprio 3")
e("v_lshrrev_b32 %s, 3, %s" % (v(vT1), v(vL)))
e("v_lshlrev_b32 %s, 1, %s" % (v(vT2), v(vQ)))
e("v_xor_b32 %s, %s, %s" % (v(vT2), v(vT2), v(vL)))
e("v_and_b32 %s, 7, %s" % (v(vT2), v(vT2)))
e("v_lshlrev_b32 %s, 13, %s" % (v(vT1), v(vT1)))
e("v_lshl_add_u32 %s, %s, 4, %s" % (v(vT1), v(vT2), v(vT1)))
e("s_and_b32 s%d, s%d, 3" % (sOFF, sC))
e("s_lshl_b32 s%d, s%d, 20" % (sOFF, sOFF))
e("s_lshl_b32 s%d, s%d, 10" % (sTMP, sG))
e("s_add_u32 s%d, s%d, s%d" % (sOFF, sOFF, sTMP))
e("s_lshr_b32 s%d, s%d, 2" % (sTMP, sC))
e("s_lshl_b32 s%d, s%d, 7" % (sTMP, sTMP))
e("s_add_u32 s%d, s%d, s%d" % (sOFF, sOFF, sTMP))
e("s_mov_b32 m0, %d" % WQB)
e("s_mov_b32 s%d, %s" % (SRD_B + 2, hx(1 << 22)))
e("s_mov_b32 s%d, 0x00020000" % (SRD_B + 3))
e("s_mov_b32 s%d, 16" % sCNT)
e("s_waitcnt lgkmcnt(0)")
if STAMPS: e("v_mov_b32 %s, s%d" % (v(vSTP), sST))
e("s_mov_b64 %s, s[22:23]" % sp(SRD_B))
e("global_load_dwordx2 %s, %s, s[16:17]" % (v(vX, 2), v(vT0)))
e("global_load_dwordx2 %s, %s, s[16:17] offset:32" % (v(vX + 2, 2), v(vT0)))
lab("L_wqloop")
e("buffer_load_dwordx4 %s, %s, s%d offen nt lds" % (v(vT1), srd(SRD_B), sOFF))
e("s_sub_u32 s%d, s%d, 1" % (sCNT, sCNT))
e("s_add_u32 m0, m0, 1024")
e("s_add_u32 s%d, s%d, 65536" % (sOFF, sOFF))
e("s_cmp_lg_u32 s%d, 0" % sCNT)
e("s_cbranch_scc1 L_wqloop")
if QWAIT >= 0: e("s_waitcnt vmcnt(%d)" % QWAIT)
e("s_barrier")
e("s_load_dword s%d, s[40:41], %d" % (sE, EPOCH))
e("s_load_dword s%d, s[16:17], s%d" % (sXP, sP4))
e("s_load_dword s%d, s[34:35], 0" % sB2)
mksrd(SRD_WS, 40, WS_NREC)
c("publish address: (n>>1)*128 + q'*32 + (n&1)*16 ; record (g*32+c)*512")
vPUB = 7
e("v_lshrrev_b32 %s, 1, %s" % (v(vT0), v(vN)))
e("v_lshlrev_b32 %s, 7, %s" % (v(vT0), v(vT0)))
e("v_lshl_add_u32 %s, %s, 5, %s" % (v(vT0), v(vQ), v(vT0)))
e("v_and_b32 %s, 1, %s" % (v(vT1), v(vN)))
e("v_lshl_add_u32 %s, %s, 4, %s" % (v(vPUB), v(vT1), v(vT0)))
e("s_lshl_b32 s%d, s%d, 7" % (sOFF, sP4))
e("s_add_u32 s%d, s%d, %d" % (sOFF, sOFF, MB1A))
mask(sM8, 0x00FF00FF)
vZ = 12
if PREWRITE:
    for i in range(4): e("v_mov_b32 %s, 0" % v(vZ + i))
    e("s_mov_b64 exec, %s" % sp(sM8))
    e("buffer_store_dwordx4 %s, %s, %s, s%d offen%s" % (v(vZ, 4), v(vPUB), srd(SRD_WS), sOFF, fs))
    e("s_mov_b64 exec, -1")
NQ = 1 if PREWRITE else 0
e("s_waitcnt vmcnt(%d)" % (16 + NQ))
e("s_branch L_ln1")
lab("L_B0")
c("---- B waves: issue x, w1, b1, w2 loads ----")
vW1, vB1, vW2 = 16, 22, 28
e("v_subrev_u32 %s, 64, v0" % v(vT1))
e("v_mul_u32_u24 %s, 20, %s" % (v(vT1), v(vT1)))
e("s_waitcnt lgkmcnt(0)")
if STAMPS: e("v_mov_b32 %s, s%d" % (v(vSTP), sST))
e("global_load_dwordx2 %s, %s, s[16:17]" % (v(vX, 2), v(vT0)))
e("global_load_dwordx2 %s, %s, s[16:17] offset:32" % (v(vX + 2, 2), v(vT0)))
e("s_load_dword s%d, s[16:17], s%d" % (sXP, sP4))
for b, p, r in ((SRD_A, 28, vW1), (SRD_B, 30, vB1), (SRD_C, 32, vW2)):
    mksrd(b, p, 3584)
    e("buffer_load_dwordx4 %s, %s, %s, 0 offen" % (v(r, 4), v(vT1), srd(b)))
    e("buffer_load_dword %s, %s, %s, 0 offen offset:16" % (v(r + 4), v(vT1), srd(b)))
if STAMPS: mksrd(SRD_WS, 40, WS_NREC)
if PREFETCH:
    c("pull the kernel's code into L2 (first two workgroups of each group, wave 1)")
    e("s_cmp_ge_u32 s%d, 2" % sC)
    e("s_cbranch_scc1 L_nopf")
    e("s_cmp_lg_u32 s%d, 1" % sWAVE)
    e("s_cbranch_scc1 L_nopf")
    e("s_getpc_b64 %s" % sp(sPC))
    lab("L_pc")
    e("s_sub_u32 s%d, s%d, L_pc-L_start" % (sPC, sPC))
    e("s_subb_u32 s%d, s%d, 0" % (sPC + 1, sPC + 1))
    e("v_lshlrev_b32 %s, 7, %s" % (v(vT0), v(vL)))
    e("v_min_u32 %s, L_codeend-L_start-4, %s" % (v(vT1), v(vT0)))
    e("global_load_dword %s, %s, %s" % (v(34), v(vT1), sp(sPC)))
    e("v_add_u32 %s, 8192, %s" % (v(vT0), v(vT0)))
    e("v_min_u32 %s, L_codeend-L_start-4, %s" % (v(vT1), v(vT0)))
    e("global_load_dword %s, %s, %s" % (v(35), v(vT1), sp(sPC)))
    e("s_barrier")
    e("s_waitcnt vmcnt(8)")
    e("s_branch L_ln1")
    lab("L_nopf")
e("s_barrier")
e("s_waitcnt vmcnt(6)")
lab("L_ln1")
c("---- LN1 (Q and B waves) ----")
stamp(1)
vF, vD, vS1, vS2, vM, vR, vXN = 36, 44, 52, 53, 54, 55, 56
for i in range(4): unpack(vF + 2 * i, vX + i)
e("v_readfirstlane_b32 s%d, %s" % (sPIV, v(vF)))
e("s_nop 1")
for i in range(8): e("v_subrev_f32 %s, s%d, %s" % (v(vD + i), sPIV, v(vF + i)))
def sums():
    e("v_add_f32 %s, %s, %s" % (v(vS1), v(vD), v(vD + 1)))
    e("v_mul_f32 %s, %s, %s" % (v(vS2), v(vD), v(vD)))
    e("v_fmac_f32 %s, %s, %s" % (v(vS2), v(vD + 1), v(vD + 1)))
    for i in range(2, 8):
        e("v_add_f32 %s, %s, %s" % (v(vS1), v(vS1), v(vD + i)))
        e("v_fmac_f32 %s, %s, %s" % (v(vS2), v(vD + i), v(vD + i)))
    dpp_reduce("v_add_f32", [vS1, vS2], ROW + XROW)
    e("s_nop 0")
    e("v_readlane_b32 s%d, %s, 63" % (sA, v(vS1)))
    e("v_readlane_b32 s%d, %s, 63" % (sB, v(vS2)))
sums()
e("v_mov_b32 %s, %s" % (v(vT0), hx(f2u(1.0 / 512))))
e("s_nop 0")
e("v_mul_f32 %s, s%d, %s" % (v(vM), sA, v(vT0)))
e("v_mul_f32 %s, s%d, %s" % (v(vR), sB, v(vT0)))
e("v_fma_f32 %s, -%s, %s, %s" % (v(vR), v(vM), v(vM), v(vR)))
e("v_add_f32 %s, s%d, %s" % (v(vM), sPIV, v(vM)))
ln_finish(vM, vR)
for i in range(8): e("v_sub_f32 %s, %s, %s" % (v(vD + i), v(vF + i), v(vM)))
for i in range(4): e("v_cvt_pk_bf16_f32 %s, %s, %s" % (v(vXN + i), v(vD + 2 * i), v(vD + 2 * i + 1)))
for i in range(4): unpack(vD + 2 * i, vXN + i)
for i in range(8): e("v_mul_f32 %s, %s, %s" % (v(vD + i), v(vD + i), v(vR)))
for i in range(4): e("v_cvt_pk_bf16_f32 %s, %s, %s" % (v(vXN + i), v(vD + 2 * i), v(vD + 2 * i + 1)))
e("s_cmp_lg_u32 s%d, 0" % sWAVE)
e("s_cbranch_scc1 L_B1")
c("======== Q wave: partial q (128 rows x 64 columns) ========")
vBF = 64
vAF = 80
vQA = 144
vAD = 60
e("v_lshlrev_b32 %s, 4, %s" % (v(vT0), v(vL)))
e("ds_write_b128 %s, %s offset:%d" % (v(vT0), v(vXN, 4), XN))
e("s_and_b32 s%d, s%d, 3" % (sTMP, sC))
e("s_lshl_b32 s%d, s%d, 8" % (sTMP, sTMP))
e("v_lshl_add_u32 %s, %s, 4, s%d" % (v(vT0), v(vQ), sTMP))
e("v_lshrrev_b32 %s, 2, %s" % (v(vT1), v(vL)))
e("v_lshlrev_b32 %s, 7, %s" % (v(vT1), v(vT1)))
e("v_bfe_u32 %s, %s, 3, 2" % (v(vT2), v(vL)))
e("v_lshl_add_u32 %s, %s, 5, %s" % (v(vT1), v(vT2), v(vT1)))
e("v_and_b32 %s, 3, %s" % (v(vT2), v(vL)))
e("v_lshl_add_u32 %s, %s, 3, %s" % (v(vT1), v(vT2), v(vT1)))
e("v_add_u32 %s, %d, %s" % (v(vAD), WQB, v(vT1)))
assert WQB % 256 == 0
for b in range(1, 4): e("v_xor_b32 %s, %d, %s" % (v(vAD + b), b << 5, v(vAD)))
e("s_waitcnt lgkmcnt(0)")
for s in range(4):
    e("ds_read_b128 %s, %s offset:%d" % (v(vBF + 4 * s, 4), v(vT0), XN + 64 * s))
mktag()
e("s_getreg_b32 s%d, hwreg(HW_REG_XCC_ID, 0, 4)" % (sTAG + 1))
if FORCE_SLOW: e("s_add_u32 s%d, s%d, s2" % (sTAG + 1, sTAG + 1))
e("v_mov_b32 %s, s%d" % (v(vZ + 2), sTAG))
e("v_mov_b32 %s, s%d" % (v(vZ + 3), sTAG + 1))
mask(sN1, 0xAAAAAAAA); mask(sN2, 0xCCCCCCCC); mask(sN4, 0xF0F0F0F0)
for s in range(4):
    e("s_waitcnt vmcnt(%d)" % (12 - 4 * s + NQ))
    for b in range(4):
        for h in range(2):
            e("ds_read_b64_tr_b16 %s, %s offset:%d" % (v(vAF + 16 * s + 4 * b + 2 * h, 2), v(vAD + b), 4096 * s + 2048 * h))
    for b in range(4):
        e("s_waitcnt lgkmcnt(%d)" % (6 - 2 * b))
        e("v_mfma_f32_16x16x32_bf16 %s, %s, %s, %s" % (v(vQA + 4 * b, 4), v(vAF + 16 * s + 4 * b, 4), v(vBF + 4 * s, 4), v(vQA + 4 * b, 4) if s else "0"))
c("gather address: (l>>3)*2048 + (l&7)*16")
vGA = 16
e("v_lshrrev_b32 %s, 3, %s" % (v(vT0), v(vL)))
e("v_and_b32 %s, 7, %s" % (v(vT1), v(vL)))
e("v_lshlrev_b32 %s, 11, %s" % (v(vGA), v(vT0)))
e("v_lshl_add_u32 %s, %s, 4, %s" % (v(vGA), v(vT1), v(vGA)))
e("s_nop 1")
for b in range(4):
    e("v_cndmask_b32 %s, %s, %s, %s" % (v(vD + 2 * b), v(vQA + 4 * b), v(vQA + 4 * b + 2), sp(sN1)))
    e("v_cndmask_b32 %s, %s, %s, %s" % (v(vD + 2 * b + 1), v(vQA + 4 * b + 1), v(vQA + 4 * b + 3), sp(sN1)))
for k in range(2):
    e("v_cndmask_b32 %s, %s, %s, %s" % (v(vD + 4 * k), v(vD + 4 * k), v(vD + 4 * k + 2), sp(sN2)))
    e("v_cndmask_b32 %s, %s, %s, %s" % (v(vD + 4 * k + 1), v(vD + 4 * k + 1), v(vD + 4 * k + 3), sp(sN2)))
e("v_cndmask_b32 %s, %s, %s, %s" % (v(vZ), v(vD), v(vD + 4), sp(sN4)))
e("v_cndmask_b32 %s, %s, %s, %s" % (v(vZ + 1), v(vD + 1), v(vD + 5), sp(sN4)))
e("s_mov_b64 exec, %s" % sp(sM8))
e("buffer_store_dwordx4 %s, %s, %s, s%d offen%s" % (v(vZ, 4), v(vPUB), srd(SRD_WS), sOFF, fs))
e("s_mov_b64 exec, -1")
stamp(2)
c("q LDS write address: (l>>3)*128 + (l>>4)*16 + (l&7)*4")
vQW = 17
e("v_lshlrev_b32 %s, 7, %s" % (v(vQW), v(vT0)))
e("v_lshl_add_u32 %s, %s, 4, %s" % (v(vQW), v(vQ), v(vQW)))
e("v_lshl_add_u32 %s, %s, 2, %s" % (v(vQW), v(vT1), v(vQW)))
e("v_add_u32 %s, %d, %s" % (v(vQW), QL, v(vQW)))
e("s_lshl_b32 s%d, s%d, 14" % (sOFF2, sG))
e("s_add_u32 s%d, s%d, %d" % (sOFF2, sOFF2, MB1A))
e("s_mov_b32 s%d, 0" % sCNT)
e("s_mov_b32 s%d, 1" % sMODE)
G1 = 80
G1B = 160
QS = 24
def q_loads(soff, G=G1):
    for rb in range(4):
        for k in range(4):
            e("buffer_load_dwordx4 %s, %s, %s, s%d offen offset:%d sc1" % (v(G + 16 * rb + 4 * k, 4), v(vGA), srd(SRD_WS), soff, 512 * rb + 128 * k))
def q_sum(i, G=G1):
    rb, k = divmod(i, 4)
    if rb == 0: return
    for j in range(2):
        e("v_add_f32 %s, %s, %s" % (v(QS + 2 * k + j), v(G + 4 * k + j) if rb == 1 else v(QS + 2 * k + j), v(G + 16 * rb + 4 * k + j)))
def q_check(G, behind):
    for i in range(16):
        e("s_waitcnt vmcnt(%d)" % (15 - i + behind))
        e("v_cmpx_eq_u64 vcc, %s, %s" % (sp(sTAG), v(G + 4 * i + 2, 2)))
        q_sum(i, G)
    e("s_cmp_eq_u64 exec, -1")
if QD0: e("s_sleep %d" % QD0)
lab("L_qpollA")
if QPIPE:
    q_loads(sOFF2, G1)
    if QD1: e("s_sleep %d" % QD1)
    lab("L_qpollA2")
    q_loads(sOFF2, G1B)
    q_check(G1, 16)
    e("s_cbranch_scc1 L_qok")
    e("s_mov_b64 exec, -1")
    q_loads(sOFF2, G1)
    q_check(G1B, 16)
    e("s_cbranch_scc0 L_qfail")
else:
    q_loads(sOFF2, G1)
    q_check(G1, 0)
    e("s_cbranch_scc0 L_qfail")
lab("L_qok")
for k in range(4): e("v_cvt_pk_bf16_f32 %s, %s, %s" % (v(vD + k), v(QS + 2 * k), v(QS + 2 * k + 1)))
e("v_mov_b32 %s, s%d" % (v(vD + 4), sMODE))
e("v_mov_b32 %s, %d" % (v(vD + 5), MODE))
e("ds_write2_b32 %s, %s, %s offset0:0 offset1:8" % (v(vQW), v(vD), v(vD + 1)))
e("ds_write2_b32 %s, %s, %s offset0:16 offset1:24" % (v(vQW), v(vD + 2), v(vD + 3)))
e("ds_write_b32 %s, %s" % (v(vD + 5), v(vD + 4)))
e("s_waitcnt lgkmcnt(0)")
stamp(6)
e("s_barrier")
c("copy for other dies (always stored; not needed on the fast path)")
e("s_cmp_lg_u32 s%d, 0" % sCNT)
e("s_cbranch_scc1 L_qb_done")
e("s_add_u32 s%d, s%d, %d" % (sOFF, sOFF, MB1B - MB1A))
e("s_mov_b64 exec, %s" % sp(sM8))
e("buffer_store_dwordx4 %s, %s, %s, s%d offen sc1" % (v(vZ, 4), v(vPUB), srd(SRD_WS), sOFF))
e("s_mov_b64 exec, -1")
lab("L_qb_done")
c("g for own two columns")
vG, vXO = 18, 20
e("v_mov_b32 %s, 0" % v(vT1))
e("ds_read_b128 %s, %s offset:%d" % (v(vF, 4), v(vT1), YB))
e("ds_read_b64 %s, %s offset:%d" % (v(vF + 4, 2), v(vT1), YB + 16))
e("s_lshl_b32 s%d, s%d, 16" % (sB2, sB2))
e("v_mov_b32 %s, s%d" % (v(vT0), sXP))
unpack(vXO, vT0)
e("s_waitcnt lgkmcnt(0)")
e("v_add_f32 %s, %s, %s" % (v(vG), v(vF), v(vF + 2)))
e("v_add_f32 %s, %s, %s" % (v(vG + 1), v(vF + 1), v(vF + 3)))
e("v_add_f32 %s, %s, %s" % (v(vG), v(vG), v(vF + 4)))
e("v_add_f32 %s, %s, %s" % (v(vG + 1), v(vG + 1), v(vF + 5)))
round2(vG, vT1)
e("v_add_f32 %s, s%d, %s" % (v(vG), sB2, v(vG)))
e("v_add_f32 %s, s%d, %s" % (v(vG + 1), sB2, v(vG + 1)))
round2(vG, vT1)
e("v_mul_f32 %s, %s, %s" % (v(vF), hx(f2u(-math.log2(math.e))), v(vG)))
e("v_mul_f32 %s, %s, %s" % (v(vF + 1), hx(f2u(-math.log2(math.e))), v(vG + 1)))
e("v_exp_f32 %s, %s" % (v(vF), v(vF)))
e("v_exp_f32 %s, %s" % (v(vF + 1), v(vF + 1)))
e("s_nop 0")
e("v_add_f32 %s, 1.0, %s" % (v(vF), v(vF)))
e("v_add_f32 %s, 1.0, %s" % (v(vF + 1), v(vF + 1)))
e("v_rcp_f32 %s, %s" % (v(vF), v(vF)))
e("v_rcp_f32 %s, %s" % (v(vF + 1), v(vF + 1)))
e("s_nop 0")
e("v_mul_f32 %s, %s, %s" % (v(vG), v(vG), v(vF)))
e("v_mul_f32 %s, %s, %s" % (v(vG + 1), v(vG + 1), v(vF + 1)))
round2(vG, vT1)
c("final gather address: MB3 + (p>>6)*65536 + l*1024 + (p&63)*16")
e("s_lshr_b32 s%d, s%d, 8" % (sOFF3, sP4))
e("s_lshl_b32 s%d, s%d, 16" % (sOFF3, sOFF3))
e("s_and_b32 s%d, s%d, 255" % (sTMP, sP4))
e("s_lshl_b32 s%d, s%d, 2" % (sTMP, sTMP))
e("s_add_u32 s%d, s%d, s%d" % (sOFF3, sOFF3, sTMP))
e("s_add_u32 s%d, s%d, %d" % (sOFF3, sOFF3, MB3))
e("v_lshlrev_b32 %s, 10, %s" % (v(vT1), v(vL)))
e("s_mov_b32 s%d, s%d" % (sT3, sTAG))
mksrd(SRD_A, 36, 1024)
e("v_mov_b32 %s, 0" % v(vT2))
e("s_barrier")
e("s_barrier")
G3 = 64
if PRESLEEP: e("s_sleep %d" % PRESLEEP)
e("s_mov_b32 s%d, s%d" % (sT3 + 1, sTAG))
lab("L_h3loop")
e("buffer_load_dwordx4 %s, %s, %s, s%d offen sc1" % (v(vF, 4), v(vT1), srd(SRD_WS), sOFF3))
e("s_waitcnt vmcnt(0)")
e("v_cmpx_ne_u64 vcc, %s, %s" % (sp(sT3), v(vF + 2, 2)))
e("s_cbranch_execz L_h3ok")
if LSLEEP: e("s_sleep %d" % LSLEEP)
spin_check("L_h3loop")
lab("L_h3ok")
e("s_mov_b64 exec, -1")
e("s_nop 2")
stamp(10)
dpp_reduce("v_add_f32", [vF, vF + 1], ROW + XROW)
round2(vF, vT0)
e("v_mul_f32 %s, %s, %s" % (v(vF), v(vF), v(vG)))
e("v_mul_f32 %s, %s, %s" % (v(vF + 1), v(vF + 1), v(vG + 1)))
round2(vF, vT0)
e("v_add_f32 %s, %s, %s" % (v(vF), v(vF), v(vXO)))
e("v_add_f32 %s, %s, %s" % (v(vF + 1), v(vF + 1), v(vXO + 1)))
e("v_cvt_pk_bf16_f32 %s, %s, %s" % (v(vT0), v(vF), v(vF + 1)))
e("s_mov_b32 exec_lo, 0"); e("s_mov_b32 exec_hi, 0x80000000")
e("buffer_store_dword %s, %s, %s, s%d offen" % (v(vT0), v(vT2), srd(SRD_A), sP4))
e("s_cmp_lg_u32 s2, 0")
e("s_cbranch_scc1 L_fin")
e("buffer_store_dword %s, %s, %s, 0 offen offset:%d sc1" % (v(vZ + 2), v(vT2), srd(SRD_WS), EPOCH))
e("s_branch L_fin")
c("---- q gather retry / cross-die fallback ----")
lab("L_qfail")
e("s_mov_b64 exec, -1")
e("s_sub_u32 s%d, s%d, 1" % (sSPIN, sSPIN))
e("s_cbranch_scc1 L_end")
e("s_and_b32 s%d, s%d, 3" % (sTMP, sSPIN))
e("s_cmp_lg_u32 s%d, 0" % sTMP)
e("s_cbranch_scc1 %s" % ("L_qpollA2" if QPIPE else "L_qpollA"))
e("s_cmp_lg_u32 s%d, 0" % sCNT)
e("s_cbranch_scc1 L_qpollB")
e("s_mov_b32 s%d, 1" % sCNT)
e("s_add_u32 s%d, s%d, %d" % (sOFF, sOFF, MB1B - MB1A))
e("s_mov_b64 exec, %s" % sp(sM8))
e("buffer_store_dwordx4 %s, %s, %s, s%d offen sc1" % (v(vZ, 4), v(vPUB), srd(SRD_WS), sOFF))
e("s_mov_b64 exec, -1")
lab("L_qpollB")
e("s_add_u32 s%d, s%d, %d" % (sTMP, sOFF2, MB1B - MB1A))
q_loads(sTMP)
e("s_waitcnt vmcnt(0)")
for i in range(16): e("v_cmpx_eq_u32 vcc, s%d, %s" % (sTAG, v(G1 + 4 * i + 2)))
e("s_cmp_eq_u64 exec, -1")
e("s_mov_b64 exec, -1")
e("s_cbranch_scc0 L_qpollA")
for i in range(16): q_sum(i)
for i in range(16): e("v_cmpx_eq_u32 vcc, s%d, %s" % (sTAG + 1, v(G1 + 4 * i + 3)))
e("s_cmp_eq_u64 exec, -1")
e("s_cselect_b32 s%d, 1, 0" % sMODE)
e("s_mov_b64 exec, -1")
e("s_branch L_qok")

c("======== B waves ========")
lab("L_B1")
for i in range(4): unpack(vD + 2 * i, vXN + i)
sums()
e("s_waitcnt lgkmcnt(0)")
e("v_mov_b32 %s, s%d" % (v(vT0), sXP))
unpack(vD, vT0)
def norm2():
    e("v_sub_f32 %s, %s, %s" % (v(vD), v(vD), v(vM)))
    e("v_sub_f32 %s, %s, %s" % (v(vD + 1), v(vD + 1), v(vM)))
    round2(vD, vT0)
    e("v_mul_f32 %s, %s, %s" % (v(vD), v(vD), v(vR)))
    e("v_mul_f32 %s, %s, %s" % (v(vD + 1), v(vD + 1), v(vR)))
    round2(vD, vT0)
norm2()
e("v_mov_b32 %s, %s" % (v(vT0), hx(f2u(1.0 / 512))))
e("v_mul_f32 %s, s%d, %s" % (v(vM), sA, v(vT0)))
e("v_mul_f32 %s, s%d, %s" % (v(vR), sB, v(vT0)))
e("v_fma_f32 %s, -%s, %s, %s" % (v(vR), v(vM), v(vM), v(vR)))
ln_finish(vM, vR)
norm2()
e("s_nop 0")
e("v_readfirstlane_b32 s%d, %s" % (sH0, v(vD)))
e("v_readfirstlane_b32 s%d, %s" % (sH1, v(vD + 1)))
C1 = -2.0 * math.log2(math.e) * math.sqrt(2.0 / math.pi)
C2 = C1 * 0.044715
vACC = 60
e("v_mov_b32 %s, 0" % v(vACC))
e("v_mov_b32 %s, 0" % v(vACC + 1))
e("v_mov_b32 %s, %s" % (v(vS1), hx(f2u(C1))))
e("s_mov_b32 s%d, %s" % (sTMP, hx(f2u(C2))))
e("s_mov_b32 s%d, 5" % sCNT)
e("s_waitcnt vmcnt(0)")
lab("L_Bloop")
unpack(vF, vW1)
unpack(vF + 2, vB1)
U, T = vD, vD + 4
for col, sh in ((0, sH0), (1, sH1)):
    e("v_mul_f32 %s, s%d, %s" % (v(U + 2 * col), sh, v(vF)))
    e("v_mul_f32 %s, s%d, %s" % (v(U + 2 * col + 1), sh, v(vF + 1)))
for col in range(2): e("v_cvt_pk_bf16_f32 %s, %s, %s" % (v(T + col), v(U + 2 * col), v(U + 2 * col + 1)))
for col in range(2): unpack(U + 2 * col, T + col)
for col in range(2):
    e("v_add_f32 %s, %s, %s" % (v(U + 2 * col), v(U + 2 * col), v(vF + 2)))
    e("v_add_f32 %s, %s, %s" % (v(U + 2 * col + 1), v(U + 2 * col + 1), v(vF + 3)))
for col in range(2): e("v_cvt_pk_bf16_f32 %s, %s, %s" % (v(T + col), v(U + 2 * col), v(U + 2 * col + 1)))
for col in range(2): unpack(U + 2 * col, T + col)
for i in range(4): e("v_mul_f32 %s, %s, %s" % (v(T + i), v(U + i), v(U + i)))
for i in range(4): e("v_fma_f32 %s, %s, s%d, %s" % (v(T + i), v(T + i), sTMP, v(vS1)))
for i in range(4): e("v_mul_f32 %s, %s, %s" % (v(T + i), v(T + i), v(U + i)))
for i in range(4): e("v_exp_f32 %s, %s" % (v(T + i), v(T + i)))
for i in range(4): e("v_add_f32 %s, 1.0, %s" % (v(T + i), v(T + i)))
for i in range(4): e("v_rcp_f32 %s, %s" % (v(T + i), v(T + i)))
for i in range(4): e("v_mul_f32 %s, %s, %s" % (v(T + i), v(T + i), v(U + i)))
for col in range(2): e("v_cvt_pk_bf16_f32 %s, %s, %s" % (v(U + col), v(T + 2 * col), v(T + 2 * col + 1)))
for col in range(2): e("v_dot2c_f32_bf16 %s, %s, %s" % (v(vACC + col), v(U + col), v(vW2)))
for r in (vW1, vB1, vW2):
    for i in range(4): e("v_mov_b32 %s, %s" % (v(r + i), v(r + i + 1)))
e("s_sub_u32 s%d, s%d, 1" % (sCNT, sCNT))
e("s_cmp_lg_u32 s%d, 0" % sCNT)
e("s_cbranch_scc1 L_Bloop")
dpp_reduce("v_add_f32", [vACC, vACC + 1], ROW + XROW)
e("s_lshl_b32 s%d, s%d, 3" % (sTMP, sWAVE))
e("v_mov_b32 %s, s%d" % (v(vT0), sTMP))
e("s_mov_b32 exec_lo, 0"); e("s_mov_b32 exec_hi, 0x80000000")
e("ds_write_b64 %s, %s offset:%d" % (v(vT0), v(vACC, 2), YB - 8))
e("s_mov_b64 exec, -1")
e("s_waitcnt lgkmcnt(0)")
stamp(3)
e("s_branch L_fin2")

c("======== A waves ========")
lab("L_A")
vKO, vP2, vKA, vVA, vWOo, vQB = 7, 8, 9, 10, 14, 15
vZ2 = 16
e("s_sub_u32 s%d, s%d, 4" % (sAW, sWAVE))
c("dma source offset: q'*256 + ((n ^ (q'<<2))*16)")
e("v_lshlrev_b32 %s, 2, %s" % (v(vKO), v(vQ)))
e("v_xor_b32 %s, %s, %s" % (v(vKO), v(vKO), v(vN)))
e("v_lshlrev_b32 %s, 4, %s" % (v(vKO), v(vKO)))
e("v_lshl_add_u32 %s, %s, 8, %s" % (v(vKO), v(vQ), v(vKO)))
e("s_lshl_b32 s%d, s%d, 23" % (sOFF, sG))
e("s_lshl_b32 s%d, s%d, 12" % (sTMP, sC))
e("s_add_u32 s%d, s%d, s%d" % (sOFF, sOFF, sTMP))
e("s_lshl_b32 s%d, s%d, 10" % (sTMP, sAW))
e("s_add_u32 s%d, s%d, s%d" % (sOFF, sOFF, sTMP))
e("s_add_u32 s%d, s%d, %d" % (sOFF, sOFF, 7340032))
e("s_mul_i32 s%d, s%d, %d" % (sM0, sAW, 8 * KP))
e("s_add_u32 m0, s%d, %d" % (sM0, KBUF))
c("hop2 publish address: (l>>3)*4096 + (l&7)*16 ; soffset g<<17 + aw<<15 + c<<7")
e("v_lshrrev_b32 %s, 3, %s" % (v(vT0), v(vL)))
e("v_and_b32 %s, 7, %s" % (v(vT1), v(vL)))
e("v_lshlrev_b32 %s, 12, %s" % (v(vP2), v(vT0)))
e("v_lshl_add_u32 %s, %s, 4, %s" % (v(vP2), v(vT1), v(vP2)))
e("s_lshl_b32 s%d, s%d, 17" % (sOFF2, sG))
e("s_lshl_b32 s%d, s%d, 15" % (sTMP, sAW))
e("s_add_u32 s%d, s%d, s%d" % (sOFF2, sOFF2, sTMP))
e("s_lshl_b32 s%d, s%d, 7" % (sTMP, sC))
e("s_add_u32 s%d, s%d, s%d" % (sOFF2, sOFF2, sTMP))
e("s_add_u32 s%d, s%d, %d" % (sOFF2, sOFF2, MB2A))
for i in range(4): e("v_mov_b32 %s, 0" % v(vZ2 + i))
e("s_mov_b32 s%d, 0x20000" % sSTEP)
e("s_mov_b32 s%d, s%d" % (sOFF3, sOFF))
e("s_mov_b32 s%d, 8" % sCNT)
e("s_waitcnt lgkmcnt(0)")
if STAMPS: e("v_mov_b32 %s, s%d" % (v(vSTP), sST))
mksrd(SRD_A, 18, 1 << 26); mksrd(SRD_B, 20, 1 << 26); mksrd(SRD_WS, 40, WS_NREC); mksrd(SRD_C, 24, 1 << 22)
e("s_load_dword s%d, s[40:41], %d" % (sE, EPOCH))
e("s_barrier")
lab("L_kloop")
if THR: e("s_waitcnt vmcnt(%d)" % (THR - 1))
e("buffer_load_dwordx4 %s, %s, s%d offen nt lds" % (v(vKO), srd(SRD_A), sOFF))
e("s_sub_u32 s%d, s%d, 1" % (sCNT, sCNT))
e("s_add_u32 m0, m0, %d" % KP)
e("s_add_u32 s%d, s%d, s%d" % (sOFF, sOFF, sSTEP))
e("s_cmp_lg_u32 s%d, 0" % sCNT)
e("s_cbranch_scc1 L_kloop")
if PREWRITE:
    e("buffer_store_dwordx4 %s, %s, %s, s%d offen%s" % (v(vZ2, 4), v(vP2), srd(SRD_WS), sOFF2, fs))
e("s_mul_i32 s%d, s%d, %d" % (sTMP, sAW, 8 * VP))
e("s_add_u32 m0, s%d, %d" % (sTMP, VBUF))
e("s_mov_b32 s%d, 8" % sCNT)
lab("L_vloop")
if THR: e("s_waitcnt vmcnt(%d)" % (THR - 1))
e("buffer_load_dwordx4 %s, %s, s%d offen nt lds" % (v(vKO), srd(SRD_B), sOFF3))
e("s_sub_u32 s%d, s%d, 1" % (sCNT, sCNT))
e("s_add_u32 m0, m0, %d" % VP)
e("s_add_u32 s%d, s%d, s%d" % (sOFF3, sOFF3, sSTEP))
e("s_cmp_lg_u32 s%d, 0" % sCNT)
e("s_cbranch_scc1 L_vloop")
stamp(15)
c("K frag address: KBUF + aw*8KP + (m>>2)*KP + (m&3)*256 + ((q'^(m&3))*64)")
e("v_and_b32 %s, 3, %s" % (v(vT0), v(vN)))
e("v_lshrrev_b32 %s, 2, %s" % (v(vT1), v(vN)))
e("v_xor_b32 %s, %s, %s" % (v(vT2), v(vT0), v(vQ)))
e("v_mul_u32_u24 %s, %d, %s" % (v(vKA), KP, v(vT1)))
e("v_lshl_add_u32 %s, %s, 8, %s" % (v(vKA), v(vT0), v(vKA)))
e("v_lshl_add_u32 %s, %s, 6, %s" % (v(vKA), v(vT2), v(vKA)))
e("s_add_u32 s%d, s%d, %d" % (sM0, sM0, KBUF))
e("v_add_u32 %s, s%d, %s" % (v(vKA), sM0, v(vKA)))
c("V frag address: VBUF + aw*8VP + q'*VP + r*256 + cc*8 + ((db ^ 2r)*32) ; r = n>>2, cc = n&3")
e("v_mul_u32_u24 %s, %d, %s" % (v(vT2), VP, v(vQ)))
e("v_lshl_add_u32 %s, %s, 8, %s" % (v(vT2), v(vT1), v(vT2)))
e("v_lshl_add_u32 %s, %s, 3, %s" % (v(vT2), v(vT0), v(vT2)))
e("s_add_u32 s%d, s%d, %d" % (sTMP, sTMP, VBUF))
e("v_add_u32 %s, s%d, %s" % (v(vT2), sTMP, v(vT2)))
e("v_lshlrev_b32 %s, 6, %s" % (v(vT1), v(vT1)))
e("v_add_u32 %s, %s, %s" % (v(vVA), v(vT1), v(vT2)))
for dp in range(1, 4):
    e("v_xor_b32 %s, %d, %s" % (v(vVA + dp), dp << 6, v(vT1)))
    e("v_add_u32 %s, %s, %s" % (v(vVA + dp), v(vVA + dp), v(vT2)))
c("q frag address: QL + (n&3)*272 + q'*64")
e("v_mul_u32_u24 %s, 272, %s" % (v(vQB), v(vT0)))
e("v_lshl_add_u32 %s, %s, 6, %s" % (v(vQB), v(vQ), v(vQB)))
c("wo dma offsets")
e("v_lshrrev_b32 %s, 2, %s" % (v(vT0), v(vL)))
e("v_and_b32 %s, 3, %s" % (v(vT1), v(vL)))
e("v_lshlrev_b32 %s, 10, %s" % (v(vT0), v(vT0)))
e("v_lshl_add_u32 %s, %s, 4, %s" % (v(vWOo), v(vT1), v(vT0)))
e("s_lshl_b32 s%d, s%d, 19" % (sOFF, sG))
e("s_lshr_b32 s%d, s%d, 2" % (sTMP, sC))
e("s_lshl_b32 s%d, s%d, 16" % (sTMP, sTMP))
e("s_add_u32 s%d, s%d, s%d" % (sOFF, sOFF, sTMP))
e("s_and_b32 s%d, s%d, 3" % (sTMP, sC))
e("s_lshl_b32 s%d, s%d, 8" % (sTMP, sTMP))
e("s_add_u32 s%d, s%d, s%d" % (sOFF, sOFF, sTMP))
e("s_lshl_b32 s%d, s%d, 6" % (sTMP, sAW))
e("s_add_u32 s%d, s%d, s%d" % (sOFF, sOFF, sTMP))
vONE, vSC, vP, vM, vR, vCW, vMW, vCR, vMR = 20, 24, 32, 36, 37, 38, 39, 40, 41
vF, vD = 44, 52
vS1, vS2 = 42, 43
vO, vLS, vWOF = 64, 96, 100
vQF = 116
vKF, vVF = 132, 164
for i in range(4): e("v_mov_b32 %s, 0x3f803f80" % v(vONE + i))
mask(sMASKQ, 0x000F000F); mask(sN1, 0xAAAAAAAA); mask(sN2, 0xCCCCCCCC)
c("combine addresses")
e("v_mul_u32_u24 %s, 576, %s" % (v(vCW), v(vN)))
e("v_lshl_add_u32 %s, %s, 4, %s" % (v(vCW), v(vQ), v(vCW)))
e("s_mul_i32 s%d, s%d, 2304" % (sTMP, sAW))
e("v_add_u32 %s, s%d, %s" % (v(vCW), sTMP, v(vCW)))
e("s_lshl_b32 s%d, s%d, 2" % (sTMP, sAW))
e("s_add_u32 s%d, s%d, %d" % (sTMP, sTMP, ML))
e("v_lshl_add_u32 %s, %s, 4, s%d" % (v(vMW), v(vN), sTMP))
e("s_mul_i32 s%d, s%d, 576" % (sTMP, sAW))
e("v_lshl_add_u32 %s, %s, 3, s%d" % (v(vCR), v(vL), sTMP))
e("s_lshl_b32 s%d, s%d, 4" % (sTMP, sAW))
e("v_mov_b32 %s, s%d" % (v(vMR), sTMP))
e("s_mov_b32 s%d, %s" % (sA, hx(f2u(128 ** -0.5))))
e("s_mov_b32 s%d, %s" % (sB, hx(f2u(math.log2(math.e)))))
e("s_waitcnt lgkmcnt(0)")
mktag()
e("v_mov_b32 %s, s%d" % (v(vZ2 + 3), sTAG))
e("s_lshl_b32 s%d, s%d, 12" % (sTMP, sAW))
e("s_add_u32 m0, s%d, %d" % (sTMP, WOB))
e("s_waitcnt vmcnt(8)")
stamp(4)
for T in range(2):
    for t in range(4):
        e("ds_read_b128 %s, %s offset:%d" % (v(vKF + 16 * T + 4 * t, 4), v(vKA), 4 * KP * T + 16 * t))
e("s_barrier")
for t in range(4):
    e("ds_read_b128 %s, %s offset:%d" % (v(vQF + 4 * t, 4), v(vQB), QL + 16 * t))
e("v_mov_b32 %s, %d" % (v(vT0), MODE))
e("ds_read_b32 %s, %s" % (v(vT0), v(vT0)))
for i in range(4):
    e("buffer_load_dwordx4 %s, %s, s%d offen offset:%d nt lds" % (v(vWOo), srd(SRD_C), sOFF, 1024 * i))
    if i < 3: e("s_add_u32 s%d, s%d, %d" % (sOFF, sOFF, 16384 - 1024))
for t in range(4):
    e("s_waitcnt lgkmcnt(%d)" % (4 - t))
    for T in range(2):
        e("v_mfma_f32_16x16x32_bf16 %s, %s, %s, %s" % (v(vSC + 4 * T, 4), v(vKF + 16 * T + 4 * t, 4), v(vQF + 4 * t, 4), v(vSC + 4 * T, 4) if t else "0"))
e("s_waitcnt lgkmcnt(0)")
e("v_readfirstlane_b32 s%d, %s" % (sMODE, v(vT0)))
e("s_nop 5")
for i in range(4): e("v_cvt_pk_bf16_f32 %s, %s, %s" % (v(vP + i), v(vSC + 2 * i), v(vSC + 2 * i + 1)))
for i in range(4): unpack(vSC + 2 * i, vP + i)
for i in range(8): e("v_mul_f32 %s, s%d, %s" % (v(vSC + i), sA, v(vSC + i)))
for i in range(4): e("v_cvt_pk_bf16_f32 %s, %s, %s" % (v(vP + i), v(vSC + 2 * i), v(vSC + 2 * i + 1)))
for i in range(4): unpack(vSC + 2 * i, vP + i)
e("v_max3_f32 %s, %s, %s, %s" % (v(vM), v(vSC), v(vSC + 1), v(vSC + 2)))
e("v_max3_f32 %s, %s, %s, %s" % (v(vR), v(vSC + 3), v(vSC + 4), v(vSC + 5)))
e("v_max3_f32 %s, %s, %s, %s" % (v(vM), v(vM), v(vSC + 6), v(vSC + 7)))
e("v_max_f32 %s, %s, %s" % (v(vM), v(vM), v(vR)))
e("v_mov_b32 %s, %s" % (v(vR), v(vM)))
e("s_nop 1")
e("v_permlane32_swap_b32 %s, %s" % (v(vM), v(vR)))
e("v_max_f32 %s, %s, %s" % (v(vM), v(vM), v(vR)))
e("v_mov_b32 %s, %s" % (v(vR), v(vM)))
e("s_nop 1")
e("v_permlane16_swap_b32 %s, %s" % (v(vM), v(vR)))
e("v_max_f32 %s, %s, %s" % (v(vM), v(vM), v(vR)))
e("v_mul_f32 %s, s%d, %s" % (v(vM), sB, v(vM)))
for i in range(8): e("v_fma_f32 %s, %s, s%d, -%s" % (v(vSC + i), v(vSC + i), sB, v(vM)))
for i in range(8): e("v_exp_f32 %s, %s" % (v(vSC + i), v(vSC + i)))
e("s_nop 0")
for i in range(4): e("v_cvt_pk_bf16_f32 %s, %s, %s" % (v(vP + i), v(vSC + 2 * i), v(vSC + 2 * i + 1)))
c("slow mode: use the write-through mailbox")
e("s_cmp_eq_u32 s%d, 0" % sMODE)
e("s_cselect_b32 s%d, %d, 0" % (sSTEP, MB2B - MB2A))
e("s_add_u32 s%d, s%d, s%d" % (sOFF2, sOFF2, sSTEP))
e("v_mfma_f32_16x16x32_bf16 %s, %s, %s, 0" % (v(vLS, 4), v(vONE, 4), v(vP, 4)))
stamp(12)
e("s_waitcnt vmcnt(4)")
stamp(5)
for db in range(8):
    for h in range(2):
        e("ds_read_b64_tr_b16 %s, %s offset:%d" % (v(vVF + 4 * db + 2 * h, 2), v(vVA + (db >> 1)), 4 * VP * h + 32 * (db & 1)))
for db in range(8):
    e("s_waitcnt lgkmcnt(%d)" % (14 - 2 * db))
    e("v_mfma_f32_16x16x32_bf16 %s, %s, %s, 0" % (v(vO + 4 * db, 4), v(vVF + 4 * db, 4), v(vP, 4)))
e("s_mov_b64 exec, %s" % sp(sMASKQ))
e("ds_write2_b32 %s, %s, %s offset0:0 offset1:16" % (v(vMW), v(vM), v(vLS)))
for db in range(8):
    if db == 7: e("s_nop 0")
    e("ds_write_b128 %s, %s offset:%d" % (v(vCW), v(vO + 4 * db, 4), CMB + 64 * db))
e("s_mov_b64 exec, -1")
e("s_waitcnt lgkmcnt(0)")
e("s_barrier")
e("ds_read_b128 %s, %s offset:%d" % (v(vF, 4), v(vMR), ML))
e("ds_read_b128 %s, %s offset:%d" % (v(vF + 4, 4), v(vMR), ML + 64))
for w in range(4):
    e("ds_read_b64 %s, %s offset:%d" % (v(vD + 2 * w, 2), v(vCR), CMB + 2304 * w))
e("s_waitcnt lgkmcnt(5)")
e("v_max3_f32 %s, %s, %s, %s" % (v(vM), v(vF), v(vF + 1), v(vF + 2)))
e("v_max_f32 %s, %s, %s" % (v(vM), v(vM), v(vF + 3)))
for w in range(4): e("v_sub_f32 %s, %s, %s" % (v(vF + w), v(vF + w), v(vM)))
for w in range(4): e("v_exp_f32 %s, %s" % (v(vF + w), v(vF + w)))
e("s_waitcnt lgkmcnt(4)")
e("v_mul_f32 %s, %s, %s" % (v(vR), v(vF), v(vF + 4)))
for w in range(1, 4): e("v_fmac_f32 %s, %s, %s" % (v(vR), v(vF + w), v(vF + 4 + w)))
e("v_rcp_f32 %s, %s" % (v(vS1), v(vR)))
e("v_log_f32 %s, %s" % (v(vS2), v(vR)))
e("s_waitcnt lgkmcnt(0)")
e("v_mul_f32 %s, %s, %s" % (v(vZ2), v(vF), v(vD)))
e("v_mul_f32 %s, %s, %s" % (v(vZ2 + 1), v(vF), v(vD + 1)))
for w in range(1, 4):
    e("v_fmac_f32 %s, %s, %s" % (v(vZ2), v(vF + w), v(vD + 2 * w)))
    e("v_fmac_f32 %s, %s, %s" % (v(vZ2 + 1), v(vF + w), v(vD + 2 * w + 1)))
e("v_mul_f32 %s, %s, %s" % (v(vZ2), v(vZ2), v(vS1)))
e("v_mul_f32 %s, %s, %s" % (v(vZ2 + 1), v(vZ2 + 1), v(vS1)))
e("v_add_f32 %s, %s, %s" % (v(vZ2 + 2), v(vM), v(vS2)))
e("s_cmp_eq_u32 s%d, 0" % sMODE)
e("s_cbranch_scc1 L_p2slow")
e("buffer_store_dwordx4 %s, %s, %s, s%d offen%s" % (v(vZ2, 4), v(vP2), srd(SRD_WS), sOFF2, fs))
lab("L_p2done")
stamp(7)
c("---- hop 2 gather: region g*32 + (c>>2)*4 + aw ----")
e("s_lshr_b32 s%d, s%d, 2" % (sTMP, sC))
e("s_lshl_b32 s%d, s%d, 2" % (sTMP, sTMP))
e("s_add_u32 s%d, s%d, s%d" % (sTMP, sTMP, sAW))
e("s_lshl_b32 s%d, s%d, 12" % (sTMP, sTMP))
e("s_lshl_b32 s%d, s%d, 17" % (sOFF, sG))
e("s_add_u32 s%d, s%d, s%d" % (sOFF, sOFF, sTMP))
e("s_add_u32 s%d, s%d, %d" % (sOFF, sOFF, MB2A))
e("s_add_u32 s%d, s%d, s%d" % (sOFF, sOFF, sSTEP))
vG2A, vOXW, vOXR, vP3, vWA = 7, 9, 10, 11, 12
e("v_lshlrev_b32 %s, 4, %s" % (v(vG2A), v(vL)))
G2 = vKF
offs2 = [0, 1024, 2048, 3072]
def h2_loads():
    for i in range(4):
        e("buffer_load_dwordx4 %s, %s, %s, s%d offen offset:%d sc1" % (v(G2 + 4 * i, 4), v(vG2A), srd(SRD_WS), sOFF, offs2[i]))
h2_loads()
c("wo fragment address")
e("v_lshrrev_b32 %s, 2, %s" % (v(vT0), v(vL)))
e("v_and_b32 %s, 3, %s" % (v(vT1), v(vL)))
e("v_lshlrev_b32 %s, 6, %s" % (v(vT0), v(vT0)))
e("v_lshl_add_u32 %s, %s, 3, %s" % (v(vT0), v(vT1), v(vT0)))
e("s_lshl_b32 s%d, s%d, 12" % (sTMP, sAW))
e("s_add_u32 s%d, s%d, %d" % (sTMP, sTMP, WOB))
e("v_add_u32 %s, s%d, %s" % (v(vWA), sTMP, v(vT0)))
e("s_lshr_b32 s%d, s%d, 1" % (sTMP, sAW))
e("s_lshl_b32 s%d, s%d, 6" % (sTMP, sTMP))
e("s_and_b32 s%d, s%d, 1" % (sA, sAW))
e("s_lshl_b32 s%d, s%d, 3" % (sA, sA))
e("s_add_u32 s%d, s%d, s%d" % (sTMP, sTMP, sA))
e("v_lshlrev_b32 %s, 4, %s" % (v(vOXR), v(vQ)))
e("v_bfe_u32 %s, %s, 1, 2" % (v(vT0), v(vL)))
e("v_lshl_add_u32 %s, %s, 4, s%d" % (v(vOXW), v(vT0), sTMP))
e("v_and_b32 %s, 1, %s" % (v(vT0), v(vL)))
e("v_lshl_add_u32 %s, %s, 2, %s" % (v(vOXW), v(vT0), v(vOXW)))
e("v_lshrrev_b32 %s, 5, %s" % (v(vT0), v(vL)))
e("v_lshl_add_u32 %s, %s, 1, %s" % (v(vOXW), v(vT0), v(vOXW)))
mask(sMASK0, 0x000000FF)
c("hop 3 publish address")
e("v_lshrrev_b32 %s, 1, %s" % (v(vT0), v(vN)))
e("v_lshlrev_b32 %s, 7, %s" % (v(vT0), v(vT0)))
e("v_lshl_add_u32 %s, %s, 5, %s" % (v(vT0), v(vQ), v(vT0)))
e("v_and_b32 %s, 1, %s" % (v(vT1), v(vN)))
e("v_lshl_add_u32 %s, %s, 4, %s" % (v(vP3), v(vT1), v(vT0)))
e("s_and_b32 s%d, s%d, 3" % (sOFF3, sC))
e("s_lshl_b32 s%d, s%d, 16" % (sOFF3, sOFF3))
e("s_lshl_b32 s%d, s%d, 13" % (sTMP, sG))
e("s_add_u32 s%d, s%d, s%d" % (sOFF3, sOFF3, sTMP))
e("s_lshr_b32 s%d, s%d, 2" % (sTMP, sC))
e("s_lshl_b32 s%d, s%d, 10" % (sTMP, sTMP))
e("s_add_u32 s%d, s%d, s%d" % (sOFF3, sOFF3, sTMP))
e("s_lshl_b32 s%d, s%d, 8" % (sTMP, sAW))
e("s_add_u32 s%d, s%d, s%d" % (sOFF3, sOFF3, sTMP))
e("s_add_u32 s%d, s%d, %d" % (sOFF3, sOFF3, MB3))
vZ3 = 60
e("v_mov_b32 %s, s%d" % (v(vZ3 + 2), sTAG))
e("v_mov_b32 %s, s%d" % (v(vZ3 + 3), sTAG))
e("s_waitcnt vmcnt(5)")
stamp(13)
for b in range(2):
    for s in range(2):
        for h in range(2):
            e("ds_read_b64_tr_b16 %s, %s offset:%d" % (v(vWOF + 8 * b + 4 * s + 2 * h, 2), v(vWA), 32 * b + 2048 * s + 1024 * h))
e("s_branch L_h2chk")
lab("L_h2retry")
e("s_mov_b64 exec, -1")
h2_loads()
lab("L_h2chk")
e("s_waitcnt vmcnt(0)")
for i in range(4):
    e("v_cmpx_eq_u32 vcc, s%d, %s" % (sTAG, v(G2 + 4 * i + 3)))
e("s_cmp_eq_u64 exec, -1")
e("s_cbranch_scc1 L_h2ok")
spin_check("L_h2retry")
lab("L_h2ok")
stamp(8)
A_ = [G2 + 4 * i + 2 for i in range(4)]
e("v_max3_f32 %s, %s, %s, %s" % (v(vM), v(A_[0]), v(A_[1]), v(A_[2])))
e("v_max_f32 %s, %s, %s" % (v(vM), v(vM), v(A_[3])))
e("v_mov_b32 %s, %s" % (v(vR), v(vM)))
e("s_nop 1")
e("v_permlane32_swap_b32 %s, %s" % (v(vM), v(vR)))
e("v_max_f32 %s, %s, %s" % (v(vM), v(vM), v(vR)))
e("v_mov_b32 %s, %s" % (v(vR), v(vM)))
e("s_nop 1")
e("v_permlane16_swap_b32 %s, %s" % (v(vM), v(vR)))
e("v_max_f32 %s, %s, %s" % (v(vM), v(vM), v(vR)))
dpp_reduce("v_max_f32", [vM], ROW[:1])
for i in range(4): e("v_sub_f32 %s, %s, %s" % (v(vF + i), v(A_[i]), v(vM)))
for i in range(4): e("v_exp_f32 %s, %s" % (v(vF + i), v(vF + i)))
Y0, Y1, W, W2 = vD, vD + 1, vD + 2, vD + 3
e("v_mul_f32 %s, %s, %s" % (v(Y0), v(vF), v(G2)))
e("v_mul_f32 %s, %s, %s" % (v(Y1), v(vF), v(G2 + 1)))
e("v_add_f32 %s, %s, %s" % (v(W), v(vF), v(vF + 1)))
e("v_add_f32 %s, %s, %s" % (v(W2), v(vF + 2), v(vF + 3)))
for i in range(1, 4):
    e("v_fmac_f32 %s, %s, %s" % (v(Y0), v(vF + i), v(G2 + 4 * i)))
    e("v_fmac_f32 %s, %s, %s" % (v(Y1), v(vF + i), v(G2 + 4 * i + 1)))
    if i == 1:
        e("v_add_f32 %s, %s, %s" % (v(W), v(W), v(W2)))
        e("v_mov_b32 %s, %s" % (v(W2), v(W)))
e("v_permlane32_swap_b32 %s, %s" % (v(W), v(W2)))
e("s_nop 0")
e("v_permlane32_swap_b32 %s, %s" % (v(Y0), v(Y1)))
e("v_add_f32 %s, %s, %s" % (v(W), v(W), v(W2)))
e("v_add_f32 %s, %s, %s" % (v(Y0), v(Y0), v(Y1)))
e("s_nop 1")
e("v_permlane16_swap_b32 %s, %s" % (v(Y0), v(W)))
e("v_add_f32 %s, %s, %s" % (v(Y0), v(Y0), v(W)))
dpp_reduce("v_add_f32", [Y0], ROW[:1])
e("v_rcp_f32 %s, %s" % (v(W), v(Y0)))
e("s_nop 1")
e("v_permlane16_swap_b32 %s, %s" % (v(W), v(W2)))
e("v_mul_f32 %s, %s, %s" % (v(Y0), v(Y0), v(W2)))
e("v_cvt_pk_bf16_f32 %s, %s, %s" % (v(Y0), v(Y0), v(Y0)))
e("s_mov_b64 exec, %s" % sp(sMASK0))
e("ds_write_b16 %s, %s offset:%d" % (v(vOXW), v(Y0), OX))
e("s_mov_b64 exec, -1")
e("s_waitcnt lgkmcnt(0)")
e("s_barrier")
e("ds_read_b128 %s, %s offset:%d" % (v(vF, 4), v(vOXR), OX))
e("ds_read_b128 %s, %s offset:%d" % (v(vF + 4, 4), v(vOXR), OX + 64))
e("s_waitcnt lgkmcnt(1)")
for b in range(2):
    e("v_mfma_f32_16x16x32_bf16 %s, %s, %s, 0" % (v(vSC + 4 * b, 4), v(vWOF + 8 * b, 4), v(vF, 4)))
e("s_waitcnt lgkmcnt(0)")
for b in range(2):
    e("v_mfma_f32_16x16x32_bf16 %s, %s, %s, %s" % (v(vSC + 4 * b, 4), v(vWOF + 8 * b + 4, 4), v(vF + 4, 4), v(vSC + 4 * b, 4)))
e("s_nop 6")
e("v_cndmask_b32 %s, %s, %s, %s" % (v(vD), v(vSC), v(vSC + 2), sp(sN1)))
e("v_cndmask_b32 %s, %s, %s, %s" % (v(vD + 1), v(vSC + 1), v(vSC + 3), sp(sN1)))
e("v_cndmask_b32 %s, %s, %s, %s" % (v(vD + 2), v(vSC + 4), v(vSC + 6), sp(sN1)))
e("v_cndmask_b32 %s, %s, %s, %s" % (v(vD + 3), v(vSC + 5), v(vSC + 7), sp(sN1)))
e("v_cndmask_b32 %s, %s, %s, %s" % (v(vZ3), v(vD), v(vD + 2), sp(sN2)))
e("v_cndmask_b32 %s, %s, %s, %s" % (v(vZ3 + 1), v(vD + 1), v(vD + 3), sp(sN2)))
e("s_mov_b64 exec, %s" % sp(sMASKQ))
e("buffer_store_dwordx4 %s, %s, %s, s%d offen %s" % (v(vZ3, 4), v(vP3), srd(SRD_WS), sOFF3, H3ST))
e("s_mov_b64 exec, -1")
stamp(9)
lab("L_fin")
if PAD:
    e("s_add_u32 s100, s100, %d" % (PAD * 100))
    lab("L_pad")
    e("s_memrealtime %s" % sp(sST))
    e("s_waitcnt lgkmcnt(0)")
    e("s_sub_u32 s%d, s%d, s100" % (sST, sST))
    e("s_cmp_lt_i32 s%d, 0" % sST)
    e("s_cbranch_scc1 L_pad")
lab("L_fin2")
if STAMPS:
    e("s_mov_b64 exec, -1")
    e("s_waitcnt vmcnt(0)")
    stamp(11)
    e("s_lshl_b32 s%d, s2, 4" % sTMP)
    e("s_add_u32 s%d, s%d, s%d" % (sTMP, sTMP, sWAVE))
    e("s_lshl_b32 s%d, s%d, 6" % (sTMP, sTMP))
    e("s_add_u32 s%d, s%d, %d" % (sTMP, sTMP, STAMP_OFF))
    e("v_mov_b32 %s, 0" % v(vT1))
    e("s_mov_b64 exec, 1")
    for i in range(4):
        e("buffer_store_dwordx4 %s, %s, %s, s%d offen offset:%d" % (v(vSTP + 4 * i, 4), v(vT1), srd(SRD_WS), sTMP, 16 * i))
lab("L_end")
e("s_endpgm")
lab("L_p2slow")
e("buffer_store_dwordx4 %s, %s, %s, s%d offen sc1" % (v(vZ2, 4), v(vP2), srd(SRD_WS), sOFF2))
e("s_branch L_p2done")
lab("L_codeend")

hdr = open("cdna_kernels/%s.s.ref" % NAME).read().split("\n")
head = []
for ln in hdr:
    if ln.startswith("; @launch"):
        head.append("; @launch grid=(256,1,1) block=(512,1,1) lds=%d" % LDS_TOTAL)
    elif ln.startswith(";"):
        head.append(ln)
    else:
        break
out = "\n".join(head) + "\n"
out += '.amdgcn_target "amdgcn-amd-amdhsa--gfx950"\n.text\n.globl %s_kernel\n.p2align 8\n.type %s_kernel,@function\n%s_kernel:\n' % (NAME, NAME, NAME)
out += "\n".join(L) + "\n"
out += '''.section .rodata,"a"
.p2align 6
.amdhsa_kernel %s_kernel
  .amdhsa_next_free_vgpr %d
  .amdhsa_next_free_sgpr 102
  .amdhsa_accum_offset %d
  .amdhsa_group_segment_fixed_size 0
  .amdhsa_kernarg_size 104
  .amdhsa_user_sgpr_count 2
  .amdhsa_user_sgpr_kernarg_segment_ptr 1
  .amdhsa_system_sgpr_workgroup_id_x 1
  .amdhsa_float_denorm_mode_32 3
.end_amdhsa_kernel
''' % (NAME, NVGPR, NVGPR)
open(sys.argv[1], "w").write(out)
```

```python
import sys, struct, math
NAME = "recurrent_scan__sliding_block_cached__mixer_token_mlp__decode"
opts = dict(a.split("=") if "=" in a else (a, "1") for a in sys.argv[2:])
STAMPS = int(opts.get("stamps", 0))
PAD = int(opts.get("pad", 0))
PREFETCH = int(opts.get("pf", 1))
PREWRITE = int(opts.get("pw", 1))
QK = int(opts.get("qk", 4))
PFLATE = int(opts.get("pflate", 1))
B1B = int(opts.get("b1b", 1))
FASTST = opts.get("fastst", "sc0")
FORCE_SLOW = int(opts.get("slow", 0))
NPIPE = int(opts.get("npipe", 4))
SLEEP = int(opts.get("sleep", 3))
THR = int(opts.get("thr", 6))
LSLEEP = int(opts.get("lsleep", 0))
QWAIT = int(opts.get("qwait", -1))
QD0 = int(opts.get("qd0", 12))
QD1 = int(opts.get("qd1", 8))
QPIPE = int(opts.get("qpipe", 0))
H3LD = opts.get("h3ld", "sc1").replace("+", " ")
H3ST = opts.get("h3st", "sc1").replace("+", " ")
ATOM = int(opts.get("atom", 0))
PRESLEEP = int(opts.get("presleep", 16))

L = []
def e(s): L.append("    " + s)
def lab(s): L.append(s + ":")
def c(s): L.append("    ; " + s)
def f2u(x): return struct.unpack("<I", struct.pack("<f", x))[0]
def hx(x): return "0x%08x" % (x & 0xffffffff)

XN = 0
QL = 1024
MODE = QL + 1088
OX = 2176
ML = 2304
YB = 2432
CMB = 2560
KBUF = 12288
KP, VP = 1040, 1056
VBUF = KBUF + 32 * KP
WQB = VBUF + 32 * VP
WOB = WQB + 16384
LDS_TOTAL = WOB + 16384
EPOCH = 0
MB1A = 1 << 17
MB1B = MB1A + (1 << 17)
MB3 = MB1B + (1 << 17)
MB2A = 1 << 20
MB2B = 2 << 20
WS_USED = 3 << 20
STAMP_OFF = 32 << 20
WS_NREC = (33 << 20) if STAMPS else WS_USED

sWAVE, sG, sC, sP4, sPIV, sA, sB = 3, 4, 5, 6, 7, 8, 9
sTAG = 10
sSPIN, sTMP, sM0, sOFF = 12, 13, 14, 15
sE, sXP = 42, 43
SRD_A, SRD_B, SRD_C, SRD_D, SRD_WS = 44, 48, 52, 56, 60
sB2, sCNT, sAW, sMODE = 64, 65, 66, 67
sMASKQ, sMASK0, sN1, sN2, sN4, sM8 = 68, 70, 72, 74, 76, 78
sH0, sH1 = 80, 81
sT3 = 82
sOFF2, sOFF3, sSTEP = 84, 85, 86
sPC = 88
sST = 98
def srd(b): return "s[%d:%d]" % (b, b + 3)
def sp(b): return "s[%d:%d]" % (b, b + 1)
def v(a, n=1): return "v%d" % a if n == 1 else "v[%d:%d]" % (a, a + n - 1)

vL, vQ, vN, vT0, vT1, vT2 = 1, 2, 3, 4, 5, 6
vSTP = 240
NVGPR = 256

def stamp(i):
    if not STAMPS: return
    e("s_waitcnt lgkmcnt(0)")
    e("s_memrealtime %s" % sp(sST))
    e("s_waitcnt lgkmcnt(0)")
    e("v_mov_b32 %s, s%d" % (v(vSTP + i), sST))

def dpp_reduce(op, regs, steps):
    for s in steps:
        pad = 2 - (len(regs) - 1)
        if pad > 0: e("s_nop %d" % (pad - 1))
        for r in regs:
            e("%s_dpp %s, %s, %s %s" % (op, v(r), v(r), v(r), s))
ROW = ["row_ror:8 row_mask:0xf bank_mask:0xf", "row_ror:4 row_mask:0xf bank_mask:0xf",
       "row_ror:2 row_mask:0xf bank_mask:0xf", "row_ror:1 row_mask:0xf bank_mask:0xf"]
XROW = ["row_bcast:15 row_mask:0xa bank_mask:0xf", "row_bcast:31 row_mask:0xc bank_mask:0xf"]
def unpack(dst, src):
    e("v_lshlrev_b32 %s, 16, %s" % (v(dst), v(src)))
    e("v_and_b32 %s, 0xffff0000, %s" % (v(dst + 1), v(src)))
def round1(r):
    e("v_cvt_pk_bf16_f32 %s, %s, %s" % (v(r), v(r), v(r)))
    e("v_and_b32 %s, 0xffff0000, %s" % (v(r), v(r)))
def round2(r, tmp):
    e("v_cvt_pk_bf16_f32 %s, %s, %s" % (v(tmp), v(r), v(r + 1)))
    unpack(r, tmp)
def ln_finish(vmean, vvar):
    e("v_max_f32 %s, 0, %s" % (v(vvar), v(vvar)))
    round1(vmean)
    round1(vvar)
    e("v_add_f32 %s, %s, %s" % (v(vvar), hx(f2u(1e-5)), v(vvar)))
    round1(vvar)
    e("v_sqrt_f32 %s, %s" % (v(vvar), v(vvar)))
    e("s_nop 0")
    round1(vvar)
    e("v_rcp_f32 %s, %s" % (v(vvar), v(vvar)))
    e("s_nop 0")
def spin_check(retry_label):
    e("s_sub_u32 s%d, s%d, 1" % (sSPIN, sSPIN))
    e("s_cbranch_scc0 %s" % retry_label)
    e("s_branch L_end")
def mksrd(b, p, n):
    e("s_mov_b64 %s, %s" % (sp(b), sp(p)))
    e("s_mov_b32 s%d, %s" % (b + 2, hx(n)))
    e("s_mov_b32 s%d, 0x00020000" % (b + 3))
def mask(r, m):
    e("s_mov_b32 s%d, %s" % (r, hx(m)))
    e("s_mov_b32 s%d, %s" % (r + 1, hx(m)))
def mktag():
    e("s_mul_i32 s%d, s%d, 0x9E3779B1" % (sTAG, sE))
    e("s_add_u32 s%d, s%d, 0x632BE5AB" % (sTAG, sTAG))
fs = (" " + FASTST) if FASTST else ""

lab("L_start")
e("s_cmp_ge_u32 s2, 256")
e("s_cbranch_scc1 L_end")
e("s_load_dwordx16 s[16:31], s[0:1], 0")
e("s_load_dwordx8 s[32:39], s[0:1], 64")
e("s_load_dwordx2 s[40:41], s[0:1], 96")
if STAMPS:
    e("s_memrealtime %s" % sp(sST))
    for i in range(16): e("v_mov_b32 %s, 0" % v(vSTP + i))
if PAD: e("s_memrealtime s[100:101]")
e("v_lshrrev_b32 %s, 6, v0" % v(vT0))
e("v_and_b32 %s, 63, v0" % v(vL))
e("v_readfirstlane_b32 s%d, %s" % (sWAVE, v(vT0)))
e("v_lshrrev_b32 %s, 4, %s" % (v(vQ), v(vL)))
e("v_and_b32 %s, 15, %s" % (v(vN), v(vL)))
e("s_and_b32 s%d, s2, 7" % sG)
e("s_lshr_b32 s%d, s2, 3" % sC)
e("s_mov_b32 s%d, 0x40000" % sSPIN)
e("s_cmp_ge_u32 s%d, 4" % sWAVE)
e("s_cbranch_scc1 L_A")
vX = 8
c("x offset: (l>>2)*64 + (l&3)*8")
e("v_lshrrev_b32 %s, 2, %s" % (v(vT0), v(vL)))
e("v_and_b32 %s, 3, %s" % (v(vT1), v(vL)))
e("v_lshlrev_b32 %s, 6, %s" % (v(vT0), v(vT0)))
e("v_lshl_add_u32 %s, %s, 3, %s" % (v(vT0), v(vT1), v(vT0)))
e("s_lshl_b32 s%d, s%d, 5" % (sP4, sG))
e("s_add_u32 s%d, s%d, s%d" % (sP4, sP4, sC))
e("s_lshl_b32 s%d, s%d, 2" % (sP4, sP4))
e("s_cmp_lg_u32 s%d, 0" % sWAVE)
e("s_cbranch_scc1 L_B0")
c("---- Q wave: issue x and wq loads ----")
e("s_setprio 3")
e("v_lshrrev_b32 %s, 3, %s" % (v(vT1), v(vL)))
e("v_lshlrev_b32 %s, 1, %s" % (v(vT2), v(vQ)))
e("v_xor_b32 %s, %s, %s" % (v(vT2), v(vT2), v(vL)))
e("v_and_b32 %s, 7, %s" % (v(vT2), v(vT2)))
e("v_lshlrev_b32 %s, 13, %s" % (v(vT1), v(vT1)))
e("v_lshl_add_u32 %s, %s, 4, %s" % (v(vT1), v(vT2), v(vT1)))
e("s_and_b32 s%d, s%d, 3" % (sOFF, sC))
e("s_lshl_b32 s%d, s%d, 20" % (sOFF, sOFF))
e("s_lshl_b32 s%d, s%d, 10" % (sTMP, sG))
e("s_add_u32 s%d, s%d, s%d" % (sOFF, sOFF, sTMP))
e("s_lshr_b32 s%d, s%d, 2" % (sTMP, sC))
e("s_lshl_b32 s%d, s%d, 7" % (sTMP, sTMP))
e("s_add_u32 s%d, s%d, s%d" % (sOFF, sOFF, sTMP))
e("s_mov_b32 m0, %d" % WQB)
e("s_mov_b32 s%d, %s" % (SRD_B + 2, hx(1 << 22)))
e("s_mov_b32 s%d, 0x00020000" % (SRD_B + 3))
WQ4 = int(opts.get("wq4", 0))
e("s_mov_b32 s%d, %d" % (sCNT, 12 if WQ4 else 16))
if WQ4: e("s_mov_b32 s%d, %d" % (sSTEP, 65536 - 1024))
vEP = 22
e("v_mov_b32 %s, 0" % v(vEP))
e("s_waitcnt lgkmcnt(0)")
if STAMPS: e("v_mov_b32 %s, s%d" % (v(vSTP), sST))
e("s_mov_b64 %s, s[22:23]" % sp(SRD_B))
e("global_load_dwordx2 %s, %s, s[16:17]" % (v(vX, 2), v(vT0)))
e("global_load_dwordx2 %s, %s, s[16:17] offset:32" % (v(vX + 2, 2), v(vT0)))
e("global_load_dword %s, %s, s[40:41] offset:%d sc1" % (v(vEP), v(vEP), EPOCH))
lab("L_wqloop")
if WQ4:
    for i in range(4):
        e("buffer_load_dwordx4 %s, %s, s%d offen offset:%d nt lds" % (v(vT1), srd(SRD_B), sOFF, 1024 * i))
        if i < 3: e("s_add_u32 s%d, s%d, s%d" % (sOFF, sOFF, sSTEP))
    e("s_add_u32 m0, m0, 4096")
    e("s_add_u32 s%d, s%d, %d" % (sOFF, sOFF, 65536 + 3072))
    e("s_sub_u32 s%d, s%d, 4" % (sCNT, sCNT))
    e("s_cbranch_scc0 L_wqloop")
else:
    e("buffer_load_dwordx4 %s, %s, s%d offen nt lds" % (v(vT1), srd(SRD_B), sOFF))
    e("s_sub_u32 s%d, s%d, 1" % (sCNT, sCNT))
    e("s_add_u32 m0, m0, 1024")
    e("s_add_u32 s%d, s%d, 65536" % (sOFF, sOFF))
    e("s_cmp_lg_u32 s%d, 0" % sCNT)
    e("s_cbranch_scc1 L_wqloop")
if QWAIT >= 0: e("s_waitcnt vmcnt(%d)" % QWAIT)
e("s_barrier")
mksrd(SRD_WS, 40, WS_NREC)
c("publish address: (n>>1)*128 + q'*32 + (n&1)*16 ; record (g*32+c)*512")
vPUB = 7
e("v_lshrrev_b32 %s, 1, %s" % (v(vT0), v(vN)))
e("v_lshlrev_b32 %s, 7, %s" % (v(vT0), v(vT0)))
e("v_lshl_add_u32 %s, %s, 5, %s" % (v(vT0), v(vQ), v(vT0)))
e("v_and_b32 %s, 1, %s" % (v(vT1), v(vN)))
e("v_lshl_add_u32 %s, %s, 4, %s" % (v(vPUB), v(vT1), v(vT0)))
e("s_lshl_b32 s%d, s%d, 7" % (sOFF, sP4))
e("s_add_u32 s%d, s%d, %d" % (sOFF, sOFF, MB1A))
mask(sM8, 0x00FF00FF)
vZ = 12
if PREWRITE:
    for i in range(4): e("v_mov_b32 %s, 0" % v(vZ + i))
    e("s_mov_b64 exec, %s" % sp(sM8))
    e("buffer_store_dwordx4 %s, %s, %s, s%d offen%s" % (v(vZ, 4), v(vPUB), srd(SRD_WS), sOFF, fs))
    e("s_mov_b64 exec, -1")
NQ = 1 if PREWRITE else 0
e("s_waitcnt vmcnt(%d)" % (16 + NQ))
e("s_branch L_ln1")
lab("L_B0")
c("---- B waves: issue x, w1, b1, w2 loads ----")
vW1, vB1, vW2 = 16, 22, 28
e("v_subrev_u32 %s, 64, v0" % v(vT1))
e("v_mul_u32_u24 %s, 20, %s" % (v(vT1), v(vT1)))
e("v_mov_b32 %s, s%d" % (v(33), sP4))
e("s_waitcnt lgkmcnt(0)")
if STAMPS: e("v_mov_b32 %s, s%d" % (v(vSTP), sST))
e("global_load_dwordx2 %s, %s, s[16:17]" % (v(vX, 2), v(vT0)))
e("global_load_dwordx2 %s, %s, s[16:17] offset:32" % (v(vX + 2, 2), v(vT0)))
e("global_load_dword %s, %s, s[16:17]" % (v(33), v(33)))
for b, p, r in ((SRD_A, 28, vW1), (SRD_B, 30, vB1), (SRD_C, 32, vW2)):
    mksrd(b, p, 3584)
    e("buffer_load_dwordx4 %s, %s, %s, 0 offen" % (v(r, 4), v(vT1), srd(b)))
    e("buffer_load_dword %s, %s, %s, 0 offen offset:16" % (v(r + 4), v(vT1), srd(b)))
mksrd(SRD_WS, 40, WS_NREC)
e("v_mov_b32 %s, 0" % v(vPUB))
if PFLATE:
    e("s_barrier")
    if PREFETCH:
        c("pull the kernel's code into L2 (first two workgroups of each group, wave 1)")
        e("s_cmp_ge_u32 s%d, 2" % sC)
        e("s_cbranch_scc1 L_nopf")
        e("s_cmp_lg_u32 s%d, 1" % sWAVE)
        e("s_cbranch_scc1 L_nopf")
        e("s_getpc_b64 %s" % sp(sPC))
        lab("L_pc")
        e("s_sub_u32 s%d, s%d, L_pc-L_start" % (sPC, sPC))
        e("s_subb_u32 s%d, s%d, 0" % (sPC + 1, sPC + 1))
        e("v_lshlrev_b32 %s, 7, %s" % (v(vT0), v(vL)))
        e("v_min_u32 %s, L_codeend-L_start-4, %s" % (v(vT1), v(vT0)))
        e("global_load_dword %s, %s, %s" % (v(34), v(vT1), sp(sPC)))
        e("v_add_u32 %s, 8192, %s" % (v(vT0), v(vT0)))
        e("v_min_u32 %s, L_codeend-L_start-4, %s" % (v(vT1), v(vT0)))
        e("global_load_dword %s, %s, %s" % (v(35), v(vT1), sp(sPC)))
        e("s_waitcnt vmcnt(8)")
        e("s_branch L_ln1")
        lab("L_nopf")
    e("s_waitcnt vmcnt(6)")
else:
    if PREFETCH:
        c("pull the kernel's code into L2 (first two workgroups of each group, wave 1)")
        e("s_cmp_ge_u32 s%d, 2" % sC)
        e("s_cbranch_scc1 L_nopf")
        e("s_cmp_lg_u32 s%d, 1" % sWAVE)
        e("s_cbranch_scc1 L_nopf")
        e("s_getpc_b64 %s" % sp(sPC))
        lab("L_pc")
        e("s_sub_u32 s%d, s%d, L_pc-L_start" % (sPC, sPC))
        e("s_subb_u32 s%d, s%d, 0" % (sPC + 1, sPC + 1))
        e("v_lshlrev_b32 %s, 7, %s" % (v(vT0), v(vL)))
        e("v_min_u32 %s, L_codeend-L_start-4, %s" % (v(vT1), v(vT0)))
        e("global_load_dword %s, %s, %s" % (v(34), v(vT1), sp(sPC)))
        e("v_add_u32 %s, 8192, %s" % (v(vT0), v(vT0)))
        e("v_min_u32 %s, L_codeend-L_start-4, %s" % (v(vT1), v(vT0)))
        e("global_load_dword %s, %s, %s" % (v(35), v(vT1), sp(sPC)))
        e("s_barrier")
        e("s_waitcnt vmcnt(8)")
        e("s_branch L_ln1")
        lab("L_nopf")
    e("s_barrier")
    e("s_waitcnt vmcnt(6)")
lab("L_ln1")
c("---- LN1 (Q and B waves) ----")
stamp(1)
vF, vD, vS1, vS2, vM, vR, vXN = 36, 44, 52, 53, 54, 55, 56
for i in range(4): unpack(vF + 2 * i, vX + i)
e("v_readfirstlane_b32 s%d, %s" % (sPIV, v(vF)))
e("s_nop 1")
for i in range(8): e("v_subrev_f32 %s, s%d, %s" % (v(vD + i), sPIV, v(vF + i)))
def sums():
    e("v_add_f32 %s, %s, %s" % (v(vS1), v(vD), v(vD + 1)))
    e("v_mul_f32 %s, %s, %s" % (v(vS2), v(vD), v(vD)))
    e("v_fmac_f32 %s, %s, %s" % (v(vS2), v(vD + 1), v(vD + 1)))
    for i in range(2, 8):
        e("v_add_f32 %s, %s, %s" % (v(vS1), v(vS1), v(vD + i)))
        e("v_fmac_f32 %s, %s, %s" % (v(vS2), v(vD + i), v(vD + i)))
    dpp_reduce("v_add_f32", [vS1, vS2], ROW + XROW)
    e("s_nop 0")
    e("v_readlane_b32 s%d, %s, 63" % (sA, v(vS1)))
    e("v_readlane_b32 s%d, %s, 63" % (sB, v(vS2)))
sums()
e("v_mov_b32 %s, %s" % (v(vT0), hx(f2u(1.0 / 512))))
e("s_nop 0")
e("v_mul_f32 %s, s%d, %s" % (v(vM), sA, v(vT0)))
e("v_mul_f32 %s, s%d, %s" % (v(vR), sB, v(vT0)))
e("v_fma_f32 %s, -%s, %s, %s" % (v(vR), v(vM), v(vM), v(vR)))
e("v_add_f32 %s, s%d, %s" % (v(vM), sPIV, v(vM)))
ln_finish(vM, vR)
for i in range(8): e("v_sub_f32 %s, %s, %s" % (v(vD + i), v(vF + i), v(vM)))
for i in range(4): e("v_cvt_pk_bf16_f32 %s, %s, %s" % (v(vXN + i), v(vD + 2 * i), v(vD + 2 * i + 1)))
for i in range(4): unpack(vD + 2 * i, vXN + i)
for i in range(8): e("v_mul_f32 %s, %s, %s" % (v(vD + i), v(vD + i), v(vR)))
for i in range(4): e("v_cvt_pk_bf16_f32 %s, %s, %s" % (v(vXN + i), v(vD + 2 * i), v(vD + 2 * i + 1)))
e("s_cmp_lg_u32 s%d, 0" % sWAVE)
e("s_cbranch_scc1 L_B1")
c("======== Q wave: partial q (128 rows x 64 columns) ========")
vBF = 64
vAF = 80
vQA = 144
vAD = 60
e("v_lshlrev_b32 %s, 4, %s" % (v(vT0), v(vL)))
e("ds_write_b128 %s, %s offset:%d" % (v(vT0), v(vXN, 4), XN))
e("s_and_b32 s%d, s%d, 3" % (sTMP, sC))
e("s_lshl_b32 s%d, s%d, 8" % (sTMP, sTMP))
e("v_lshl_add_u32 %s, %s, 4, s%d" % (v(vT0), v(vQ), sTMP))
e("v_lshrrev_b32 %s, 2, %s" % (v(vT1), v(vL)))
e("v_lshlrev_b32 %s, 7, %s" % (v(vT1), v(vT1)))
e("v_bfe_u32 %s, %s, 3, 2" % (v(vT2), v(vL)))
e("v_lshl_add_u32 %s, %s, 5, %s" % (v(vT1), v(vT2), v(vT1)))
e("v_and_b32 %s, 3, %s" % (v(vT2), v(vL)))
e("v_lshl_add_u32 %s, %s, 3, %s" % (v(vT1), v(vT2), v(vT1)))
e("v_add_u32 %s, %d, %s" % (v(vAD), WQB, v(vT1)))
assert WQB % 256 == 0
for b in range(1, 4): e("v_xor_b32 %s, %d, %s" % (v(vAD + b), b << 5, v(vAD)))
e("s_waitcnt lgkmcnt(0)")
for s in range(4):
    e("ds_read_b128 %s, %s offset:%d" % (v(vBF + 4 * s, 4), v(vT0), XN + 64 * s))
e("v_readfirstlane_b32 s%d, %s" % (sE, v(vEP)))
mktag()
e("s_getreg_b32 s%d, hwreg(HW_REG_XCC_ID, 0, 4)" % (sTAG + 1))
if FORCE_SLOW: e("s_add_u32 s%d, s%d, s2" % (sTAG + 1, sTAG + 1))
e("v_mov_b32 %s, s%d" % (v(vZ + 2), sTAG))
e("v_mov_b32 %s, s%d" % (v(vZ + 3), sTAG + 1))
mask(sN1, 0xAAAAAAAA); mask(sN2, 0xCCCCCCCC); mask(sN4, 0xF0F0F0F0)
def q_reads(s):
    e("s_waitcnt vmcnt(%d)" % (12 - 4 * s + NQ))
    for b in range(4):
        for h in range(2):
            e("ds_read_b64_tr_b16 %s, %s offset:%d" % (v(vAF + 16 * s + 4 * b + 2 * h, 2), v(vAD + b), 4096 * s + 2048 * h))
def q_mfma(s, behind):
    for b in range(4):
        e("s_waitcnt lgkmcnt(%d)" % (6 - 2 * b + behind))
        e("v_mfma_f32_16x16x32_bf16 %s, %s, %s, %s" % (v(vQA + 4 * b, 4), v(vAF + 16 * s + 4 * b, 4), v(vBF + 4 * s, 4), v(vQA + 4 * b, 4) if s else "0"))
q_reads(0)
for s in range(4):
    if s < 3: q_reads(s + 1)
    q_mfma(s, 8 if s < 3 else 0)
c("gather address: (l>>3)*2048 + (l&7)*16")
vGA = 16
e("v_lshrrev_b32 %s, 3, %s" % (v(vT0), v(vL)))
e("v_and_b32 %s, 7, %s" % (v(vT1), v(vL)))
e("v_lshlrev_b32 %s, 11, %s" % (v(vGA), v(vT0)))
e("v_lshl_add_u32 %s, %s, 4, %s" % (v(vGA), v(vT1), v(vGA)))
e("s_nop 1")
for b in range(4):
    e("v_cndmask_b32 %s, %s, %s, %s" % (v(vD + 2 * b), v(vQA + 4 * b), v(vQA + 4 * b + 2), sp(sN1)))
    e("v_cndmask_b32 %s, %s, %s, %s" % (v(vD + 2 * b + 1), v(vQA + 4 * b + 1), v(vQA + 4 * b + 3), sp(sN1)))
for k in range(2):
    e("v_cndmask_b32 %s, %s, %s, %s" % (v(vD + 4 * k), v(vD + 4 * k), v(vD + 4 * k + 2), sp(sN2)))
    e("v_cndmask_b32 %s, %s, %s, %s" % (v(vD + 4 * k + 1), v(vD + 4 * k + 1), v(vD + 4 * k + 3), sp(sN2)))
e("v_cndmask_b32 %s, %s, %s, %s" % (v(vZ), v(vD), v(vD + 4), sp(sN4)))
e("v_cndmask_b32 %s, %s, %s, %s" % (v(vZ + 1), v(vD + 1), v(vD + 5), sp(sN4)))
e("s_mov_b64 exec, %s" % sp(sM8))
e("buffer_store_dwordx4 %s, %s, %s, s%d offen%s" % (v(vZ, 4), v(vPUB), srd(SRD_WS), sOFF, fs))
e("s_mov_b64 exec, -1")
if B1B: e("s_barrier")
stamp(2)
c("q LDS write address: (l>>3)*128 + (l>>4)*16 + (l&7)*4")
vQW = 17
e("v_lshlrev_b32 %s, 7, %s" % (v(vQW), v(vT0)))
e("v_lshl_add_u32 %s, %s, 4, %s" % (v(vQW), v(vQ), v(vQW)))
e("v_lshl_add_u32 %s, %s, 2, %s" % (v(vQW), v(vT1), v(vQW)))
e("v_add_u32 %s, %d, %s" % (v(vQW), QL, v(vQW)))
e("s_lshl_b32 s%d, s%d, 14" % (sOFF2, sG))
e("s_add_u32 s%d, s%d, %d" % (sOFF2, sOFF2, MB1A))
e("s_mov_b32 s%d, 0" % sCNT)
e("s_mov_b32 s%d, 1" % sMODE)
G1 = 80
G1B = 160
QS = 24
def q_loads(soff, G=G1):
    for rb in range(4):
        for k in range(QK):
            e("buffer_load_dwordx4 %s, %s, %s, s%d offen offset:%d sc1" % (v(G + 16 * rb + 4 * k, 4), v(vGA), srd(SRD_WS), soff, 512 * rb + 128 * k))
def q_sum(i, G=G1):
    rb, k = divmod(i, 4)
    if rb == 0: return
    for j in range(2):
        e("v_add_f32 %s, %s, %s" % (v(QS + 2 * k + j), v(G + 4 * k + j) if rb == 1 else v(QS + 2 * k + j), v(G + 16 * rb + 4 * k + j)))
def q_check(G, behind):
    idx = [i for i in range(16) if i % 4 < QK]
    if behind: behind = len(idx)
    for n_, i in enumerate(idx):
        e("s_waitcnt vmcnt(%d)" % (len(idx) - 1 - n_ + behind))
        e("v_cmpx_eq_u64 vcc, %s, %s" % (sp(sTAG), v(G + 4 * i + 2, 2)))
        q_sum(i, G)
    e("s_cmp_eq_u64 exec, -1")
if QD0: e("s_sleep %d" % QD0)
lab("L_qpollA")
if QPIPE:
    q_loads(sOFF2, G1)
    if QD1: e("s_sleep %d" % QD1)
    lab("L_qpollA2")
    q_loads(sOFF2, G1B)
    q_check(G1, 16)
    e("s_cbranch_scc1 L_qok")
    e("s_mov_b64 exec, -1")
    q_loads(sOFF2, G1)
    q_check(G1B, 16)
    e("s_cbranch_scc0 L_qfail")
else:
    q_loads(sOFF2, G1)
    q_check(G1, 0)
    e("s_cbranch_scc0 L_qfail")
lab("L_qok")
for k in range(4): e("v_cvt_pk_bf16_f32 %s, %s, %s" % (v(vD + k), v(QS + 2 * k), v(QS + 2 * k + 1)))
e("v_mov_b32 %s, s%d" % (v(vD + 4), sMODE))
e("v_mov_b32 %s, s%d" % (v(vD + 5), sTAG))
e("v_mov_b32 %s, %d" % (v(vD + 6), MODE))
e("ds_write2_b32 %s, %s, %s offset0:0 offset1:8" % (v(vQW), v(vD), v(vD + 1)))
e("ds_write2_b32 %s, %s, %s offset0:16 offset1:24" % (v(vQW), v(vD + 2), v(vD + 3)))
e("ds_write_b64 %s, %s" % (v(vD + 6), v(vD + 4, 2)))
e("s_waitcnt lgkmcnt(0)")
stamp(6)
e("s_barrier")
e("s_load_dword s%d, s[16:17], s%d" % (sXP, sP4))
e("s_load_dword s%d, s[34:35], 0" % sB2)
c("copy for other dies (always stored; not needed on the fast path)")
e("s_cmp_lg_u32 s%d, 0" % sCNT)
e("s_cbranch_scc1 L_qb_done")
e("s_add_u32 s%d, s%d, %d" % (sOFF, sOFF, MB1B - MB1A))
e("s_mov_b64 exec, %s" % sp(sM8))
e("buffer_store_dwordx4 %s, %s, %s, s%d offen sc1" % (v(vZ, 4), v(vPUB), srd(SRD_WS), sOFF))
e("s_mov_b64 exec, -1")
lab("L_qb_done")
c("g for own two columns")
vG, vXO = 18, 20
e("v_mov_b32 %s, 0" % v(vT1))
e("ds_read_b128 %s, %s offset:%d" % (v(vF, 4), v(vT1), YB))
e("ds_read_b64 %s, %s offset:%d" % (v(vF + 4, 2), v(vT1), YB + 16))
e("s_waitcnt lgkmcnt(0)")
e("s_lshl_b32 s%d, s%d, 16" % (sB2, sB2))
e("v_mov_b32 %s, s%d" % (v(vT0), sXP))
unpack(vXO, vT0)
e("v_add_f32 %s, %s, %s" % (v(vG), v(vF), v(vF + 2)))
e("v_add_f32 %s, %s, %s" % (v(vG + 1), v(vF + 1), v(vF + 3)))
e("v_add_f32 %s, %s, %s" % (v(vG), v(vG), v(vF + 4)))
e("v_add_f32 %s, %s, %s" % (v(vG + 1), v(vG + 1), v(vF + 5)))
round2(vG, vT1)
e("v_add_f32 %s, s%d, %s" % (v(vG), sB2, v(vG)))
e("v_add_f32 %s, s%d, %s" % (v(vG + 1), sB2, v(vG + 1)))
round2(vG, vT1)
e("v_mul_f32 %s, %s, %s" % (v(vF), hx(f2u(-math.log2(math.e))), v(vG)))
e("v_mul_f32 %s, %s, %s" % (v(vF + 1), hx(f2u(-math.log2(math.e))), v(vG + 1)))
e("v_exp_f32 %s, %s" % (v(vF), v(vF)))
e("v_exp_f32 %s, %s" % (v(vF + 1), v(vF + 1)))
e("s_nop 0")
e("v_add_f32 %s, 1.0, %s" % (v(vF), v(vF)))
e("v_add_f32 %s, 1.0, %s" % (v(vF + 1), v(vF + 1)))
e("v_rcp_f32 %s, %s" % (v(vF), v(vF)))
e("v_rcp_f32 %s, %s" % (v(vF + 1), v(vF + 1)))
e("s_nop 0")
e("v_mul_f32 %s, %s, %s" % (v(vG), v(vG), v(vF)))
e("v_mul_f32 %s, %s, %s" % (v(vG + 1), v(vG + 1), v(vF + 1)))
round2(vG, vT1)
c("final gather address: MB3 + (p>>6)*65536 + l*1024 + (p&63)*16")
e("s_lshr_b32 s%d, s%d, 8" % (sOFF3, sP4))
e("s_lshl_b32 s%d, s%d, 16" % (sOFF3, sOFF3))
e("s_and_b32 s%d, s%d, 255" % (sTMP, sP4))
e("s_lshl_b32 s%d, s%d, 2" % (sTMP, sTMP))
e("s_add_u32 s%d, s%d, s%d" % (sOFF3, sOFF3, sTMP))
e("s_add_u32 s%d, s%d, %d" % (sOFF3, sOFF3, MB3))
e("v_lshlrev_b32 %s, 10, %s" % (v(vT1), v(vL)))
e("s_mov_b32 s%d, s%d" % (sT3, sTAG))
mksrd(SRD_A, 36, 1024)
e("v_mov_b32 %s, 0" % v(vT2))
e("s_barrier")
e("s_barrier")
G3 = 64
if PRESLEEP: e("s_sleep %d" % PRESLEEP)
e("s_mov_b32 s%d, s%d" % (sT3 + 1, sTAG))
lab("L_h3loop")
e("buffer_load_dwordx4 %s, %s, %s, s%d offen sc1" % (v(vF, 4), v(vT1), srd(SRD_WS), sOFF3))
e("s_waitcnt vmcnt(0)")
e("v_cmpx_ne_u64 vcc, %s, %s" % (sp(sT3), v(vF + 2, 2)))
e("s_cbranch_execz L_h3ok")
if LSLEEP: e("s_sleep %d" % LSLEEP)
spin_check("L_h3loop")
lab("L_h3ok")
e("s_mov_b64 exec, -1")
e("s_nop 2")
stamp(10)
dpp_reduce("v_add_f32", [vF, vF + 1], ROW + XROW)
round2(vF, vT0)
e("v_mul_f32 %s, %s, %s" % (v(vF), v(vF), v(vG)))
e("v_mul_f32 %s, %s, %s" % (v(vF + 1), v(vF + 1), v(vG + 1)))
round2(vF, vT0)
e("v_add_f32 %s, %s, %s" % (v(vF), v(vF), v(vXO)))
e("v_add_f32 %s, %s, %s" % (v(vF + 1), v(vF + 1), v(vXO + 1)))
e("v_cvt_pk_bf16_f32 %s, %s, %s" % (v(vT0), v(vF), v(vF + 1)))
e("s_mov_b32 exec_lo, 0"); e("s_mov_b32 exec_hi, 0x80000000")
e("buffer_store_dword %s, %s, %s, s%d offen" % (v(vT0), v(vT2), srd(SRD_A), sP4))
e("s_cmp_lg_u32 s2, 0")
e("s_cbranch_scc1 L_fin")
e("buffer_store_dword %s, %s, %s, 0 offen offset:%d sc1" % (v(vZ + 2), v(vT2), srd(SRD_WS), EPOCH))
e("s_branch L_fin")
c("---- q gather retry / cross-die fallback ----")
lab("L_qfail")
e("s_mov_b64 exec, -1")
e("s_sub_u32 s%d, s%d, 1" % (sSPIN, sSPIN))
e("s_cbranch_scc1 L_end")
e("s_and_b32 s%d, s%d, 3" % (sTMP, sSPIN))
e("s_cmp_lg_u32 s%d, 0" % sTMP)
e("s_cbranch_scc1 %s" % ("L_qpollA2" if QPIPE else "L_qpollA"))
e("s_cmp_lg_u32 s%d, 0" % sCNT)
e("s_cbranch_scc1 L_qpollB")
e("s_mov_b32 s%d, 1" % sCNT)
e("s_add_u32 s%d, s%d, %d" % (sOFF, sOFF, MB1B - MB1A))
e("s_mov_b64 exec, %s" % sp(sM8))
e("buffer_store_dwordx4 %s, %s, %s, s%d offen sc1" % (v(vZ, 4), v(vPUB), srd(SRD_WS), sOFF))
e("s_mov_b64 exec, -1")
lab("L_qpollB")
e("s_add_u32 s%d, s%d, %d" % (sTMP, sOFF2, MB1B - MB1A))
q_loads(sTMP)
e("s_waitcnt vmcnt(0)")
for i in range(16): e("v_cmpx_eq_u32 vcc, s%d, %s" % (sTAG, v(G1 + 4 * i + 2)))
e("s_cmp_eq_u64 exec, -1")
e("s_mov_b64 exec, -1")
e("s_cbranch_scc0 L_qpollA")
for i in range(16): q_sum(i)
for i in range(16): e("v_cmpx_eq_u32 vcc, s%d, %s" % (sTAG + 1, v(G1 + 4 * i + 3)))
e("s_cmp_eq_u64 exec, -1")
e("s_cselect_b32 s%d, 1, 0" % sMODE)
e("s_mov_b64 exec, -1")
e("s_branch L_qok")

c("======== B waves ========")
lab("L_B1")
for i in range(4): unpack(vD + 2 * i, vXN + i)
sums()
unpack(vD, 33)
def norm2():
    e("v_sub_f32 %s, %s, %s" % (v(vD), v(vD), v(vM)))
    e("v_sub_f32 %s, %s, %s" % (v(vD + 1), v(vD + 1), v(vM)))
    round2(vD, vT0)
    e("v_mul_f32 %s, %s, %s" % (v(vD), v(vD), v(vR)))
    e("v_mul_f32 %s, %s, %s" % (v(vD + 1), v(vD + 1), v(vR)))
    round2(vD, vT0)
norm2()
e("v_mov_b32 %s, %s" % (v(vT0), hx(f2u(1.0 / 512))))
e("v_mul_f32 %s, s%d, %s" % (v(vM), sA, v(vT0)))
e("v_mul_f32 %s, s%d, %s" % (v(vR), sB, v(vT0)))
e("v_fma_f32 %s, -%s, %s, %s" % (v(vR), v(vM), v(vM), v(vR)))
ln_finish(vM, vR)
norm2()
e("s_nop 0")
e("v_readfirstlane_b32 s%d, %s" % (sH0, v(vD)))
e("v_readfirstlane_b32 s%d, %s" % (sH1, v(vD + 1)))
C1 = -2.0 * math.log2(math.e) * math.sqrt(2.0 / math.pi)
C2 = C1 * 0.044715
vACC = 60
e("v_mov_b32 %s, 0" % v(vACC))
e("v_mov_b32 %s, 0" % v(vACC + 1))
e("v_mov_b32 %s, %s" % (v(vS1), hx(f2u(C1))))
e("s_mov_b32 s%d, %s" % (sTMP, hx(f2u(C2))))
e("s_mov_b32 s%d, 5" % sCNT)
if B1B: e("s_barrier")
e("s_waitcnt vmcnt(0)")
lab("L_Bloop")
unpack(vF, vW1)
unpack(vF + 2, vB1)
U, T = vD, vD + 4
for col, sh in ((0, sH0), (1, sH1)):
    e("v_mul_f32 %s, s%d, %s" % (v(U + 2 * col), sh, v(vF)))
    e("v_mul_f32 %s, s%d, %s" % (v(U + 2 * col + 1), sh, v(vF + 1)))
for col in range(2): e("v_cvt_pk_bf16_f32 %s, %s, %s" % (v(T + col), v(U + 2 * col), v(U + 2 * col + 1)))
for col in range(2): unpack(U + 2 * col, T + col)
for col in range(2):
    e("v_add_f32 %s, %s, %s" % (v(U + 2 * col), v(U + 2 * col), v(vF + 2)))
    e("v_add_f32 %s, %s, %s" % (v(U + 2 * col + 1), v(U + 2 * col + 1), v(vF + 3)))
for col in range(2): e("v_cvt_pk_bf16_f32 %s, %s, %s" % (v(T + col), v(U + 2 * col), v(U + 2 * col + 1)))
for col in range(2): unpack(U + 2 * col, T + col)
for i in range(4): e("v_mul_f32 %s, %s, %s" % (v(T + i), v(U + i), v(U + i)))
for i in range(4): e("v_fma_f32 %s, %s, s%d, %s" % (v(T + i), v(T + i), sTMP, v(vS1)))
for i in range(4): e("v_mul_f32 %s, %s, %s" % (v(T + i), v(T + i), v(U + i)))
for i in range(4): e("v_exp_f32 %s, %s" % (v(T + i), v(T + i)))
for i in range(4): e("v_add_f32 %s, 1.0, %s" % (v(T + i), v(T + i)))
for i in range(4): e("v_rcp_f32 %s, %s" % (v(T + i), v(T + i)))
for i in range(4): e("v_mul_f32 %s, %s, %s" % (v(T + i), v(T + i), v(U + i)))
for col in range(2): e("v_cvt_pk_bf16_f32 %s, %s, %s" % (v(U + col), v(T + 2 * col), v(T + 2 * col + 1)))
for col in range(2): e("v_dot2c_f32_bf16 %s, %s, %s" % (v(vACC + col), v(U + col), v(vW2)))
for r in (vW1, vB1, vW2):
    for i in range(4): e("v_mov_b32 %s, %s" % (v(r + i), v(r + i + 1)))
e("s_sub_u32 s%d, s%d, 1" % (sCNT, sCNT))
e("s_cmp_lg_u32 s%d, 0" % sCNT)
e("s_cbranch_scc1 L_Bloop")
dpp_reduce("v_add_f32", [vACC, vACC + 1], ROW + XROW)
e("s_lshl_b32 s%d, s%d, 3" % (sTMP, sWAVE))
e("v_mov_b32 %s, s%d" % (v(vT0), sTMP))
e("s_mov_b32 exec_lo, 0"); e("s_mov_b32 exec_hi, 0x80000000")
e("ds_write_b64 %s, %s offset:%d" % (v(vT0), v(vACC, 2), YB - 8))
e("s_mov_b64 exec, -1")
e("s_waitcnt lgkmcnt(0)")
e("s_endpgm")

c("======== A waves ========")
lab("L_A")
WOAT = int(opts.get("woat", 8))
vKO, vP2, vKA, vVA, vWOo, vQB, vPX, vMW, vMR = 7, 8, 9, 10, 11, 12, 13, 14, 15
vZ2 = 16
vONE, vSC, vP, vM, vR = 20, 24, 32, 36, 37
vG2A, vOXW, vOXR, vP3 = 38, 39, 40, 41
vS1, vS2 = 42, 43
vF, vD = 44, 52
vZ3 = 60
vO, vLS, vWOF = 64, 96, 100
vQF = 116
vKF, vVF = 132, 164
vWA = 196
PX = CMB
sOFFW, sOFFG = 90, 91
e("s_sub_u32 s%d, s%d, 4" % (sAW, sWAVE))
c("dma source offset: q'*256 + ((n ^ (q'<<2))*16)")
e("v_lshlrev_b32 %s, 2, %s" % (v(vKO), v(vQ)))
e("v_xor_b32 %s, %s, %s" % (v(vKO), v(vKO), v(vN)))
e("v_lshlrev_b32 %s, 4, %s" % (v(vKO), v(vKO)))
e("v_lshl_add_u32 %s, %s, 8, %s" % (v(vKO), v(vQ), v(vKO)))
e("s_lshl_b32 s%d, s%d, 23" % (sOFF, sG))
e("s_lshl_b32 s%d, s%d, 12" % (sTMP, sC))
e("s_add_u32 s%d, s%d, s%d" % (sOFF, sOFF, sTMP))
e("s_lshl_b32 s%d, s%d, 10" % (sTMP, sAW))
e("s_add_u32 s%d, s%d, s%d" % (sOFF, sOFF, sTMP))
e("s_add_u32 s%d, s%d, %d" % (sOFF, sOFF, 7340032))
e("s_mul_i32 s%d, s%d, %d" % (sM0, sAW, 8 * KP))
e("s_add_u32 s%d, s%d, %d" % (sM0, sM0, KBUF))
e("s_mov_b32 m0, s%d" % sM0)
e("s_mov_b32 s%d, 0x20000" % sSTEP)
e("s_mov_b32 s%d, s%d" % (sOFF3, sOFF))
N1 = int(opts.get("n1", 4))
N1L = int(opts.get("n1l", N1)); THRL = int(opts.get("thrl", THR))
sLATE = 93
e("s_getreg_b32 s%d, hwreg(HW_REG_XCC_ID, 2, 1)" % sLATE)
e("s_cmp_lg_u32 s%d, 0" % sLATE)
e("s_cselect_b32 s%d, %d, %d" % (sCNT, N1L, N1))
e("s_mov_b32 s%d, %s" % (SRD_A + 2, hx(1 << 26)))
e("s_mov_b32 s%d, 0x00020000" % (SRD_A + 3))
e("s_waitcnt lgkmcnt(0)")
if STAMPS: e("v_mov_b32 %s, s%d" % (v(vSTP), sST))
e("s_mov_b64 %s, s[18:19]" % sp(SRD_A))
e("s_barrier")
KSLEEP = int(opts.get("ksleep", 0))
if KSLEEP: e("s_sleep %d" % KSLEEP)
def dma_loop(name, sr, soff, step, thr):
    lab(name)
    if thr: e("s_waitcnt vmcnt(%d)" % (thr - 1))
    e("buffer_load_dwordx4 %s, %s, s%d offen nt lds" % (v(vKO), srd(sr), soff))
    e("s_sub_u32 s%d, s%d, 1" % (sCNT, sCNT))
    e("s_add_u32 m0, m0, %d" % step)
    e("s_add_u32 s%d, s%d, s%d" % (soff, soff, sSTEP))
    e("s_cmp_lg_u32 s%d, 0" % sCNT)
    e("s_cbranch_scc1 %s" % name)
dma_loop("L_kloop", SRD_A, sOFF, KP, 0)
c("---- address setup (in the shadow of the first loads) ----")
mksrd(SRD_B, 20, 1 << 26); mksrd(SRD_WS, 40, WS_NREC); mksrd(SRD_C, 24, 1 << 22)
e("v_and_b32 %s, 3, %s" % (v(vT0), v(vN)))
e("v_lshrrev_b32 %s, 2, %s" % (v(vT1), v(vN)))
c("K frag address: KBUF + aw*8KP + (m>>2)*KP + (m&3)*256 + ((q'^(m&3))*64)")
e("v_xor_b32 %s, %s, %s" % (v(vT2), v(vT0), v(vQ)))
e("v_mul_u32_u24 %s, %d, %s" % (v(vKA), KP, v(vT1)))
e("v_lshl_add_u32 %s, %s, 8, %s" % (v(vKA), v(vT0), v(vKA)))
e("v_lshl_add_u32 %s, %s, 6, %s" % (v(vKA), v(vT2), v(vKA)))
e("v_add_u32 %s, s%d, %s" % (v(vKA), sM0, v(vKA)))
c("V frag address: VBUF + q'*VP + r*256 + cc*8 + ((aw ^ r)*64) ; r = n>>2, cc = n&3")
e("v_mul_u32_u24 %s, %d, %s" % (v(vVA), VP, v(vQ)))
e("v_lshl_add_u32 %s, %s, 8, %s" % (v(vVA), v(vT1), v(vVA)))
e("v_lshl_add_u32 %s, %s, 3, %s" % (v(vVA), v(vT0), v(vVA)))
e("v_xor_b32 %s, s%d, %s" % (v(vT2), sAW, v(vT1)))
e("v_lshl_add_u32 %s, %s, 6, %s" % (v(vVA), v(vT2), v(vVA)))
e("v_add_u32 %s, %d, %s" % (v(vVA), VBUF, v(vVA)))
c("q frag address: (n>>2)*272 + q'*64 ; P exchange: q'*64 + (n>>2)*16 ; m/l: (n>>2)*16")
e("v_mul_u32_u24 %s, 272, %s" % (v(vQB), v(vT1)))
e("v_lshl_add_u32 %s, %s, 6, %s" % (v(vQB), v(vQ), v(vQB)))
e("v_lshlrev_b32 %s, 4, %s" % (v(vMR), v(vT1)))
e("v_lshl_add_u32 %s, %s, 6, %s" % (v(vPX), v(vQ), v(vMR)))
e("s_lshl_b32 s%d, s%d, 2" % (sTMP, sAW))
e("s_add_u32 s%d, s%d, %d" % (sTMP, sTMP, ML))
e("v_add_u32 %s, s%d, %s" % (v(vMW), sTMP, v(vMR)))
e("s_lshl_b32 s%d, s%d, 8" % (sTMP, sAW))
e("v_add_u32 %s, s%d, %s" % (v(vWA + 1), sTMP, v(vPX)))
c("hop2 publish: (n>>2)*32768 + (q'>>1)*4096 + (q'&1)*64 + (n&3)*16 ; soffset g<<17 + aw<<13 + c<<7")
e("v_lshlrev_b32 %s, 15, %s" % (v(vP2), v(vT1)))
e("v_lshl_add_u32 %s, %s, 4, %s" % (v(vP2), v(vT0), v(vP2)))
e("v_lshrrev_b32 %s, 1, %s" % (v(vT2), v(vQ)))
e("v_lshl_add_u32 %s, %s, 12, %s" % (v(vP2), v(vT2), v(vP2)))
e("v_and_b32 %s, 1, %s" % (v(vT2), v(vQ)))
e("v_lshl_add_u32 %s, %s, 6, %s" % (v(vP2), v(vT2), v(vP2)))
e("s_lshl_b32 s%d, s%d, 17" % (sOFF2, sG))
e("s_add_u32 s%d, s%d, %d" % (sOFF2, sOFF2, MB2A))
c("hop2 gather region g*32 + (c>>2)*4 + aw")
e("s_and_b32 s%d, s%d, 28" % (sTMP, sC))
e("s_add_u32 s%d, s%d, s%d" % (sTMP, sTMP, sAW))
e("s_lshl_b32 s%d, s%d, 12" % (sTMP, sTMP))
e("s_add_u32 s%d, s%d, s%d" % (sOFFG, sOFF2, sTMP))
e("s_lshl_b32 s%d, s%d, 13" % (sTMP, sAW))
e("s_add_u32 s%d, s%d, s%d" % (sOFF2, sOFF2, sTMP))
e("s_lshl_b32 s%d, s%d, 7" % (sTMP, sC))
e("s_add_u32 s%d, s%d, s%d" % (sOFF2, sOFF2, sTMP))
e("v_lshlrev_b32 %s, 4, %s" % (v(vG2A), v(vL)))
c("hop 3 publish address: (n>>1)*128 + q'*32 + (n&1)*16")
e("v_lshrrev_b32 %s, 1, %s" % (v(vT2), v(vN)))
e("v_lshlrev_b32 %s, 7, %s" % (v(vP3), v(vT2)))
e("v_lshl_add_u32 %s, %s, 5, %s" % (v(vP3), v(vQ), v(vP3)))
e("v_and_b32 %s, 1, %s" % (v(vT2), v(vN)))
e("v_lshl_add_u32 %s, %s, 4, %s" % (v(vP3), v(vT2), v(vP3)))
c("wo dma offset (l>>2)*1024 + (l&3)*16 ; frag address WOB + aw*4096 + (l>>2)*64 + (l&3)*8")
e("v_lshrrev_b32 %s, 2, %s" % (v(vT2), v(vL)))
e("v_lshlrev_b32 %s, 10, %s" % (v(vWOo), v(vT2)))
e("v_lshl_add_u32 %s, %s, 4, %s" % (v(vWOo), v(vT0), v(vWOo)))
e("v_lshlrev_b32 %s, 6, %s" % (v(vWA), v(vT2)))
e("v_lshl_add_u32 %s, %s, 3, %s" % (v(vWA), v(vT0), v(vWA)))
e("s_lshl_b32 s%d, s%d, 12" % (sM0, sAW))
e("s_add_u32 s%d, s%d, %d" % (sM0, sM0, WOB))
e("v_add_u32 %s, s%d, %s" % (v(vWA), sM0, v(vWA)))
e("s_lshl_b32 s%d, s%d, 19" % (sOFFW, sG))
e("s_lshr_b32 s%d, s%d, 2" % (sA, sC))
e("s_lshl_b32 s%d, s%d, 16" % (sTMP, sA))
e("s_add_u32 s%d, s%d, s%d" % (sOFFW, sOFFW, sTMP))
e("s_and_b32 s%d, s%d, 3" % (sB, sC))
e("s_lshl_b32 s%d, s%d, 8" % (sTMP, sB))
e("s_add_u32 s%d, s%d, s%d" % (sOFFW, sOFFW, sTMP))
e("s_lshl_b32 s%d, s%d, 6" % (sTMP, sAW))
e("s_add_u32 s%d, s%d, s%d" % (sOFFW, sOFFW, sTMP))
sOFFP3 = 92
e("s_lshl_b32 s%d, s%d, 16" % (sOFFP3, sB))
e("s_lshl_b32 s%d, s%d, 13" % (sTMP, sG))
e("s_add_u32 s%d, s%d, s%d" % (sOFFP3, sOFFP3, sTMP))
e("s_lshl_b32 s%d, s%d, 10" % (sTMP, sA))
e("s_add_u32 s%d, s%d, s%d" % (sOFFP3, sOFFP3, sTMP))
e("s_lshl_b32 s%d, s%d, 8" % (sTMP, sAW))
e("s_add_u32 s%d, s%d, s%d" % (sOFFP3, sOFFP3, sTMP))
e("s_add_u32 s%d, s%d, %d" % (sOFFP3, sOFFP3, MB3))
c("OX write: aw*32 + (l&7)*4 + (l>>5)*2 ; read q'*16")
e("v_lshlrev_b32 %s, 4, %s" % (v(vOXR), v(vQ)))
e("v_and_b32 %s, 7, %s" % (v(vT2), v(vL)))
e("s_lshl_b32 s%d, s%d, 5" % (sTMP, sAW))
e("v_lshl_add_u32 %s, %s, 2, s%d" % (v(vOXW), v(vT2), sTMP))
e("v_lshrrev_b32 %s, 5, %s" % (v(vT2), v(vL)))
e("v_lshl_add_u32 %s, %s, 1, %s" % (v(vOXW), v(vT2), v(vOXW)))
for i in range(4): e("v_mov_b32 %s, 0x3f803f80" % v(vONE + i))
mask(sMASKQ, 0x000F000F); mask(sN1, 0xAAAAAAAA); mask(sN2, 0xCCCCCCCC); mask(sMASK0, 0x000000FF); mask(sN4, 0x11111111)
e("s_mov_b32 s%d, %s" % (sA, hx(f2u(128 ** -0.5))))
e("s_mov_b32 s%d, %s" % (sB, hx(f2u(math.log2(math.e)))))
e("v_mov_b32 %s, %d" % (v(vT0), MODE))
if B1B: e("s_barrier")
def rest(tag, n1, thr):
    if n1 < 8:
        e("s_mov_b32 s%d, %d" % (sCNT, 8 - n1))
        dma_loop("L_kloop2" + tag, SRD_A, sOFF, KP, thr)
    e("s_mul_i32 s%d, s%d, %d" % (sTMP, sAW, 8 * VP))
    e("s_add_u32 m0, s%d, %d" % (sTMP, VBUF))
    e("s_mov_b32 s%d, 8" % sCNT)
    dma_loop("L_vloop" + tag, SRD_B, sOFF3, VP, thr)
if (N1L, THRL) != (N1, THR):
    e("s_cmp_lg_u32 s%d, 0" % sLATE)
    e("s_cbranch_scc1 L_late")
    rest("e", N1, THR)
    e("s_branch L_issued")
    lab("L_late")
    rest("l", N1L, THRL)
    lab("L_issued")
else:
    rest("", N1, THR)
def wo_loads():
    for i in range(4):
        e("buffer_load_dwordx4 %s, %s, s%d offen offset:%d nt lds" % (v(vWOo), srd(SRD_C), sOFFW, 1024 * i))
        if i < 3: e("s_add_u32 s%d, s%d, %d" % (sOFFW, sOFFW, 16384 - 1024))
e("s_mov_b32 m0, s%d" % sM0)
stamp(15)
WOE = int(opts.get("woe", 0))
if WOAT == -2:
    e("s_nop 0")
    wo_loads()
e("s_waitcnt vmcnt(%d)" % (12 if WOAT == -2 else 8))
if WOAT == -3:
    e("s_cmp_eq_u32 s%d, 0" % sLATE)
    e("s_cbranch_scc1 L_wo1")
    wo_loads()
    lab("L_wo1")
for T in range(2):
    for t in range(4):
        e("ds_read_b128 %s, %s offset:%d" % (v(vKF + 16 * T + 4 * t, 4), v(vKA), 4 * KP * T + 16 * t))
e("s_barrier")
for t in range(4):
    e("ds_read_b128 %s, %s offset:%d" % (v(vQF + 4 * t, 4), v(vQB), QL + 16 * t))
e("ds_read_b64 %s, %s" % (v(vZ3 + 2, 2), v(vT0)))
if WOAT == -1: wo_loads()
if WOAT == -4:
    e("s_cmp_eq_u32 s%d, 0" % sLATE)
    e("s_cbranch_scc1 L_wo1")
    wo_loads()
    lab("L_wo1")
for t in range(4):
    e("s_waitcnt lgkmcnt(%d)" % (4 - t))
    for T in range(2):
        e("v_mfma_f32_16x16x32_bf16 %s, %s, %s, %s" % (v(vSC + 4 * T, 4), v(vKF + 16 * T + 4 * t, 4), v(vQF + 4 * t, 4), v(vSC + 4 * T, 4) if t else "0"))
e("s_waitcnt lgkmcnt(0)")
e("v_readfirstlane_b32 s%d, %s" % (sMODE, v(vZ3 + 2)))
e("v_readfirstlane_b32 s%d, %s" % (sTAG, v(vZ3 + 3)))
e("v_mov_b32 %s, %s" % (v(vZ3 + 2), v(vZ3 + 3)))
e("v_mov_b32 %s, %s" % (v(vZ2 + 3), v(vZ3 + 3)))
e("s_nop 2")
for i in range(4): e("v_cvt_pk_bf16_f32 %s, %s, %s" % (v(vP + i), v(vSC + 2 * i), v(vSC + 2 * i + 1)))
for i in range(4): unpack(vSC + 2 * i, vP + i)
for i in range(8): e("v_mul_f32 %s, s%d, %s" % (v(vSC + i), sA, v(vSC + i)))
for i in range(4): e("v_cvt_pk_bf16_f32 %s, %s, %s" % (v(vP + i), v(vSC + 2 * i), v(vSC + 2 * i + 1)))
for i in range(4): unpack(vSC + 2 * i, vP + i)
e("v_max3_f32 %s, %s, %s, %s" % (v(vM), v(vSC), v(vSC + 1), v(vSC + 2)))
e("v_max3_f32 %s, %s, %s, %s" % (v(vR), v(vSC + 3), v(vSC + 4), v(vSC + 5)))
e("v_max3_f32 %s, %s, %s, %s" % (v(vM), v(vM), v(vSC + 6), v(vSC + 7)))
e("v_max_f32 %s, %s, %s" % (v(vM), v(vM), v(vR)))
e("v_mov_b32 %s, %s" % (v(vR), v(vM)))
e("s_nop 1")
e("v_permlane32_swap_b32 %s, %s" % (v(vM), v(vR)))
e("v_max_f32 %s, %s, %s" % (v(vM), v(vM), v(vR)))
e("v_mov_b32 %s, %s" % (v(vR), v(vM)))
e("s_nop 1")
e("v_permlane16_swap_b32 %s, %s" % (v(vM), v(vR)))
e("v_max_f32 %s, %s, %s" % (v(vM), v(vM), v(vR)))
e("v_mul_f32 %s, s%d, %s" % (v(vM), sB, v(vM)))
for i in range(8): e("v_fma_f32 %s, %s, s%d, -%s" % (v(vSC + i), v(vSC + i), sB, v(vM)))
for i in range(8): e("v_exp_f32 %s, %s" % (v(vSC + i), v(vSC + i)))
e("s_nop 0")
for i in range(4): e("v_cvt_pk_bf16_f32 %s, %s, %s" % (v(vP + i), v(vSC + 2 * i), v(vSC + 2 * i + 1)))
c("slow mode: use the write-through mailbox")
e("s_cmp_eq_u32 s%d, 0" % sMODE)
e("s_cselect_b32 s%d, %d, 0" % (sSTEP, MB2B - MB2A))
e("v_mfma_f32_16x16x32_bf16 %s, %s, %s, 0" % (v(vLS, 4), v(vONE, 4), v(vP, 4)))
e("s_mov_b64 exec, %s" % sp(sN4))
e("ds_write_b128 %s, %s offset:%d" % (v(vWA + 1), v(vP, 4), PX))
e("s_add_u32 s%d, s%d, s%d" % (sOFF2, sOFF2, sSTEP))
e("s_add_u32 s%d, s%d, s%d" % (sOFFG, sOFFG, sSTEP))
e("s_nop 3")
e("ds_write2_b32 %s, %s, %s offset0:0 offset1:16" % (v(vMW), v(vM), v(vLS)))
e("s_mov_b64 exec, -1")
stamp(12)
if WOAT >= 0:
    e("s_waitcnt vmcnt(%d)" % WOAT)
    wo_loads()
if WOAT in (-3, -4):
    e("s_cmp_lg_u32 s%d, 0" % sLATE)
    e("s_cbranch_scc1 L_wo2")
    e("s_waitcnt vmcnt(%d)" % WOE)
    wo_loads()
    lab("L_wo2")
e("s_waitcnt vmcnt(4) lgkmcnt(0)")
stamp(5)
e("s_barrier")
e("ds_read_b128 %s, %s offset:%d" % (v(vF, 4), v(vMR), ML))
e("ds_read_b128 %s, %s offset:%d" % (v(vF + 4, 4), v(vMR), ML + 64))
for s_ in range(4):
    e("ds_read_b128 %s, %s offset:%d" % (v(vQF + 4 * s_, 4), v(vPX), PX + 256 * s_))
    for dbl in range(2):
        for h in range(2):
            e("ds_read_b64_tr_b16 %s, %s offset:%d" % (v(vVF + 8 * s_ + 4 * dbl + 2 * h, 2), v(vVA), 8 * VP * s_ + 4 * VP * h + 32 * dbl))
e("s_waitcnt lgkmcnt(15)")
e("v_max3_f32 %s, %s, %s, %s" % (v(vM), v(vF), v(vF + 1), v(vF + 2)))
def pv(s_):
    for dbl in range(2):
        e("v_mfma_f32_16x16x32_bf16 %s, %s, %s, 0" % (v(vO + 8 * s_ + 4 * dbl, 4), v(vVF + 8 * s_ + 4 * dbl, 4), v(vQF + 4 * s_, 4)))
def sel(s_):
    o = vO + 8 * s_
    e("v_cndmask_b32 %s, %s, %s, %s" % (v(o), v(o), v(o + 2), sp(sN1)))
    e("v_cndmask_b32 %s, %s, %s, %s" % (v(o + 1), v(o + 1), v(o + 3), sp(sN1)))
    e("v_cndmask_b32 %s, %s, %s, %s" % (v(o + 4), v(o + 4), v(o + 6), sp(sN1)))
    e("v_cndmask_b32 %s, %s, %s, %s" % (v(o + 5), v(o + 5), v(o + 7), sp(sN1)))
    e("v_cndmask_b32 %s, %s, %s, %s" % (v(o), v(o), v(o + 4), sp(sN2)))
    e("v_cndmask_b32 %s, %s, %s, %s" % (v(o + 1), v(o + 1), v(o + 5), sp(sN2)))
    if s_ == 0:
        e("v_mul_f32 %s, %s, %s" % (v(vZ2), v(vF), v(o)))
        e("v_mul_f32 %s, %s, %s" % (v(vZ2 + 1), v(vF), v(o + 1)))
    else:
        e("v_fmac_f32 %s, %s, %s" % (v(vZ2), v(vF + s_), v(o)))
        e("v_fmac_f32 %s, %s, %s" % (v(vZ2 + 1), v(vF + s_), v(o + 1)))
pv(0)
e("v_max_f32 %s, %s, %s" % (v(vM), v(vM), v(vF + 3)))
for w in range(4): e("v_sub_f32 %s, %s, %s" % (v(vF + w), v(vF + w), v(vM)))
for w in range(4): e("v_exp_f32 %s, %s" % (v(vF + w), v(vF + w)))
e("s_waitcnt lgkmcnt(10)")
pv(1)
e("v_mul_f32 %s, %s, %s" % (v(vR), v(vF), v(vF + 4)))
for w in range(1, 4): e("v_fmac_f32 %s, %s, %s" % (v(vR), v(vF + w), v(vF + 4 + w)))
e("v_rcp_f32 %s, %s" % (v(vS1), v(vR)))
e("v_log_f32 %s, %s" % (v(vS2), v(vR)))
e("s_waitcnt lgkmcnt(5)")
pv(2)
for w in range(4): e("v_mul_f32 %s, %s, %s" % (v(vF + w), v(vF + w), v(vS1)))
e("v_add_f32 %s, %s, %s" % (v(vZ2 + 2), v(vM), v(vS2)))
e("s_waitcnt lgkmcnt(0)")
pv(3)
sel(0); sel(1); sel(2); sel(3)
e("s_cmp_eq_u32 s%d, 0" % sMODE)
e("s_cbranch_scc1 L_p2slow")
e("buffer_store_dwordx4 %s, %s, %s, s%d offen%s" % (v(vZ2, 4), v(vP2), srd(SRD_WS), sOFF2, fs))
lab("L_p2done")
stamp(7)
G2 = vKF
def h2_loads():
    for i in range(4):
        e("buffer_load_dwordx4 %s, %s, %s, s%d offen offset:%d sc1" % (v(G2 + 4 * i, 4), v(vG2A), srd(SRD_WS), sOFFG, 1024 * i))
h2_loads()
e("s_waitcnt vmcnt(5)")
stamp(13)
for b in range(2):
    for s in range(2):
        for h in range(2):
            e("ds_read_b64_tr_b16 %s, %s offset:%d" % (v(vWOF + 8 * b + 4 * s + 2 * h, 2), v(vWA), 32 * b + 2048 * s + 1024 * h))
e("s_branch L_h2chk")
lab("L_h2retry")
e("s_not_b64 exec, exec")
h2_loads()
e("s_mov_b64 exec, -1")
lab("L_h2chk")
e("s_waitcnt vmcnt(0)")
for i in range(4):
    e("v_cmpx_eq_u32 vcc, s%d, %s" % (sTAG, v(G2 + 4 * i + 3)))
e("s_cmp_eq_u64 exec, -1")
e("s_cbranch_scc1 L_h2ok")
spin_check("L_h2retry")
lab("L_h2ok")
stamp(8)
A_ = [G2 + 4 * i + 2 for i in range(4)]
e("v_max3_f32 %s, %s, %s, %s" % (v(vM), v(A_[0]), v(A_[1]), v(A_[2])))
e("v_max_f32 %s, %s, %s" % (v(vM), v(vM), v(A_[3])))
e("v_mov_b32 %s, %s" % (v(vR), v(vM)))
e("s_nop 1")
e("v_permlane32_swap_b32 %s, %s" % (v(vM), v(vR)))
e("v_max_f32 %s, %s, %s" % (v(vM), v(vM), v(vR)))
e("v_mov_b32 %s, %s" % (v(vR), v(vM)))
e("s_nop 1")
e("v_permlane16_swap_b32 %s, %s" % (v(vM), v(vR)))
e("v_max_f32 %s, %s, %s" % (v(vM), v(vM), v(vR)))
dpp_reduce("v_max_f32", [vM], ROW[:1])
for i in range(4): e("v_sub_f32 %s, %s, %s" % (v(vF + i), v(A_[i]), v(vM)))
for i in range(4): e("v_exp_f32 %s, %s" % (v(vF + i), v(vF + i)))
Y0, Y1, W, W2 = vD, vD + 1, vD + 2, vD + 3
e("v_mul_f32 %s, %s, %s" % (v(Y0), v(vF), v(G2)))
e("v_mul_f32 %s, %s, %s" % (v(Y1), v(vF), v(G2 + 1)))
e("v_add_f32 %s, %s, %s" % (v(W), v(vF), v(vF + 1)))
e("v_add_f32 %s, %s, %s" % (v(W2), v(vF + 2), v(vF + 3)))
for i in range(1, 4):
    e("v_fmac_f32 %s, %s, %s" % (v(Y0), v(vF + i), v(G2 + 4 * i)))
    e("v_fmac_f32 %s, %s, %s" % (v(Y1), v(vF + i), v(G2 + 4 * i + 1)))
    if i == 1:
        e("v_add_f32 %s, %s, %s" % (v(W), v(W), v(W2)))
        e("v_mov_b32 %s, %s" % (v(W2), v(W)))
e("v_permlane32_swap_b32 %s, %s" % (v(W), v(W2)))
e("s_nop 0")
e("v_permlane32_swap_b32 %s, %s" % (v(Y0), v(Y1)))
e("v_add_f32 %s, %s, %s" % (v(W), v(W), v(W2)))
e("v_add_f32 %s, %s, %s" % (v(Y0), v(Y0), v(Y1)))
e("s_nop 1")
e("v_permlane16_swap_b32 %s, %s" % (v(Y0), v(W)))
e("v_add_f32 %s, %s, %s" % (v(Y0), v(Y0), v(W)))
dpp_reduce("v_add_f32", [Y0], ROW[:1])
e("v_rcp_f32 %s, %s" % (v(W), v(Y0)))
e("s_nop 1")
e("v_permlane16_swap_b32 %s, %s" % (v(W), v(W2)))
e("v_mul_f32 %s, %s, %s" % (v(Y0), v(Y0), v(W2)))
e("v_cvt_pk_bf16_f32 %s, %s, %s" % (v(Y0), v(Y0), v(Y0)))
e("s_mov_b64 exec, %s" % sp(sMASK0))
e("ds_write_b16 %s, %s offset:%d" % (v(vOXW), v(Y0), OX))
e("s_mov_b64 exec, -1")
e("s_waitcnt lgkmcnt(0)")
e("s_barrier")
e("ds_read_b128 %s, %s offset:%d" % (v(vF, 4), v(vOXR), OX))
e("ds_read_b128 %s, %s offset:%d" % (v(vF + 4, 4), v(vOXR), OX + 64))
e("s_waitcnt lgkmcnt(1)")
for b in range(2):
    e("v_mfma_f32_16x16x32_bf16 %s, %s, %s, 0" % (v(vSC + 4 * b, 4), v(vWOF + 8 * b, 4), v(vF, 4)))
e("s_waitcnt lgkmcnt(0)")
for b in range(2):
    e("v_mfma_f32_16x16x32_bf16 %s, %s, %s, %s" % (v(vSC + 4 * b, 4), v(vWOF + 8 * b + 4, 4), v(vF + 4, 4), v(vSC + 4 * b, 4)))
e("s_nop 6")
e("v_cndmask_b32 %s, %s, %s, %s" % (v(vD), v(vSC), v(vSC + 2), sp(sN1)))
e("v_cndmask_b32 %s, %s, %s, %s" % (v(vD + 1), v(vSC + 1), v(vSC + 3), sp(sN1)))
e("v_cndmask_b32 %s, %s, %s, %s" % (v(vD + 2), v(vSC + 4), v(vSC + 6), sp(sN1)))
e("v_cndmask_b32 %s, %s, %s, %s" % (v(vD + 3), v(vSC + 5), v(vSC + 7), sp(sN1)))
e("v_cndmask_b32 %s, %s, %s, %s" % (v(vZ3), v(vD), v(vD + 2), sp(sN2)))
e("v_cndmask_b32 %s, %s, %s, %s" % (v(vZ3 + 1), v(vD + 1), v(vD + 3), sp(sN2)))
e("s_mov_b64 exec, %s" % sp(sMASKQ))
e("buffer_store_dwordx4 %s, %s, %s, s%d offen %s" % (v(vZ3, 4), v(vP3), srd(SRD_WS), sOFFP3, H3ST))
e("s_mov_b64 exec, -1")
stamp(9)
lab("L_fin")
if PAD:
    e("s_add_u32 s100, s100, %d" % (PAD * 100))
    lab("L_pad")
    e("s_memrealtime %s" % sp(sST))
    e("s_waitcnt lgkmcnt(0)")
    e("s_sub_u32 s%d, s%d, s100" % (sST, sST))
    e("s_cmp_lt_i32 s%d, 0" % sST)
    e("s_cbranch_scc1 L_pad")
lab("L_fin2")
if STAMPS:
    e("s_mov_b64 exec, -1")
    e("s_waitcnt vmcnt(0)")
    stamp(11)
    e("s_lshl_b32 s%d, s2, 4" % sTMP)
    e("s_add_u32 s%d, s%d, s%d" % (sTMP, sTMP, sWAVE))
    e("s_lshl_b32 s%d, s%d, 6" % (sTMP, sTMP))
    e("s_add_u32 s%d, s%d, %d" % (sTMP, sTMP, STAMP_OFF))
    e("v_mov_b32 %s, 0" % v(vT1))
    e("s_mov_b64 exec, 1")
    for i in range(4):
        e("buffer_store_dwordx4 %s, %s, %s, s%d offen offset:%d" % (v(vSTP + 4 * i, 4), v(vT1), srd(SRD_WS), sTMP, 16 * i))
lab("L_end")
e("s_endpgm")
lab("L_p2slow")
e("buffer_store_dwordx4 %s, %s, %s, s%d offen sc1" % (v(vZ2, 4), v(vP2), srd(SRD_WS), sOFF2))
e("s_branch L_p2done")
lab("L_codeend")

hdr = open("cdna_kernels/%s.s.ref" % NAME).read().split("\n")
head = []
for ln in hdr:
    if ln.startswith("; @launch"):
        head.append("; @launch grid=(256,1,1) block=(512,1,1) lds=%d" % LDS_TOTAL)
    elif ln.startswith(";"):
        head.append(ln)
    else:
        break
out = "\n".join(head) + "\n"
out += '.amdgcn_target "amdgcn-amd-amdhsa--gfx950"\n.text\n.globl %s_kernel\n.p2align 8\n.type %s_kernel,@function\n%s_kernel:\n' % (NAME, NAME, NAME)
out += "\n".join(L) + "\n"
out += '''.section .rodata,"a"
.p2align 6
.amdhsa_kernel %s_kernel
  .amdhsa_next_free_vgpr %d
  .amdhsa_next_free_sgpr 102
  .amdhsa_accum_offset %d
  .amdhsa_group_segment_fixed_size 0
  .amdhsa_kernarg_size 104
  .amdhsa_user_sgpr_count 2
  .amdhsa_user_sgpr_kernarg_segment_ptr 1
  .amdhsa_system_sgpr_workgroup_id_x 1
  .amdhsa_float_denorm_mode_32 3
.end_amdhsa_kernel
''' % (NAME, NVGPR, NVGPR)
open(sys.argv[1], "w").write(out)
```

```python
import sys, struct, math
NAME = "recurrent_scan__sliding_block_cached__mixer_token_mlp__decode"
opts = dict(a.split("=") if "=" in a else (a, "1") for a in sys.argv[2:])
STAMPS = int(opts.get("stamps", 0))
PAD = int(opts.get("pad", 0))
PREFETCH = int(opts.get("pf", 1))
PREWRITE = int(opts.get("pw", 1))
QK = int(opts.get("qk", 4))
PFLATE = int(opts.get("pflate", 1))
B1B = int(opts.get("b1b", 1))
FASTST = opts.get("fastst", "sc0")
FORCE_SLOW = int(opts.get("slow", 0))
NPIPE = int(opts.get("npipe", 4))
SLEEP = int(opts.get("sleep", 3))
THR = int(opts.get("thr", 6))
LSLEEP = int(opts.get("lsleep", 0))
QWAIT = int(opts.get("qwait", -1))
QD0 = int(opts.get("qd0", 12))
QD1 = int(opts.get("qd1", 8))
QPIPE = int(opts.get("qpipe", 0))
H3LD = opts.get("h3ld", "sc1").replace("+", " ")
H3ST = opts.get("h3st", "sc1").replace("+", " ")
ATOM = int(opts.get("atom", 0))
PRESLEEP = int(opts.get("presleep", 16))

L = []
def e(s): L.append("    " + s)
def lab(s): L.append(s + ":")
def c(s): L.append("    ; " + s)
def f2u(x): return struct.unpack("<I", struct.pack("<f", x))[0]
def hx(x): return "0x%08x" % (x & 0xffffffff)

XN = 0
QL = 1024
MODE = QL + 1088
OX = 2176
ML = 2304
YB = 2432
CMB = 2560
KBUF = 12288
KP, VP = 1040, 1056
VBUF = KBUF + 32 * KP
WQB = VBUF + 32 * VP
WOB = WQB + 16384
LDS_TOTAL = WOB + 16384
EPOCH = 0
MB1A = 1 << 17
MB1B = MB1A + (1 << 17)
MB3 = MB1B + (1 << 17)
MB2A = 1 << 20
MB2B = 2 << 20
WS_USED = 3 << 20
STAMP_OFF = 32 << 20
WS_NREC = (33 << 20) if STAMPS else WS_USED

sWAVE, sG, sC, sP4, sPIV, sA, sB = 3, 4, 5, 6, 7, 8, 9
sTAG = 10
sSPIN, sTMP, sM0, sOFF = 12, 13, 14, 15
sE, sXP = 42, 43
SRD_A, SRD_B, SRD_C, SRD_D, SRD_WS = 44, 48, 52, 56, 60
sB2, sCNT, sAW, sMODE = 64, 65, 66, 67
sMASKQ, sMASK0, sN1, sN2, sN4, sM8 = 68, 70, 72, 74, 76, 78
sH0, sH1 = 80, 81
sT3 = 82
sOFF2, sOFF3, sSTEP = 84, 85, 86
sPC = 88
sST = 98
def srd(b): return "s[%d:%d]" % (b, b + 3)
def sp(b): return "s[%d:%d]" % (b, b + 1)
def v(a, n=1): return "v%d" % a if n == 1 else "v[%d:%d]" % (a, a + n - 1)

vL, vQ, vN, vT0, vT1, vT2 = 1, 2, 3, 4, 5, 6
vSTP = 240
NVGPR = 256

def stamp(i):
    if not STAMPS: return
    e("s_waitcnt lgkmcnt(0)")
    e("s_memrealtime %s" % sp(sST))
    e("s_waitcnt lgkmcnt(0)")
    e("v_mov_b32 %s, s%d" % (v(vSTP + i), sST))

def dpp_reduce(op, regs, steps):
    for s in steps:
        pad = 2 - (len(regs) - 1)
        if pad > 0: e("s_nop %d" % (pad - 1))
        for r in regs:
            e("%s_dpp %s, %s, %s %s" % (op, v(r), v(r), v(r), s))
ROW = ["row_ror:8 row_mask:0xf bank_mask:0xf", "row_ror:4 row_mask:0xf bank_mask:0xf",
       "row_ror:2 row_mask:0xf bank_mask:0xf", "row_ror:1 row_mask:0xf bank_mask:0xf"]
XROW = ["row_bcast:15 row_mask:0xa bank_mask:0xf", "row_bcast:31 row_mask:0xc bank_mask:0xf"]
def unpack(dst, src):
    e("v_lshlrev_b32 %s, 16, %s" % (v(dst), v(src)))
    e("v_and_b32 %s, 0xffff0000, %s" % (v(dst + 1), v(src)))
def round1(r):
    e("v_cvt_pk_bf16_f32 %s, %s, %s" % (v(r), v(r), v(r)))
    e("v_and_b32 %s, 0xffff0000, %s" % (v(r), v(r)))
def round2(r, tmp):
    e("v_cvt_pk_bf16_f32 %s, %s, %s" % (v(tmp), v(r), v(r + 1)))
    unpack(r, tmp)
def ln_finish(vmean, vvar):
    e("v_max_f32 %s, 0, %s" % (v(vvar), v(vvar)))
    round1(vmean)
    round1(vvar)
    e("v_add_f32 %s, %s, %s" % (v(vvar), hx(f2u(1e-5)), v(vvar)))
    round1(vvar)
    e("v_sqrt_f32 %s, %s" % (v(vvar), v(vvar)))
    e("s_nop 0")
    round1(vvar)
    e("v_rcp_f32 %s, %s" % (v(vvar), v(vvar)))
    e("s_nop 0")
def spin_check(retry_label):
    e("s_sub_u32 s%d, s%d, 1" % (sSPIN, sSPIN))
    e("s_cbranch_scc0 %s" % retry_label)
    e("s_branch L_end")
def mksrd(b, p, n):
    e("s_mov_b64 %s, %s" % (sp(b), sp(p)))
    e("s_mov_b32 s%d, %s" % (b + 2, hx(n)))
    e("s_mov_b32 s%d, 0x00020000" % (b + 3))
def mask(r, m):
    e("s_mov_b32 s%d, %s" % (r, hx(m)))
    e("s_mov_b32 s%d, %s" % (r + 1, hx(m)))
def mktag():
    e("s_mul_i32 s%d, s%d, 0x9E3779B1" % (sTAG, sE))
    e("s_add_u32 s%d, s%d, 0x632BE5AB" % (sTAG, sTAG))
fs = (" " + FASTST) if FASTST else ""

lab("L_start")
e("s_cmp_ge_u32 s2, 256")
e("s_cbranch_scc1 L_end")
e("s_load_dwordx16 s[16:31], s[0:1], 0")
e("s_load_dwordx8 s[32:39], s[0:1], 64")
e("s_load_dwordx2 s[40:41], s[0:1], 96")
if STAMPS:
    e("s_memrealtime %s" % sp(sST))
    for i in range(16): e("v_mov_b32 %s, 0" % v(vSTP + i))
DBG = int(opts.get("dbg", 0))
if PAD or DBG: e("s_memrealtime s[100:101]")
e("v_lshrrev_b32 %s, 6, v0" % v(vT0))
e("v_and_b32 %s, 63, v0" % v(vL))
e("v_readfirstlane_b32 s%d, %s" % (sWAVE, v(vT0)))
e("v_lshrrev_b32 %s, 4, %s" % (v(vQ), v(vL)))
e("v_and_b32 %s, 15, %s" % (v(vN), v(vL)))
e("s_and_b32 s%d, s2, 7" % sG)
e("s_lshr_b32 s%d, s2, 3" % sC)
e("s_mov_b32 s%d, 0x40000" % sSPIN)
e("s_cmp_ge_u32 s%d, 4" % sWAVE)
e("s_cbranch_scc1 L_A")
vX = 8
c("x offset: (l>>2)*64 + (l&3)*8")
e("v_lshrrev_b32 %s, 2, %s" % (v(vT0), v(vL)))
e("v_and_b32 %s, 3, %s" % (v(vT1), v(vL)))
e("v_lshlrev_b32 %s, 6, %s" % (v(vT0), v(vT0)))
e("v_lshl_add_u32 %s, %s, 3, %s" % (v(vT0), v(vT1), v(vT0)))
e("s_lshl_b32 s%d, s%d, 5" % (sP4, sG))
e("s_add_u32 s%d, s%d, s%d" % (sP4, sP4, sC))
e("s_lshl_b32 s%d, s%d, 2" % (sP4, sP4))
e("s_cmp_lg_u32 s%d, 0" % sWAVE)
e("s_cbranch_scc1 L_B0")
c("---- Q wave: issue x and wq loads ----")
e("s_setprio 3")
e("v_lshrrev_b32 %s, 3, %s" % (v(vT1), v(vL)))
e("v_lshlrev_b32 %s, 1, %s" % (v(vT2), v(vQ)))
e("v_xor_b32 %s, %s, %s" % (v(vT2), v(vT2), v(vL)))
e("v_and_b32 %s, 7, %s" % (v(vT2), v(vT2)))
e("v_lshlrev_b32 %s, 13, %s" % (v(vT1), v(vT1)))
e("v_lshl_add_u32 %s, %s, 4, %s" % (v(vT1), v(vT2), v(vT1)))
e("s_and_b32 s%d, s%d, 3" % (sOFF, sC))
e("s_lshl_b32 s%d, s%d, 20" % (sOFF, sOFF))
e("s_lshl_b32 s%d, s%d, 10" % (sTMP, sG))
e("s_add_u32 s%d, s%d, s%d" % (sOFF, sOFF, sTMP))
e("s_lshr_b32 s%d, s%d, 2" % (sTMP, sC))
e("s_lshl_b32 s%d, s%d, 7" % (sTMP, sTMP))
e("s_add_u32 s%d, s%d, s%d" % (sOFF, sOFF, sTMP))
e("s_mov_b32 m0, %d" % WQB)
e("s_mov_b32 s%d, %s" % (SRD_B + 2, hx(1 << 22)))
e("s_mov_b32 s%d, 0x00020000" % (SRD_B + 3))
WQ4 = int(opts.get("wq4", 0))
e("s_mov_b32 s%d, %d" % (sCNT, 12 if WQ4 else 16))
if WQ4: e("s_mov_b32 s%d, %d" % (sSTEP, 65536 - 1024))
vEP = 22
e("v_mov_b32 %s, 0" % v(vEP))
e("s_waitcnt lgkmcnt(0)")
if STAMPS: e("v_mov_b32 %s, s%d" % (v(vSTP), sST))
e("s_mov_b64 %s, s[22:23]" % sp(SRD_B))
e("global_load_dwordx2 %s, %s, s[16:17]" % (v(vX, 2), v(vT0)))
e("global_load_dwordx2 %s, %s, s[16:17] offset:32" % (v(vX + 2, 2), v(vT0)))
e("global_load_dword %s, %s, s[40:41] offset:%d sc1" % (v(vEP), v(vEP), EPOCH))
lab("L_wqloop")
if WQ4:
    for i in range(4):
        e("buffer_load_dwordx4 %s, %s, s%d offen offset:%d nt lds" % (v(vT1), srd(SRD_B), sOFF, 1024 * i))
        if i < 3: e("s_add_u32 s%d, s%d, s%d" % (sOFF, sOFF, sSTEP))
    e("s_add_u32 m0, m0, 4096")
    e("s_add_u32 s%d, s%d, %d" % (sOFF, sOFF, 65536 + 3072))
    e("s_sub_u32 s%d, s%d, 4" % (sCNT, sCNT))
    e("s_cbranch_scc0 L_wqloop")
else:
    e("buffer_load_dwordx4 %s, %s, s%d offen nt lds" % (v(vT1), srd(SRD_B), sOFF))
    e("s_sub_u32 s%d, s%d, 1" % (sCNT, sCNT))
    e("s_add_u32 m0, m0, 1024")
    e("s_add_u32 s%d, s%d, 65536" % (sOFF, sOFF))
    e("s_cmp_lg_u32 s%d, 0" % sCNT)
    e("s_cbranch_scc1 L_wqloop")
if QWAIT >= 0: e("s_waitcnt vmcnt(%d)" % QWAIT)
e("s_barrier")
mksrd(SRD_WS, 40, WS_NREC)
c("publish address: (n>>1)*128 + q'*32 + (n&1)*16 ; record (g*32+c)*512")
vPUB = 7
e("v_lshrrev_b32 %s, 1, %s" % (v(vT0), v(vN)))
e("v_lshlrev_b32 %s, 7, %s" % (v(vT0), v(vT0)))
e("v_lshl_add_u32 %s, %s, 5, %s" % (v(vT0), v(vQ), v(vT0)))
e("v_and_b32 %s, 1, %s" % (v(vT1), v(vN)))
e("v_lshl_add_u32 %s, %s, 4, %s" % (v(vPUB), v(vT1), v(vT0)))
e("s_lshl_b32 s%d, s%d, 7" % (sOFF, sP4))
e("s_add_u32 s%d, s%d, %d" % (sOFF, sOFF, MB1A))
mask(sM8, 0x00FF00FF)
vZ = 12
if PREWRITE:
    for i in range(4): e("v_mov_b32 %s, 0" % v(vZ + i))
    e("s_mov_b64 exec, %s" % sp(sM8))
    e("buffer_store_dwordx4 %s, %s, %s, s%d offen%s" % (v(vZ, 4), v(vPUB), srd(SRD_WS), sOFF, fs))
    e("s_mov_b64 exec, -1")
NQ = 1 if PREWRITE else 0
e("s_waitcnt vmcnt(%d)" % (16 + NQ))
e("s_branch L_ln1")
lab("L_B0")
c("---- B waves: issue x, w1, b1, w2 loads ----")
vW1, vB1, vW2 = 16, 22, 28
e("v_subrev_u32 %s, 64, v0" % v(vT1))
e("v_mul_u32_u24 %s, 20, %s" % (v(vT1), v(vT1)))
e("v_mov_b32 %s, s%d" % (v(33), sP4))
e("s_waitcnt lgkmcnt(0)")
if STAMPS: e("v_mov_b32 %s, s%d" % (v(vSTP), sST))
e("global_load_dwordx2 %s, %s, s[16:17]" % (v(vX, 2), v(vT0)))
e("global_load_dwordx2 %s, %s, s[16:17] offset:32" % (v(vX + 2, 2), v(vT0)))
e("global_load_dword %s, %s, s[16:17]" % (v(33), v(33)))
for b, p, r in ((SRD_A, 28, vW1), (SRD_B, 30, vB1), (SRD_C, 32, vW2)):
    mksrd(b, p, 3584)
    e("buffer_load_dwordx4 %s, %s, %s, 0 offen" % (v(r, 4), v(vT1), srd(b)))
    e("buffer_load_dword %s, %s, %s, 0 offen offset:16" % (v(r + 4), v(vT1), srd(b)))
mksrd(SRD_WS, 40, WS_NREC)
e("v_mov_b32 %s, 0" % v(vPUB))
if PFLATE:
    e("s_barrier")
    if PREFETCH:
        c("pull the kernel's code into L2 (first two workgroups of each group, wave 1)")
        e("s_cmp_ge_u32 s%d, 2" % sC)
        e("s_cbranch_scc1 L_nopf")
        e("s_cmp_lg_u32 s%d, 1" % sWAVE)
        e("s_cbranch_scc1 L_nopf")
        e("s_getpc_b64 %s" % sp(sPC))
        lab("L_pc")
        e("s_sub_u32 s%d, s%d, L_pc-L_start" % (sPC, sPC))
        e("s_subb_u32 s%d, s%d, 0" % (sPC + 1, sPC + 1))
        e("v_lshlrev_b32 %s, 7, %s" % (v(vT0), v(vL)))
        e("v_min_u32 %s, L_codeend-L_start-4, %s" % (v(vT1), v(vT0)))
        e("global_load_dword %s, %s, %s" % (v(34), v(vT1), sp(sPC)))
        e("v_add_u32 %s, 8192, %s" % (v(vT0), v(vT0)))
        e("v_min_u32 %s, L_codeend-L_start-4, %s" % (v(vT1), v(vT0)))
        e("global_load_dword %s, %s, %s" % (v(35), v(vT1), sp(sPC)))
        e("s_waitcnt vmcnt(8)")
        e("s_branch L_ln1")
        lab("L_nopf")
    e("s_waitcnt vmcnt(6)")
else:
    if PREFETCH:
        c("pull the kernel's code into L2 (first two workgroups of each group, wave 1)")
        e("s_cmp_ge_u32 s%d, 2" % sC)
        e("s_cbranch_scc1 L_nopf")
        e("s_cmp_lg_u32 s%d, 1" % sWAVE)
        e("s_cbranch_scc1 L_nopf")
        e("s_getpc_b64 %s" % sp(sPC))
        lab("L_pc")
        e("s_sub_u32 s%d, s%d, L_pc-L_start" % (sPC, sPC))
        e("s_subb_u32 s%d, s%d, 0" % (sPC + 1, sPC + 1))
        e("v_lshlrev_b32 %s, 7, %s" % (v(vT0), v(vL)))
        e("v_min_u32 %s, L_codeend-L_start-4, %s" % (v(vT1), v(vT0)))
        e("global_load_dword %s, %s, %s" % (v(34), v(vT1), sp(sPC)))
        e("v_add_u32 %s, 8192, %s" % (v(vT0), v(vT0)))
        e("v_min_u32 %s, L_codeend-L_start-4, %s" % (v(vT1), v(vT0)))
        e("global_load_dword %s, %s, %s" % (v(35), v(vT1), sp(sPC)))
        e("s_barrier")
        e("s_waitcnt vmcnt(8)")
        e("s_branch L_ln1")
        lab("L_nopf")
    e("s_barrier")
    e("s_waitcnt vmcnt(6)")
lab("L_ln1")
c("---- LN1 (Q and B waves) ----")
stamp(1)
vF, vD, vS1, vS2, vM, vR, vXN = 36, 44, 52, 53, 54, 55, 56
for i in range(4): unpack(vF + 2 * i, vX + i)
e("v_readfirstlane_b32 s%d, %s" % (sPIV, v(vF)))
e("s_nop 1")
for i in range(8): e("v_subrev_f32 %s, s%d, %s" % (v(vD + i), sPIV, v(vF + i)))
def sums():
    e("v_add_f32 %s, %s, %s" % (v(vS1), v(vD), v(vD + 1)))
    e("v_mul_f32 %s, %s, %s" % (v(vS2), v(vD), v(vD)))
    e("v_fmac_f32 %s, %s, %s" % (v(vS2), v(vD + 1), v(vD + 1)))
    for i in range(2, 8):
        e("v_add_f32 %s, %s, %s" % (v(vS1), v(vS1), v(vD + i)))
        e("v_fmac_f32 %s, %s, %s" % (v(vS2), v(vD + i), v(vD + i)))
    dpp_reduce("v_add_f32", [vS1, vS2], ROW + XROW)
    e("s_nop 0")
    e("v_readlane_b32 s%d, %s, 63" % (sA, v(vS1)))
    e("v_readlane_b32 s%d, %s, 63" % (sB, v(vS2)))
sums()
e("v_mov_b32 %s, %s" % (v(vT0), hx(f2u(1.0 / 512))))
e("s_nop 0")
e("v_mul_f32 %s, s%d, %s" % (v(vM), sA, v(vT0)))
e("v_mul_f32 %s, s%d, %s" % (v(vR), sB, v(vT0)))
e("v_fma_f32 %s, -%s, %s, %s" % (v(vR), v(vM), v(vM), v(vR)))
e("v_add_f32 %s, s%d, %s" % (v(vM), sPIV, v(vM)))
ln_finish(vM, vR)
for i in range(8): e("v_sub_f32 %s, %s, %s" % (v(vD + i), v(vF + i), v(vM)))
for i in range(4): e("v_cvt_pk_bf16_f32 %s, %s, %s" % (v(vXN + i), v(vD + 2 * i), v(vD + 2 * i + 1)))
for i in range(4): unpack(vD + 2 * i, vXN + i)
for i in range(8): e("v_mul_f32 %s, %s, %s" % (v(vD + i), v(vD + i), v(vR)))
for i in range(4): e("v_cvt_pk_bf16_f32 %s, %s, %s" % (v(vXN + i), v(vD + 2 * i), v(vD + 2 * i + 1)))
e("s_cmp_lg_u32 s%d, 0" % sWAVE)
e("s_cbranch_scc1 L_B1")
c("======== Q wave: partial q (128 rows x 64 columns) ========")
vBF = 64
vAF = 80
vQA = 144
vAD = 60
e("v_lshlrev_b32 %s, 4, %s" % (v(vT0), v(vL)))
e("ds_write_b128 %s, %s offset:%d" % (v(vT0), v(vXN, 4), XN))
e("s_and_b32 s%d, s%d, 3" % (sTMP, sC))
e("s_lshl_b32 s%d, s%d, 8" % (sTMP, sTMP))
e("v_lshl_add_u32 %s, %s, 4, s%d" % (v(vT0), v(vQ), sTMP))
e("v_lshrrev_b32 %s, 2, %s" % (v(vT1), v(vL)))
e("v_lshlrev_b32 %s, 7, %s" % (v(vT1), v(vT1)))
e("v_bfe_u32 %s, %s, 3, 2" % (v(vT2), v(vL)))
e("v_lshl_add_u32 %s, %s, 5, %s" % (v(vT1), v(vT2), v(vT1)))
e("v_and_b32 %s, 3, %s" % (v(vT2), v(vL)))
e("v_lshl_add_u32 %s, %s, 3, %s" % (v(vT1), v(vT2), v(vT1)))
e("v_add_u32 %s, %d, %s" % (v(vAD), WQB, v(vT1)))
assert WQB % 256 == 0
for b in range(1, 4): e("v_xor_b32 %s, %d, %s" % (v(vAD + b), b << 5, v(vAD)))
e("s_waitcnt lgkmcnt(0)")
for s in range(4):
    e("ds_read_b128 %s, %s offset:%d" % (v(vBF + 4 * s, 4), v(vT0), XN + 64 * s))
e("v_readfirstlane_b32 s%d, %s" % (sE, v(vEP)))
mktag()
e("s_getreg_b32 s%d, hwreg(HW_REG_XCC_ID, 0, 4)" % (sTAG + 1))
if FORCE_SLOW: e("s_add_u32 s%d, s%d, s2" % (sTAG + 1, sTAG + 1))
e("v_mov_b32 %s, s%d" % (v(vZ + 2), sTAG))
e("v_mov_b32 %s, s%d" % (v(vZ + 3), sTAG + 1))
mask(sN1, 0xAAAAAAAA); mask(sN2, 0xCCCCCCCC); mask(sN4, 0xF0F0F0F0)
def q_reads(s):
    e("s_waitcnt vmcnt(%d)" % (12 - 4 * s + NQ))
    for b in range(4):
        for h in range(2):
            e("ds_read_b64_tr_b16 %s, %s offset:%d" % (v(vAF + 16 * s + 4 * b + 2 * h, 2), v(vAD + b), 4096 * s + 2048 * h))
def q_mfma(s, behind):
    for b in range(4):
        e("s_waitcnt lgkmcnt(%d)" % (6 - 2 * b + behind))
        e("v_mfma_f32_16x16x32_bf16 %s, %s, %s, %s" % (v(vQA + 4 * b, 4), v(vAF + 16 * s + 4 * b, 4), v(vBF + 4 * s, 4), v(vQA + 4 * b, 4) if s else "0"))
q_reads(0)
for s in range(4):
    if s < 3: q_reads(s + 1)
    q_mfma(s, 8 if s < 3 else 0)
c("gather address: (l>>3)*2048 + (l&7)*16")
vGA = 16
e("v_lshrrev_b32 %s, 3, %s" % (v(vT0), v(vL)))
e("v_and_b32 %s, 7, %s" % (v(vT1), v(vL)))
e("v_lshlrev_b32 %s, 11, %s" % (v(vGA), v(vT0)))
e("v_lshl_add_u32 %s, %s, 4, %s" % (v(vGA), v(vT1), v(vGA)))
e("s_nop 1")
for b in range(4):
    e("v_cndmask_b32 %s, %s, %s, %s" % (v(vD + 2 * b), v(vQA + 4 * b), v(vQA + 4 * b + 2), sp(sN1)))
    e("v_cndmask_b32 %s, %s, %s, %s" % (v(vD + 2 * b + 1), v(vQA + 4 * b + 1), v(vQA + 4 * b + 3), sp(sN1)))
for k in range(2):
    e("v_cndmask_b32 %s, %s, %s, %s" % (v(vD + 4 * k), v(vD + 4 * k), v(vD + 4 * k + 2), sp(sN2)))
    e("v_cndmask_b32 %s, %s, %s, %s" % (v(vD + 4 * k + 1), v(vD + 4 * k + 1), v(vD + 4 * k + 3), sp(sN2)))
e("v_cndmask_b32 %s, %s, %s, %s" % (v(vZ), v(vD), v(vD + 4), sp(sN4)))
e("v_cndmask_b32 %s, %s, %s, %s" % (v(vZ + 1), v(vD + 1), v(vD + 5), sp(sN4)))
e("s_mov_b64 exec, %s" % sp(sM8))
e("buffer_store_dwordx4 %s, %s, %s, s%d offen%s" % (v(vZ, 4), v(vPUB), srd(SRD_WS), sOFF, fs))
e("s_mov_b64 exec, -1")
if B1B: e("s_barrier")
stamp(2)
c("q LDS write address: (l>>3)*128 + (l>>4)*16 + (l&7)*4")
vQW = 17
e("v_lshlrev_b32 %s, 7, %s" % (v(vQW), v(vT0)))
e("v_lshl_add_u32 %s, %s, 4, %s" % (v(vQW), v(vQ), v(vQW)))
e("v_lshl_add_u32 %s, %s, 2, %s" % (v(vQW), v(vT1), v(vQW)))
e("v_add_u32 %s, %d, %s" % (v(vQW), QL, v(vQW)))
e("s_lshl_b32 s%d, s%d, 14" % (sOFF2, sG))
e("s_add_u32 s%d, s%d, %d" % (sOFF2, sOFF2, MB1A))
e("s_mov_b32 s%d, 0" % sCNT)
e("s_mov_b32 s%d, 1" % sMODE)
G1 = 80
G1B = 160
QS = 24
def q_loads(soff, G=G1):
    for rb in range(4):
        for k in range(QK):
            e("buffer_load_dwordx4 %s, %s, %s, s%d offen offset:%d sc1" % (v(G + 16 * rb + 4 * k, 4), v(vGA), srd(SRD_WS), soff, 512 * rb + 128 * k))
def q_sum(i, G=G1):
    rb, k = divmod(i, 4)
    if rb == 0: return
    for j in range(2):
        e("v_add_f32 %s, %s, %s" % (v(QS + 2 * k + j), v(G + 4 * k + j) if rb == 1 else v(QS + 2 * k + j), v(G + 16 * rb + 4 * k + j)))
def q_check(G, behind):
    idx = [i for i in range(16) if i % 4 < QK]
    if behind: behind = len(idx)
    for n_, i in enumerate(idx):
        e("s_waitcnt vmcnt(%d)" % (len(idx) - 1 - n_ + behind))
        e("v_cmpx_eq_u64 vcc, %s, %s" % (sp(sTAG), v(G + 4 * i + 2, 2)))
        q_sum(i, G)
    e("s_cmp_eq_u64 exec, -1")
if QD0: e("s_sleep %d" % QD0)
lab("L_qpollA")
if QPIPE:
    q_loads(sOFF2, G1)
    if QD1: e("s_sleep %d" % QD1)
    lab("L_qpollA2")
    q_loads(sOFF2, G1B)
    q_check(G1, 16)
    e("s_cbranch_scc1 L_qok")
    e("s_mov_b64 exec, -1")
    q_loads(sOFF2, G1)
    q_check(G1B, 16)
    e("s_cbranch_scc0 L_qfail")
else:
    q_loads(sOFF2, G1)
    q_check(G1, 0)
    e("s_cbranch_scc0 L_qfail")
lab("L_qok")
for k in range(4): e("v_cvt_pk_bf16_f32 %s, %s, %s" % (v(vD + k), v(QS + 2 * k), v(QS + 2 * k + 1)))
e("v_mov_b32 %s, s%d" % (v(vD + 4), sMODE))
e("v_mov_b32 %s, s%d" % (v(vD + 5), sTAG))
e("v_mov_b32 %s, %d" % (v(vD + 6), MODE))
e("ds_write2_b32 %s, %s, %s offset0:0 offset1:8" % (v(vQW), v(vD), v(vD + 1)))
e("ds_write2_b32 %s, %s, %s offset0:16 offset1:24" % (v(vQW), v(vD + 2), v(vD + 3)))
e("ds_write_b64 %s, %s" % (v(vD + 6), v(vD + 4, 2)))
e("s_waitcnt lgkmcnt(0)")
stamp(6)
e("s_barrier")
e("s_load_dword s%d, s[16:17], s%d" % (sXP, sP4))
e("s_load_dword s%d, s[34:35], 0" % sB2)
c("copy for other dies (always stored; not needed on the fast path)")
e("s_cmp_lg_u32 s%d, 0" % sCNT)
e("s_cbranch_scc1 L_qb_done")
e("s_add_u32 s%d, s%d, %d" % (sOFF, sOFF, MB1B - MB1A))
e("s_mov_b64 exec, %s" % sp(sM8))
e("buffer_store_dwordx4 %s, %s, %s, s%d offen sc1" % (v(vZ, 4), v(vPUB), srd(SRD_WS), sOFF))
e("s_mov_b64 exec, -1")
lab("L_qb_done")
c("g for own two columns")
vG, vXO = 18, 20
e("v_mov_b32 %s, 0" % v(vT1))
e("ds_read_b128 %s, %s offset:%d" % (v(vF, 4), v(vT1), YB))
e("ds_read_b64 %s, %s offset:%d" % (v(vF + 4, 2), v(vT1), YB + 16))
e("s_waitcnt lgkmcnt(0)")
e("s_lshl_b32 s%d, s%d, 16" % (sB2, sB2))
e("v_mov_b32 %s, s%d" % (v(vT0), sXP))
unpack(vXO, vT0)
e("v_add_f32 %s, %s, %s" % (v(vG), v(vF), v(vF + 2)))
e("v_add_f32 %s, %s, %s" % (v(vG + 1), v(vF + 1), v(vF + 3)))
e("v_add_f32 %s, %s, %s" % (v(vG), v(vG), v(vF + 4)))
e("v_add_f32 %s, %s, %s" % (v(vG + 1), v(vG + 1), v(vF + 5)))
round2(vG, vT1)
e("v_add_f32 %s, s%d, %s" % (v(vG), sB2, v(vG)))
e("v_add_f32 %s, s%d, %s" % (v(vG + 1), sB2, v(vG + 1)))
round2(vG, vT1)
e("v_mul_f32 %s, %s, %s" % (v(vF), hx(f2u(-math.log2(math.e))), v(vG)))
e("v_mul_f32 %s, %s, %s" % (v(vF + 1), hx(f2u(-math.log2(math.e))), v(vG + 1)))
e("v_exp_f32 %s, %s" % (v(vF), v(vF)))
e("v_exp_f32 %s, %s" % (v(vF + 1), v(vF + 1)))
e("s_nop 0")
e("v_add_f32 %s, 1.0, %s" % (v(vF), v(vF)))
e("v_add_f32 %s, 1.0, %s" % (v(vF + 1), v(vF + 1)))
e("v_rcp_f32 %s, %s" % (v(vF), v(vF)))
e("v_rcp_f32 %s, %s" % (v(vF + 1), v(vF + 1)))
e("s_nop 0")
e("v_mul_f32 %s, %s, %s" % (v(vG), v(vG), v(vF)))
e("v_mul_f32 %s, %s, %s" % (v(vG + 1), v(vG + 1), v(vF + 1)))
round2(vG, vT1)
c("final gather address: MB3 + (p>>6)*65536 + l*1024 + (p&63)*16")
e("s_lshr_b32 s%d, s%d, 8" % (sOFF3, sP4))
e("s_lshl_b32 s%d, s%d, 16" % (sOFF3, sOFF3))
e("s_and_b32 s%d, s%d, 255" % (sTMP, sP4))
e("s_lshl_b32 s%d, s%d, 2" % (sTMP, sTMP))
e("s_add_u32 s%d, s%d, s%d" % (sOFF3, sOFF3, sTMP))
e("s_add_u32 s%d, s%d, %d" % (sOFF3, sOFF3, MB3))
e("v_lshlrev_b32 %s, 10, %s" % (v(vT1), v(vL)))
e("s_mov_b32 s%d, s%d" % (sT3, sTAG))
mksrd(SRD_A, 36, 1024)
e("v_mov_b32 %s, 0" % v(vT2))
if int(opts.get("pr3", 0)):
    e("buffer_load_dwordx4 %s, %s, %s, s%d offen sc1" % (v(72, 4), v(vT1), srd(SRD_WS), sOFF3))
e("s_barrier")
e("s_barrier")
G3 = 64
if PRESLEEP: e("s_sleep %d" % PRESLEEP)
e("s_mov_b32 s%d, s%d" % (sT3 + 1, sTAG))
REP = int(opts.get("rep", 0)); HALF = int(opts.get("half", 6))
if REP:
    sPEND, sOFF3B = 94, 96
    GA, GB = 64, 68
    e("s_add_u32 s%d, s%d, %d" % (sOFF3B, sOFF3, 1 << 18))
    e("s_mov_b64 %s, -1" % sp(sPEND))
    for r in (GA, GB):
        e("v_mov_b32 %s, 0" % v(r + 2))
        e("v_not_b32 %s, %s" % (v(r + 3), v(r + 2)))
    e("buffer_load_dwordx4 %s, %s, %s, s%d offen sc1" % (v(GA, 4), v(vT1), srd(SRD_WS), sOFF3))
    e("s_sleep %d" % HALF)
    lab("L_h3loop")
    for (iss, so, chk) in ((GB, sOFF3B, GA), (GA, sOFF3, GB)):
        e("s_mov_b64 exec, %s" % sp(sPEND))
        e("buffer_load_dwordx4 %s, %s, %s, s%d offen sc1" % (v(iss, 4), v(vT1), srd(SRD_WS), so))
        e("s_waitcnt vmcnt(1)")
        e("v_cmpx_eq_u64 vcc, %s, %s" % (sp(sT3), v(chk + 2, 2)))
        e("v_mov_b32 %s, %s" % (v(vF), v(chk)))
        e("v_mov_b32 %s, %s" % (v(vF + 1), v(chk + 1)))
        e("s_andn2_b64 %s, %s, exec" % (sp(sPEND), sp(sPEND)))
        e("s_cbranch_scc0 L_h3ok")
    spin_check("L_h3loop")
else:
    lab("L_h3loop")
    e("buffer_load_dwordx4 %s, %s, %s, s%d offen sc1" % (v(vF, 4), v(vT1), srd(SRD_WS), sOFF3))
    e("s_waitcnt vmcnt(0)")
    e("v_cmpx_ne_u64 vcc, %s, %s" % (sp(sT3), v(vF + 2, 2)))
    e("s_cbranch_execz L_h3ok")
    if LSLEEP: e("s_sleep %d" % LSLEEP)
    spin_check("L_h3loop")
lab("L_h3ok")
e("s_mov_b64 exec, -1")
e("s_nop 2")
stamp(10)
dpp_reduce("v_add_f32", [vF, vF + 1], ROW + XROW)
round2(vF, vT0)
e("v_mul_f32 %s, %s, %s" % (v(vF), v(vF), v(vG)))
e("v_mul_f32 %s, %s, %s" % (v(vF + 1), v(vF + 1), v(vG + 1)))
round2(vF, vT0)
e("v_add_f32 %s, %s, %s" % (v(vF), v(vF), v(vXO)))
e("v_add_f32 %s, %s, %s" % (v(vF + 1), v(vF + 1), v(vXO + 1)))
e("v_cvt_pk_bf16_f32 %s, %s, %s" % (v(vT0), v(vF), v(vF + 1)))
e("s_mov_b32 exec_lo, 0"); e("s_mov_b32 exec_hi, 0x80000000")
OUTM = opts.get("outm", "").replace("+", " ")
e("buffer_store_dword %s, %s, %s, s%d offen %s" % (v(vT0), v(vT2), srd(SRD_A), sP4, OUTM))
if DBG:
    e("s_cmp_lg_u32 s%d, 0" % sC)
    e("s_cbranch_scc1 L_nodbg")
    e("s_memrealtime %s" % sp(sST))
    mksrd(SRD_B, 38, 256)
    e("s_lshl_b32 s%d, s%d, 2" % (sTMP, sG))
    e("s_waitcnt lgkmcnt(0)")
    e("s_and_b32 s100, s100, 0xfffff")
    e("s_and_b32 s%d, s%d, 0xfffff" % (sST, sST))
    e("v_mov_b32 %s, s100" % v(vF))
    e("v_mov_b32 %s, s%d" % (v(vF + 1), sST))
    e("buffer_store_dword %s, %s, %s, s%d offen" % (v(vF), v(vT2), srd(SRD_B), sTMP))
    e("buffer_store_dword %s, %s, %s, s%d offen offset:32" % (v(vF + 1), v(vT2), srd(SRD_B), sTMP))
    lab("L_nodbg")
e("s_cmp_lg_u32 s2, 0")
e("s_cbranch_scc1 L_fin")
e("buffer_store_dword %s, %s, %s, 0 offen offset:%d %s" % (v(vZ + 2), v(vT2), srd(SRD_WS), EPOCH, opts.get("epm", "sc1").replace("none", "")))
e("s_branch L_fin")
c("---- q gather retry / cross-die fallback ----")
lab("L_qfail")
e("s_mov_b64 exec, -1")
e("s_sub_u32 s%d, s%d, 1" % (sSPIN, sSPIN))
e("s_cbranch_scc1 L_end")
e("s_and_b32 s%d, s%d, 3" % (sTMP, sSPIN))
e("s_cmp_lg_u32 s%d, 0" % sTMP)
e("s_cbranch_scc1 %s" % ("L_qpollA2" if QPIPE else "L_qpollA"))
e("s_cmp_lg_u32 s%d, 0" % sCNT)
e("s_cbranch_scc1 L_qpollB")
e("s_mov_b32 s%d, 1" % sCNT)
e("s_add_u32 s%d, s%d, %d" % (sOFF, sOFF, MB1B - MB1A))
e("s_mov_b64 exec, %s" % sp(sM8))
e("buffer_store_dwordx4 %s, %s, %s, s%d offen sc1" % (v(vZ, 4), v(vPUB), srd(SRD_WS), sOFF))
e("s_mov_b64 exec, -1")
lab("L_qpollB")
e("s_add_u32 s%d, s%d, %d" % (sTMP, sOFF2, MB1B - MB1A))
q_loads(sTMP)
e("s_waitcnt vmcnt(0)")
for i in range(16): e("v_cmpx_eq_u32 vcc, s%d, %s" % (sTAG, v(G1 + 4 * i + 2)))
e("s_cmp_eq_u64 exec, -1")
e("s_mov_b64 exec, -1")
e("s_cbranch_scc0 L_qpollA")
for i in range(16): q_sum(i)
for i in range(16): e("v_cmpx_eq_u32 vcc, s%d, %s" % (sTAG + 1, v(G1 + 4 * i + 3)))
e("s_cmp_eq_u64 exec, -1")
e("s_cselect_b32 s%d, 1, 0" % sMODE)
e("s_mov_b64 exec, -1")
e("s_branch L_qok")

c("======== B waves ========")
lab("L_B1")
for i in range(4): unpack(vD + 2 * i, vXN + i)
sums()
unpack(vD, 33)
def norm2():
    e("v_sub_f32 %s, %s, %s" % (v(vD), v(vD), v(vM)))
    e("v_sub_f32 %s, %s, %s" % (v(vD + 1), v(vD + 1), v(vM)))
    round2(vD, vT0)
    e("v_mul_f32 %s, %s, %s" % (v(vD), v(vD), v(vR)))
    e("v_mul_f32 %s, %s, %s" % (v(vD + 1), v(vD + 1), v(vR)))
    round2(vD, vT0)
norm2()
e("v_mov_b32 %s, %s" % (v(vT0), hx(f2u(1.0 / 512))))
e("v_mul_f32 %s, s%d, %s" % (v(vM), sA, v(vT0)))
e("v_mul_f32 %s, s%d, %s" % (v(vR), sB, v(vT0)))
e("v_fma_f32 %s, -%s, %s, %s" % (v(vR), v(vM), v(vM), v(vR)))
ln_finish(vM, vR)
norm2()
e("s_nop 0")
e("v_readfirstlane_b32 s%d, %s" % (sH0, v(vD)))
e("v_readfirstlane_b32 s%d, %s" % (sH1, v(vD + 1)))
C1 = -2.0 * math.log2(math.e) * math.sqrt(2.0 / math.pi)
C2 = C1 * 0.044715
vACC = 60
e("v_mov_b32 %s, 0" % v(vACC))
e("v_mov_b32 %s, 0" % v(vACC + 1))
e("v_mov_b32 %s, %s" % (v(vS1), hx(f2u(C1))))
e("s_mov_b32 s%d, %s" % (sTMP, hx(f2u(C2))))
e("s_mov_b32 s%d, 5" % sCNT)
if B1B: e("s_barrier")
e("s_waitcnt vmcnt(0)")
lab("L_Bloop")
unpack(vF, vW1)
unpack(vF + 2, vB1)
U, T = vD, vD + 4
for col, sh in ((0, sH0), (1, sH1)):
    e("v_mul_f32 %s, s%d, %s" % (v(U + 2 * col), sh, v(vF)))
    e("v_mul_f32 %s, s%d, %s" % (v(U + 2 * col + 1), sh, v(vF + 1)))
for col in range(2): e("v_cvt_pk_bf16_f32 %s, %s, %s" % (v(T + col), v(U + 2 * col), v(U + 2 * col + 1)))
for col in range(2): unpack(U + 2 * col, T + col)
for col in range(2):
    e("v_add_f32 %s, %s, %s" % (v(U + 2 * col), v(U + 2 * col), v(vF + 2)))
    e("v_add_f32 %s, %s, %s" % (v(U + 2 * col + 1), v(U + 2 * col + 1), v(vF + 3)))
for col in range(2): e("v_cvt_pk_bf16_f32 %s, %s, %s" % (v(T + col), v(U + 2 * col), v(U + 2 * col + 1)))
for col in range(2): unpack(U + 2 * col, T + col)
for i in range(4): e("v_mul_f32 %s, %s, %s" % (v(T + i), v(U + i), v(U + i)))
for i in range(4): e("v_fma_f32 %s, %s, s%d, %s" % (v(T + i), v(T + i), sTMP, v(vS1)))
for i in range(4): e("v_mul_f32 %s, %s, %s" % (v(T + i), v(T + i), v(U + i)))
for i in range(4): e("v_exp_f32 %s, %s" % (v(T + i), v(T + i)))
for i in range(4): e("v_add_f32 %s, 1.0, %s" % (v(T + i), v(T + i)))
for i in range(4): e("v_rcp_f32 %s, %s" % (v(T + i), v(T + i)))
for i in range(4): e("v_mul_f32 %s, %s, %s" % (v(T + i), v(T + i), v(U + i)))
for col in range(2): e("v_cvt_pk_bf16_f32 %s, %s, %s" % (v(U + col), v(T + 2 * col), v(T + 2 * col + 1)))
for col in range(2): e("v_dot2c_f32_bf16 %s, %s, %s" % (v(vACC + col), v(U + col), v(vW2)))
for r in (vW1, vB1, vW2):
    for i in range(4): e("v_mov_b32 %s, %s" % (v(r + i), v(r + i + 1)))
e("s_sub_u32 s%d, s%d, 1" % (sCNT, sCNT))
e("s_cmp_lg_u32 s%d, 0" % sCNT)
e("s_cbranch_scc1 L_Bloop")
dpp_reduce("v_add_f32", [vACC, vACC + 1], ROW + XROW)
e("s_lshl_b32 s%d, s%d, 3" % (sTMP, sWAVE))
e("v_mov_b32 %s, s%d" % (v(vT0), sTMP))
e("s_mov_b32 exec_lo, 0"); e("s_mov_b32 exec_hi, 0x80000000")
e("ds_write_b64 %s, %s offset:%d" % (v(vT0), v(vACC, 2), YB - 8))
e("s_mov_b64 exec, -1")
e("s_waitcnt lgkmcnt(0)")
e("s_endpgm")

c("======== A waves ========")
lab("L_A")
WOAT = int(opts.get("woat", 8))
vKO, vP2, vKA, vVA, vWOo, vQB, vPX, vMW, vMR = 7, 8, 9, 10, 11, 12, 13, 14, 15
vZ2 = 16
vONE, vSC, vP, vM, vR = 20, 24, 32, 36, 37
vG2A, vOXW, vOXR, vP3 = 38, 39, 40, 41
vS1, vS2 = 42, 43
vF, vD = 44, 52
vZ3 = 60
vO, vLS, vWOF = 64, 96, 100
vQF = 116
vKF, vVF = 132, 164
vWA = 196
PX = CMB
sOFFW, sOFFG = 90, 91
e("s_sub_u32 s%d, s%d, 4" % (sAW, sWAVE))
c("dma source offset: q'*256 + ((n ^ (q'<<2))*16)")
e("v_lshlrev_b32 %s, 2, %s" % (v(vKO), v(vQ)))
e("v_xor_b32 %s, %s, %s" % (v(vKO), v(vKO), v(vN)))
e("v_lshlrev_b32 %s, 4, %s" % (v(vKO), v(vKO)))
e("v_lshl_add_u32 %s, %s, 8, %s" % (v(vKO), v(vQ), v(vKO)))
e("s_lshl_b32 s%d, s%d, 23" % (sOFF, sG))
e("s_lshl_b32 s%d, s%d, 12" % (sTMP, sC))
e("s_add_u32 s%d, s%d, s%d" % (sOFF, sOFF, sTMP))
e("s_lshl_b32 s%d, s%d, 10" % (sTMP, sAW))
e("s_add_u32 s%d, s%d, s%d" % (sOFF, sOFF, sTMP))
e("s_add_u32 s%d, s%d, %d" % (sOFF, sOFF, 7340032))
e("s_mul_i32 s%d, s%d, %d" % (sM0, sAW, 8 * KP))
e("s_add_u32 s%d, s%d, %d" % (sM0, sM0, KBUF))
e("s_mov_b32 m0, s%d" % sM0)
e("s_mov_b32 s%d, 0x20000" % sSTEP)
e("s_mov_b32 s%d, s%d" % (sOFF3, sOFF))
N1 = int(opts.get("n1", 4))
N1L = int(opts.get("n1l", N1)); THRL = int(opts.get("thrl", THR))
sLATE = 93
e("s_getreg_b32 s%d, hwreg(HW_REG_XCC_ID, 2, 1)" % sLATE)
e("s_cmp_lg_u32 s%d, 0" % sLATE)
e("s_cselect_b32 s%d, %d, %d" % (sCNT, N1L, N1))
e("s_mov_b32 s%d, %s" % (SRD_A + 2, hx(1 << 26)))
e("s_mov_b32 s%d, 0x00020000" % (SRD_A + 3))
e("s_waitcnt lgkmcnt(0)")
if STAMPS: e("v_mov_b32 %s, s%d" % (v(vSTP), sST))
e("s_mov_b64 %s, s[18:19]" % sp(SRD_A))
e("s_barrier")
KSLEEP = int(opts.get("ksleep", 0))
if KSLEEP: e("s_sleep %d" % KSLEEP)
def dma_loop(name, sr, soff, step, thr):
    lab(name)
    if thr: e("s_waitcnt vmcnt(%d)" % (thr - 1))
    e("buffer_load_dwordx4 %s, %s, s%d offen nt lds" % (v(vKO), srd(sr), soff))
    e("s_sub_u32 s%d, s%d, 1" % (sCNT, sCNT))
    e("s_add_u32 m0, m0, %d" % step)
    e("s_add_u32 s%d, s%d, s%d" % (soff, soff, sSTEP))
    e("s_cmp_lg_u32 s%d, 0" % sCNT)
    e("s_cbranch_scc1 %s" % name)
dma_loop("L_kloop", SRD_A, sOFF, KP, 0)
c("---- address setup (in the shadow of the first loads) ----")
mksrd(SRD_B, 20, 1 << 26); mksrd(SRD_WS, 40, WS_NREC); mksrd(SRD_C, 24, 1 << 22)
e("v_and_b32 %s, 3, %s" % (v(vT0), v(vN)))
e("v_lshrrev_b32 %s, 2, %s" % (v(vT1), v(vN)))
c("K frag address: KBUF + aw*8KP + (m>>2)*KP + (m&3)*256 + ((q'^(m&3))*64)")
e("v_xor_b32 %s, %s, %s" % (v(vT2), v(vT0), v(vQ)))
e("v_mul_u32_u24 %s, %d, %s" % (v(vKA), KP, v(vT1)))
e("v_lshl_add_u32 %s, %s, 8, %s" % (v(vKA), v(vT0), v(vKA)))
e("v_lshl_add_u32 %s, %s, 6, %s" % (v(vKA), v(vT2), v(vKA)))
e("v_add_u32 %s, s%d, %s" % (v(vKA), sM0, v(vKA)))
c("V frag address: VBUF + q'*VP + r*256 + cc*8 + ((aw ^ r)*64) ; r = n>>2, cc = n&3")
e("v_mul_u32_u24 %s, %d, %s" % (v(vVA), VP, v(vQ)))
e("v_lshl_add_u32 %s, %s, 8, %s" % (v(vVA), v(vT1), v(vVA)))
e("v_lshl_add_u32 %s, %s, 3, %s" % (v(vVA), v(vT0), v(vVA)))
e("v_xor_b32 %s, s%d, %s" % (v(vT2), sAW, v(vT1)))
e("v_lshl_add_u32 %s, %s, 6, %s" % (v(vVA), v(vT2), v(vVA)))
e("v_add_u32 %s, %d, %s" % (v(vVA), VBUF, v(vVA)))
c("q frag address: (n>>2)*272 + q'*64 ; P exchange: q'*64 + (n>>2)*16 ; m/l: (n>>2)*16")
e("v_mul_u32_u24 %s, 272, %s" % (v(vQB), v(vT1)))
e("v_lshl_add_u32 %s, %s, 6, %s" % (v(vQB), v(vQ), v(vQB)))
e("v_lshlrev_b32 %s, 4, %s" % (v(vMR), v(vT1)))
e("v_lshl_add_u32 %s, %s, 6, %s" % (v(vPX), v(vQ), v(vMR)))
e("s_lshl_b32 s%d, s%d, 2" % (sTMP, sAW))
e("s_add_u32 s%d, s%d, %d" % (sTMP, sTMP, ML))
e("v_add_u32 %s, s%d, %s" % (v(vMW), sTMP, v(vMR)))
e("s_lshl_b32 s%d, s%d, 8" % (sTMP, sAW))
e("v_add_u32 %s, s%d, %s" % (v(vWA + 1), sTMP, v(vPX)))
c("hop2 publish: (n>>2)*32768 + (q'>>1)*4096 + (q'&1)*64 + (n&3)*16 ; soffset g<<17 + aw<<13 + c<<7")
e("v_lshlrev_b32 %s, 15, %s" % (v(vP2), v(vT1)))
e("v_lshl_add_u32 %s, %s, 4, %s" % (v(vP2), v(vT0), v(vP2)))
e("v_lshrrev_b32 %s, 1, %s" % (v(vT2), v(vQ)))
e("v_lshl_add_u32 %s, %s, 12, %s" % (v(vP2), v(vT2), v(vP2)))
e("v_and_b32 %s, 1, %s" % (v(vT2), v(vQ)))
e("v_lshl_add_u32 %s, %s, 6, %s" % (v(vP2), v(vT2), v(vP2)))
e("s_lshl_b32 s%d, s%d, 17" % (sOFF2, sG))
e("s_add_u32 s%d, s%d, %d" % (sOFF2, sOFF2, MB2A))
c("hop2 gather region g*32 + (c>>2)*4 + aw")
e("s_and_b32 s%d, s%d, 28" % (sTMP, sC))
e("s_add_u32 s%d, s%d, s%d" % (sTMP, sTMP, sAW))
e("s_lshl_b32 s%d, s%d, 12" % (sTMP, sTMP))
e("s_add_u32 s%d, s%d, s%d" % (sOFFG, sOFF2, sTMP))
e("s_lshl_b32 s%d, s%d, 13" % (sTMP, sAW))
e("s_add_u32 s%d, s%d, s%d" % (sOFF2, sOFF2, sTMP))
e("s_lshl_b32 s%d, s%d, 7" % (sTMP, sC))
e("s_add_u32 s%d, s%d, s%d" % (sOFF2, sOFF2, sTMP))
e("v_lshlrev_b32 %s, 4, %s" % (v(vG2A), v(vL)))
c("hop 3 publish address: (n>>1)*128 + q'*32 + (n&1)*16")
e("v_lshrrev_b32 %s, 1, %s" % (v(vT2), v(vN)))
e("v_lshlrev_b32 %s, 7, %s" % (v(vP3), v(vT2)))
e("v_lshl_add_u32 %s, %s, 5, %s" % (v(vP3), v(vQ), v(vP3)))
e("v_and_b32 %s, 1, %s" % (v(vT2), v(vN)))
e("v_lshl_add_u32 %s, %s, 4, %s" % (v(vP3), v(vT2), v(vP3)))
c("wo dma offset (l>>2)*1024 + (l&3)*16 ; frag address WOB + aw*4096 + (l>>2)*64 + (l&3)*8")
e("v_lshrrev_b32 %s, 2, %s" % (v(vT2), v(vL)))
e("v_lshlrev_b32 %s, 10, %s" % (v(vWOo), v(vT2)))
e("v_lshl_add_u32 %s, %s, 4, %s" % (v(vWOo), v(vT0), v(vWOo)))
e("v_lshlrev_b32 %s, 6, %s" % (v(vWA), v(vT2)))
e("v_lshl_add_u32 %s, %s, 3, %s" % (v(vWA), v(vT0), v(vWA)))
e("s_lshl_b32 s%d, s%d, 12" % (sM0, sAW))
e("s_add_u32 s%d, s%d, %d" % (sM0, sM0, WOB))
e("v_add_u32 %s, s%d, %s" % (v(vWA), sM0, v(vWA)))
e("s_lshl_b32 s%d, s%d, 19" % (sOFFW, sG))
e("s_lshr_b32 s%d, s%d, 2" % (sA, sC))
e("s_lshl_b32 s%d, s%d, 16" % (sTMP, sA))
e("s_add_u32 s%d, s%d, s%d" % (sOFFW, sOFFW, sTMP))
e("s_and_b32 s%d, s%d, 3" % (sB, sC))
e("s_lshl_b32 s%d, s%d, 8" % (sTMP, sB))
e("s_add_u32 s%d, s%d, s%d" % (sOFFW, sOFFW, sTMP))
e("s_lshl_b32 s%d, s%d, 6" % (sTMP, sAW))
e("s_add_u32 s%d, s%d, s%d" % (sOFFW, sOFFW, sTMP))
sOFFP3 = 92
e("s_lshl_b32 s%d, s%d, 16" % (sOFFP3, sB))
e("s_lshl_b32 s%d, s%d, 13" % (sTMP, sG))
e("s_add_u32 s%d, s%d, s%d" % (sOFFP3, sOFFP3, sTMP))
e("s_lshl_b32 s%d, s%d, 10" % (sTMP, sA))
e("s_add_u32 s%d, s%d, s%d" % (sOFFP3, sOFFP3, sTMP))
e("s_lshl_b32 s%d, s%d, 8" % (sTMP, sAW))
e("s_add_u32 s%d, s%d, s%d" % (sOFFP3, sOFFP3, sTMP))
e("s_add_u32 s%d, s%d, %d" % (sOFFP3, sOFFP3, MB3))
c("OX write: aw*32 + (l&7)*4 + (l>>5)*2 ; read q'*16")
e("v_lshlrev_b32 %s, 4, %s" % (v(vOXR), v(vQ)))
e("v_and_b32 %s, 7, %s" % (v(vT2), v(vL)))
e("s_lshl_b32 s%d, s%d, 5" % (sTMP, sAW))
e("v_lshl_add_u32 %s, %s, 2, s%d" % (v(vOXW), v(vT2), sTMP))
e("v_lshrrev_b32 %s, 5, %s" % (v(vT2), v(vL)))
e("v_lshl_add_u32 %s, %s, 1, %s" % (v(vOXW), v(vT2), v(vOXW)))
for i in range(4): e("v_mov_b32 %s, 0x3f803f80" % v(vONE + i))
mask(sMASKQ, 0x000F000F); mask(sN1, 0xAAAAAAAA); mask(sN2, 0xCCCCCCCC); mask(sMASK0, 0x000000FF); mask(sN4, 0x11111111)
e("s_mov_b32 s%d, %s" % (sA, hx(f2u(128 ** -0.5))))
e("s_mov_b32 s%d, %s" % (sB, hx(f2u(math.log2(math.e)))))
e("v_mov_b32 %s, %d" % (v(vT0), MODE))
PW3 = int(opts.get("pw3", 0))
if PW3:
    for i in range(4): e("v_mov_b32 %s, 0" % v(vZ3 + i))
    e("s_mov_b64 exec, %s" % sp(sMASKQ))
    e("buffer_store_dwordx4 %s, %s, %s, s%d offen sc1" % (v(vZ3, 4), v(vP3), srd(SRD_WS), sOFFP3))
    e("s_mov_b64 exec, -1")
if B1B: e("s_barrier")
def rest(tag, n1, thr):
    if n1 < 8:
        e("s_mov_b32 s%d, %d" % (sCNT, 8 - n1))
        dma_loop("L_kloop2" + tag, SRD_A, sOFF, KP, thr)
    e("s_mul_i32 s%d, s%d, %d" % (sTMP, sAW, 8 * VP))
    e("s_add_u32 m0, s%d, %d" % (sTMP, VBUF))
    e("s_mov_b32 s%d, 8" % sCNT)
    dma_loop("L_vloop" + tag, SRD_B, sOFF3, VP, thr)
if (N1L, THRL) != (N1, THR):
    e("s_cmp_lg_u32 s%d, 0" % sLATE)
    e("s_cbranch_scc1 L_late")
    rest("e", N1, THR)
    e("s_branch L_issued")
    lab("L_late")
    rest("l", N1L, THRL)
    lab("L_issued")
else:
    rest("", N1, THR)
def wo_loads():
    for i in range(4):
        e("buffer_load_dwordx4 %s, %s, s%d offen offset:%d nt lds" % (v(vWOo), srd(SRD_C), sOFFW, 1024 * i))
        if i < 3: e("s_add_u32 s%d, s%d, %d" % (sOFFW, sOFFW, 16384 - 1024))
e("s_mov_b32 m0, s%d" % sM0)
stamp(15)
WOE = int(opts.get("woe", 0))
if WOAT == -2:
    e("s_nop 0")
    wo_loads()
e("s_waitcnt vmcnt(%d)" % (12 if WOAT == -2 else 8))
if WOAT == -3:
    e("s_cmp_eq_u32 s%d, 0" % sLATE)
    e("s_cbranch_scc1 L_wo1")
    wo_loads()
    lab("L_wo1")
for T in range(2):
    for t in range(4):
        e("ds_read_b128 %s, %s offset:%d" % (v(vKF + 16 * T + 4 * t, 4), v(vKA), 4 * KP * T + 16 * t))
e("s_barrier")
for t in range(4):
    e("ds_read_b128 %s, %s offset:%d" % (v(vQF + 4 * t, 4), v(vQB), QL + 16 * t))
e("ds_read_b64 %s, %s" % (v(vZ3 + 2, 2), v(vT0)))
if WOAT == -1: wo_loads()
if WOAT == -4:
    e("s_cmp_eq_u32 s%d, 0" % sLATE)
    e("s_cbranch_scc1 L_wo1")
    wo_loads()
    lab("L_wo1")
for t in range(4):
    e("s_waitcnt lgkmcnt(%d)" % (4 - t))
    for T in range(2):
        e("v_mfma_f32_16x16x32_bf16 %s, %s, %s, %s" % (v(vSC + 4 * T, 4), v(vKF + 16 * T + 4 * t, 4), v(vQF + 4 * t, 4), v(vSC + 4 * T, 4) if t else "0"))
e("s_waitcnt lgkmcnt(0)")
e("v_readfirstlane_b32 s%d, %s" % (sMODE, v(vZ3 + 2)))
e("v_readfirstlane_b32 s%d, %s" % (sTAG, v(vZ3 + 3)))
e("v_mov_b32 %s, %s" % (v(vZ3 + 2), v(vZ3 + 3)))
e("v_mov_b32 %s, %s" % (v(vZ2 + 3), v(vZ3 + 3)))
e("s_nop 2")
for i in range(4): e("v_cvt_pk_bf16_f32 %s, %s, %s" % (v(vP + i), v(vSC + 2 * i), v(vSC + 2 * i + 1)))
for i in range(4): unpack(vSC + 2 * i, vP + i)
for i in range(8): e("v_mul_f32 %s, s%d, %s" % (v(vSC + i), sA, v(vSC + i)))
for i in range(4): e("v_cvt_pk_bf16_f32 %s, %s, %s" % (v(vP + i), v(vSC + 2 * i), v(vSC + 2 * i + 1)))
for i in range(4): unpack(vSC + 2 * i, vP + i)
e("v_max3_f32 %s, %s, %s, %s" % (v(vM), v(vSC), v(vSC + 1), v(vSC + 2)))
e("v_max3_f32 %s, %s, %s, %s" % (v(vR), v(vSC + 3), v(vSC + 4), v(vSC + 5)))
e("v_max3_f32 %s, %s, %s, %s" % (v(vM), v(vM), v(vSC + 6), v(vSC + 7)))
e("v_max_f32 %s, %s, %s" % (v(vM), v(vM), v(vR)))
e("v_mov_b32 %s, %s" % (v(vR), v(vM)))
e("s_nop 1")
e("v_permlane32_swap_b32 %s, %s" % (v(vM), v(vR)))
e("v_max_f32 %s, %s, %s" % (v(vM), v(vM), v(vR)))
e("v_mov_b32 %s, %s" % (v(vR), v(vM)))
e("s_nop 1")
e("v_permlane16_swap_b32 %s, %s" % (v(vM), v(vR)))
e("v_max_f32 %s, %s, %s" % (v(vM), v(vM), v(vR)))
e("v_mul_f32 %s, s%d, %s" % (v(vM), sB, v(vM)))
for i in range(8): e("v_fma_f32 %s, %s, s%d, -%s" % (v(vSC + i), v(vSC + i), sB, v(vM)))
for i in range(8): e("v_exp_f32 %s, %s" % (v(vSC + i), v(vSC + i)))
e("s_nop 0")
for i in range(4): e("v_cvt_pk_bf16_f32 %s, %s, %s" % (v(vP + i), v(vSC + 2 * i), v(vSC + 2 * i + 1)))
c("slow mode: use the write-through mailbox")
e("s_cmp_eq_u32 s%d, 0" % sMODE)
e("s_cselect_b32 s%d, %d, 0" % (sSTEP, MB2B - MB2A))
e("v_mfma_f32_16x16x32_bf16 %s, %s, %s, 0" % (v(vLS, 4), v(vONE, 4), v(vP, 4)))
e("s_mov_b64 exec, %s" % sp(sN4))
e("ds_write_b128 %s, %s offset:%d" % (v(vWA + 1), v(vP, 4), PX))
e("s_add_u32 s%d, s%d, s%d" % (sOFF2, sOFF2, sSTEP))
e("s_add_u32 s%d, s%d, s%d" % (sOFFG, sOFFG, sSTEP))
e("s_nop 3")
e("ds_write2_b32 %s, %s, %s offset0:0 offset1:16" % (v(vMW), v(vM), v(vLS)))
e("s_mov_b64 exec, -1")
stamp(12)
if WOAT >= 0:
    e("s_waitcnt vmcnt(%d)" % WOAT)
    wo_loads()
if WOAT in (-3, -4):
    e("s_cmp_lg_u32 s%d, 0" % sLATE)
    e("s_cbranch_scc1 L_wo2")
    e("s_waitcnt vmcnt(%d)" % WOE)
    wo_loads()
    lab("L_wo2")
e("s_waitcnt vmcnt(4) lgkmcnt(0)")
stamp(5)
e("s_barrier")
e("ds_read_b128 %s, %s offset:%d" % (v(vF, 4), v(vMR), ML))
e("ds_read_b128 %s, %s offset:%d" % (v(vF + 4, 4), v(vMR), ML + 64))
for s_ in range(4):
    e("ds_read_b128 %s, %s offset:%d" % (v(vQF + 4 * s_, 4), v(vPX), PX + 256 * s_))
    for dbl in range(2):
        for h in range(2):
            e("ds_read_b64_tr_b16 %s, %s offset:%d" % (v(vVF + 8 * s_ + 4 * dbl + 2 * h, 2), v(vVA), 8 * VP * s_ + 4 * VP * h + 32 * dbl))
e("s_waitcnt lgkmcnt(15)")
e("v_max3_f32 %s, %s, %s, %s" % (v(vM), v(vF), v(vF + 1), v(vF + 2)))
def pv(s_):
    for dbl in range(2):
        e("v_mfma_f32_16x16x32_bf16 %s, %s, %s, 0" % (v(vO + 8 * s_ + 4 * dbl, 4), v(vVF + 8 * s_ + 4 * dbl, 4), v(vQF + 4 * s_, 4)))
def sel(s_):
    o = vO + 8 * s_
    e("v_cndmask_b32 %s, %s, %s, %s" % (v(o), v(o), v(o + 2), sp(sN1)))
    e("v_cndmask_b32 %s, %s, %s, %s" % (v(o + 1), v(o + 1), v(o + 3), sp(sN1)))
    e("v_cndmask_b32 %s, %s, %s, %s" % (v(o + 4), v(o + 4), v(o + 6), sp(sN1)))
    e("v_cndmask_b32 %s, %s, %s, %s" % (v(o + 5), v(o + 5), v(o + 7), sp(sN1)))
    e("v_cndmask_b32 %s, %s, %s, %s" % (v(o), v(o), v(o + 4), sp(sN2)))
    e("v_cndmask_b32 %s, %s, %s, %s" % (v(o + 1), v(o + 1), v(o + 5), sp(sN2)))
    if s_ == 0:
        e("v_mul_f32 %s, %s, %s" % (v(vZ2), v(vF), v(o)))
        e("v_mul_f32 %s, %s, %s" % (v(vZ2 + 1), v(vF), v(o + 1)))
    else:
        e("v_fmac_f32 %s, %s, %s" % (v(vZ2), v(vF + s_), v(o)))
        e("v_fmac_f32 %s, %s, %s" % (v(vZ2 + 1), v(vF + s_), v(o + 1)))
pv(0)
e("v_max_f32 %s, %s, %s" % (v(vM), v(vM), v(vF + 3)))
for w in range(4): e("v_sub_f32 %s, %s, %s" % (v(vF + w), v(vF + w), v(vM)))
for w in range(4): e("v_exp_f32 %s, %s" % (v(vF + w), v(vF + w)))
e("s_waitcnt lgkmcnt(10)")
pv(1)
e("v_mul_f32 %s, %s, %s" % (v(vR), v(vF), v(vF + 4)))
for w in range(1, 4): e("v_fmac_f32 %s, %s, %s" % (v(vR), v(vF + w), v(vF + 4 + w)))
e("v_rcp_f32 %s, %s" % (v(vS1), v(vR)))
e("v_log_f32 %s, %s" % (v(vS2), v(vR)))
e("s_waitcnt lgkmcnt(5)")
pv(2)
for w in range(4): e("v_mul_f32 %s, %s, %s" % (v(vF + w), v(vF + w), v(vS1)))
e("v_add_f32 %s, %s, %s" % (v(vZ2 + 2), v(vM), v(vS2)))
e("s_waitcnt lgkmcnt(0)")
pv(3)
sel(0); sel(1); sel(2); sel(3)
e("s_cmp_eq_u32 s%d, 0" % sMODE)
e("s_cbranch_scc1 L_p2slow")
e("buffer_store_dwordx4 %s, %s, %s, s%d offen%s" % (v(vZ2, 4), v(vP2), srd(SRD_WS), sOFF2, fs))
lab("L_p2done")
stamp(7)
G2 = vKF
def h2_loads():
    for i in range(4):
        e("buffer_load_dwordx4 %s, %s, %s, s%d offen offset:%d sc1" % (v(G2 + 4 * i, 4), v(vG2A), srd(SRD_WS), sOFFG, 1024 * i))
h2_loads()
e("s_waitcnt vmcnt(5)")
stamp(13)
for b in range(2):
    for s in range(2):
        for h in range(2):
            e("ds_read_b64_tr_b16 %s, %s offset:%d" % (v(vWOF + 8 * b + 4 * s + 2 * h, 2), v(vWA), 32 * b + 2048 * s + 1024 * h))
e("s_branch L_h2chk")
lab("L_h2retry")
e("s_not_b64 exec, exec")
h2_loads()
e("s_mov_b64 exec, -1")
lab("L_h2chk")
e("s_waitcnt vmcnt(0)")
for i in range(4):
    e("v_cmpx_eq_u32 vcc, s%d, %s" % (sTAG, v(G2 + 4 * i + 3)))
e("s_cmp_eq_u64 exec, -1")
e("s_cbranch_scc1 L_h2ok")
spin_check("L_h2retry")
lab("L_h2ok")
stamp(8)
A_ = [G2 + 4 * i + 2 for i in range(4)]
e("v_max3_f32 %s, %s, %s, %s" % (v(vM), v(A_[0]), v(A_[1]), v(A_[2])))
e("v_max_f32 %s, %s, %s" % (v(vM), v(vM), v(A_[3])))
e("v_mov_b32 %s, %s" % (v(vR), v(vM)))
e("s_nop 1")
e("v_permlane32_swap_b32 %s, %s" % (v(vM), v(vR)))
e("v_max_f32 %s, %s, %s" % (v(vM), v(vM), v(vR)))
e("v_mov_b32 %s, %s" % (v(vR), v(vM)))
e("s_nop 1")
e("v_permlane16_swap_b32 %s, %s" % (v(vM), v(vR)))
e("v_max_f32 %s, %s, %s" % (v(vM), v(vM), v(vR)))
dpp_reduce("v_max_f32", [vM], ROW[:1])
for i in range(4): e("v_sub_f32 %s, %s, %s" % (v(vF + i), v(A_[i]), v(vM)))
for i in range(4): e("v_exp_f32 %s, %s" % (v(vF + i), v(vF + i)))
Y0, Y1, W, W2 = vD, vD + 1, vD + 2, vD + 3
e("v_mul_f32 %s, %s, %s" % (v(Y0), v(vF), v(G2)))
e("v_mul_f32 %s, %s, %s" % (v(Y1), v(vF), v(G2 + 1)))
e("v_add_f32 %s, %s, %s" % (v(W), v(vF), v(vF + 1)))
e("v_add_f32 %s, %s, %s" % (v(W2), v(vF + 2), v(vF + 3)))
for i in range(1, 4):
    e("v_fmac_f32 %s, %s, %s" % (v(Y0), v(vF + i), v(G2 + 4 * i)))
    e("v_fmac_f32 %s, %s, %s" % (v(Y1), v(vF + i), v(G2 + 4 * i + 1)))
    if i == 1:
        e("v_add_f32 %s, %s, %s" % (v(W), v(W), v(W2)))
        e("v_mov_b32 %s, %s" % (v(W2), v(W)))
e("v_permlane32_swap_b32 %s, %s" % (v(W), v(W2)))
e("s_nop 0")
e("v_permlane32_swap_b32 %s, %s" % (v(Y0), v(Y1)))
e("v_add_f32 %s, %s, %s" % (v(W), v(W), v(W2)))
e("v_add_f32 %s, %s, %s" % (v(Y0), v(Y0), v(Y1)))
e("s_nop 1")
e("v_permlane16_swap_b32 %s, %s" % (v(Y0), v(W)))
e("v_add_f32 %s, %s, %s" % (v(Y0), v(Y0), v(W)))
dpp_reduce("v_add_f32", [Y0], ROW[:1])
e("v_rcp_f32 %s, %s" % (v(W), v(Y0)))
e("s_nop 1")
e("v_permlane16_swap_b32 %s, %s" % (v(W), v(W2)))
e("v_mul_f32 %s, %s, %s" % (v(Y0), v(Y0), v(W2)))
e("v_cvt_pk_bf16_f32 %s, %s, %s" % (v(Y0), v(Y0), v(Y0)))
e("s_mov_b64 exec, %s" % sp(sMASK0))
e("ds_write_b16 %s, %s offset:%d" % (v(vOXW), v(Y0), OX))
e("s_mov_b64 exec, -1")
e("s_waitcnt lgkmcnt(0)")
e("s_barrier")
e("ds_read_b128 %s, %s offset:%d" % (v(vF, 4), v(vOXR), OX))
e("ds_read_b128 %s, %s offset:%d" % (v(vF + 4, 4), v(vOXR), OX + 64))
e("s_waitcnt lgkmcnt(1)")
for b in range(2):
    e("v_mfma_f32_16x16x32_bf16 %s, %s, %s, 0" % (v(vSC + 4 * b, 4), v(vWOF + 8 * b, 4), v(vF, 4)))
e("s_waitcnt lgkmcnt(0)")
for b in range(2):
    e("v_mfma_f32_16x16x32_bf16 %s, %s, %s, %s" % (v(vSC + 4 * b, 4), v(vWOF + 8 * b + 4, 4), v(vF + 4, 4), v(vSC + 4 * b, 4)))
e("s_nop 6")
e("v_cndmask_b32 %s, %s, %s, %s" % (v(vD), v(vSC), v(vSC + 2), sp(sN1)))
e("v_cndmask_b32 %s, %s, %s, %s" % (v(vD + 1), v(vSC + 1), v(vSC + 3), sp(sN1)))
e("v_cndmask_b32 %s, %s, %s, %s" % (v(vD + 2), v(vSC + 4), v(vSC + 6), sp(sN1)))
e("v_cndmask_b32 %s, %s, %s, %s" % (v(vD + 3), v(vSC + 5), v(vSC + 7), sp(sN1)))
e("v_cndmask_b32 %s, %s, %s, %s" % (v(vZ3), v(vD), v(vD + 2), sp(sN2)))
e("v_cndmask_b32 %s, %s, %s, %s" % (v(vZ3 + 1), v(vD + 1), v(vD + 3), sp(sN2)))
e("s_mov_b64 exec, %s" % sp(sMASKQ))
e("buffer_store_dwordx4 %s, %s, %s, s%d offen %s" % (v(vZ3, 4), v(vP3), srd(SRD_WS), sOFFP3, H3ST))
if REP:
    e("s_add_u32 s%d, s%d, %d" % (sOFFP3, sOFFP3, 1 << 18))
    e("buffer_store_dwordx4 %s, %s, %s, s%d offen %s" % (v(vZ3, 4), v(vP3), srd(SRD_WS), sOFFP3, H3ST))
e("s_mov_b64 exec, -1")
stamp(9)
lab("L_fin")
if PAD:
    e("s_add_u32 s100, s100, %d" % (PAD * 100))
    lab("L_pad")
    e("s_memrealtime %s" % sp(sST))
    e("s_waitcnt lgkmcnt(0)")
    e("s_sub_u32 s%d, s%d, s100" % (sST, sST))
    e("s_cmp_lt_i32 s%d, 0" % sST)
    e("s_cbranch_scc1 L_pad")
lab("L_fin2")
if STAMPS:
    e("s_mov_b64 exec, -1")
    e("s_waitcnt vmcnt(0)")
    stamp(11)
    e("s_lshl_b32 s%d, s2, 4" % sTMP)
    e("s_add_u32 s%d, s%d, s%d" % (sTMP, sTMP, sWAVE))
    e("s_lshl_b32 s%d, s%d, 6" % (sTMP, sTMP))
    e("s_add_u32 s%d, s%d, %d" % (sTMP, sTMP, STAMP_OFF))
    e("v_mov_b32 %s, 0" % v(vT1))
    e("s_mov_b64 exec, 1")
    for i in range(4):
        e("buffer_store_dwordx4 %s, %s, %s, s%d offen offset:%d" % (v(vSTP + 4 * i, 4), v(vT1), srd(SRD_WS), sTMP, 16 * i))
lab("L_end")
e("s_endpgm")
lab("L_p2slow")
e("buffer_store_dwordx4 %s, %s, %s, s%d offen sc1" % (v(vZ2, 4), v(vP2), srd(SRD_WS), sOFF2))
e("s_branch L_p2done")
lab("L_codeend")

hdr = open("cdna_kernels/%s.s.ref" % NAME).read().split("\n")
head = []
for ln in hdr:
    if ln.startswith("; @launch"):
        head.append("; @launch grid=(256,1,1) block=(512,1,1) lds=%d" % LDS_TOTAL)
    elif ln.startswith(";"):
        head.append(ln)
    else:
        break
out = "\n".join(head) + "\n"
out += '.amdgcn_target "amdgcn-amd-amdhsa--gfx950"\n.text\n.globl %s_kernel\n.p2align 8\n.type %s_kernel,@function\n%s_kernel:\n' % (NAME, NAME, NAME)
out += "\n".join(L) + "\n"
out += '''.section .rodata,"a"
.p2align 6
.amdhsa_kernel %s_kernel
  .amdhsa_next_free_vgpr %d
  .amdhsa_next_free_sgpr 102
  .amdhsa_accum_offset %d
  .amdhsa_group_segment_fixed_size 0
  .amdhsa_kernarg_size 104
  .amdhsa_user_sgpr_count 2
  .amdhsa_user_sgpr_kernarg_segment_ptr 1
  .amdhsa_system_sgpr_workgroup_id_x 1
  .amdhsa_float_denorm_mode_32 3
.end_amdhsa_kernel
''' % (NAME, NVGPR, NVGPR)
open(sys.argv[1], "w").write(out)
```

```python
import sys, struct, math
NAME = "recurrent_scan__sliding_block_cached__mixer_token_mlp__decode"
opts = dict(a.split("=") if "=" in a else (a, "1") for a in sys.argv[2:])
STAMPS = int(opts.get("stamps", 0))
PAD = int(opts.get("pad", 0))
PREFETCH = int(opts.get("pf", 0))
PREWRITE = int(opts.get("pw", 1))
QK = int(opts.get("qk", 4))
SPF = int(opts.get("spf", 0))
DPF = int(opts.get("dpf", 0))
EPF = int(opts.get("epf", 1))
XFLIP = int(opts.get("xflip", "0"), 0)
WOF = int(opts.get("wof", 1))
XLIN = int(opts.get("xlin", 0))
B1ONLY = int(opts.get("b1only", 0))

SM = " nt" if int(opts.get("smnt", 0)) else ""
PFM = " nt" if int(opts.get("pfnt", 0)) else ""
PFLATE = int(opts.get("pflate", 1))
B1B = int(opts.get("b1b", 1))
FASTST = opts.get("fastst", "sc0")
FORCE_SLOW = int(opts.get("slow", 0))
NPIPE = int(opts.get("npipe", 4))
SLEEP = int(opts.get("sleep", 3))
THR = int(opts.get("thr", 6))
LSLEEP = int(opts.get("lsleep", 0))
QWAIT = int(opts.get("qwait", -1))
QD0 = int(opts.get("qd0", 12))
QD1 = int(opts.get("qd1", 8))
QPIPE = int(opts.get("qpipe", 0))
H3LD = opts.get("h3ld", "sc1").replace("+", " ")
H3ST = opts.get("h3st", "sc1").replace("+", " ")
ATOM = int(opts.get("atom", 0))
PRESLEEP = int(opts.get("presleep", 16))

L = []
def e(s): L.append("    " + s)
def lab(s): L.append(s + ":")
def c(s): L.append("    ; " + s)
def f2u(x): return struct.unpack("<I", struct.pack("<f", x))[0]
def hx(x): return "0x%08x" % (x & 0xffffffff)

XN = 0
QL = 1024
MODE = QL + 1088
HX = MODE + 16
OX = 2176
ML = 2304
YB = 2432
CMB = 2560
KBUF = 12288
KP, VP = 1040, 1056
VBUF = KBUF + 32 * KP
WQB = VBUF + 32 * VP
WOB = WQB + 16384
LDS_TOTAL = WOB + 16896
EPOCH = 0
MB1A = 1 << 17
MB1B = MB1A + (1 << 17)
MB3 = MB1B + (1 << 17)
MB2A = 1 << 20
MB2B = 2 << 20
WS_USED = 3 << 20
STAMP_OFF = 32 << 20
WS_NREC = (33 << 20) if STAMPS else WS_USED

sWAVE, sG, sC, sP4, sPIV, sA, sB = 3, 4, 5, 6, 7, 8, 9
sTAG = 10
sSPIN, sTMP, sM0, sOFF = 12, 13, 14, 15
sE, sXP = 42, 43
SRD_A, SRD_B, SRD_C, SRD_D, SRD_WS = 44, 48, 52, 56, 60
sB2, sCNT, sAW, sMODE = 64, 65, 66, 67
sMASKQ, sMASK0, sN1, sN2, sN4, sM8 = 68, 70, 72, 74, 76, 78
sH0, sH1 = 80, 81
sT3 = 82
sOFF2, sOFF3, sSTEP = 84, 85, 86
sPC = 88
sST = 98
def srd(b): return "s[%d:%d]" % (b, b + 3)
def sp(b): return "s[%d:%d]" % (b, b + 1)
def v(a, n=1): return "v%d" % a if n == 1 else "v[%d:%d]" % (a, a + n - 1)

vL, vQ, vN, vT0, vT1, vT2 = 1, 2, 3, 4, 5, 6
vSTP = 240
NVGPR = 256

def stamp(i):
    if not STAMPS: return
    e("s_waitcnt lgkmcnt(0)")
    e("s_memrealtime %s" % sp(sST))
    e("s_waitcnt lgkmcnt(0)")
    e("v_mov_b32 %s, s%d" % (v(vSTP + i), sST))

def dpp_reduce(op, regs, steps):
    for s in steps:
        pad = 2 - (len(regs) - 1)
        if pad > 0: e("s_nop %d" % (pad - 1))
        for r in regs:
            e("%s_dpp %s, %s, %s %s" % (op, v(r), v(r), v(r), s))
ROW = ["row_ror:8 row_mask:0xf bank_mask:0xf", "row_ror:4 row_mask:0xf bank_mask:0xf",
       "row_ror:2 row_mask:0xf bank_mask:0xf", "row_ror:1 row_mask:0xf bank_mask:0xf"]
XROW = ["row_bcast:15 row_mask:0xa bank_mask:0xf", "row_bcast:31 row_mask:0xc bank_mask:0xf"]
def unpack(dst, src):
    e("v_lshlrev_b32 %s, 16, %s" % (v(dst), v(src)))
    e("v_and_b32 %s, 0xffff0000, %s" % (v(dst + 1), v(src)))
def round1(r):
    e("v_cvt_pk_bf16_f32 %s, %s, %s" % (v(r), v(r), v(r)))
    e("v_and_b32 %s, 0xffff0000, %s" % (v(r), v(r)))
def round2(r, tmp):
    e("v_cvt_pk_bf16_f32 %s, %s, %s" % (v(tmp), v(r), v(r + 1)))
    unpack(r, tmp)
def ln_finish(vmean, vvar):
    e("v_max_f32 %s, 0, %s" % (v(vvar), v(vvar)))
    round1(vmean)
    round1(vvar)
    e("v_add_f32 %s, %s, %s" % (v(vvar), hx(f2u(1e-5)), v(vvar)))
    round1(vvar)
    e("v_sqrt_f32 %s, %s" % (v(vvar), v(vvar)))
    e("s_nop 0")
    round1(vvar)
    e("v_rcp_f32 %s, %s" % (v(vvar), v(vvar)))
    e("s_nop 0")
def spin_check(retry_label):
    e("s_sub_u32 s%d, s%d, 1" % (sSPIN, sSPIN))
    e("s_cbranch_scc0 %s" % retry_label)
    e("s_branch L_end")
def mksrd(b, p, n):
    e("s_mov_b64 %s, %s" % (sp(b), sp(p)))
    e("s_mov_b32 s%d, %s" % (b + 2, hx(n)))
    e("s_mov_b32 s%d, 0x00020000" % (b + 3))
def mask(r, m):
    e("s_mov_b32 s%d, %s" % (r, hx(m)))
    e("s_mov_b32 s%d, %s" % (r + 1, hx(m)))
def mktag():
    e("s_mul_i32 s%d, s%d, 0x9E3779B1" % (sTAG, sE))
    e("s_add_u32 s%d, s%d, 0x632BE5AB" % (sTAG, sTAG))
fs = (" " + FASTST) if FASTST else ""

lab("L_start")
if EPF: e("s_getpc_b64 %s" % sp(sPC))
e("s_cmp_ge_u32 s2, 256")
e("s_cbranch_scc1 L_end")
e("s_load_dwordx16 s[16:31], s[0:1], 0")
e("s_load_dwordx8 s[32:39], s[0:1], 64")
e("s_load_dwordx2 s[40:41], s[0:1], 96")
if EPF:
    NL = 4 if STAMPS else 2
    c("pull the kernel's code into L2: every workgroup fetches %d of its 128 B lines" % NL)
    e("s_lshr_b32 s%d, s2, 3" % sTMP)
    e("s_lshl_b32 s%d, s%d, %d" % (sTMP, sTMP, 9 if STAMPS else 8))
    e("v_lshl_add_u32 %s, v0, 7, s%d" % (v(35), sTMP))
    e("v_cmp_gt_u32 vcc, %d, v0" % NL)
    e("v_min_u32 %s, L_codeend-L_start-8, %s" % (v(35), v(35)))
    e("s_and_saveexec_b64 s[90:91], vcc")
    e("s_cbranch_execz L_noepf")
    e("global_load_dword %s, %s, %s" % (v(35), v(35), sp(sPC)))
    lab("L_noepf")
    e("s_mov_b64 exec, -1")
if STAMPS:
    e("s_memrealtime %s" % sp(sST))
    for i in range(16): e("v_mov_b32 %s, 0" % v(vSTP + i))
DBG = int(opts.get("dbg", 0))
if PAD or DBG: e("s_memrealtime s[100:101]")
e("v_lshrrev_b32 %s, 6, v0" % v(vT0))
e("v_and_b32 %s, 63, v0" % v(vL))
e("v_readfirstlane_b32 s%d, %s" % (sWAVE, v(vT0)))
e("v_lshrrev_b32 %s, 4, %s" % (v(vQ), v(vL)))
e("v_and_b32 %s, 15, %s" % (v(vN), v(vL)))
e("s_and_b32 s%d, s2, 7" % sG)
e("s_lshr_b32 s%d, s2, 3" % sC)
e("s_mov_b32 s%d, 0x40000" % sSPIN)
e("s_cmp_ge_u32 s%d, 4" % sWAVE)
e("s_cbranch_scc1 L_A")
vX = 8
if XLIN:
    e("v_lshlrev_b32 %s, 4, %s" % (v(vT0), v(vL)))
else:
    c("x offset: (l>>2)*64 + (l&3)*8")
    e("v_lshrrev_b32 %s, 2, %s" % (v(vT0), v(vL)))
    e("v_and_b32 %s, 3, %s" % (v(vT1), v(vL)))
    e("v_lshlrev_b32 %s, 6, %s" % (v(vT0), v(vT0)))
    e("v_lshl_add_u32 %s, %s, 3, %s" % (v(vT0), v(vT1), v(vT0)))
def xload():
    if XLIN:
        e("global_load_dwordx4 %s, %s, s[16:17]" % (v(vX, 4), v(vT0)))
    else:
        e("global_load_dwordx2 %s, %s, s[16:17]" % (v(vX, 2), v(vT0)))
        e("global_load_dwordx2 %s, %s, s[16:17] offset:32" % (v(vX + 2, 2), v(vT0)))
e("s_lshl_b32 s%d, s%d, 5" % (sP4, sG))
e("s_add_u32 s%d, s%d, s%d" % (sP4, sP4, sC))
e("s_lshl_b32 s%d, s%d, 2" % (sP4, sP4))
e("s_cmp_lg_u32 s%d, 0" % sWAVE)
e("s_cbranch_scc1 L_B0")
c("---- Q wave: issue x and wq loads ----")
e("s_setprio 3")
e("v_lshrrev_b32 %s, 3, %s" % (v(vT1), v(vL)))
e("v_lshlrev_b32 %s, 1, %s" % (v(vT2), v(vQ)))
e("v_xor_b32 %s, %s, %s" % (v(vT2), v(vT2), v(vL)))
e("v_and_b32 %s, 7, %s" % (v(vT2), v(vT2)))
e("v_lshlrev_b32 %s, 13, %s" % (v(vT1), v(vT1)))
e("v_lshl_add_u32 %s, %s, 4, %s" % (v(vT1), v(vT2), v(vT1)))
e("s_and_b32 s%d, s%d, 3" % (sOFF, sC))
e("s_lshl_b32 s%d, s%d, 20" % (sOFF, sOFF))
e("s_lshl_b32 s%d, s%d, 10" % (sTMP, sG))
e("s_add_u32 s%d, s%d, s%d" % (sOFF, sOFF, sTMP))
e("s_lshr_b32 s%d, s%d, 2" % (sTMP, sC))
e("s_lshl_b32 s%d, s%d, 7" % (sTMP, sTMP))
e("s_add_u32 s%d, s%d, s%d" % (sOFF, sOFF, sTMP))
e("s_mov_b32 m0, %d" % WQB)
e("s_mov_b32 s%d, %s" % (SRD_B + 2, hx(1 << 22)))
e("s_mov_b32 s%d, 0x00020000" % (SRD_B + 3))
WQ4 = int(opts.get("wq4", 0))
e("s_mov_b32 s%d, %d" % (sCNT, 12 if WQ4 else 16))
if WQ4: e("s_mov_b32 s%d, %d" % (sSTEP, 65536 - 1024))
vEP = 22
e("v_mov_b32 %s, 0" % v(vEP))
e("s_waitcnt lgkmcnt(0)")
if STAMPS: e("v_mov_b32 %s, s%d" % (v(vSTP), sST))
e("s_mov_b64 %s, s[22:23]" % sp(SRD_B))
xload()
e("global_load_dword %s, %s, s[40:41] offset:%d sc1%s" % (v(vEP), v(vEP), EPOCH, SM))
lab("L_wqloop")
if WQ4:
    for i in range(4):
        e("buffer_load_dwordx4 %s, %s, s%d offen offset:%d nt lds" % (v(vT1), srd(SRD_B), sOFF, 1024 * i))
        if i < 3: e("s_add_u32 s%d, s%d, s%d" % (sOFF, sOFF, sSTEP))
    e("s_add_u32 m0, m0, 4096")
    e("s_add_u32 s%d, s%d, %d" % (sOFF, sOFF, 65536 + 3072))
    e("s_sub_u32 s%d, s%d, 4" % (sCNT, sCNT))
    e("s_cbranch_scc0 L_wqloop")
else:
    e("buffer_load_dwordx4 %s, %s, s%d offen nt lds" % (v(vT1), srd(SRD_B), sOFF))
    e("s_sub_u32 s%d, s%d, 1" % (sCNT, sCNT))
    e("s_add_u32 m0, m0, 1024")
    e("s_add_u32 s%d, s%d, 65536" % (sOFF, sOFF))
    e("s_cmp_lg_u32 s%d, 0" % sCNT)
    e("s_cbranch_scc1 L_wqloop")
if QWAIT >= 0: e("s_waitcnt vmcnt(%d)" % QWAIT)
e("s_barrier")
mksrd(SRD_WS, 40, WS_NREC)
c("publish address: (n>>1)*128 + q'*32 + (n&1)*16 ; record (g*32+c)*512")
vPUB = 7
e("v_lshrrev_b32 %s, 1, %s" % (v(vT0), v(vN)))
e("v_lshlrev_b32 %s, 7, %s" % (v(vT0), v(vT0)))
e("v_lshl_add_u32 %s, %s, 5, %s" % (v(vT0), v(vQ), v(vT0)))
e("v_and_b32 %s, 1, %s" % (v(vT1), v(vN)))
e("v_lshl_add_u32 %s, %s, 4, %s" % (v(vPUB), v(vT1), v(vT0)))
e("s_lshl_b32 s%d, s%d, 7" % (sOFF, sP4))
e("s_add_u32 s%d, s%d, %d" % (sOFF, sOFF, MB1A))
mask(sM8, 0x00FF00FF)
vXW = 23
if XLIN:
    e("v_lshrrev_b32 %s, 2, %s" % (v(vXW), v(vL)))
    e("v_lshlrev_b32 %s, 6, %s" % (v(vXW), v(vXW)))
    e("v_lshl_add_u32 %s, %s, 5, %s" % (v(vXW), v(vT1), v(vXW)))
    e("v_bfe_u32 %s, %s, 1, 1" % (v(vT0), v(vL)))
    e("v_lshl_add_u32 %s, %s, 3, %s" % (v(vXW), v(vT0), v(vXW)))
vZ = 12
if PREWRITE:
    for i in range(4): e("v_mov_b32 %s, 0" % v(vZ + i))
    e("s_mov_b64 exec, %s" % sp(sM8))
    e("buffer_store_dwordx4 %s, %s, %s, s%d offen%s" % (v(vZ, 4), v(vPUB), srd(SRD_WS), sOFF, fs))
    e("s_mov_b64 exec, -1")
NQ = 1 if PREWRITE else 0
e("s_waitcnt vmcnt(%d)" % (16 + NQ))
e("s_branch L_ln1")
lab("L_B0")
c("---- B waves: issue x, w1, b1, w2 loads ----")
vW1, vB1, vW2 = 16, 22, 28
if DPF:
    c("distributed code prefetch into L2: this workgroup pulls a few lines (needs no kernarg)")
    e("s_cmp_lg_u32 s%d, 1" % sWAVE)
    e("s_cbranch_scc1 L_nodpf")
    e("s_getpc_b64 %s" % sp(sPC))
    lab("L_pc3")
    NL = 4 if STAMPS else 2 * DPF
    e("s_sub_u32 s%d, s%d, L_pc3-L_start" % (sPC, sPC))
    e("s_subb_u32 s%d, s%d, 0" % (sPC + 1, sPC + 1))
    e("s_mul_i32 s%d, s%d, %d" % (sTMP, sC, NL * 128))
    if not STAMPS: e("s_and_b32 s%d, s%d, 8191" % (sTMP, sTMP))
    e("v_lshl_add_u32 %s, %s, 7, s%d" % (v(35), v(vL), sTMP))
    e("v_min_u32 %s, L_codeend-L_start-4, %s" % (v(35), v(35)))
    e("s_mov_b64 exec, %d" % ((1 << NL) - 1))
    e("global_load_dword %s, %s, %s" % (v(35), v(35), sp(sPC)))
    e("s_mov_b64 exec, -1")
    lab("L_nodpf")
BW = int(opts.get("bw", 1))
e("v_subrev_u32 %s, 64, v0" % v(vT1))
if BW:
    e("v_lshlrev_b32 %s, 2, %s" % (v(vT2), v(vT1)))
    e("v_lshlrev_b32 %s, 4, %s" % (v(vT1), v(vT1)))
else:
    e("v_mul_u32_u24 %s, 20, %s" % (v(vT1), v(vT1)))
e("v_mov_b32 %s, s%d" % (v(33), sP4))
e("s_waitcnt lgkmcnt(0)")
if STAMPS: e("v_mov_b32 %s, s%d" % (v(vSTP), sST))
if B1ONLY:
    e("s_cmp_lg_u32 s%d, 1" % sWAVE)
    e("s_cbranch_scc1 L_nox")
xload()
e("global_load_dword %s, %s, s[16:17]" % (v(33), v(33)))
if B1ONLY: lab("L_nox")
for b, p, r in ((SRD_A, 28, vW1), (SRD_B, 30, vB1), (SRD_C, 32, vW2)):
    mksrd(b, p, 3584)
mksrd(SRD_WS, 40, WS_NREC)
e("v_mov_b32 %s, 0" % v(vPUB))
if BW == 2: e("s_barrier")
for b, p, r in ((SRD_A, 28, vW1), (SRD_B, 30, vB1), (SRD_C, 32, vW2)):
    e("buffer_load_dwordx4 %s, %s, %s, 0 offen" % (v(r, 4), v(vT1), srd(b)))
    if BW: e("buffer_load_dword %s, %s, %s, 0 offen offset:3072" % (v(r + 4), v(vT2), srd(b)))
    else: e("buffer_load_dword %s, %s, %s, 0 offen offset:16" % (v(r + 4), v(vT1), srd(b)))
if BW != 2: e("s_barrier")
if B1ONLY:
    e("s_cmp_lg_u32 s%d, 1" % sWAVE)
    e("s_cbranch_scc1 L_B2")
if PREFETCH:
    c("pull the kernel's code into L2 (first two workgroups of each group, wave 1)")
    e("s_cmp_ge_u32 s%d, 2" % sC)
    e("s_cbranch_scc1 L_nopf")
    e("s_cmp_lg_u32 s%d, 1" % sWAVE)
    e("s_cbranch_scc1 L_nopf")
    e("s_getpc_b64 %s" % sp(sPC))
    lab("L_pc")
    e("s_sub_u32 s%d, s%d, L_pc-L_start" % (sPC, sPC))
    e("s_subb_u32 s%d, s%d, 0" % (sPC + 1, sPC + 1))
    e("v_lshlrev_b32 %s, 7, %s" % (v(vT0), v(vL)))
    e("v_min_u32 %s, L_codeend-L_start-4, %s" % (v(vT1), v(vT0)))
    e("global_load_dword %s, %s, %s" % (v(34), v(vT1), sp(sPC)))
    if STAMPS:
        e("v_add_u32 %s, 8192, %s" % (v(vT0), v(vT0)))
        e("v_min_u32 %s, L_codeend-L_start-4, %s" % (v(vT1), v(vT0)))
        e("global_load_dword %s, %s, %s" % (v(35), v(vT1), sp(sPC)))
    e("s_waitcnt vmcnt(%d)" % (8 if STAMPS else 7))
    e("s_branch L_ln1")
    lab("L_nopf")
e("s_waitcnt vmcnt(6)")
lab("L_ln1")
c("---- LN1 (Q and B waves) ----")
stamp(1)
vF, vD, vS1, vS2, vM, vR, vXN = 36, 44, 52, 53, 54, 55, 56
for i in range(4): unpack(vF + 2 * i, vX + i)
e("v_readfirstlane_b32 s%d, %s" % (sPIV, v(vF)))
e("s_nop 1")
for i in range(8): e("v_subrev_f32 %s, s%d, %s" % (v(vD + i), sPIV, v(vF + i)))
def sums():
    e("v_add_f32 %s, %s, %s" % (v(vS1), v(vD), v(vD + 1)))
    e("v_mul_f32 %s, %s, %s" % (v(vS2), v(vD), v(vD)))
    e("v_fmac_f32 %s, %s, %s" % (v(vS2), v(vD + 1), v(vD + 1)))
    for i in range(2, 8):
        e("v_add_f32 %s, %s, %s" % (v(vS1), v(vS1), v(vD + i)))
        e("v_fmac_f32 %s, %s, %s" % (v(vS2), v(vD + i), v(vD + i)))
    dpp_reduce("v_add_f32", [vS1, vS2], ROW + XROW)
    e("s_nop 0")
    e("v_readlane_b32 s%d, %s, 63" % (sA, v(vS1)))
    e("v_readlane_b32 s%d, %s, 63" % (sB, v(vS2)))
sums()
e("v_mov_b32 %s, %s" % (v(vT0), hx(f2u(1.0 / 512))))
e("s_nop 0")
e("v_mul_f32 %s, s%d, %s" % (v(vM), sA, v(vT0)))
e("v_mul_f32 %s, s%d, %s" % (v(vR), sB, v(vT0)))
e("v_fma_f32 %s, -%s, %s, %s" % (v(vR), v(vM), v(vM), v(vR)))
e("v_add_f32 %s, s%d, %s" % (v(vM), sPIV, v(vM)))
ln_finish(vM, vR)
for i in range(8): e("v_sub_f32 %s, %s, %s" % (v(vD + i), v(vF + i), v(vM)))
for i in range(4): e("v_cvt_pk_bf16_f32 %s, %s, %s" % (v(vXN + i), v(vD + 2 * i), v(vD + 2 * i + 1)))
for i in range(4): unpack(vD + 2 * i, vXN + i)
for i in range(8): e("v_mul_f32 %s, %s, %s" % (v(vD + i), v(vD + i), v(vR)))
for i in range(4): e("v_cvt_pk_bf16_f32 %s, %s, %s" % (v(vXN + i), v(vD + 2 * i), v(vD + 2 * i + 1)))
e("s_cmp_lg_u32 s%d, 0" % sWAVE)
e("s_cbranch_scc1 L_B1")
c("======== Q wave: partial q (128 rows x 64 columns) ========")
vBF = 64
vAF = 80
vQA = 144
vAD = 60
if XLIN:
    assert XN == 0
    e("ds_write2_b64 %s, %s, %s offset0:0 offset1:2" % (v(vXW), v(vXN, 2), v(vXN + 2, 2)))
else:
    e("v_lshlrev_b32 %s, 4, %s" % (v(vT0), v(vL)))
    e("ds_write_b128 %s, %s offset:%d" % (v(vT0), v(vXN, 4), XN))
e("s_and_b32 s%d, s%d, 3" % (sTMP, sC))
e("s_lshl_b32 s%d, s%d, 8" % (sTMP, sTMP))
e("v_lshl_add_u32 %s, %s, 4, s%d" % (v(vT0), v(vQ), sTMP))
e("v_lshrrev_b32 %s, 2, %s" % (v(vT1), v(vL)))
e("v_lshlrev_b32 %s, 7, %s" % (v(vT1), v(vT1)))
e("v_bfe_u32 %s, %s, 3, 2" % (v(vT2), v(vL)))
e("v_lshl_add_u32 %s, %s, 5, %s" % (v(vT1), v(vT2), v(vT1)))
e("v_and_b32 %s, 3, %s" % (v(vT2), v(vL)))
e("v_lshl_add_u32 %s, %s, 3, %s" % (v(vT1), v(vT2), v(vT1)))
e("v_add_u32 %s, %d, %s" % (v(vAD), WQB, v(vT1)))
assert WQB % 256 == 0
for b in range(1, 4): e("v_xor_b32 %s, %d, %s" % (v(vAD + b), b << 5, v(vAD)))
e("s_waitcnt lgkmcnt(0)")
for s in range(4):
    e("ds_read_b128 %s, %s offset:%d" % (v(vBF + 4 * s, 4), v(vT0), XN + 64 * s))
e("v_readfirstlane_b32 s%d, %s" % (sE, v(vEP)))
mktag()
e("s_getreg_b32 s%d, hwreg(HW_REG_XCC_ID, 0, 4)" % (sTAG + 1))
if FORCE_SLOW: e("s_add_u32 s%d, s%d, s2" % (sTAG + 1, sTAG + 1))
e("v_mov_b32 %s, s%d" % (v(vZ + 2), sTAG))
e("v_mov_b32 %s, s%d" % (v(vZ + 3), sTAG + 1))
mask(sN1, 0xAAAAAAAA); mask(sN2, 0xCCCCCCCC); mask(sN4, 0xF0F0F0F0)
def q_reads(s):
    e("s_waitcnt vmcnt(%d)" % (12 - 4 * s + NQ))
    for b in range(4):
        for h in range(2):
            e("ds_read_b64_tr_b16 %s, %s offset:%d" % (v(vAF + 16 * s + 4 * b + 2 * h, 2), v(vAD + b), 4096 * s + 2048 * h))
def q_mfma(s, behind):
    for b in range(4):
        e("s_waitcnt lgkmcnt(%d)" % (6 - 2 * b + behind))
        e("v_mfma_f32_16x16x32_bf16 %s, %s, %s, %s" % (v(vQA + 4 * b, 4), v(vAF + 16 * s + 4 * b, 4), v(vBF + 4 * s, 4), v(vQA + 4 * b, 4) if s else "0"))
q_reads(0)
for s in range(4):
    if s < 3: q_reads(s + 1)
    q_mfma(s, 8 if s < 3 else 0)
c("gather address: (l>>3)*2048 + (l&7)*16")
vGA = 16
e("v_lshrrev_b32 %s, 3, %s" % (v(vT0), v(vL)))
e("v_and_b32 %s, 7, %s" % (v(vT1), v(vL)))
e("v_lshlrev_b32 %s, 11, %s" % (v(vGA), v(vT0)))
e("v_lshl_add_u32 %s, %s, 4, %s" % (v(vGA), v(vT1), v(vGA)))
e("s_nop 1")
for b in range(4):
    e("v_cndmask_b32 %s, %s, %s, %s" % (v(vD + 2 * b), v(vQA + 4 * b), v(vQA + 4 * b + 2), sp(sN1)))
    e("v_cndmask_b32 %s, %s, %s, %s" % (v(vD + 2 * b + 1), v(vQA + 4 * b + 1), v(vQA + 4 * b + 3), sp(sN1)))
for k in range(2):
    e("v_cndmask_b32 %s, %s, %s, %s" % (v(vD + 4 * k), v(vD + 4 * k), v(vD + 4 * k + 2), sp(sN2)))
    e("v_cndmask_b32 %s, %s, %s, %s" % (v(vD + 4 * k + 1), v(vD + 4 * k + 1), v(vD + 4 * k + 3), sp(sN2)))
e("v_cndmask_b32 %s, %s, %s, %s" % (v(vZ), v(vD), v(vD + 4), sp(sN4)))
e("v_cndmask_b32 %s, %s, %s, %s" % (v(vZ + 1), v(vD + 1), v(vD + 5), sp(sN4)))
e("s_mov_b64 exec, %s" % sp(sM8))
e("buffer_store_dwordx4 %s, %s, %s, s%d offen%s" % (v(vZ, 4), v(vPUB), srd(SRD_WS), sOFF, fs))
e("s_mov_b64 exec, -1")
if B1B: e("s_barrier")
stamp(2)
c("q LDS write address: (l>>3)*128 + (l>>4)*16 + (l&7)*4")
vQW = 17
e("v_lshlrev_b32 %s, 7, %s" % (v(vQW), v(vT0)))
e("v_lshl_add_u32 %s, %s, 4, %s" % (v(vQW), v(vQ), v(vQW)))
e("v_lshl_add_u32 %s, %s, 2, %s" % (v(vQW), v(vT1), v(vQW)))
e("v_add_u32 %s, %d, %s" % (v(vQW), QL, v(vQW)))
e("s_lshl_b32 s%d, s%d, 14" % (sOFF2, sG))
e("s_add_u32 s%d, s%d, %d" % (sOFF2, sOFF2, MB1A))
e("s_mov_b32 s%d, 0" % sCNT)
e("s_mov_b32 s%d, 1" % sMODE)
G1 = 80
G1B = 160
QS = 24
def q_loads(soff, G=G1):
    for rb in range(4):
        for k in range(QK):
            e("buffer_load_dwordx4 %s, %s, %s, s%d offen offset:%d sc1" % (v(G + 16 * rb + 4 * k, 4), v(vGA), srd(SRD_WS), soff, 512 * rb + 128 * k))
def q_sum(i, G=G1):
    rb, k = divmod(i, 4)
    if rb == 0: return
    for j in range(2):
        e("v_add_f32 %s, %s, %s" % (v(QS + 2 * k + j), v(G + 4 * k + j) if rb == 1 else v(QS + 2 * k + j), v(G + 16 * rb + 4 * k + j)))
def q_check(G, behind):
    idx = [i for i in range(16) if i % 4 < QK]
    if behind: behind = len(idx)
    for n_, i in enumerate(idx):
        e("s_waitcnt vmcnt(%d)" % (len(idx) - 1 - n_ + behind))
        e("v_cmpx_eq_u64 vcc, %s, %s" % (sp(sTAG), v(G + 4 * i + 2, 2)))
        q_sum(i, G)
    e("s_cmp_eq_u64 exec, -1")
if QD0: e("s_sleep %d" % QD0)
lab("L_qpollA")
if QPIPE:
    q_loads(sOFF2, G1)
    if QD1: e("s_sleep %d" % QD1)
    lab("L_qpollA2")
    q_loads(sOFF2, G1B)
    q_check(G1, 16)
    e("s_cbranch_scc1 L_qok")
    e("s_mov_b64 exec, -1")
    q_loads(sOFF2, G1)
    q_check(G1B, 16)
    e("s_cbranch_scc0 L_qfail")
else:
    q_loads(sOFF2, G1)
    q_check(G1, 0)
    e("s_cbranch_scc0 L_qfail")
lab("L_qok")
for k in range(4): e("v_cvt_pk_bf16_f32 %s, %s, %s" % (v(vD + k), v(QS + 2 * k), v(QS + 2 * k + 1)))
e("v_mov_b32 %s, s%d" % (v(vD + 4), sMODE))
e("v_mov_b32 %s, s%d" % (v(vD + 5), sTAG))
e("v_mov_b32 %s, %d" % (v(vD + 6), MODE))
e("ds_write2_b32 %s, %s, %s offset0:0 offset1:8" % (v(vQW), v(vD), v(vD + 1)))
e("ds_write2_b32 %s, %s, %s offset0:16 offset1:24" % (v(vQW), v(vD + 2), v(vD + 3)))
e("ds_write_b64 %s, %s" % (v(vD + 6), v(vD + 4, 2)))
e("s_waitcnt lgkmcnt(0)")
stamp(6)
e("s_barrier")
e("s_load_dword s%d, s[16:17], s%d" % (sXP, sP4))
e("s_load_dword s%d, s[34:35], 0" % sB2)
c("copy for other dies (always stored; not needed on the fast path)")
e("s_cmp_lg_u32 s%d, 0" % sCNT)
e("s_cbranch_scc1 L_qb_done")
e("s_add_u32 s%d, s%d, %d" % (sOFF, sOFF, MB1B - MB1A))
e("s_mov_b64 exec, %s" % sp(sM8))
e("buffer_store_dwordx4 %s, %s, %s, s%d offen sc1" % (v(vZ, 4), v(vPUB), srd(SRD_WS), sOFF))
e("s_mov_b64 exec, -1")
lab("L_qb_done")
c("g for own two columns")
vG, vXO = 18, 20
e("v_mov_b32 %s, 0" % v(vT1))
e("ds_read_b128 %s, %s offset:%d" % (v(vF, 4), v(vT1), YB))
e("ds_read_b64 %s, %s offset:%d" % (v(vF + 4, 2), v(vT1), YB + 16))
e("s_waitcnt lgkmcnt(0)")
e("s_lshl_b32 s%d, s%d, 16" % (sB2, sB2))
e("v_mov_b32 %s, s%d" % (v(vT0), sXP))
unpack(vXO, vT0)
e("v_add_f32 %s, %s, %s" % (v(vG), v(vF), v(vF + 2)))
e("v_add_f32 %s, %s, %s" % (v(vG + 1), v(vF + 1), v(vF + 3)))
e("v_add_f32 %s, %s, %s" % (v(vG), v(vG), v(vF + 4)))
e("v_add_f32 %s, %s, %s" % (v(vG + 1), v(vG + 1), v(vF + 5)))
round2(vG, vT1)
e("v_add_f32 %s, s%d, %s" % (v(vG), sB2, v(vG)))
e("v_add_f32 %s, s%d, %s" % (v(vG + 1), sB2, v(vG + 1)))
round2(vG, vT1)
e("v_mul_f32 %s, %s, %s" % (v(vF), hx(f2u(-math.log2(math.e))), v(vG)))
e("v_mul_f32 %s, %s, %s" % (v(vF + 1), hx(f2u(-math.log2(math.e))), v(vG + 1)))
e("v_exp_f32 %s, %s" % (v(vF), v(vF)))
e("v_exp_f32 %s, %s" % (v(vF + 1), v(vF + 1)))
e("s_nop 0")
e("v_add_f32 %s, 1.0, %s" % (v(vF), v(vF)))
e("v_add_f32 %s, 1.0, %s" % (v(vF + 1), v(vF + 1)))
e("v_rcp_f32 %s, %s" % (v(vF), v(vF)))
e("v_rcp_f32 %s, %s" % (v(vF + 1), v(vF + 1)))
e("s_nop 0")
e("v_mul_f32 %s, %s, %s" % (v(vG), v(vG), v(vF)))
e("v_mul_f32 %s, %s, %s" % (v(vG + 1), v(vG + 1), v(vF + 1)))
round2(vG, vT1)
c("final gather address: MB3 + (p>>6)*65536 + l*1024 + (p&63)*16")
e("s_lshr_b32 s%d, s%d, 8" % (sOFF3, sP4))
e("s_lshl_b32 s%d, s%d, 16" % (sOFF3, sOFF3))
e("s_and_b32 s%d, s%d, 255" % (sTMP, sP4))
e("s_lshl_b32 s%d, s%d, 2" % (sTMP, sTMP))
e("s_add_u32 s%d, s%d, s%d" % (sOFF3, sOFF3, sTMP))
e("s_add_u32 s%d, s%d, %d" % (sOFF3, sOFF3, MB3))
e("v_lshlrev_b32 %s, 10, %s" % (v(vT1), v(vL)))
e("s_mov_b32 s%d, s%d" % (sT3, sTAG))
mksrd(SRD_A, 36, 1024)
e("v_mov_b32 %s, 0" % v(vT2))
if int(opts.get("pr3", 0)):
    e("buffer_load_dwordx4 %s, %s, %s, s%d offen sc1" % (v(72, 4), v(vT1), srd(SRD_WS), sOFF3))
e("s_barrier")
e("s_barrier")
G3 = 64
if PRESLEEP: e("s_sleep %d" % PRESLEEP)
e("s_mov_b32 s%d, s%d" % (sT3 + 1, sTAG))
REP = int(opts.get("rep", 0)); HALF = int(opts.get("half", 6))
if REP:
    sPEND, sOFF3B = 94, 96
    GA, GB = 64, 68
    e("s_add_u32 s%d, s%d, %d" % (sOFF3B, sOFF3, 1 << 18))
    e("s_mov_b64 %s, -1" % sp(sPEND))
    for r in (GA, GB):
        e("v_mov_b32 %s, 0" % v(r + 2))
        e("v_not_b32 %s, %s" % (v(r + 3), v(r + 2)))
    e("buffer_load_dwordx4 %s, %s, %s, s%d offen sc1" % (v(GA, 4), v(vT1), srd(SRD_WS), sOFF3))
    e("s_sleep %d" % HALF)
    lab("L_h3loop")
    for (iss, so, chk) in ((GB, sOFF3B, GA), (GA, sOFF3, GB)):
        e("s_mov_b64 exec, %s" % sp(sPEND))
        e("buffer_load_dwordx4 %s, %s, %s, s%d offen sc1" % (v(iss, 4), v(vT1), srd(SRD_WS), so))
        e("s_waitcnt vmcnt(1)")
        e("v_cmpx_eq_u64 vcc, %s, %s" % (sp(sT3), v(chk + 2, 2)))
        e("v_mov_b32 %s, %s" % (v(vF), v(chk)))
        e("v_mov_b32 %s, %s" % (v(vF + 1), v(chk + 1)))
        e("s_andn2_b64 %s, %s, exec" % (sp(sPEND), sp(sPEND)))
        e("s_cbranch_scc0 L_h3ok")
    spin_check("L_h3loop")
else:
    lab("L_h3loop")
    e("buffer_load_dwordx4 %s, %s, %s, s%d offen sc1" % (v(vF, 4), v(vT1), srd(SRD_WS), sOFF3))
    e("s_waitcnt vmcnt(0)")
    e("v_cmpx_ne_u64 vcc, %s, %s" % (sp(sT3), v(vF + 2, 2)))
    e("s_cbranch_execz L_h3ok")
    if LSLEEP: e("s_sleep %d" % LSLEEP)
    spin_check("L_h3loop")
lab("L_h3ok")
e("s_mov_b64 exec, -1")
e("s_nop 2")
stamp(10)
dpp_reduce("v_add_f32", [vF, vF + 1], ROW + XROW)
round2(vF, vT0)
e("v_mul_f32 %s, %s, %s" % (v(vF), v(vF), v(vG)))
e("v_mul_f32 %s, %s, %s" % (v(vF + 1), v(vF + 1), v(vG + 1)))
round2(vF, vT0)
e("v_add_f32 %s, %s, %s" % (v(vF), v(vF), v(vXO)))
e("v_add_f32 %s, %s, %s" % (v(vF + 1), v(vF + 1), v(vXO + 1)))
e("v_cvt_pk_bf16_f32 %s, %s, %s" % (v(vT0), v(vF), v(vF + 1)))
e("s_mov_b32 exec_lo, 0"); e("s_mov_b32 exec_hi, 0x80000000")
OUTM = opts.get("outm", "").replace("+", " ")
e("buffer_store_dword %s, %s, %s, s%d offen %s" % (v(vT0), v(vT2), srd(SRD_A), sP4, OUTM))
if DBG:
    e("s_cmp_lg_u32 s%d, 0" % sC)
    e("s_cbranch_scc1 L_nodbg")
    e("s_memrealtime %s" % sp(sST))
    mksrd(SRD_B, 38, 256)
    e("s_lshl_b32 s%d, s%d, 2" % (sTMP, sG))
    e("s_waitcnt lgkmcnt(0)")
    e("s_and_b32 s100, s100, 0xfffff")
    e("s_and_b32 s%d, s%d, 0xfffff" % (sST, sST))
    e("v_mov_b32 %s, s100" % v(vF))
    e("v_mov_b32 %s, s%d" % (v(vF + 1), sST))
    e("buffer_store_dword %s, %s, %s, s%d offen" % (v(vF), v(vT2), srd(SRD_B), sTMP))
    e("buffer_store_dword %s, %s, %s, s%d offen offset:32" % (v(vF + 1), v(vT2), srd(SRD_B), sTMP))
    lab("L_nodbg")
e("s_cmp_lg_u32 s2, 0")
e("s_cbranch_scc1 L_fin")
e("buffer_store_dword %s, %s, %s, 0 offen offset:%d %s" % (v(vZ + 2), v(vT2), srd(SRD_WS), EPOCH, opts.get("epm", "sc1").replace("none", "")))
e("s_branch L_fin")
c("---- q gather retry / cross-die fallback ----")
lab("L_qfail")
e("s_mov_b64 exec, -1")
e("s_sub_u32 s%d, s%d, 1" % (sSPIN, sSPIN))
e("s_cbranch_scc1 L_end")
e("s_and_b32 s%d, s%d, 3" % (sTMP, sSPIN))
e("s_cmp_lg_u32 s%d, 0" % sTMP)
e("s_cbranch_scc1 %s" % ("L_qpollA2" if QPIPE else "L_qpollA"))
e("s_cmp_lg_u32 s%d, 0" % sCNT)
e("s_cbranch_scc1 L_qpollB")
e("s_mov_b32 s%d, 1" % sCNT)
e("s_add_u32 s%d, s%d, %d" % (sOFF, sOFF, MB1B - MB1A))
e("s_mov_b64 exec, %s" % sp(sM8))
e("buffer_store_dwordx4 %s, %s, %s, s%d offen sc1" % (v(vZ, 4), v(vPUB), srd(SRD_WS), sOFF))
e("s_mov_b64 exec, -1")
lab("L_qpollB")
e("s_add_u32 s%d, s%d, %d" % (sTMP, sOFF2, MB1B - MB1A))
q_loads(sTMP)
e("s_waitcnt vmcnt(0)")
for i in range(16): e("v_cmpx_eq_u32 vcc, s%d, %s" % (sTAG, v(G1 + 4 * i + 2)))
e("s_cmp_eq_u64 exec, -1")
e("s_mov_b64 exec, -1")
e("s_cbranch_scc0 L_qpollA")
for i in range(16): q_sum(i)
for i in range(16): e("v_cmpx_eq_u32 vcc, s%d, %s" % (sTAG + 1, v(G1 + 4 * i + 3)))
e("s_cmp_eq_u64 exec, -1")
e("s_cselect_b32 s%d, 1, 0" % sMODE)
e("s_mov_b64 exec, -1")
e("s_branch L_qok")

c("======== B waves ========")
lab("L_B1")
for i in range(4): unpack(vD + 2 * i, vXN + i)
sums()
unpack(vD, 33)
def norm2():
    e("v_sub_f32 %s, %s, %s" % (v(vD), v(vD), v(vM)))
    e("v_sub_f32 %s, %s, %s" % (v(vD + 1), v(vD + 1), v(vM)))
    round2(vD, vT0)
    e("v_mul_f32 %s, %s, %s" % (v(vD), v(vD), v(vR)))
    e("v_mul_f32 %s, %s, %s" % (v(vD + 1), v(vD + 1), v(vR)))
    round2(vD, vT0)
norm2()
e("v_mov_b32 %s, %s" % (v(vT0), hx(f2u(1.0 / 512))))
e("v_mul_f32 %s, s%d, %s" % (v(vM), sA, v(vT0)))
e("v_mul_f32 %s, s%d, %s" % (v(vR), sB, v(vT0)))
e("v_fma_f32 %s, -%s, %s, %s" % (v(vR), v(vM), v(vM), v(vR)))
ln_finish(vM, vR)
norm2()
if B1ONLY:
    assert B1B
    e("v_mov_b32 %s, %d" % (v(vT0), HX))
    e("ds_write_b64 %s, %s" % (v(vT0), v(vD, 2)))
    e("s_waitcnt lgkmcnt(0)")
    lab("L_B2")
else:
    e("s_nop 0")
    e("v_readfirstlane_b32 s%d, %s" % (sH0, v(vD)))
    e("v_readfirstlane_b32 s%d, %s" % (sH1, v(vD + 1)))
C1 = -2.0 * math.log2(math.e) * math.sqrt(2.0 / math.pi)
C2 = C1 * 0.044715
vACC = 60
e("v_mov_b32 %s, 0" % v(vACC))
e("v_mov_b32 %s, 0" % v(vACC + 1))
e("v_mov_b32 %s, %s" % (v(vS1), hx(f2u(C1))))
e("s_mov_b32 s%d, %s" % (sTMP, hx(f2u(C2))))
e("s_mov_b32 s%d, 5" % sCNT)
e("v_mov_b32 %s, %d" % (v(vT0), HX))
if B1B: e("s_barrier")
if B1ONLY:
    e("ds_read_b64 %s, %s" % (v(vD, 2), v(vT0)))
    e("s_waitcnt lgkmcnt(0)")
    e("v_readfirstlane_b32 s%d, %s" % (sH0, v(vD)))
    e("v_readfirstlane_b32 s%d, %s" % (sH1, v(vD + 1)))
e("s_waitcnt vmcnt(0)")
lab("L_Bloop")
unpack(vF, vW1)
unpack(vF + 2, vB1)
U, T = vD, vD + 4
for col, sh in ((0, sH0), (1, sH1)):
    e("v_mul_f32 %s, s%d, %s" % (v(U + 2 * col), sh, v(vF)))
    e("v_mul_f32 %s, s%d, %s" % (v(U + 2 * col + 1), sh, v(vF + 1)))
for col in range(2): e("v_cvt_pk_bf16_f32 %s, %s, %s" % (v(T + col), v(U + 2 * col), v(U + 2 * col + 1)))
for col in range(2): unpack(U + 2 * col, T + col)
for col in range(2):
    e("v_add_f32 %s, %s, %s" % (v(U + 2 * col), v(U + 2 * col), v(vF + 2)))
    e("v_add_f32 %s, %s, %s" % (v(U + 2 * col + 1), v(U + 2 * col + 1), v(vF + 3)))
for col in range(2): e("v_cvt_pk_bf16_f32 %s, %s, %s" % (v(T + col), v(U + 2 * col), v(U + 2 * col + 1)))
for col in range(2): unpack(U + 2 * col, T + col)
for i in range(4): e("v_mul_f32 %s, %s, %s" % (v(T + i), v(U + i), v(U + i)))
for i in range(4): e("v_fma_f32 %s, %s, s%d, %s" % (v(T + i), v(T + i), sTMP, v(vS1)))
for i in range(4): e("v_mul_f32 %s, %s, %s" % (v(T + i), v(T + i), v(U + i)))
for i in range(4): e("v_exp_f32 %s, %s" % (v(T + i), v(T + i)))
for i in range(4): e("v_add_f32 %s, 1.0, %s" % (v(T + i), v(T + i)))
for i in range(4): e("v_rcp_f32 %s, %s" % (v(T + i), v(T + i)))
for i in range(4): e("v_mul_f32 %s, %s, %s" % (v(T + i), v(T + i), v(U + i)))
for col in range(2): e("v_cvt_pk_bf16_f32 %s, %s, %s" % (v(U + col), v(T + 2 * col), v(T + 2 * col + 1)))
for col in range(2): e("v_dot2c_f32_bf16 %s, %s, %s" % (v(vACC + col), v(U + col), v(vW2)))
for r in (vW1, vB1, vW2):
    for i in range(4): e("v_mov_b32 %s, %s" % (v(r + i), v(r + i + 1)))
e("s_sub_u32 s%d, s%d, 1" % (sCNT, sCNT))
e("s_cmp_lg_u32 s%d, 0" % sCNT)
e("s_cbranch_scc1 L_Bloop")
dpp_reduce("v_add_f32", [vACC, vACC + 1], ROW + XROW)
e("s_lshl_b32 s%d, s%d, 3" % (sTMP, sWAVE))
e("v_mov_b32 %s, s%d" % (v(vT0), sTMP))
e("s_mov_b32 exec_lo, 0"); e("s_mov_b32 exec_hi, 0x80000000")
e("ds_write_b64 %s, %s offset:%d" % (v(vT0), v(vACC, 2), YB - 8))
e("s_mov_b64 exec, -1")
e("s_waitcnt lgkmcnt(0)")
e("s_endpgm")

c("======== A waves ========")
lab("L_A")
WOAT = int(opts.get("woat", 8))
vKO, vP2, vKA, vVA, vWOo, vQB, vPX, vMW, vMR = 7, 8, 9, 10, 11, 12, 13, 14, 15
vZ2 = 16
vONE, vSC, vP, vM, vR = 20, 24, 32, 36, 37
vG2A, vOXW, vOXR, vP3 = 38, 39, 40, 41
vS1, vS2 = 42, 43
vF, vD = 44, 52
vZ3 = 60
vO, vLS, vWOF = 64, 96, 100
vQF = 116
vKF, vVF = 132, 164
vWA = 196
PX = CMB
sOFFW, sOFFG = 90, 91
e("s_sub_u32 s%d, s%d, 4" % (sAW, sWAVE))
c("dma source offset: q'*256 + ((n ^ (q'<<2))*16)")
e("v_lshlrev_b32 %s, 2, %s" % (v(vKO), v(vQ)))
e("v_xor_b32 %s, %s, %s" % (v(vKO), v(vKO), v(vN)))
e("v_lshlrev_b32 %s, 4, %s" % (v(vKO), v(vKO)))
e("v_lshl_add_u32 %s, %s, 8, %s" % (v(vKO), v(vQ), v(vKO)))
e("s_lshl_b32 s%d, s%d, 23" % (sOFF, sG))
e("s_lshl_b32 s%d, s%d, 12" % (sTMP, sC))
e("s_add_u32 s%d, s%d, s%d" % (sOFF, sOFF, sTMP))
e("s_lshl_b32 s%d, s%d, 10" % (sTMP, sAW))
e("s_add_u32 s%d, s%d, s%d" % (sOFF, sOFF, sTMP))
e("s_add_u32 s%d, s%d, %d" % (sOFF, sOFF, 7340032))
e("s_mul_i32 s%d, s%d, %d" % (sM0, sAW, 8 * KP))
e("s_add_u32 s%d, s%d, %d" % (sM0, sM0, KBUF))
e("s_mov_b32 m0, s%d" % sM0)
e("s_mov_b32 s%d, 0x20000" % sSTEP)
e("s_mov_b32 s%d, s%d" % (sOFF3, sOFF))
N1 = int(opts.get("n1", 4))
N1L = int(opts.get("n1l", N1)); THRL = int(opts.get("thrl", THR))
sLATE = 93
e("s_getreg_b32 s%d, hwreg(HW_REG_XCC_ID, 2, 1)" % sLATE)
e("s_cmp_lg_u32 s%d, 0" % sLATE)
e("s_cselect_b32 s%d, %d, %d" % (sCNT, N1L, N1))
e("s_mov_b32 s%d, %s" % (SRD_A + 2, hx(1 << 26)))
e("s_mov_b32 s%d, 0x00020000" % (SRD_A + 3))
if SPF:
    c("code prefetch into L2 through the scalar path: one 64 B sector per wave")
    e("s_getpc_b64 %s" % sp(sPC))
    lab("L_pc2")
    e("s_sub_u32 s%d, s%d, L_pc2-L_start" % (sPC, sPC))
    e("s_subb_u32 s%d, s%d, 0" % (sPC + 1, sPC + 1))
    e("s_lshl_b32 s%d, s%d, 2" % (sTMP, sC))
    e("s_add_u32 s%d, s%d, s%d" % (sTMP, sTMP, sAW))
    e("s_lshl_b32 s%d, s%d, %d" % (sTMP, sTMP, 7 if STAMPS else 6))
    e("s_min_u32 s%d, s%d, L_codeend-L_start-4" % (sTMP, sTMP))
e("s_waitcnt lgkmcnt(0)")
if STAMPS: e("v_mov_b32 %s, s%d" % (v(vSTP), sST))
if SPF: e("s_load_dword s%d, %s, s%d" % (97, sp(sPC), sTMP))
e("s_mov_b64 %s, s[18:19]" % sp(SRD_A))
e("s_barrier")
KSLEEP = int(opts.get("ksleep", 0))
if KSLEEP: e("s_sleep %d" % KSLEEP)
def dma_loop(name, sr, soff, step, thr):
    lab(name)
    if thr: e("s_waitcnt vmcnt(%d)" % (thr - 1))
    e("buffer_load_dwordx4 %s, %s, s%d offen nt lds" % (v(vKO), srd(sr), soff))
    e("s_sub_u32 s%d, s%d, 1" % (sCNT, sCNT))
    e("s_add_u32 m0, m0, %d" % step)
    e("s_add_u32 s%d, s%d, s%d" % (soff, soff, sSTEP))
    if XFLIP: e("s_xor_b32 s%d, s%d, 0x%x" % (soff, soff, XFLIP))
    e("s_cmp_lg_u32 s%d, 0" % sCNT)
    e("s_cbranch_scc1 %s" % name)
dma_loop("L_kloop", SRD_A, sOFF, KP, 0)
c("---- address setup (in the shadow of the first loads) ----")
mksrd(SRD_B, 20, 1 << 26); mksrd(SRD_WS, 40, WS_NREC); mksrd(SRD_C, 24, 1 << 22)
e("v_and_b32 %s, 3, %s" % (v(vT0), v(vN)))
e("v_lshrrev_b32 %s, 2, %s" % (v(vT1), v(vN)))
c("K frag address: KBUF + aw*8KP + (m>>2)*KP + (m&3)*256 + ((q'^(m&3))*64)")
e("v_xor_b32 %s, %s, %s" % (v(vT2), v(vT0), v(vQ)))
e("v_mul_u32_u24 %s, %d, %s" % (v(vKA), KP, v(vT1)))
e("v_lshl_add_u32 %s, %s, 8, %s" % (v(vKA), v(vT0), v(vKA)))
e("v_lshl_add_u32 %s, %s, 6, %s" % (v(vKA), v(vT2), v(vKA)))
e("v_add_u32 %s, s%d, %s" % (v(vKA), sM0, v(vKA)))
c("V frag address: VBUF + q'*VP + r*256 + cc*8 + ((aw ^ r)*64) ; r = n>>2, cc = n&3")
e("v_mul_u32_u24 %s, %d, %s" % (v(vVA), VP, v(vQ)))
e("v_lshl_add_u32 %s, %s, 8, %s" % (v(vVA), v(vT1), v(vVA)))
e("v_lshl_add_u32 %s, %s, 3, %s" % (v(vVA), v(vT0), v(vVA)))
e("v_xor_b32 %s, s%d, %s" % (v(vT2), sAW, v(vT1)))
e("v_lshl_add_u32 %s, %s, 6, %s" % (v(vVA), v(vT2), v(vVA)))
e("v_add_u32 %s, %d, %s" % (v(vVA), VBUF, v(vVA)))
c("q frag address: (n>>2)*272 + q'*64 ; P exchange: q'*64 + (n>>2)*16 ; m/l: (n>>2)*16")
e("v_mul_u32_u24 %s, 272, %s" % (v(vQB), v(vT1)))
e("v_lshl_add_u32 %s, %s, 6, %s" % (v(vQB), v(vQ), v(vQB)))
e("v_lshlrev_b32 %s, 4, %s" % (v(vMR), v(vT1)))
e("v_lshl_add_u32 %s, %s, 6, %s" % (v(vPX), v(vQ), v(vMR)))
e("s_lshl_b32 s%d, s%d, 2" % (sTMP, sAW))
e("s_add_u32 s%d, s%d, %d" % (sTMP, sTMP, ML))
e("v_add_u32 %s, s%d, %s" % (v(vMW), sTMP, v(vMR)))
e("s_lshl_b32 s%d, s%d, 8" % (sTMP, sAW))
e("v_add_u32 %s, s%d, %s" % (v(vWA + 1), sTMP, v(vPX)))
c("hop2 publish: (n>>2)*32768 + (q'>>1)*4096 + (q'&1)*64 + (n&3)*16 ; soffset g<<17 + aw<<13 + c<<7")
e("v_lshlrev_b32 %s, 15, %s" % (v(vP2), v(vT1)))
e("v_lshl_add_u32 %s, %s, 4, %s" % (v(vP2), v(vT0), v(vP2)))
e("v_lshrrev_b32 %s, 1, %s" % (v(vT2), v(vQ)))
e("v_lshl_add_u32 %s, %s, 12, %s" % (v(vP2), v(vT2), v(vP2)))
e("v_and_b32 %s, 1, %s" % (v(vT2), v(vQ)))
e("v_lshl_add_u32 %s, %s, 6, %s" % (v(vP2), v(vT2), v(vP2)))
e("s_lshl_b32 s%d, s%d, 17" % (sOFF2, sG))
e("s_add_u32 s%d, s%d, %d" % (sOFF2, sOFF2, MB2A))
c("hop2 gather region g*32 + (c>>2)*4 + aw")
e("s_and_b32 s%d, s%d, 28" % (sTMP, sC))
e("s_add_u32 s%d, s%d, s%d" % (sTMP, sTMP, sAW))
e("s_lshl_b32 s%d, s%d, 12" % (sTMP, sTMP))
e("s_add_u32 s%d, s%d, s%d" % (sOFFG, sOFF2, sTMP))
e("s_lshl_b32 s%d, s%d, 13" % (sTMP, sAW))
e("s_add_u32 s%d, s%d, s%d" % (sOFF2, sOFF2, sTMP))
e("s_lshl_b32 s%d, s%d, 7" % (sTMP, sC))
e("s_add_u32 s%d, s%d, s%d" % (sOFF2, sOFF2, sTMP))
e("v_lshlrev_b32 %s, 4, %s" % (v(vG2A), v(vL)))
c("hop 3 publish address: (n>>1)*128 + q'*32 + (n&1)*16")
e("v_lshrrev_b32 %s, 1, %s" % (v(vT2), v(vN)))
e("v_lshlrev_b32 %s, 7, %s" % (v(vP3), v(vT2)))
e("v_lshl_add_u32 %s, %s, 5, %s" % (v(vP3), v(vQ), v(vP3)))
e("v_and_b32 %s, 1, %s" % (v(vT2), v(vN)))
e("v_lshl_add_u32 %s, %s, 4, %s" % (v(vP3), v(vT2), v(vP3)))
if WOF:
    c("wo dma offset q'*1024 + ((n ^ (q'<<2))*16) ; rows 16aw+4i+q'")
    e("v_mul_u32_u24 %s, 768, %s" % (v(vWOo), v(vQ)))
    e("v_add_u32 %s, %s, %s" % (v(vWOo), v(vWOo), v(vKO)))
    e("s_mul_i32 s%d, s%d, %d" % (sM0, sAW, 4 * VP))
    e("s_add_u32 s%d, s%d, %d" % (sM0, sM0, WOB))
else:
    c("wo dma offset (l>>2)*1024 + (l&3)*16 ; frag address WOB + aw*4096 + (l>>2)*64 + (l&3)*8")
    e("v_lshrrev_b32 %s, 2, %s" % (v(vT2), v(vL)))
    e("v_lshlrev_b32 %s, 10, %s" % (v(vWOo), v(vT2)))
    e("v_lshl_add_u32 %s, %s, 4, %s" % (v(vWOo), v(vT0), v(vWOo)))
    e("v_lshlrev_b32 %s, 6, %s" % (v(vWA), v(vT2)))
    e("v_lshl_add_u32 %s, %s, 3, %s" % (v(vWA), v(vT0), v(vWA)))
    e("s_lshl_b32 s%d, s%d, 12" % (sM0, sAW))
    e("s_add_u32 s%d, s%d, %d" % (sM0, sM0, WOB))
    e("v_add_u32 %s, s%d, %s" % (v(vWA), sM0, v(vWA)))
e("s_lshl_b32 s%d, s%d, 19" % (sOFFW, sG))
e("s_lshr_b32 s%d, s%d, 2" % (sA, sC))
e("s_lshl_b32 s%d, s%d, 16" % (sTMP, sA))
e("s_add_u32 s%d, s%d, s%d" % (sOFFW, sOFFW, sTMP))
e("s_and_b32 s%d, s%d, 3" % (sB, sC))
e("s_lshl_b32 s%d, s%d, 8" % (sTMP, sB))
e("s_add_u32 s%d, s%d, s%d" % (sOFFW, sOFFW, sTMP))
e("s_lshl_b32 s%d, s%d, %d" % (sTMP, sAW, 14 if WOF else 6))
e("s_add_u32 s%d, s%d, s%d" % (sOFFW, sOFFW, sTMP))
sOFFP3 = 92
e("s_lshl_b32 s%d, s%d, 16" % (sOFFP3, sB))
e("s_lshl_b32 s%d, s%d, 13" % (sTMP, sG))
e("s_add_u32 s%d, s%d, s%d" % (sOFFP3, sOFFP3, sTMP))
e("s_lshl_b32 s%d, s%d, 10" % (sTMP, sA))
e("s_add_u32 s%d, s%d, s%d" % (sOFFP3, sOFFP3, sTMP))
e("s_lshl_b32 s%d, s%d, 8" % (sTMP, sAW))
e("s_add_u32 s%d, s%d, s%d" % (sOFFP3, sOFFP3, sTMP))
e("s_add_u32 s%d, s%d, %d" % (sOFFP3, sOFFP3, MB3))
c("OX write: aw*32 + (l&7)*4 + (l>>5)*2 ; read q'*16")
e("v_lshlrev_b32 %s, 4, %s" % (v(vOXR), v(vQ)))
e("v_and_b32 %s, 7, %s" % (v(vT2), v(vL)))
e("s_lshl_b32 s%d, s%d, 5" % (sTMP, sAW))
e("v_lshl_add_u32 %s, %s, 2, s%d" % (v(vOXW), v(vT2), sTMP))
e("v_lshrrev_b32 %s, 5, %s" % (v(vT2), v(vL)))
e("v_lshl_add_u32 %s, %s, 1, %s" % (v(vOXW), v(vT2), v(vOXW)))
for i in range(4): e("v_mov_b32 %s, 0x3f803f80" % v(vONE + i))
mask(sMASKQ, 0x000F000F); mask(sN1, 0xAAAAAAAA); mask(sN2, 0xCCCCCCCC); mask(sMASK0, 0x000000FF); mask(sN4, 0x11111111)
e("s_mov_b32 s%d, %s" % (sA, hx(f2u(128 ** -0.5))))
e("s_mov_b32 s%d, %s" % (sB, hx(f2u(math.log2(math.e)))))
e("v_mov_b32 %s, %d" % (v(vT0), MODE))
PW3 = int(opts.get("pw3", 0))
if PW3:
    for i in range(4): e("v_mov_b32 %s, 0" % v(vZ3 + i))
    e("s_mov_b64 exec, %s" % sp(sMASKQ))
    e("buffer_store_dwordx4 %s, %s, %s, s%d offen sc1" % (v(vZ3, 4), v(vP3), srd(SRD_WS), sOFFP3))
    e("s_mov_b64 exec, -1")
if B1B: e("s_barrier")
def rest(tag, n1, thr):
    if n1 < 8:
        e("s_mov_b32 s%d, %d" % (sCNT, 8 - n1))
        dma_loop("L_kloop2" + tag, SRD_A, sOFF, KP, thr)
    e("s_mul_i32 s%d, s%d, %d" % (sTMP, sAW, 8 * VP))
    e("s_add_u32 m0, s%d, %d" % (sTMP, VBUF))
    e("s_mov_b32 s%d, 8" % sCNT)
    dma_loop("L_vloop" + tag, SRD_B, sOFF3, VP, thr)
if (N1L, THRL) != (N1, THR):
    e("s_cmp_lg_u32 s%d, 0" % sLATE)
    e("s_cbranch_scc1 L_late")
    rest("e", N1, THR)
    e("s_branch L_issued")
    lab("L_late")
    rest("l", N1L, THRL)
    lab("L_issued")
else:
    rest("", N1, THR)
WO15 = int(opts.get("wo15", 0)); WOB2 = int(opts.get("wob2", 0))
wo_next = [0]
def wo_loads(n=4):
    while n > 0 and wo_next[0] < 4:
        i = wo_next[0]
        st = VP if WOF else 1024
        e("buffer_load_dwordx4 %s, %s, s%d offen offset:%d nt lds" % (v(vWOo), srd(SRD_C), sOFFW, st * i))
        if i < 3: e("s_add_u32 s%d, s%d, %d" % (sOFFW, sOFFW, (4096 if WOF else 16384) - st))
        wo_next[0] += 1; n -= 1
e("s_mov_b32 m0, s%d" % sM0)
stamp(15)
e("s_waitcnt vmcnt(8) lgkmcnt(0)")
for T in range(2):
    for t in range(4):
        e("ds_read_b128 %s, %s offset:%d" % (v(vKF + 16 * T + 4 * t, 4), v(vKA), 4 * KP * T + 16 * t))
wo_loads(WO15)
e("s_barrier")
for t in range(4):
    e("ds_read_b128 %s, %s offset:%d" % (v(vQF + 4 * t, 4), v(vQB), QL + 16 * t))
e("ds_read_b64 %s, %s" % (v(vZ3 + 2, 2), v(vT0)))
wo_loads(WOB2)
for t in range(4):
    e("s_waitcnt lgkmcnt(%d)" % (4 - t))
    for T in range(2):
        e("v_mfma_f32_16x16x32_bf16 %s, %s, %s, %s" % (v(vSC + 4 * T, 4), v(vKF + 16 * T + 4 * t, 4), v(vQF + 4 * t, 4), v(vSC + 4 * T, 4) if t else "0"))
e("s_waitcnt lgkmcnt(0)")
e("v_readfirstlane_b32 s%d, %s" % (sMODE, v(vZ3 + 2)))
e("v_readfirstlane_b32 s%d, %s" % (sTAG, v(vZ3 + 3)))
e("v_mov_b32 %s, %s" % (v(vZ3 + 2), v(vZ3 + 3)))
e("v_mov_b32 %s, %s" % (v(vZ2 + 3), v(vZ3 + 3)))
e("s_nop 2")
for i in range(4): e("v_cvt_pk_bf16_f32 %s, %s, %s" % (v(vP + i), v(vSC + 2 * i), v(vSC + 2 * i + 1)))
for i in range(4): unpack(vSC + 2 * i, vP + i)
for i in range(8): e("v_mul_f32 %s, s%d, %s" % (v(vSC + i), sA, v(vSC + i)))
for i in range(4): e("v_cvt_pk_bf16_f32 %s, %s, %s" % (v(vP + i), v(vSC + 2 * i), v(vSC + 2 * i + 1)))
for i in range(4): unpack(vSC + 2 * i, vP + i)
e("v_max3_f32 %s, %s, %s, %s" % (v(vM), v(vSC), v(vSC + 1), v(vSC + 2)))
e("v_max3_f32 %s, %s, %s, %s" % (v(vR), v(vSC + 3), v(vSC + 4), v(vSC + 5)))
e("v_max3_f32 %s, %s, %s, %s" % (v(vM), v(vM), v(vSC + 6), v(vSC + 7)))
e("v_max_f32 %s, %s, %s" % (v(vM), v(vM), v(vR)))
e("v_mov_b32 %s, %s" % (v(vR), v(vM)))
e("s_nop 1")
e("v_permlane32_swap_b32 %s, %s" % (v(vM), v(vR)))
e("v_max_f32 %s, %s, %s" % (v(vM), v(vM), v(vR)))
e("v_mov_b32 %s, %s" % (v(vR), v(vM)))
e("s_nop 1")
e("v_permlane16_swap_b32 %s, %s" % (v(vM), v(vR)))
e("v_max_f32 %s, %s, %s" % (v(vM), v(vM), v(vR)))
e("v_mul_f32 %s, s%d, %s" % (v(vM), sB, v(vM)))
for i in range(8): e("v_fma_f32 %s, %s, s%d, -%s" % (v(vSC + i), v(vSC + i), sB, v(vM)))
for i in range(8): e("v_exp_f32 %s, %s" % (v(vSC + i), v(vSC + i)))
e("s_nop 0")
for i in range(4): e("v_cvt_pk_bf16_f32 %s, %s, %s" % (v(vP + i), v(vSC + 2 * i), v(vSC + 2 * i + 1)))
c("slow mode: use the write-through mailbox")
e("s_cmp_eq_u32 s%d, 0" % sMODE)
e("s_cselect_b32 s%d, %d, 0" % (sSTEP, MB2B - MB2A))
e("v_mfma_f32_16x16x32_bf16 %s, %s, %s, 0" % (v(vLS, 4), v(vONE, 4), v(vP, 4)))
e("s_mov_b64 exec, %s" % sp(sN4))
e("ds_write_b128 %s, %s offset:%d" % (v(vWA + 1), v(vP, 4), PX))
e("s_add_u32 s%d, s%d, s%d" % (sOFF2, sOFF2, sSTEP))
e("s_add_u32 s%d, s%d, s%d" % (sOFFG, sOFFG, sSTEP))
e("s_nop 3")
e("ds_write2_b32 %s, %s, %s offset0:0 offset1:16" % (v(vMW), v(vM), v(vLS)))
e("s_mov_b64 exec, -1")
stamp(12)
if WOAT < 8: e("s_waitcnt vmcnt(%d)" % WOAT)
wo_loads()
e("s_waitcnt vmcnt(4) lgkmcnt(0)")
stamp(5)
e("s_barrier")
e("ds_read_b128 %s, %s offset:%d" % (v(vF, 4), v(vMR), ML))
e("ds_read_b128 %s, %s offset:%d" % (v(vF + 4, 4), v(vMR), ML + 64))
for s_ in range(4):
    e("ds_read_b128 %s, %s offset:%d" % (v(vQF + 4 * s_, 4), v(vPX), PX + 256 * s_))
    for dbl in range(2):
        for h in range(2):
            e("ds_read_b64_tr_b16 %s, %s offset:%d" % (v(vVF + 8 * s_ + 4 * dbl + 2 * h, 2), v(vVA), 8 * VP * s_ + 4 * VP * h + 32 * dbl))
e("s_waitcnt lgkmcnt(15)")
e("v_max3_f32 %s, %s, %s, %s" % (v(vM), v(vF), v(vF + 1), v(vF + 2)))
def pv(s_):
    for dbl in range(2):
        e("v_mfma_f32_16x16x32_bf16 %s, %s, %s, 0" % (v(vO + 8 * s_ + 4 * dbl, 4), v(vVF + 8 * s_ + 4 * dbl, 4), v(vQF + 4 * s_, 4)))
def sel(s_):
    o = vO + 8 * s_
    e("v_cndmask_b32 %s, %s, %s, %s" % (v(o), v(o), v(o + 2), sp(sN1)))
    e("v_cndmask_b32 %s, %s, %s, %s" % (v(o + 1), v(o + 1), v(o + 3), sp(sN1)))
    e("v_cndmask_b32 %s, %s, %s, %s" % (v(o + 4), v(o + 4), v(o + 6), sp(sN1)))
    e("v_cndmask_b32 %s, %s, %s, %s" % (v(o + 5), v(o + 5), v(o + 7), sp(sN1)))
    e("v_cndmask_b32 %s, %s, %s, %s" % (v(o), v(o), v(o + 4), sp(sN2)))
    e("v_cndmask_b32 %s, %s, %s, %s" % (v(o + 1), v(o + 1), v(o + 5), sp(sN2)))
    if s_ == 0:
        e("v_mul_f32 %s, %s, %s" % (v(vZ2), v(vF), v(o)))
        e("v_mul_f32 %s, %s, %s" % (v(vZ2 + 1), v(vF), v(o + 1)))
    else:
        e("v_fmac_f32 %s, %s, %s" % (v(vZ2), v(vF + s_), v(o)))
        e("v_fmac_f32 %s, %s, %s" % (v(vZ2 + 1), v(vF + s_), v(o + 1)))
pv(0)
e("v_max_f32 %s, %s, %s" % (v(vM), v(vM), v(vF + 3)))
for w in range(4): e("v_sub_f32 %s, %s, %s" % (v(vF + w), v(vF + w), v(vM)))
for w in range(4): e("v_exp_f32 %s, %s" % (v(vF + w), v(vF + w)))
e("s_waitcnt lgkmcnt(10)")
pv(1)
e("v_mul_f32 %s, %s, %s" % (v(vR), v(vF), v(vF + 4)))
for w in range(1, 4): e("v_fmac_f32 %s, %s, %s" % (v(vR), v(vF + w), v(vF + 4 + w)))
e("v_rcp_f32 %s, %s" % (v(vS1), v(vR)))
e("v_log_f32 %s, %s" % (v(vS2), v(vR)))
e("s_waitcnt lgkmcnt(5)")
pv(2)
for w in range(4): e("v_mul_f32 %s, %s, %s" % (v(vF + w), v(vF + w), v(vS1)))
e("v_add_f32 %s, %s, %s" % (v(vZ2 + 2), v(vM), v(vS2)))
e("s_waitcnt lgkmcnt(0)")
pv(3)
sel(0); sel(1); sel(2); sel(3)
e("s_cmp_eq_u32 s%d, 0" % sMODE)
e("s_cbranch_scc1 L_p2slow")
e("buffer_store_dwordx4 %s, %s, %s, s%d offen%s" % (v(vZ2, 4), v(vP2), srd(SRD_WS), sOFF2, fs))
lab("L_p2done")
stamp(7)
G2 = vKF
def h2_loads():
    for i in range(4):
        e("buffer_load_dwordx4 %s, %s, %s, s%d offen offset:%d sc1" % (v(G2 + 4 * i, 4), v(vG2A), srd(SRD_WS), sOFFG, 1024 * i))
h2_loads()
if not WOF:
    e("s_waitcnt vmcnt(5)")
    stamp(13)
    for b in range(2):
        for s in range(2):
            for h in range(2):
                e("ds_read_b64_tr_b16 %s, %s offset:%d" % (v(vWOF + 8 * b + 4 * s + 2 * h, 2), v(vWA), 32 * b + 2048 * s + 1024 * h))
elif STAMPS:
    e("s_waitcnt vmcnt(5)")
    stamp(13)
e("s_branch L_h2chk")
lab("L_h2retry")
e("s_not_b64 exec, exec")
h2_loads()
e("s_mov_b64 exec, -1")
lab("L_h2chk")
e("s_waitcnt vmcnt(0)")
for i in range(4):
    e("v_cmpx_eq_u32 vcc, s%d, %s" % (sTAG, v(G2 + 4 * i + 3)))
e("s_cmp_eq_u64 exec, -1")
e("s_cbranch_scc1 L_h2ok")
spin_check("L_h2retry")
lab("L_h2ok")
stamp(8)
A_ = [G2 + 4 * i + 2 for i in range(4)]
e("v_max3_f32 %s, %s, %s, %s" % (v(vM), v(A_[0]), v(A_[1]), v(A_[2])))
e("v_max_f32 %s, %s, %s" % (v(vM), v(vM), v(A_[3])))
e("v_mov_b32 %s, %s" % (v(vR), v(vM)))
e("s_nop 1")
e("v_permlane32_swap_b32 %s, %s" % (v(vM), v(vR)))
e("v_max_f32 %s, %s, %s" % (v(vM), v(vM), v(vR)))
e("v_mov_b32 %s, %s" % (v(vR), v(vM)))
e("s_nop 1")
e("v_permlane16_swap_b32 %s, %s" % (v(vM), v(vR)))
e("v_max_f32 %s, %s, %s" % (v(vM), v(vM), v(vR)))
dpp_reduce("v_max_f32", [vM], ROW[:1])
for i in range(4): e("v_sub_f32 %s, %s, %s" % (v(vF + i), v(A_[i]), v(vM)))
for i in range(4): e("v_exp_f32 %s, %s" % (v(vF + i), v(vF + i)))
Y0, Y1, W, W2 = vD, vD + 1, vD + 2, vD + 3
e("v_mul_f32 %s, %s, %s" % (v(Y0), v(vF), v(G2)))
e("v_mul_f32 %s, %s, %s" % (v(Y1), v(vF), v(G2 + 1)))
e("v_add_f32 %s, %s, %s" % (v(W), v(vF), v(vF + 1)))
e("v_add_f32 %s, %s, %s" % (v(W2), v(vF + 2), v(vF + 3)))
for i in range(1, 4):
    e("v_fmac_f32 %s, %s, %s" % (v(Y0), v(vF + i), v(G2 + 4 * i)))
    e("v_fmac_f32 %s, %s, %s" % (v(Y1), v(vF + i), v(G2 + 4 * i + 1)))
    if i == 1:
        e("v_add_f32 %s, %s, %s" % (v(W), v(W), v(W2)))
        e("v_mov_b32 %s, %s" % (v(W2), v(W)))
e("v_permlane32_swap_b32 %s, %s" % (v(W), v(W2)))
e("s_nop 0")
e("v_permlane32_swap_b32 %s, %s" % (v(Y0), v(Y1)))
e("v_add_f32 %s, %s, %s" % (v(W), v(W), v(W2)))
e("v_add_f32 %s, %s, %s" % (v(Y0), v(Y0), v(Y1)))
e("s_nop 1")
e("v_permlane16_swap_b32 %s, %s" % (v(Y0), v(W)))
e("v_add_f32 %s, %s, %s" % (v(Y0), v(Y0), v(W)))
dpp_reduce("v_add_f32", [Y0], ROW[:1])
e("v_rcp_f32 %s, %s" % (v(W), v(Y0)))
e("s_nop 1")
e("v_permlane16_swap_b32 %s, %s" % (v(W), v(W2)))
e("v_mul_f32 %s, %s, %s" % (v(Y0), v(Y0), v(W2)))
e("v_cvt_pk_bf16_f32 %s, %s, %s" % (v(Y0), v(Y0), v(Y0)))
e("s_mov_b64 exec, %s" % sp(sMASK0))
e("ds_write_b16 %s, %s offset:%d" % (v(vOXW), v(Y0), OX))
e("s_mov_b64 exec, -1")
e("s_waitcnt lgkmcnt(0)")
e("s_barrier")
if WOF:
    for s in range(2):
        e("ds_read_b128 %s, %s offset:%d" % (v(vF + 4 * s, 4), v(vOXR), OX + 64 * s))
        for b in range(2):
            for h in range(2):
                e("ds_read_b64_tr_b16 %s, %s offset:%d" % (v(vWOF + 8 * b + 4 * s + 2 * h, 2), v(vVA), WOB - VBUF + (8 * s + 4 * h) * VP + 32 * b))
    for s in range(2):
        for b in range(2):
            e("s_waitcnt lgkmcnt(%d)" % (7 - 5 * s - 2 * b))
            e("v_mfma_f32_16x16x32_bf16 %s, %s, %s, %s" % (v(vSC + 4 * b, 4), v(vWOF + 8 * b + 4 * s, 4), v(vF + 4 * s, 4), v(vSC + 4 * b, 4) if s else "0"))
else:
    e("ds_read_b128 %s, %s offset:%d" % (v(vF, 4), v(vOXR), OX))
    e("ds_read_b128 %s, %s offset:%d" % (v(vF + 4, 4), v(vOXR), OX + 64))
    e("s_waitcnt lgkmcnt(1)")
    for b in range(2):
        e("v_mfma_f32_16x16x32_bf16 %s, %s, %s, 0" % (v(vSC + 4 * b, 4), v(vWOF + 8 * b, 4), v(vF, 4)))
    e("s_waitcnt lgkmcnt(0)")
    for b in range(2):
        e("v_mfma_f32_16x16x32_bf16 %s, %s, %s, %s" % (v(vSC + 4 * b, 4), v(vWOF + 8 * b + 4, 4), v(vF + 4, 4), v(vSC + 4 * b, 4)))
e("s_nop 6")
e("v_cndmask_b32 %s, %s, %s, %s" % (v(vD), v(vSC), v(vSC + 2), sp(sN1)))
e("v_cndmask_b32 %s, %s, %s, %s" % (v(vD + 1), v(vSC + 1), v(vSC + 3), sp(sN1)))
e("v_cndmask_b32 %s, %s, %s, %s" % (v(vD + 2), v(vSC + 4), v(vSC + 6), sp(sN1)))
e("v_cndmask_b32 %s, %s, %s, %s" % (v(vD + 3), v(vSC + 5), v(vSC + 7), sp(sN1)))
e("v_cndmask_b32 %s, %s, %s, %s" % (v(vZ3), v(vD), v(vD + 2), sp(sN2)))
e("v_cndmask_b32 %s, %s, %s, %s" % (v(vZ3 + 1), v(vD + 1), v(vD + 3), sp(sN2)))
e("s_mov_b64 exec, %s" % sp(sMASKQ))
e("buffer_store_dwordx4 %s, %s, %s, s%d offen %s" % (v(vZ3, 4), v(vP3), srd(SRD_WS), sOFFP3, H3ST))
if REP:
    e("s_add_u32 s%d, s%d, %d" % (sOFFP3, sOFFP3, 1 << 18))
    e("buffer_store_dwordx4 %s, %s, %s, s%d offen %s" % (v(vZ3, 4), v(vP3), srd(SRD_WS), sOFFP3, H3ST))
e("s_mov_b64 exec, -1")
stamp(9)
lab("L_fin")
if PAD:
    e("s_add_u32 s100, s100, %d" % (PAD * 100))
    lab("L_pad")
    e("s_memrealtime %s" % sp(sST))
    e("s_waitcnt lgkmcnt(0)")
    e("s_sub_u32 s%d, s%d, s100" % (sST, sST))
    e("s_cmp_lt_i32 s%d, 0" % sST)
    e("s_cbranch_scc1 L_pad")
lab("L_fin2")
if STAMPS:
    e("s_mov_b64 exec, -1")
    e("s_waitcnt vmcnt(0)")
    stamp(11)
    e("s_lshl_b32 s%d, s2, 4" % sTMP)
    e("s_add_u32 s%d, s%d, s%d" % (sTMP, sTMP, sWAVE))
    e("s_lshl_b32 s%d, s%d, 6" % (sTMP, sTMP))
    e("s_add_u32 s%d, s%d, %d" % (sTMP, sTMP, STAMP_OFF))
    e("v_mov_b32 %s, 0" % v(vT1))
    e("s_mov_b64 exec, 1")
    for i in range(4):
        e("buffer_store_dwordx4 %s, %s, %s, s%d offen offset:%d" % (v(vSTP + 4 * i, 4), v(vT1), srd(SRD_WS), sTMP, 16 * i))
lab("L_end")
e("s_endpgm")
lab("L_p2slow")
e("buffer_store_dwordx4 %s, %s, %s, s%d offen sc1" % (v(vZ2, 4), v(vP2), srd(SRD_WS), sOFF2))
e("s_branch L_p2done")
lab("L_codeend")

if int(opts.get("reord", 1)):
    ia = L.index("L_A:")
    ib = L.index("    s_cbranch_scc1 L_kloop") + 1
    blk = L[ia:ib] + ["    s_branch L_A2"]
    L[ia:ib] = ["L_A2:"]
    ic = L.index("L_B0:")
    L[ic:ic] = blk
hdr = open("cdna_kernels/%s.s.ref" % NAME).read().split("\n")
head = []
for ln in hdr:
    if ln.startswith("; @launch"):
        head.append("; @launch grid=(256,1,1) block=(512,1,1) lds=%d" % LDS_TOTAL)
    elif ln.startswith(";"):
        head.append(ln)
    else:
        break
out = "\n".join(head) + "\n"
out += '.amdgcn_target "amdgcn-amd-amdhsa--gfx950"\n.text\n.globl %s_kernel\n.p2align 8\n.type %s_kernel,@function\n%s_kernel:\n' % (NAME, NAME, NAME)
out += "\n".join(L) + "\n"
out += '''.section .rodata,"a"
.p2align 6
.amdhsa_kernel %s_kernel
  .amdhsa_next_free_vgpr %d
  .amdhsa_next_free_sgpr 102
  .amdhsa_accum_offset %d
  .amdhsa_group_segment_fixed_size 0
  .amdhsa_kernarg_size 104
  .amdhsa_user_sgpr_count 2
  .amdhsa_user_sgpr_kernarg_segment_ptr 1
  .amdhsa_system_sgpr_workgroup_id_x 1
  .amdhsa_float_denorm_mode_32 3
.end_amdhsa_kernel
''' % (NAME, NVGPR, NVGPR)
open(sys.argv[1], "w").write(out)
```

```python
import sys, struct, math
NAME = "recurrent_scan__sliding_block_cached__mixer_token_mlp__decode"
opts = dict(a.split("=") if "=" in a else (a, "1") for a in sys.argv[2:])
STAMPS = int(opts.get("stamps", 0))
PAD = int(opts.get("pad", 0))
PREFETCH = int(opts.get("pf", 0))
PREWRITE = int(opts.get("pw", 1))
QK = int(opts.get("qk", 4))
SPF = int(opts.get("spf", 0))
DPF = int(opts.get("dpf", 0))
EPF = int(opts.get("epf", 1))
XFLIP = int(opts.get("xflip", "0"), 0)
WOF = int(opts.get("wof", 1))
XLIN = int(opts.get("xlin", 1))
B1ONLY = int(opts.get("b1only", 1))

SM = " nt" if int(opts.get("smnt", 0)) else ""
PFM = " nt" if int(opts.get("pfnt", 0)) else ""
PFLATE = int(opts.get("pflate", 1))
B1B = int(opts.get("b1b", 1))
FASTST = opts.get("fastst", "sc0")
FORCE_SLOW = int(opts.get("slow", 0))
NPIPE = int(opts.get("npipe", 4))
SLEEP = int(opts.get("sleep", 3))
THR = int(opts.get("thr", 6))
LSLEEP = int(opts.get("lsleep", 0))
QWAIT = int(opts.get("qwait", -1))
QD0 = int(opts.get("qd0", 12))
QD1 = int(opts.get("qd1", 8))
QPIPE = int(opts.get("qpipe", 0))
H3LD = opts.get("h3ld", "sc1").replace("+", " ")
H3ST = opts.get("h3st", "sc1").replace("+", " ")
ATOM = int(opts.get("atom", 0))
PRESLEEP = int(opts.get("presleep", 16))

L = []
def e(s): L.append("    " + s)
def lab(s): L.append(s + ":")
def c(s): L.append("    ; " + s)
def f2u(x): return struct.unpack("<I", struct.pack("<f", x))[0]
def hx(x): return "0x%08x" % (x & 0xffffffff)

XN = 0
QL = 1024
MODE = QL + 1088
HX = MODE + 16
OX = 2176
ML = 2304
YB = 2432
CMB = 2560
KBUF = 12288
KP, VP = 1040, 1056
VBUF = KBUF + 32 * KP
WQB = VBUF + 32 * VP
WOB = WQB + 16384
LDS_TOTAL = WOB + 16896
EPOCH = 0
MB1A = 1 << 17
MB1B = MB1A + (1 << 17)
MB3 = MB1B + (1 << 17)
MB2A = 1 << 20
MB2B = 2 << 20
WS_USED = 3 << 20
STAMP_OFF = 32 << 20
WS_NREC = (33 << 20) if STAMPS else WS_USED

sWAVE, sG, sC, sP4, sPIV, sA, sB = 3, 4, 5, 6, 7, 8, 9
sTAG = 10
sSPIN, sTMP, sM0, sOFF = 12, 13, 14, 15
sE, sXP = 42, 43
SRD_A, SRD_B, SRD_C, SRD_D, SRD_WS = 44, 48, 52, 56, 60
sB2, sCNT, sAW, sMODE = 64, 65, 66, 67
sMASKQ, sMASK0, sN1, sN2, sN4, sM8 = 68, 70, 72, 74, 76, 78
sH0, sH1 = 80, 81
sT3 = 82
sOFF2, sOFF3, sSTEP = 84, 85, 86
sPC = 88
sST = 98
def srd(b): return "s[%d:%d]" % (b, b + 3)
def sp(b): return "s[%d:%d]" % (b, b + 1)
def v(a, n=1): return "v%d" % a if n == 1 else "v[%d:%d]" % (a, a + n - 1)

vL, vQ, vN, vT0, vT1, vT2 = 1, 2, 3, 4, 5, 6
vSTP = 240
NVGPR = 256

def stamp(i):
    if not STAMPS: return
    e("s_waitcnt lgkmcnt(0)")
    e("s_memrealtime %s" % sp(sST))
    e("s_waitcnt lgkmcnt(0)")
    e("v_mov_b32 %s, s%d" % (v(vSTP + i), sST))

def dpp_reduce(op, regs, steps):
    for s in steps:
        pad = 2 - (len(regs) - 1)
        if pad > 0: e("s_nop %d" % (pad - 1))
        for r in regs:
            e("%s_dpp %s, %s, %s %s" % (op, v(r), v(r), v(r), s))
ROW = ["row_ror:8 row_mask:0xf bank_mask:0xf", "row_ror:4 row_mask:0xf bank_mask:0xf",
       "row_ror:2 row_mask:0xf bank_mask:0xf", "row_ror:1 row_mask:0xf bank_mask:0xf"]
XROW = ["row_bcast:15 row_mask:0xa bank_mask:0xf", "row_bcast:31 row_mask:0xc bank_mask:0xf"]
def unpack(dst, src):
    e("v_lshlrev_b32 %s, 16, %s" % (v(dst), v(src)))
    e("v_and_b32 %s, 0xffff0000, %s" % (v(dst + 1), v(src)))
def round1(r):
    e("v_cvt_pk_bf16_f32 %s, %s, %s" % (v(r), v(r), v(r)))
    e("v_and_b32 %s, 0xffff0000, %s" % (v(r), v(r)))
def round2(r, tmp):
    e("v_cvt_pk_bf16_f32 %s, %s, %s" % (v(tmp), v(r), v(r + 1)))
    unpack(r, tmp)
def ln_finish(vmean, vvar):
    e("v_max_f32 %s, 0, %s" % (v(vvar), v(vvar)))
    round1(vmean)
    round1(vvar)
    e("v_add_f32 %s, %s, %s" % (v(vvar), hx(f2u(1e-5)), v(vvar)))
    round1(vvar)
    e("v_sqrt_f32 %s, %s" % (v(vvar), v(vvar)))
    e("s_nop 0")
    round1(vvar)
    e("v_rcp_f32 %s, %s" % (v(vvar), v(vvar)))
    e("s_nop 0")
def spin_check(retry_label):
    e("s_sub_u32 s%d, s%d, 1" % (sSPIN, sSPIN))
    e("s_cbranch_scc0 %s" % retry_label)
    e("s_branch L_end")
def mksrd(b, p, n):
    e("s_mov_b64 %s, %s" % (sp(b), sp(p)))
    e("s_mov_b32 s%d, %s" % (b + 2, hx(n)))
    e("s_mov_b32 s%d, 0x00020000" % (b + 3))
def mask(r, m):
    e("s_mov_b32 s%d, %s" % (r, hx(m)))
    e("s_mov_b32 s%d, %s" % (r + 1, hx(m)))
def mktag():
    e("s_mul_i32 s%d, s%d, 0x9E3779B1" % (sTAG, sE))
    e("s_add_u32 s%d, s%d, 0x632BE5AB" % (sTAG, sTAG))
fs = (" " + FASTST) if FASTST else ""

lab("L_start")
if EPF: e("s_getpc_b64 %s" % sp(sPC))
e("s_cmp_ge_u32 s2, 256")
e("s_cbranch_scc1 L_end")
e("s_load_dwordx16 s[16:31], s[0:1], 0")
e("s_load_dwordx8 s[32:39], s[0:1], 64")
e("s_load_dwordx2 s[40:41], s[0:1], 96")
if EPF:
    NL = 4 if STAMPS else 2
    c("pull the kernel's code into L2: every workgroup fetches %d of its 128 B lines" % NL)
    e("s_lshr_b32 s%d, s2, 3" % sTMP)
    e("s_lshl_b32 s%d, s%d, %d" % (sTMP, sTMP, 9 if STAMPS else 8))
    e("v_lshl_add_u32 %s, v0, 7, s%d" % (v(35), sTMP))
    e("v_cmp_gt_u32 vcc, %d, v0" % NL)
    e("v_min_u32 %s, L_codeend-L_start-8, %s" % (v(35), v(35)))
    e("s_and_saveexec_b64 s[90:91], vcc")
    e("s_cbranch_execz L_noepf")
    e("global_load_dword %s, %s, %s" % (v(35), v(35), sp(sPC)))
    lab("L_noepf")
    e("s_mov_b64 exec, -1")
if STAMPS:
    e("s_memrealtime %s" % sp(sST))
    for i in range(16): e("v_mov_b32 %s, 0" % v(vSTP + i))
    if EPF: e("v_mov_b32 %s, s%d" % (v(vSTP + 14), sPC))
DBG = int(opts.get("dbg", 0))
if PAD or DBG: e("s_memrealtime s[100:101]")
e("v_lshrrev_b32 %s, 6, v0" % v(vT0))
e("v_and_b32 %s, 63, v0" % v(vL))
e("v_readfirstlane_b32 s%d, %s" % (sWAVE, v(vT0)))
e("v_lshrrev_b32 %s, 4, %s" % (v(vQ), v(vL)))
e("v_and_b32 %s, 15, %s" % (v(vN), v(vL)))
e("s_and_b32 s%d, s2, 7" % sG)
e("s_lshr_b32 s%d, s2, 3" % sC)
e("s_mov_b32 s%d, 0x40000" % sSPIN)
e("s_cmp_ge_u32 s%d, 4" % sWAVE)
e("s_cbranch_scc1 L_A")
vX = 8
if XLIN:
    e("v_lshlrev_b32 %s, 4, %s" % (v(vT0), v(vL)))
else:
    c("x offset: (l>>2)*64 + (l&3)*8")
    e("v_lshrrev_b32 %s, 2, %s" % (v(vT0), v(vL)))
    e("v_and_b32 %s, 3, %s" % (v(vT1), v(vL)))
    e("v_lshlrev_b32 %s, 6, %s" % (v(vT0), v(vT0)))
    e("v_lshl_add_u32 %s, %s, 3, %s" % (v(vT0), v(vT1), v(vT0)))
def xload():
    if XLIN:
        e("global_load_dwordx4 %s, %s, s[16:17]" % (v(vX, 4), v(vT0)))
    else:
        e("global_load_dwordx2 %s, %s, s[16:17]" % (v(vX, 2), v(vT0)))
        e("global_load_dwordx2 %s, %s, s[16:17] offset:32" % (v(vX + 2, 2), v(vT0)))
e("s_lshl_b32 s%d, s%d, 5" % (sP4, sG))
e("s_add_u32 s%d, s%d, s%d" % (sP4, sP4, sC))
e("s_lshl_b32 s%d, s%d, 2" % (sP4, sP4))
e("s_cmp_lg_u32 s%d, 0" % sWAVE)
e("s_cbranch_scc1 L_B0")
c("---- Q wave: issue x and wq loads ----")
e("s_setprio 3")
e("v_lshrrev_b32 %s, 3, %s" % (v(vT1), v(vL)))
e("v_lshlrev_b32 %s, 1, %s" % (v(vT2), v(vQ)))
e("v_xor_b32 %s, %s, %s" % (v(vT2), v(vT2), v(vL)))
e("v_and_b32 %s, 7, %s" % (v(vT2), v(vT2)))
e("v_lshlrev_b32 %s, 13, %s" % (v(vT1), v(vT1)))
e("v_lshl_add_u32 %s, %s, 4, %s" % (v(vT1), v(vT2), v(vT1)))
e("s_and_b32 s%d, s%d, 3" % (sOFF, sC))
e("s_lshl_b32 s%d, s%d, 20" % (sOFF, sOFF))
e("s_lshl_b32 s%d, s%d, 10" % (sTMP, sG))
e("s_add_u32 s%d, s%d, s%d" % (sOFF, sOFF, sTMP))
e("s_lshr_b32 s%d, s%d, 2" % (sTMP, sC))
e("s_lshl_b32 s%d, s%d, 7" % (sTMP, sTMP))
e("s_add_u32 s%d, s%d, s%d" % (sOFF, sOFF, sTMP))
e("s_mov_b32 m0, %d" % WQB)
e("s_mov_b32 s%d, %s" % (SRD_B + 2, hx(1 << 22)))
e("s_mov_b32 s%d, 0x00020000" % (SRD_B + 3))
WQ4 = int(opts.get("wq4", 0))
e("s_mov_b32 s%d, %d" % (sCNT, 12 if WQ4 else 16))
if WQ4: e("s_mov_b32 s%d, %d" % (sSTEP, 65536 - 1024))
vEP = 22
e("v_mov_b32 %s, 0" % v(vEP))
e("s_waitcnt lgkmcnt(0)")
if STAMPS: e("v_mov_b32 %s, s%d" % (v(vSTP), sST))
e("s_mov_b64 %s, s[22:23]" % sp(SRD_B))
xload()
e("global_load_dword %s, %s, s[40:41] offset:%d sc1%s" % (v(vEP), v(vEP), EPOCH, SM))
lab("L_wqloop")
if WQ4:
    for i in range(4):
        e("buffer_load_dwordx4 %s, %s, s%d offen offset:%d nt lds" % (v(vT1), srd(SRD_B), sOFF, 1024 * i))
        if i < 3: e("s_add_u32 s%d, s%d, s%d" % (sOFF, sOFF, sSTEP))
    e("s_add_u32 m0, m0, 4096")
    e("s_add_u32 s%d, s%d, %d" % (sOFF, sOFF, 65536 + 3072))
    e("s_sub_u32 s%d, s%d, 4" % (sCNT, sCNT))
    e("s_cbranch_scc0 L_wqloop")
else:
    e("buffer_load_dwordx4 %s, %s, s%d offen nt lds" % (v(vT1), srd(SRD_B), sOFF))
    e("s_sub_u32 s%d, s%d, 1" % (sCNT, sCNT))
    e("s_add_u32 m0, m0, 1024")
    e("s_add_u32 s%d, s%d, 65536" % (sOFF, sOFF))
    e("s_cmp_lg_u32 s%d, 0" % sCNT)
    e("s_cbranch_scc1 L_wqloop")
if QWAIT >= 0: e("s_waitcnt vmcnt(%d)" % QWAIT)
e("s_barrier")
mksrd(SRD_WS, 40, WS_NREC)
c("publish address: (n>>1)*128 + q'*32 + (n&1)*16 ; record (g*32+c)*512")
vPUB = 7
e("v_lshrrev_b32 %s, 1, %s" % (v(vT0), v(vN)))
e("v_lshlrev_b32 %s, 7, %s" % (v(vT0), v(vT0)))
e("v_lshl_add_u32 %s, %s, 5, %s" % (v(vT0), v(vQ), v(vT0)))
e("v_and_b32 %s, 1, %s" % (v(vT1), v(vN)))
e("v_lshl_add_u32 %s, %s, 4, %s" % (v(vPUB), v(vT1), v(vT0)))
e("s_lshl_b32 s%d, s%d, 7" % (sOFF, sP4))
e("s_add_u32 s%d, s%d, %d" % (sOFF, sOFF, MB1A))
mask(sM8, 0x00FF00FF)
vXW = 23
if XLIN:
    e("v_lshrrev_b32 %s, 2, %s" % (v(vXW), v(vL)))
    e("v_lshlrev_b32 %s, 6, %s" % (v(vXW), v(vXW)))
    e("v_lshl_add_u32 %s, %s, 5, %s" % (v(vXW), v(vT1), v(vXW)))
    e("v_bfe_u32 %s, %s, 1, 1" % (v(vT0), v(vL)))
    e("v_lshl_add_u32 %s, %s, 3, %s" % (v(vXW), v(vT0), v(vXW)))
vZ = 12
if PREWRITE:
    for i in range(4): e("v_mov_b32 %s, 0" % v(vZ + i))
    e("s_mov_b64 exec, %s" % sp(sM8))
    e("buffer_store_dwordx4 %s, %s, %s, s%d offen%s" % (v(vZ, 4), v(vPUB), srd(SRD_WS), sOFF, fs))
    e("s_mov_b64 exec, -1")
NQ = 1 if PREWRITE else 0
e("s_waitcnt vmcnt(%d)" % (16 + NQ))
e("s_branch L_ln1")
lab("L_B0")
c("---- B waves: issue x, w1, b1, w2 loads ----")
vW1, vB1, vW2 = 16, 22, 28
if DPF:
    c("distributed code prefetch into L2: this workgroup pulls a few lines (needs no kernarg)")
    e("s_cmp_lg_u32 s%d, 1" % sWAVE)
    e("s_cbranch_scc1 L_nodpf")
    e("s_getpc_b64 %s" % sp(sPC))
    lab("L_pc3")
    NL = 4 if STAMPS else 2 * DPF
    e("s_sub_u32 s%d, s%d, L_pc3-L_start" % (sPC, sPC))
    e("s_subb_u32 s%d, s%d, 0" % (sPC + 1, sPC + 1))
    e("s_mul_i32 s%d, s%d, %d" % (sTMP, sC, NL * 128))
    if not STAMPS: e("s_and_b32 s%d, s%d, 8191" % (sTMP, sTMP))
    e("v_lshl_add_u32 %s, %s, 7, s%d" % (v(35), v(vL), sTMP))
    e("v_min_u32 %s, L_codeend-L_start-4, %s" % (v(35), v(35)))
    e("s_mov_b64 exec, %d" % ((1 << NL) - 1))
    e("global_load_dword %s, %s, %s" % (v(35), v(35), sp(sPC)))
    e("s_mov_b64 exec, -1")
    lab("L_nodpf")
BW = int(opts.get("bw", 1))
e("v_subrev_u32 %s, 64, v0" % v(vT1))
if BW:
    e("v_lshlrev_b32 %s, 2, %s" % (v(vT2), v(vT1)))
    e("v_lshlrev_b32 %s, 4, %s" % (v(vT1), v(vT1)))
else:
    e("v_mul_u32_u24 %s, 20, %s" % (v(vT1), v(vT1)))
e("v_mov_b32 %s, s%d" % (v(33), sP4))
e("s_waitcnt lgkmcnt(0)")
if STAMPS: e("v_mov_b32 %s, s%d" % (v(vSTP), sST))
if B1ONLY:
    e("s_cmp_lg_u32 s%d, 1" % sWAVE)
    e("s_cbranch_scc1 L_nox")
xload()
e("global_load_dword %s, %s, s[16:17]" % (v(33), v(33)))
if B1ONLY: lab("L_nox")
for b, p, r in ((SRD_A, 28, vW1), (SRD_B, 30, vB1), (SRD_C, 32, vW2)):
    mksrd(b, p, 3584)
mksrd(SRD_WS, 40, WS_NREC)
e("v_mov_b32 %s, 0" % v(vPUB))
if BW == 2: e("s_barrier")
for b, p, r in ((SRD_A, 28, vW1), (SRD_B, 30, vB1), (SRD_C, 32, vW2)):
    e("buffer_load_dwordx4 %s, %s, %s, 0 offen" % (v(r, 4), v(vT1), srd(b)))
    if BW: e("buffer_load_dword %s, %s, %s, 0 offen offset:3072" % (v(r + 4), v(vT2), srd(b)))
    else: e("buffer_load_dword %s, %s, %s, 0 offen offset:16" % (v(r + 4), v(vT1), srd(b)))
if BW != 2: e("s_barrier")
if B1ONLY:
    e("s_cmp_lg_u32 s%d, 1" % sWAVE)
    e("s_cbranch_scc1 L_B2")
if PREFETCH:
    c("pull the kernel's code into L2 (first two workgroups of each group, wave 1)")
    e("s_cmp_ge_u32 s%d, 2" % sC)
    e("s_cbranch_scc1 L_nopf")
    e("s_cmp_lg_u32 s%d, 1" % sWAVE)
    e("s_cbranch_scc1 L_nopf")
    e("s_getpc_b64 %s" % sp(sPC))
    lab("L_pc")
    e("s_sub_u32 s%d, s%d, L_pc-L_start" % (sPC, sPC))
    e("s_subb_u32 s%d, s%d, 0" % (sPC + 1, sPC + 1))
    e("v_lshlrev_b32 %s, 7, %s" % (v(vT0), v(vL)))
    e("v_min_u32 %s, L_codeend-L_start-4, %s" % (v(vT1), v(vT0)))
    e("global_load_dword %s, %s, %s" % (v(34), v(vT1), sp(sPC)))
    if STAMPS:
        e("v_add_u32 %s, 8192, %s" % (v(vT0), v(vT0)))
        e("v_min_u32 %s, L_codeend-L_start-4, %s" % (v(vT1), v(vT0)))
        e("global_load_dword %s, %s, %s" % (v(35), v(vT1), sp(sPC)))
    e("s_waitcnt vmcnt(%d)" % (8 if STAMPS else 7))
    e("s_branch L_ln1")
    lab("L_nopf")
e("s_waitcnt vmcnt(6)")
lab("L_ln1")
c("---- LN1 (Q and B waves) ----")
stamp(1)
vF, vD, vS1, vS2, vM, vR, vXN = 36, 44, 52, 53, 54, 55, 56
for i in range(4): unpack(vF + 2 * i, vX + i)
e("v_readfirstlane_b32 s%d, %s" % (sPIV, v(vF)))
e("s_nop 1")
for i in range(8): e("v_subrev_f32 %s, s%d, %s" % (v(vD + i), sPIV, v(vF + i)))
def sums():
    e("v_add_f32 %s, %s, %s" % (v(vS1), v(vD), v(vD + 1)))
    e("v_mul_f32 %s, %s, %s" % (v(vS2), v(vD), v(vD)))
    e("v_fmac_f32 %s, %s, %s" % (v(vS2), v(vD + 1), v(vD + 1)))
    for i in range(2, 8):
        e("v_add_f32 %s, %s, %s" % (v(vS1), v(vS1), v(vD + i)))
        e("v_fmac_f32 %s, %s, %s" % (v(vS2), v(vD + i), v(vD + i)))
    dpp_reduce("v_add_f32", [vS1, vS2], ROW + XROW)
    e("s_nop 0")
    e("v_readlane_b32 s%d, %s, 63" % (sA, v(vS1)))
    e("v_readlane_b32 s%d, %s, 63" % (sB, v(vS2)))
sums()
e("v_mov_b32 %s, %s" % (v(vT0), hx(f2u(1.0 / 512))))
e("s_nop 0")
e("v_mul_f32 %s, s%d, %s" % (v(vM), sA, v(vT0)))
e("v_mul_f32 %s, s%d, %s" % (v(vR), sB, v(vT0)))
e("v_fma_f32 %s, -%s, %s, %s" % (v(vR), v(vM), v(vM), v(vR)))
e("v_add_f32 %s, s%d, %s" % (v(vM), sPIV, v(vM)))
ln_finish(vM, vR)
for i in range(8): e("v_sub_f32 %s, %s, %s" % (v(vD + i), v(vF + i), v(vM)))
for i in range(4): e("v_cvt_pk_bf16_f32 %s, %s, %s" % (v(vXN + i), v(vD + 2 * i), v(vD + 2 * i + 1)))
for i in range(4): unpack(vD + 2 * i, vXN + i)
for i in range(8): e("v_mul_f32 %s, %s, %s" % (v(vD + i), v(vD + i), v(vR)))
for i in range(4): e("v_cvt_pk_bf16_f32 %s, %s, %s" % (v(vXN + i), v(vD + 2 * i), v(vD + 2 * i + 1)))
e("s_cmp_lg_u32 s%d, 0" % sWAVE)
e("s_cbranch_scc1 L_B1")
c("======== Q wave: partial q (128 rows x 64 columns) ========")
vBF = 64
vAF = 80
vQA = 144
vAD = 60
if XLIN:
    assert XN == 0
    e("ds_write2_b64 %s, %s, %s offset0:0 offset1:2" % (v(vXW), v(vXN, 2), v(vXN + 2, 2)))
else:
    e("v_lshlrev_b32 %s, 4, %s" % (v(vT0), v(vL)))
    e("ds_write_b128 %s, %s offset:%d" % (v(vT0), v(vXN, 4), XN))
e("s_and_b32 s%d, s%d, 3" % (sTMP, sC))
e("s_lshl_b32 s%d, s%d, 8" % (sTMP, sTMP))
e("v_lshl_add_u32 %s, %s, 4, s%d" % (v(vT0), v(vQ), sTMP))
e("v_lshrrev_b32 %s, 2, %s" % (v(vT1), v(vL)))
e("v_lshlrev_b32 %s, 7, %s" % (v(vT1), v(vT1)))
e("v_bfe_u32 %s, %s, 3, 2" % (v(vT2), v(vL)))
e("v_lshl_add_u32 %s, %s, 5, %s" % (v(vT1), v(vT2), v(vT1)))
e("v_and_b32 %s, 3, %s" % (v(vT2), v(vL)))
e("v_lshl_add_u32 %s, %s, 3, %s" % (v(vT1), v(vT2), v(vT1)))
e("v_add_u32 %s, %d, %s" % (v(vAD), WQB, v(vT1)))
assert WQB % 256 == 0
for b in range(1, 4): e("v_xor_b32 %s, %d, %s" % (v(vAD + b), b << 5, v(vAD)))
e("s_waitcnt lgkmcnt(0)")
for s in range(4):
    e("ds_read_b128 %s, %s offset:%d" % (v(vBF + 4 * s, 4), v(vT0), XN + 64 * s))
e("v_readfirstlane_b32 s%d, %s" % (sE, v(vEP)))
mktag()
e("s_getreg_b32 s%d, hwreg(HW_REG_XCC_ID, 0, 4)" % (sTAG + 1))
if FORCE_SLOW: e("s_add_u32 s%d, s%d, s2" % (sTAG + 1, sTAG + 1))
e("v_mov_b32 %s, s%d" % (v(vZ + 2), sTAG))
e("v_mov_b32 %s, s%d" % (v(vZ + 3), sTAG + 1))
mask(sN1, 0xAAAAAAAA); mask(sN2, 0xCCCCCCCC); mask(sN4, 0xF0F0F0F0)
def q_reads(s):
    e("s_waitcnt vmcnt(%d)" % (12 - 4 * s + NQ))
    for b in range(4):
        for h in range(2):
            e("ds_read_b64_tr_b16 %s, %s offset:%d" % (v(vAF + 16 * s + 4 * b + 2 * h, 2), v(vAD + b), 4096 * s + 2048 * h))
def q_mfma(s, behind):
    for b in range(4):
        e("s_waitcnt lgkmcnt(%d)" % (6 - 2 * b + behind))
        e("v_mfma_f32_16x16x32_bf16 %s, %s, %s, %s" % (v(vQA + 4 * b, 4), v(vAF + 16 * s + 4 * b, 4), v(vBF + 4 * s, 4), v(vQA + 4 * b, 4) if s else "0"))
q_reads(0)
for s in range(4):
    if s < 3: q_reads(s + 1)
    q_mfma(s, 8 if s < 3 else 0)
c("gather address: (l>>3)*2048 + (l&7)*16")
vGA = 16
e("v_lshrrev_b32 %s, 3, %s" % (v(vT0), v(vL)))
e("v_and_b32 %s, 7, %s" % (v(vT1), v(vL)))
e("v_lshlrev_b32 %s, 11, %s" % (v(vGA), v(vT0)))
e("v_lshl_add_u32 %s, %s, 4, %s" % (v(vGA), v(vT1), v(vGA)))
e("s_nop 1")
for b in range(4):
    e("v_cndmask_b32 %s, %s, %s, %s" % (v(vD + 2 * b), v(vQA + 4 * b), v(vQA + 4 * b + 2), sp(sN1)))
    e("v_cndmask_b32 %s, %s, %s, %s" % (v(vD + 2 * b + 1), v(vQA + 4 * b + 1), v(vQA + 4 * b + 3), sp(sN1)))
for k in range(2):
    e("v_cndmask_b32 %s, %s, %s, %s" % (v(vD + 4 * k), v(vD + 4 * k), v(vD + 4 * k + 2), sp(sN2)))
    e("v_cndmask_b32 %s, %s, %s, %s" % (v(vD + 4 * k + 1), v(vD + 4 * k + 1), v(vD + 4 * k + 3), sp(sN2)))
e("v_cndmask_b32 %s, %s, %s, %s" % (v(vZ), v(vD), v(vD + 4), sp(sN4)))
e("v_cndmask_b32 %s, %s, %s, %s" % (v(vZ + 1), v(vD + 1), v(vD + 5), sp(sN4)))
e("s_mov_b64 exec, %s" % sp(sM8))
e("buffer_store_dwordx4 %s, %s, %s, s%d offen%s" % (v(vZ, 4), v(vPUB), srd(SRD_WS), sOFF, fs))
e("s_mov_b64 exec, -1")
if B1B: e("s_barrier")
stamp(2)
c("q LDS write address: (l>>3)*128 + (l>>4)*16 + (l&7)*4")
vQW = 17
e("v_lshlrev_b32 %s, 7, %s" % (v(vQW), v(vT0)))
e("v_lshl_add_u32 %s, %s, 4, %s" % (v(vQW), v(vQ), v(vQW)))
e("v_lshl_add_u32 %s, %s, 2, %s" % (v(vQW), v(vT1), v(vQW)))
e("v_add_u32 %s, %d, %s" % (v(vQW), QL, v(vQW)))
e("s_lshl_b32 s%d, s%d, 14" % (sOFF2, sG))
e("s_add_u32 s%d, s%d, %d" % (sOFF2, sOFF2, MB1A))
e("s_mov_b32 s%d, 0" % sCNT)
e("s_mov_b32 s%d, 1" % sMODE)
G1 = 80
G1B = 160
QS = 24
def q_loads(soff, G=G1):
    for rb in range(4):
        for k in range(QK):
            e("buffer_load_dwordx4 %s, %s, %s, s%d offen offset:%d sc1" % (v(G + 16 * rb + 4 * k, 4), v(vGA), srd(SRD_WS), soff, 512 * rb + 128 * k))
def q_sum(i, G=G1):
    rb, k = divmod(i, 4)
    if rb == 0: return
    for j in range(2):
        e("v_add_f32 %s, %s, %s" % (v(QS + 2 * k + j), v(G + 4 * k + j) if rb == 1 else v(QS + 2 * k + j), v(G + 16 * rb + 4 * k + j)))
def q_check(G, behind):
    idx = [i for i in range(16) if i % 4 < QK]
    if behind: behind = len(idx)
    for n_, i in enumerate(idx):
        e("s_waitcnt vmcnt(%d)" % (len(idx) - 1 - n_ + behind))
        e("v_cmpx_eq_u64 vcc, %s, %s" % (sp(sTAG), v(G + 4 * i + 2, 2)))
        q_sum(i, G)
    e("s_cmp_eq_u64 exec, -1")
if QD0: e("s_sleep %d" % QD0)
lab("L_qpollA")
if QPIPE:
    q_loads(sOFF2, G1)
    if QD1: e("s_sleep %d" % QD1)
    lab("L_qpollA2")
    q_loads(sOFF2, G1B)
    q_check(G1, 16)
    e("s_cbranch_scc1 L_qok")
    e("s_mov_b64 exec, -1")
    q_loads(sOFF2, G1)
    q_check(G1B, 16)
    e("s_cbranch_scc0 L_qfail")
else:
    q_loads(sOFF2, G1)
    q_check(G1, 0)
    e("s_cbranch_scc0 L_qfail")
lab("L_qok")
for k in range(4): e("v_cvt_pk_bf16_f32 %s, %s, %s" % (v(vD + k), v(QS + 2 * k), v(QS + 2 * k + 1)))
e("v_mov_b32 %s, s%d" % (v(vD + 4), sMODE))
e("v_mov_b32 %s, s%d" % (v(vD + 5), sTAG))
e("v_mov_b32 %s, %d" % (v(vD + 6), MODE))
e("ds_write2_b32 %s, %s, %s offset0:0 offset1:8" % (v(vQW), v(vD), v(vD + 1)))
e("ds_write2_b32 %s, %s, %s offset0:16 offset1:24" % (v(vQW), v(vD + 2), v(vD + 3)))
e("ds_write_b64 %s, %s" % (v(vD + 6), v(vD + 4, 2)))
e("s_waitcnt lgkmcnt(0)")
stamp(6)
e("s_barrier")
e("s_load_dword s%d, s[16:17], s%d" % (sXP, sP4))
e("s_load_dword s%d, s[34:35], 0" % sB2)
c("copy for other dies (always stored; not needed on the fast path)")
e("s_cmp_lg_u32 s%d, 0" % sCNT)
e("s_cbranch_scc1 L_qb_done")
e("s_add_u32 s%d, s%d, %d" % (sOFF, sOFF, MB1B - MB1A))
e("s_mov_b64 exec, %s" % sp(sM8))
e("buffer_store_dwordx4 %s, %s, %s, s%d offen sc1" % (v(vZ, 4), v(vPUB), srd(SRD_WS), sOFF))
e("s_mov_b64 exec, -1")
lab("L_qb_done")
c("g for own two columns")
vG, vXO = 18, 20
e("v_mov_b32 %s, 0" % v(vT1))
e("ds_read_b128 %s, %s offset:%d" % (v(vF, 4), v(vT1), YB))
e("ds_read_b64 %s, %s offset:%d" % (v(vF + 4, 2), v(vT1), YB + 16))
e("s_waitcnt lgkmcnt(0)")
e("s_lshl_b32 s%d, s%d, 16" % (sB2, sB2))
e("v_mov_b32 %s, s%d" % (v(vT0), sXP))
unpack(vXO, vT0)
e("v_add_f32 %s, %s, %s" % (v(vG), v(vF), v(vF + 2)))
e("v_add_f32 %s, %s, %s" % (v(vG + 1), v(vF + 1), v(vF + 3)))
e("v_add_f32 %s, %s, %s" % (v(vG), v(vG), v(vF + 4)))
e("v_add_f32 %s, %s, %s" % (v(vG + 1), v(vG + 1), v(vF + 5)))
round2(vG, vT1)
e("v_add_f32 %s, s%d, %s" % (v(vG), sB2, v(vG)))
e("v_add_f32 %s, s%d, %s" % (v(vG + 1), sB2, v(vG + 1)))
round2(vG, vT1)
e("v_mul_f32 %s, %s, %s" % (v(vF), hx(f2u(-math.log2(math.e))), v(vG)))
e("v_mul_f32 %s, %s, %s" % (v(vF + 1), hx(f2u(-math.log2(math.e))), v(vG + 1)))
e("v_exp_f32 %s, %s" % (v(vF), v(vF)))
e("v_exp_f32 %s, %s" % (v(vF + 1), v(vF + 1)))
e("s_nop 0")
e("v_add_f32 %s, 1.0, %s" % (v(vF), v(vF)))
e("v_add_f32 %s, 1.0, %s" % (v(vF + 1), v(vF + 1)))
e("v_rcp_f32 %s, %s" % (v(vF), v(vF)))
e("v_rcp_f32 %s, %s" % (v(vF + 1), v(vF + 1)))
e("s_nop 0")
e("v_mul_f32 %s, %s, %s" % (v(vG), v(vG), v(vF)))
e("v_mul_f32 %s, %s, %s" % (v(vG + 1), v(vG + 1), v(vF + 1)))
round2(vG, vT1)
c("final gather address: MB3 + (p>>6)*65536 + l*1024 + (p&63)*16")
e("s_lshr_b32 s%d, s%d, 8" % (sOFF3, sP4))
e("s_lshl_b32 s%d, s%d, 16" % (sOFF3, sOFF3))
e("s_and_b32 s%d, s%d, 255" % (sTMP, sP4))
e("s_lshl_b32 s%d, s%d, 2" % (sTMP, sTMP))
e("s_add_u32 s%d, s%d, s%d" % (sOFF3, sOFF3, sTMP))
e("s_add_u32 s%d, s%d, %d" % (sOFF3, sOFF3, MB3))
e("v_lshlrev_b32 %s, 10, %s" % (v(vT1), v(vL)))
e("s_mov_b32 s%d, s%d" % (sT3, sTAG))
mksrd(SRD_A, 36, 1024)
e("v_mov_b32 %s, 0" % v(vT2))
if int(opts.get("pr3", 0)):
    e("buffer_load_dwordx4 %s, %s, %s, s%d offen sc1" % (v(72, 4), v(vT1), srd(SRD_WS), sOFF3))
e("s_barrier")
e("s_barrier")
G3 = 64
if PRESLEEP: e("s_sleep %d" % PRESLEEP)
e("s_mov_b32 s%d, s%d" % (sT3 + 1, sTAG))
REP = int(opts.get("rep", 0)); HALF = int(opts.get("half", 6))
if REP:
    sPEND, sOFF3B = 94, 96
    GA, GB = 64, 68
    e("s_add_u32 s%d, s%d, %d" % (sOFF3B, sOFF3, 1 << 18))
    e("s_mov_b64 %s, -1" % sp(sPEND))
    for r in (GA, GB):
        e("v_mov_b32 %s, 0" % v(r + 2))
        e("v_not_b32 %s, %s" % (v(r + 3), v(r + 2)))
    e("buffer_load_dwordx4 %s, %s, %s, s%d offen sc1" % (v(GA, 4), v(vT1), srd(SRD_WS), sOFF3))
    e("s_sleep %d" % HALF)
    lab("L_h3loop")
    for (iss, so, chk) in ((GB, sOFF3B, GA), (GA, sOFF3, GB)):
        e("s_mov_b64 exec, %s" % sp(sPEND))
        e("buffer_load_dwordx4 %s, %s, %s, s%d offen sc1" % (v(iss, 4), v(vT1), srd(SRD_WS), so))
        e("s_waitcnt vmcnt(1)")
        e("v_cmpx_eq_u64 vcc, %s, %s" % (sp(sT3), v(chk + 2, 2)))
        e("v_mov_b32 %s, %s" % (v(vF), v(chk)))
        e("v_mov_b32 %s, %s" % (v(vF + 1), v(chk + 1)))
        e("s_andn2_b64 %s, %s, exec" % (sp(sPEND), sp(sPEND)))
        e("s_cbranch_scc0 L_h3ok")
    spin_check("L_h3loop")
else:
    lab("L_h3loop")
    e("buffer_load_dwordx4 %s, %s, %s, s%d offen sc1" % (v(vF, 4), v(vT1), srd(SRD_WS), sOFF3))
    e("s_waitcnt vmcnt(0)")
    e("v_cmpx_ne_u64 vcc, %s, %s" % (sp(sT3), v(vF + 2, 2)))
    e("s_cbranch_execz L_h3ok")
    if LSLEEP: e("s_sleep %d" % LSLEEP)
    spin_check("L_h3loop")
lab("L_h3ok")
e("s_mov_b64 exec, -1")
e("s_nop 2")
stamp(10)
dpp_reduce("v_add_f32", [vF, vF + 1], ROW + XROW)
round2(vF, vT0)
e("v_mul_f32 %s, %s, %s" % (v(vF), v(vF), v(vG)))
e("v_mul_f32 %s, %s, %s" % (v(vF + 1), v(vF + 1), v(vG + 1)))
round2(vF, vT0)
e("v_add_f32 %s, %s, %s" % (v(vF), v(vF), v(vXO)))
e("v_add_f32 %s, %s, %s" % (v(vF + 1), v(vF + 1), v(vXO + 1)))
e("v_cvt_pk_bf16_f32 %s, %s, %s" % (v(vT0), v(vF), v(vF + 1)))
e("s_mov_b32 exec_lo, 0"); e("s_mov_b32 exec_hi, 0x80000000")
OUTM = opts.get("outm", "").replace("+", " ")
e("buffer_store_dword %s, %s, %s, s%d offen %s" % (v(vT0), v(vT2), srd(SRD_A), sP4, OUTM))
if DBG:
    e("s_cmp_lg_u32 s%d, 0" % sC)
    e("s_cbranch_scc1 L_nodbg")
    e("s_memrealtime %s" % sp(sST))
    mksrd(SRD_B, 38, 256)
    e("s_lshl_b32 s%d, s%d, 2" % (sTMP, sG))
    e("s_waitcnt lgkmcnt(0)")
    e("s_and_b32 s100, s100, 0xfffff")
    e("s_and_b32 s%d, s%d, 0xfffff" % (sST, sST))
    e("v_mov_b32 %s, s100" % v(vF))
    e("v_mov_b32 %s, s%d" % (v(vF + 1), sST))
    e("buffer_store_dword %s, %s, %s, s%d offen" % (v(vF), v(vT2), srd(SRD_B), sTMP))
    e("buffer_store_dword %s, %s, %s, s%d offen offset:32" % (v(vF + 1), v(vT2), srd(SRD_B), sTMP))
    lab("L_nodbg")
e("s_cmp_lg_u32 s2, 0")
e("s_cbranch_scc1 L_fin")
e("buffer_store_dword %s, %s, %s, 0 offen offset:%d %s" % (v(vZ + 2), v(vT2), srd(SRD_WS), EPOCH, opts.get("epm", "sc1").replace("none", "")))
e("s_branch L_fin")
c("---- q gather retry / cross-die fallback ----")
lab("L_qfail")
e("s_mov_b64 exec, -1")
e("s_sub_u32 s%d, s%d, 1" % (sSPIN, sSPIN))
e("s_cbranch_scc1 L_end")
e("s_and_b32 s%d, s%d, 3" % (sTMP, sSPIN))
e("s_cmp_lg_u32 s%d, 0" % sTMP)
e("s_cbranch_scc1 %s" % ("L_qpollA2" if QPIPE else "L_qpollA"))
e("s_cmp_lg_u32 s%d, 0" % sCNT)
e("s_cbranch_scc1 L_qpollB")
e("s_mov_b32 s%d, 1" % sCNT)
e("s_add_u32 s%d, s%d, %d" % (sOFF, sOFF, MB1B - MB1A))
e("s_mov_b64 exec, %s" % sp(sM8))
e("buffer_store_dwordx4 %s, %s, %s, s%d offen sc1" % (v(vZ, 4), v(vPUB), srd(SRD_WS), sOFF))
e("s_mov_b64 exec, -1")
lab("L_qpollB")
e("s_add_u32 s%d, s%d, %d" % (sTMP, sOFF2, MB1B - MB1A))
q_loads(sTMP)
e("s_waitcnt vmcnt(0)")
for i in range(16): e("v_cmpx_eq_u32 vcc, s%d, %s" % (sTAG, v(G1 + 4 * i + 2)))
e("s_cmp_eq_u64 exec, -1")
e("s_mov_b64 exec, -1")
e("s_cbranch_scc0 L_qpollA")
for i in range(16): q_sum(i)
for i in range(16): e("v_cmpx_eq_u32 vcc, s%d, %s" % (sTAG + 1, v(G1 + 4 * i + 3)))
e("s_cmp_eq_u64 exec, -1")
e("s_cselect_b32 s%d, 1, 0" % sMODE)
e("s_mov_b64 exec, -1")
e("s_branch L_qok")

c("======== B waves ========")
lab("L_B1")
BB = int(opts.get("bb", 0))
if B1B and BB and not B1ONLY: e("s_barrier")
for i in range(4): unpack(vD + 2 * i, vXN + i)
sums()
unpack(vD, 33)
def norm2():
    e("v_sub_f32 %s, %s, %s" % (v(vD), v(vD), v(vM)))
    e("v_sub_f32 %s, %s, %s" % (v(vD + 1), v(vD + 1), v(vM)))
    round2(vD, vT0)
    e("v_mul_f32 %s, %s, %s" % (v(vD), v(vD), v(vR)))
    e("v_mul_f32 %s, %s, %s" % (v(vD + 1), v(vD + 1), v(vR)))
    round2(vD, vT0)
norm2()
e("v_mov_b32 %s, %s" % (v(vT0), hx(f2u(1.0 / 512))))
e("v_mul_f32 %s, s%d, %s" % (v(vM), sA, v(vT0)))
e("v_mul_f32 %s, s%d, %s" % (v(vR), sB, v(vT0)))
e("v_fma_f32 %s, -%s, %s, %s" % (v(vR), v(vM), v(vM), v(vR)))
ln_finish(vM, vR)
norm2()
if B1ONLY:
    assert B1B
    e("v_mov_b32 %s, %d" % (v(vT0), HX))
    e("ds_write_b64 %s, %s" % (v(vT0), v(vD, 2)))
    e("s_waitcnt lgkmcnt(0)")
    lab("L_B2")
else:
    e("s_nop 0")
    e("v_readfirstlane_b32 s%d, %s" % (sH0, v(vD)))
    e("v_readfirstlane_b32 s%d, %s" % (sH1, v(vD + 1)))
C1 = -2.0 * math.log2(math.e) * math.sqrt(2.0 / math.pi)
C2 = C1 * 0.044715
vACC = 60
e("v_mov_b32 %s, 0" % v(vACC))
e("v_mov_b32 %s, 0" % v(vACC + 1))
e("v_mov_b32 %s, %s" % (v(vS1), hx(f2u(C1))))
e("s_mov_b32 s%d, %s" % (sTMP, hx(f2u(C2))))
e("s_mov_b32 s%d, 5" % sCNT)
e("v_mov_b32 %s, %d" % (v(vT0), HX))
if B1B and not (BB and not B1ONLY): e("s_barrier")
if B1ONLY:
    e("ds_read_b64 %s, %s" % (v(vD, 2), v(vT0)))
    e("s_waitcnt lgkmcnt(0)")
    e("v_readfirstlane_b32 s%d, %s" % (sH0, v(vD)))
    e("v_readfirstlane_b32 s%d, %s" % (sH1, v(vD + 1)))
e("s_waitcnt vmcnt(0)")
lab("L_Bloop")
unpack(vF, vW1)
unpack(vF + 2, vB1)
U, T = vD, vD + 4
for col, sh in ((0, sH0), (1, sH1)):
    e("v_mul_f32 %s, s%d, %s" % (v(U + 2 * col), sh, v(vF)))
    e("v_mul_f32 %s, s%d, %s" % (v(U + 2 * col + 1), sh, v(vF + 1)))
for col in range(2): e("v_cvt_pk_bf16_f32 %s, %s, %s" % (v(T + col), v(U + 2 * col), v(U + 2 * col + 1)))
for col in range(2): unpack(U + 2 * col, T + col)
for col in range(2):
    e("v_add_f32 %s, %s, %s" % (v(U + 2 * col), v(U + 2 * col), v(vF + 2)))
    e("v_add_f32 %s, %s, %s" % (v(U + 2 * col + 1), v(U + 2 * col + 1), v(vF + 3)))
for col in range(2): e("v_cvt_pk_bf16_f32 %s, %s, %s" % (v(T + col), v(U + 2 * col), v(U + 2 * col + 1)))
for col in range(2): unpack(U + 2 * col, T + col)
for i in range(4): e("v_mul_f32 %s, %s, %s" % (v(T + i), v(U + i), v(U + i)))
for i in range(4): e("v_fma_f32 %s, %s, s%d, %s" % (v(T + i), v(T + i), sTMP, v(vS1)))
for i in range(4): e("v_mul_f32 %s, %s, %s" % (v(T + i), v(T + i), v(U + i)))
for i in range(4): e("v_exp_f32 %s, %s" % (v(T + i), v(T + i)))
for i in range(4): e("v_add_f32 %s, 1.0, %s" % (v(T + i), v(T + i)))
for i in range(4): e("v_rcp_f32 %s, %s" % (v(T + i), v(T + i)))
for i in range(4): e("v_mul_f32 %s, %s, %s" % (v(T + i), v(T + i), v(U + i)))
for col in range(2): e("v_cvt_pk_bf16_f32 %s, %s, %s" % (v(U + col), v(T + 2 * col), v(T + 2 * col + 1)))
for col in range(2): e("v_dot2c_f32_bf16 %s, %s, %s" % (v(vACC + col), v(U + col), v(vW2)))
for r in (vW1, vB1, vW2):
    for i in range(4): e("v_mov_b32 %s, %s" % (v(r + i), v(r + i + 1)))
e("s_sub_u32 s%d, s%d, 1" % (sCNT, sCNT))
e("s_cmp_lg_u32 s%d, 0" % sCNT)
e("s_cbranch_scc1 L_Bloop")
dpp_reduce("v_add_f32", [vACC, vACC + 1], ROW + XROW)
e("s_lshl_b32 s%d, s%d, 3" % (sTMP, sWAVE))
e("v_mov_b32 %s, s%d" % (v(vT0), sTMP))
e("s_mov_b32 exec_lo, 0"); e("s_mov_b32 exec_hi, 0x80000000")
e("ds_write_b64 %s, %s offset:%d" % (v(vT0), v(vACC, 2), YB - 8))
e("s_mov_b64 exec, -1")
e("s_waitcnt lgkmcnt(0)")
e("s_endpgm")

c("======== A waves ========")
lab("L_A")
WOAT = int(opts.get("woat", 8))
vKO, vP2, vKA, vVA, vWOo, vQB, vPX, vMW, vMR = 7, 8, 9, 10, 11, 12, 13, 14, 15
vZ2 = 16
vONE, vSC, vP, vM, vR = 20, 24, 32, 36, 37
vG2A, vOXW, vOXR, vP3 = 38, 39, 40, 41
vS1, vS2 = 42, 43
vF, vD = 44, 52
vZ3 = 60
vO, vLS, vWOF = 64, 96, 100
vQF = 116
vKF, vVF = 132, 164
vWA = 196
PX = CMB
sOFFW, sOFFG = 90, 91
e("s_sub_u32 s%d, s%d, 4" % (sAW, sWAVE))
c("dma source offset: q'*256 + ((n ^ (q'<<2))*16)")
e("v_lshlrev_b32 %s, 2, %s" % (v(vKO), v(vQ)))
e("v_xor_b32 %s, %s, %s" % (v(vKO), v(vKO), v(vN)))
e("v_lshlrev_b32 %s, 4, %s" % (v(vKO), v(vKO)))
e("v_lshl_add_u32 %s, %s, 8, %s" % (v(vKO), v(vQ), v(vKO)))
e("s_lshl_b32 s%d, s%d, 23" % (sOFF, sG))
e("s_lshl_b32 s%d, s%d, 12" % (sTMP, sC))
e("s_add_u32 s%d, s%d, s%d" % (sOFF, sOFF, sTMP))
e("s_lshl_b32 s%d, s%d, 10" % (sTMP, sAW))
e("s_add_u32 s%d, s%d, s%d" % (sOFF, sOFF, sTMP))
e("s_add_u32 s%d, s%d, %d" % (sOFF, sOFF, 7340032))
e("s_mul_i32 s%d, s%d, %d" % (sM0, sAW, 8 * KP))
e("s_add_u32 s%d, s%d, %d" % (sM0, sM0, KBUF))
e("s_mov_b32 m0, s%d" % sM0)
e("s_mov_b32 s%d, 0x20000" % sSTEP)
e("s_mov_b32 s%d, s%d" % (sOFF3, sOFF))
N1 = int(opts.get("n1", 4))
N1L = int(opts.get("n1l", N1)); THRL = int(opts.get("thrl", THR))
sLATE = 93
e("s_getreg_b32 s%d, hwreg(HW_REG_XCC_ID, 2, 1)" % sLATE)
e("s_cmp_lg_u32 s%d, 0" % sLATE)
e("s_cselect_b32 s%d, %d, %d" % (sCNT, N1L, N1))
e("s_mov_b32 s%d, %s" % (SRD_A + 2, hx(1 << 26)))
e("s_mov_b32 s%d, 0x00020000" % (SRD_A + 3))
if SPF:
    c("code prefetch into L2 through the scalar path: one 64 B sector per wave")
    e("s_getpc_b64 %s" % sp(sPC))
    lab("L_pc2")
    e("s_sub_u32 s%d, s%d, L_pc2-L_start" % (sPC, sPC))
    e("s_subb_u32 s%d, s%d, 0" % (sPC + 1, sPC + 1))
    e("s_lshl_b32 s%d, s%d, 2" % (sTMP, sC))
    e("s_add_u32 s%d, s%d, s%d" % (sTMP, sTMP, sAW))
    e("s_lshl_b32 s%d, s%d, %d" % (sTMP, sTMP, 7 if STAMPS else 6))
    e("s_min_u32 s%d, s%d, L_codeend-L_start-4" % (sTMP, sTMP))
e("s_waitcnt lgkmcnt(0)")
if STAMPS: e("v_mov_b32 %s, s%d" % (v(vSTP), sST))
if SPF: e("s_load_dword s%d, %s, s%d" % (97, sp(sPC), sTMP))
e("s_mov_b64 %s, s[18:19]" % sp(SRD_A))
e("s_barrier")
KSLEEP = int(opts.get("ksleep", 0))
if KSLEEP: e("s_sleep %d" % KSLEEP)
def dma_loop(name, sr, soff, step, thr):
    lab(name)
    if thr: e("s_waitcnt vmcnt(%d)" % (thr - 1))
    e("buffer_load_dwordx4 %s, %s, s%d offen nt lds" % (v(vKO), srd(sr), soff))
    e("s_sub_u32 s%d, s%d, 1" % (sCNT, sCNT))
    e("s_add_u32 m0, m0, %d" % step)
    e("s_add_u32 s%d, s%d, s%d" % (soff, soff, sSTEP))
    if XFLIP: e("s_xor_b32 s%d, s%d, 0x%x" % (soff, soff, XFLIP))
    e("s_cmp_lg_u32 s%d, 0" % sCNT)
    e("s_cbranch_scc1 %s" % name)
dma_loop("L_kloop", SRD_A, sOFF, KP, 0)
c("---- address setup (in the shadow of the first loads) ----")
mksrd(SRD_B, 20, 1 << 26); mksrd(SRD_WS, 40, WS_NREC); mksrd(SRD_C, 24, 1 << 22)
e("v_and_b32 %s, 3, %s" % (v(vT0), v(vN)))
e("v_lshrrev_b32 %s, 2, %s" % (v(vT1), v(vN)))
c("K frag address: KBUF + aw*8KP + (m>>2)*KP + (m&3)*256 + ((q'^(m&3))*64)")
e("v_xor_b32 %s, %s, %s" % (v(vT2), v(vT0), v(vQ)))
e("v_mul_u32_u24 %s, %d, %s" % (v(vKA), KP, v(vT1)))
e("v_lshl_add_u32 %s, %s, 8, %s" % (v(vKA), v(vT0), v(vKA)))
e("v_lshl_add_u32 %s, %s, 6, %s" % (v(vKA), v(vT2), v(vKA)))
e("v_add_u32 %s, s%d, %s" % (v(vKA), sM0, v(vKA)))
c("V frag address: VBUF + q'*VP + r*256 + cc*8 + ((aw ^ r)*64) ; r = n>>2, cc = n&3")
e("v_mul_u32_u24 %s, %d, %s" % (v(vVA), VP, v(vQ)))
e("v_lshl_add_u32 %s, %s, 8, %s" % (v(vVA), v(vT1), v(vVA)))
e("v_lshl_add_u32 %s, %s, 3, %s" % (v(vVA), v(vT0), v(vVA)))
e("v_xor_b32 %s, s%d, %s" % (v(vT2), sAW, v(vT1)))
e("v_lshl_add_u32 %s, %s, 6, %s" % (v(vVA), v(vT2), v(vVA)))
e("v_add_u32 %s, %d, %s" % (v(vVA), VBUF, v(vVA)))
c("q frag address: (n>>2)*272 + q'*64 ; P exchange: q'*64 + (n>>2)*16 ; m/l: (n>>2)*16")
e("v_mul_u32_u24 %s, 272, %s" % (v(vQB), v(vT1)))
e("v_lshl_add_u32 %s, %s, 6, %s" % (v(vQB), v(vQ), v(vQB)))
e("v_lshlrev_b32 %s, 4, %s" % (v(vMR), v(vT1)))
e("v_lshl_add_u32 %s, %s, 6, %s" % (v(vPX), v(vQ), v(vMR)))
e("s_lshl_b32 s%d, s%d, 2" % (sTMP, sAW))
e("s_add_u32 s%d, s%d, %d" % (sTMP, sTMP, ML))
e("v_add_u32 %s, s%d, %s" % (v(vMW), sTMP, v(vMR)))
e("s_lshl_b32 s%d, s%d, 8" % (sTMP, sAW))
e("v_add_u32 %s, s%d, %s" % (v(vWA + 1), sTMP, v(vPX)))
c("hop2 publish: (n>>2)*32768 + (q'>>1)*4096 + (q'&1)*64 + (n&3)*16 ; soffset g<<17 + aw<<13 + c<<7")
e("v_lshlrev_b32 %s, 15, %s" % (v(vP2), v(vT1)))
e("v_lshl_add_u32 %s, %s, 4, %s" % (v(vP2), v(vT0), v(vP2)))
e("v_lshrrev_b32 %s, 1, %s" % (v(vT2), v(vQ)))
e("v_lshl_add_u32 %s, %s, 12, %s" % (v(vP2), v(vT2), v(vP2)))
e("v_and_b32 %s, 1, %s" % (v(vT2), v(vQ)))
e("v_lshl_add_u32 %s, %s, 6, %s" % (v(vP2), v(vT2), v(vP2)))
e("s_lshl_b32 s%d, s%d, 17" % (sOFF2, sG))
e("s_add_u32 s%d, s%d, %d" % (sOFF2, sOFF2, MB2A))
c("hop2 gather region g*32 + (c>>2)*4 + aw")
e("s_and_b32 s%d, s%d, 28" % (sTMP, sC))
e("s_add_u32 s%d, s%d, s%d" % (sTMP, sTMP, sAW))
e("s_lshl_b32 s%d, s%d, 12" % (sTMP, sTMP))
e("s_add_u32 s%d, s%d, s%d" % (sOFFG, sOFF2, sTMP))
e("s_lshl_b32 s%d, s%d, 13" % (sTMP, sAW))
e("s_add_u32 s%d, s%d, s%d" % (sOFF2, sOFF2, sTMP))
e("s_lshl_b32 s%d, s%d, 7" % (sTMP, sC))
e("s_add_u32 s%d, s%d, s%d" % (sOFF2, sOFF2, sTMP))
e("v_lshlrev_b32 %s, 4, %s" % (v(vG2A), v(vL)))
c("hop 3 publish address: (n>>1)*128 + q'*32 + (n&1)*16")
e("v_lshrrev_b32 %s, 1, %s" % (v(vT2), v(vN)))
e("v_lshlrev_b32 %s, 7, %s" % (v(vP3), v(vT2)))
e("v_lshl_add_u32 %s, %s, 5, %s" % (v(vP3), v(vQ), v(vP3)))
e("v_and_b32 %s, 1, %s" % (v(vT2), v(vN)))
e("v_lshl_add_u32 %s, %s, 4, %s" % (v(vP3), v(vT2), v(vP3)))
if WOF:
    c("wo dma offset q'*1024 + ((n ^ (q'<<2))*16) ; rows 16aw+4i+q'")
    e("v_mul_u32_u24 %s, 768, %s" % (v(vWOo), v(vQ)))
    e("v_add_u32 %s, %s, %s" % (v(vWOo), v(vWOo), v(vKO)))
    e("s_mul_i32 s%d, s%d, %d" % (sM0, sAW, 4 * VP))
    e("s_add_u32 s%d, s%d, %d" % (sM0, sM0, WOB))
else:
    c("wo dma offset (l>>2)*1024 + (l&3)*16 ; frag address WOB + aw*4096 + (l>>2)*64 + (l&3)*8")
    e("v_lshrrev_b32 %s, 2, %s" % (v(vT2), v(vL)))
    e("v_lshlrev_b32 %s, 10, %s" % (v(vWOo), v(vT2)))
    e("v_lshl_add_u32 %s, %s, 4, %s" % (v(vWOo), v(vT0), v(vWOo)))
    e("v_lshlrev_b32 %s, 6, %s" % (v(vWA), v(vT2)))
    e("v_lshl_add_u32 %s, %s, 3, %s" % (v(vWA), v(vT0), v(vWA)))
    e("s_lshl_b32 s%d, s%d, 12" % (sM0, sAW))
    e("s_add_u32 s%d, s%d, %d" % (sM0, sM0, WOB))
    e("v_add_u32 %s, s%d, %s" % (v(vWA), sM0, v(vWA)))
e("s_lshl_b32 s%d, s%d, 19" % (sOFFW, sG))
e("s_lshr_b32 s%d, s%d, 2" % (sA, sC))
e("s_lshl_b32 s%d, s%d, 16" % (sTMP, sA))
e("s_add_u32 s%d, s%d, s%d" % (sOFFW, sOFFW, sTMP))
e("s_and_b32 s%d, s%d, 3" % (sB, sC))
e("s_lshl_b32 s%d, s%d, 8" % (sTMP, sB))
e("s_add_u32 s%d, s%d, s%d" % (sOFFW, sOFFW, sTMP))
e("s_lshl_b32 s%d, s%d, %d" % (sTMP, sAW, 14 if WOF else 6))
e("s_add_u32 s%d, s%d, s%d" % (sOFFW, sOFFW, sTMP))
sOFFP3 = 92
e("s_lshl_b32 s%d, s%d, 16" % (sOFFP3, sB))
e("s_lshl_b32 s%d, s%d, 13" % (sTMP, sG))
e("s_add_u32 s%d, s%d, s%d" % (sOFFP3, sOFFP3, sTMP))
e("s_lshl_b32 s%d, s%d, 10" % (sTMP, sA))
e("s_add_u32 s%d, s%d, s%d" % (sOFFP3, sOFFP3, sTMP))
e("s_lshl_b32 s%d, s%d, 8" % (sTMP, sAW))
e("s_add_u32 s%d, s%d, s%d" % (sOFFP3, sOFFP3, sTMP))
e("s_add_u32 s%d, s%d, %d" % (sOFFP3, sOFFP3, MB3))
c("OX write: aw*32 + (l&7)*4 + (l>>5)*2 ; read q'*16")
e("v_lshlrev_b32 %s, 4, %s" % (v(vOXR), v(vQ)))
e("v_and_b32 %s, 7, %s" % (v(vT2), v(vL)))
e("s_lshl_b32 s%d, s%d, 5" % (sTMP, sAW))
e("v_lshl_add_u32 %s, %s, 2, s%d" % (v(vOXW), v(vT2), sTMP))
e("v_lshrrev_b32 %s, 5, %s" % (v(vT2), v(vL)))
e("v_lshl_add_u32 %s, %s, 1, %s" % (v(vOXW), v(vT2), v(vOXW)))
for i in range(4): e("v_mov_b32 %s, 0x3f803f80" % v(vONE + i))
mask(sMASKQ, 0x000F000F); mask(sN1, 0xAAAAAAAA); mask(sN2, 0xCCCCCCCC); mask(sMASK0, 0x000000FF); mask(sN4, 0x11111111)
e("s_mov_b32 s%d, %s" % (sA, hx(f2u(128 ** -0.5))))
e("s_mov_b32 s%d, %s" % (sB, hx(f2u(math.log2(math.e)))))
e("v_mov_b32 %s, %d" % (v(vT0), MODE))
PW3 = int(opts.get("pw3", 0))
if PW3:
    for i in range(4): e("v_mov_b32 %s, 0" % v(vZ3 + i))
    e("s_mov_b64 exec, %s" % sp(sMASKQ))
    e("buffer_store_dwordx4 %s, %s, %s, s%d offen sc1" % (v(vZ3, 4), v(vP3), srd(SRD_WS), sOFFP3))
    e("s_mov_b64 exec, -1")
if B1B: e("s_barrier")
def rest(tag, n1, thr):
    if n1 < 8:
        e("s_mov_b32 s%d, %d" % (sCNT, 8 - n1))
        dma_loop("L_kloop2" + tag, SRD_A, sOFF, KP, thr)
    e("s_mul_i32 s%d, s%d, %d" % (sTMP, sAW, 8 * VP))
    e("s_add_u32 m0, s%d, %d" % (sTMP, VBUF))
    e("s_mov_b32 s%d, 8" % sCNT)
    dma_loop("L_vloop" + tag, SRD_B, sOFF3, VP, int(opts.get("thrv", thr)))
if (N1L, THRL) != (N1, THR):
    e("s_cmp_lg_u32 s%d, 0" % sLATE)
    e("s_cbranch_scc1 L_late")
    rest("e", N1, THR)
    e("s_branch L_issued")
    lab("L_late")
    rest("l", N1L, THRL)
    lab("L_issued")
else:
    rest("", N1, THR)
WO15 = int(opts.get("wo15", 0)); WOB2 = int(opts.get("wob2", 0))
wo_next = [0]
def wo_loads(n=4):
    while n > 0 and wo_next[0] < 4:
        i = wo_next[0]
        st = VP if WOF else 1024
        e("buffer_load_dwordx4 %s, %s, s%d offen offset:%d nt lds" % (v(vWOo), srd(SRD_C), sOFFW, st * i))
        if i < 3: e("s_add_u32 s%d, s%d, %d" % (sOFFW, sOFFW, (4096 if WOF else 16384) - st))
        wo_next[0] += 1; n -= 1
e("s_mov_b32 m0, s%d" % sM0)
stamp(15)
e("s_waitcnt vmcnt(8) lgkmcnt(0)")
for T in range(2):
    for t in range(4):
        e("ds_read_b128 %s, %s offset:%d" % (v(vKF + 16 * T + 4 * t, 4), v(vKA), 4 * KP * T + 16 * t))
wo_loads(WO15)
e("s_barrier")
for t in range(4):
    e("ds_read_b128 %s, %s offset:%d" % (v(vQF + 4 * t, 4), v(vQB), QL + 16 * t))
e("ds_read_b64 %s, %s" % (v(vZ3 + 2, 2), v(vT0)))
wo_loads(WOB2)
for t in range(4):
    e("s_waitcnt lgkmcnt(%d)" % (4 - t))
    for T in range(2):
        e("v_mfma_f32_16x16x32_bf16 %s, %s, %s, %s" % (v(vSC + 4 * T, 4), v(vKF + 16 * T + 4 * t, 4), v(vQF + 4 * t, 4), v(vSC + 4 * T, 4) if t else "0"))
e("s_waitcnt lgkmcnt(0)")
e("v_readfirstlane_b32 s%d, %s" % (sMODE, v(vZ3 + 2)))
e("v_readfirstlane_b32 s%d, %s" % (sTAG, v(vZ3 + 3)))
e("v_mov_b32 %s, %s" % (v(vZ3 + 2), v(vZ3 + 3)))
e("v_mov_b32 %s, %s" % (v(vZ2 + 3), v(vZ3 + 3)))
e("s_nop 2")
for i in range(4): e("v_cvt_pk_bf16_f32 %s, %s, %s" % (v(vP + i), v(vSC + 2 * i), v(vSC + 2 * i + 1)))
for i in range(4): unpack(vSC + 2 * i, vP + i)
for i in range(8): e("v_mul_f32 %s, s%d, %s" % (v(vSC + i), sA, v(vSC + i)))
for i in range(4): e("v_cvt_pk_bf16_f32 %s, %s, %s" % (v(vP + i), v(vSC + 2 * i), v(vSC + 2 * i + 1)))
for i in range(4): unpack(vSC + 2 * i, vP + i)
e("v_max3_f32 %s, %s, %s, %s" % (v(vM), v(vSC), v(vSC + 1), v(vSC + 2)))
e("v_max3_f32 %s, %s, %s, %s" % (v(vR), v(vSC + 3), v(vSC + 4), v(vSC + 5)))
e("v_max3_f32 %s, %s, %s, %s" % (v(vM), v(vM), v(vSC + 6), v(vSC + 7)))
e("v_max_f32 %s, %s, %s" % (v(vM), v(vM), v(vR)))
e("v_mov_b32 %s, %s" % (v(vR), v(vM)))
e("s_nop 1")
e("v_permlane32_swap_b32 %s, %s" % (v(vM), v(vR)))
e("v_max_f32 %s, %s, %s" % (v(vM), v(vM), v(vR)))
e("v_mov_b32 %s, %s" % (v(vR), v(vM)))
e("s_nop 1")
e("v_permlane16_swap_b32 %s, %s" % (v(vM), v(vR)))
e("v_max_f32 %s, %s, %s" % (v(vM), v(vM), v(vR)))
e("v_mul_f32 %s, s%d, %s" % (v(vM), sB, v(vM)))
for i in range(8): e("v_fma_f32 %s, %s, s%d, -%s" % (v(vSC + i), v(vSC + i), sB, v(vM)))
for i in range(8): e("v_exp_f32 %s, %s" % (v(vSC + i), v(vSC + i)))
e("s_nop 0")
for i in range(4): e("v_cvt_pk_bf16_f32 %s, %s, %s" % (v(vP + i), v(vSC + 2 * i), v(vSC + 2 * i + 1)))
c("slow mode: use the write-through mailbox")
e("s_cmp_eq_u32 s%d, 0" % sMODE)
e("s_cselect_b32 s%d, %d, 0" % (sSTEP, MB2B - MB2A))
e("v_mfma_f32_16x16x32_bf16 %s, %s, %s, 0" % (v(vLS, 4), v(vONE, 4), v(vP, 4)))
e("s_mov_b64 exec, %s" % sp(sN4))
e("ds_write_b128 %s, %s offset:%d" % (v(vWA + 1), v(vP, 4), PX))
e("s_add_u32 s%d, s%d, s%d" % (sOFF2, sOFF2, sSTEP))
e("s_add_u32 s%d, s%d, s%d" % (sOFFG, sOFFG, sSTEP))
e("s_nop 3")
e("ds_write2_b32 %s, %s, %s offset0:0 offset1:16" % (v(vMW), v(vM), v(vLS)))
e("s_mov_b64 exec, -1")
stamp(12)
if WOAT < 8: e("s_waitcnt vmcnt(%d)" % WOAT)
wo_loads()
e("s_waitcnt vmcnt(4) lgkmcnt(0)")
stamp(5)
e("s_barrier")
e("ds_read_b128 %s, %s offset:%d" % (v(vF, 4), v(vMR), ML))
e("ds_read_b128 %s, %s offset:%d" % (v(vF + 4, 4), v(vMR), ML + 64))
for s_ in range(4):
    e("ds_read_b128 %s, %s offset:%d" % (v(vQF + 4 * s_, 4), v(vPX), PX + 256 * s_))
    for dbl in range(2):
        for h in range(2):
            e("ds_read_b64_tr_b16 %s, %s offset:%d" % (v(vVF + 8 * s_ + 4 * dbl + 2 * h, 2), v(vVA), 8 * VP * s_ + 4 * VP * h + 32 * dbl))
e("s_waitcnt lgkmcnt(15)")
e("v_max3_f32 %s, %s, %s, %s" % (v(vM), v(vF), v(vF + 1), v(vF + 2)))
def pv(s_):
    for dbl in range(2):
        e("v_mfma_f32_16x16x32_bf16 %s, %s, %s, 0" % (v(vO + 8 * s_ + 4 * dbl, 4), v(vVF + 8 * s_ + 4 * dbl, 4), v(vQF + 4 * s_, 4)))
def sel(s_):
    o = vO + 8 * s_
    e("v_cndmask_b32 %s, %s, %s, %s" % (v(o), v(o), v(o + 2), sp(sN1)))
    e("v_cndmask_b32 %s, %s, %s, %s" % (v(o + 1), v(o + 1), v(o + 3), sp(sN1)))
    e("v_cndmask_b32 %s, %s, %s, %s" % (v(o + 4), v(o + 4), v(o + 6), sp(sN1)))
    e("v_cndmask_b32 %s, %s, %s, %s" % (v(o + 5), v(o + 5), v(o + 7), sp(sN1)))
    e("v_cndmask_b32 %s, %s, %s, %s" % (v(o), v(o), v(o + 4), sp(sN2)))
    e("v_cndmask_b32 %s, %s, %s, %s" % (v(o + 1), v(o + 1), v(o + 5), sp(sN2)))
    if s_ == 0:
        e("v_mul_f32 %s, %s, %s" % (v(vZ2), v(vF), v(o)))
        e("v_mul_f32 %s, %s, %s" % (v(vZ2 + 1), v(vF), v(o + 1)))
    else:
        e("v_fmac_f32 %s, %s, %s" % (v(vZ2), v(vF + s_), v(o)))
        e("v_fmac_f32 %s, %s, %s" % (v(vZ2 + 1), v(vF + s_), v(o + 1)))
pv(0)
e("v_max_f32 %s, %s, %s" % (v(vM), v(vM), v(vF + 3)))
for w in range(4): e("v_sub_f32 %s, %s, %s" % (v(vF + w), v(vF + w), v(vM)))
for w in range(4): e("v_exp_f32 %s, %s" % (v(vF + w), v(vF + w)))
e("s_waitcnt lgkmcnt(10)")
pv(1)
e("v_mul_f32 %s, %s, %s" % (v(vR), v(vF), v(vF + 4)))
for w in range(1, 4): e("v_fmac_f32 %s, %s, %s" % (v(vR), v(vF + w), v(vF + 4 + w)))
e("v_rcp_f32 %s, %s" % (v(vS1), v(vR)))
e("v_log_f32 %s, %s" % (v(vS2), v(vR)))
e("s_waitcnt lgkmcnt(5)")
pv(2)
for w in range(4): e("v_mul_f32 %s, %s, %s" % (v(vF + w), v(vF + w), v(vS1)))
e("v_add_f32 %s, %s, %s" % (v(vZ2 + 2), v(vM), v(vS2)))
e("s_waitcnt lgkmcnt(0)")
pv(3)
sel(0); sel(1); sel(2); sel(3)
e("s_cmp_eq_u32 s%d, 0" % sMODE)
e("s_cbranch_scc1 L_p2slow")
e("buffer_store_dwordx4 %s, %s, %s, s%d offen%s" % (v(vZ2, 4), v(vP2), srd(SRD_WS), sOFF2, fs))
lab("L_p2done")
stamp(7)
G2 = vKF
def h2_loads():
    for i in range(4):
        e("buffer_load_dwordx4 %s, %s, %s, s%d offen offset:%d sc1" % (v(G2 + 4 * i, 4), v(vG2A), srd(SRD_WS), sOFFG, 1024 * i))
h2_loads()
if not WOF:
    e("s_waitcnt vmcnt(5)")
    stamp(13)
    for b in range(2):
        for s in range(2):
            for h in range(2):
                e("ds_read_b64_tr_b16 %s, %s offset:%d" % (v(vWOF + 8 * b + 4 * s + 2 * h, 2), v(vWA), 32 * b + 2048 * s + 1024 * h))
elif STAMPS:
    e("s_waitcnt vmcnt(5)")
    stamp(13)
e("s_branch L_h2chk")
lab("L_h2retry")
e("s_not_b64 exec, exec")
h2_loads()
e("s_mov_b64 exec, -1")
lab("L_h2chk")
e("s_waitcnt vmcnt(0)")
for i in range(4):
    e("v_cmpx_eq_u32 vcc, s%d, %s" % (sTAG, v(G2 + 4 * i + 3)))
e("s_cmp_eq_u64 exec, -1")
e("s_cbranch_scc1 L_h2ok")
spin_check("L_h2retry")
lab("L_h2ok")
stamp(8)
A_ = [G2 + 4 * i + 2 for i in range(4)]
e("v_max3_f32 %s, %s, %s, %s" % (v(vM), v(A_[0]), v(A_[1]), v(A_[2])))
e("v_max_f32 %s, %s, %s" % (v(vM), v(vM), v(A_[3])))
e("v_mov_b32 %s, %s" % (v(vR), v(vM)))
e("s_nop 1")
e("v_permlane32_swap_b32 %s, %s" % (v(vM), v(vR)))
e("v_max_f32 %s, %s, %s" % (v(vM), v(vM), v(vR)))
e("v_mov_b32 %s, %s" % (v(vR), v(vM)))
e("s_nop 1")
e("v_permlane16_swap_b32 %s, %s" % (v(vM), v(vR)))
e("v_max_f32 %s, %s, %s" % (v(vM), v(vM), v(vR)))
dpp_reduce("v_max_f32", [vM], ROW[:1])
for i in range(4): e("v_sub_f32 %s, %s, %s" % (v(vF + i), v(A_[i]), v(vM)))
for i in range(4): e("v_exp_f32 %s, %s" % (v(vF + i), v(vF + i)))
Y0, Y1, W, W2 = vD, vD + 1, vD + 2, vD + 3
e("v_mul_f32 %s, %s, %s" % (v(Y0), v(vF), v(G2)))
e("v_mul_f32 %s, %s, %s" % (v(Y1), v(vF), v(G2 + 1)))
e("v_add_f32 %s, %s, %s" % (v(W), v(vF), v(vF + 1)))
e("v_add_f32 %s, %s, %s" % (v(W2), v(vF + 2), v(vF + 3)))
for i in range(1, 4):
    e("v_fmac_f32 %s, %s, %s" % (v(Y0), v(vF + i), v(G2 + 4 * i)))
    e("v_fmac_f32 %s, %s, %s" % (v(Y1), v(vF + i), v(G2 + 4 * i + 1)))
    if i == 1:
        e("v_add_f32 %s, %s, %s" % (v(W), v(W), v(W2)))
        e("v_mov_b32 %s, %s" % (v(W2), v(W)))
e("v_permlane32_swap_b32 %s, %s" % (v(W), v(W2)))
e("s_nop 0")
e("v_permlane32_swap_b32 %s, %s" % (v(Y0), v(Y1)))
e("v_add_f32 %s, %s, %s" % (v(W), v(W), v(W2)))
e("v_add_f32 %s, %s, %s" % (v(Y0), v(Y0), v(Y1)))
e("s_nop 1")
e("v_permlane16_swap_b32 %s, %s" % (v(Y0), v(W)))
e("v_add_f32 %s, %s, %s" % (v(Y0), v(Y0), v(W)))
dpp_reduce("v_add_f32", [Y0], ROW[:1])
e("v_rcp_f32 %s, %s" % (v(W), v(Y0)))
e("s_nop 1")
e("v_permlane16_swap_b32 %s, %s" % (v(W), v(W2)))
e("v_mul_f32 %s, %s, %s" % (v(Y0), v(Y0), v(W2)))
e("v_cvt_pk_bf16_f32 %s, %s, %s" % (v(Y0), v(Y0), v(Y0)))
e("s_mov_b64 exec, %s" % sp(sMASK0))
e("ds_write_b16 %s, %s offset:%d" % (v(vOXW), v(Y0), OX))
e("s_mov_b64 exec, -1")
e("s_waitcnt lgkmcnt(0)")
e("s_barrier")
if WOF:
    for s in range(2):
        e("ds_read_b128 %s, %s offset:%d" % (v(vF + 4 * s, 4), v(vOXR), OX + 64 * s))
        for b in range(2):
            for h in range(2):
                e("ds_read_b64_tr_b16 %s, %s offset:%d" % (v(vWOF + 8 * b + 4 * s + 2 * h, 2), v(vVA), WOB - VBUF + (8 * s + 4 * h) * VP + 32 * b))
    for s in range(2):
        for b in range(2):
            e("s_waitcnt lgkmcnt(%d)" % (7 - 5 * s - 2 * b))
            e("v_mfma_f32_16x16x32_bf16 %s, %s, %s, %s" % (v(vSC + 4 * b, 4), v(vWOF + 8 * b + 4 * s, 4), v(vF + 4 * s, 4), v(vSC + 4 * b, 4) if s else "0"))
else:
    e("ds_read_b128 %s, %s offset:%d" % (v(vF, 4), v(vOXR), OX))
    e("ds_read_b128 %s, %s offset:%d" % (v(vF + 4, 4), v(vOXR), OX + 64))
    e("s_waitcnt lgkmcnt(1)")
    for b in range(2):
        e("v_mfma_f32_16x16x32_bf16 %s, %s, %s, 0" % (v(vSC + 4 * b, 4), v(vWOF + 8 * b, 4), v(vF, 4)))
    e("s_waitcnt lgkmcnt(0)")
    for b in range(2):
        e("v_mfma_f32_16x16x32_bf16 %s, %s, %s, %s" % (v(vSC + 4 * b, 4), v(vWOF + 8 * b + 4, 4), v(vF + 4, 4), v(vSC + 4 * b, 4)))
e("s_nop 6")
e("v_cndmask_b32 %s, %s, %s, %s" % (v(vD), v(vSC), v(vSC + 2), sp(sN1)))
e("v_cndmask_b32 %s, %s, %s, %s" % (v(vD + 1), v(vSC + 1), v(vSC + 3), sp(sN1)))
e("v_cndmask_b32 %s, %s, %s, %s" % (v(vD + 2), v(vSC + 4), v(vSC + 6), sp(sN1)))
e("v_cndmask_b32 %s, %s, %s, %s" % (v(vD + 3), v(vSC + 5), v(vSC + 7), sp(sN1)))
e("v_cndmask_b32 %s, %s, %s, %s" % (v(vZ3), v(vD), v(vD + 2), sp(sN2)))
e("v_cndmask_b32 %s, %s, %s, %s" % (v(vZ3 + 1), v(vD + 1), v(vD + 3), sp(sN2)))
e("s_mov_b64 exec, %s" % sp(sMASKQ))
e("buffer_store_dwordx4 %s, %s, %s, s%d offen %s" % (v(vZ3, 4), v(vP3), srd(SRD_WS), sOFFP3, H3ST))
if REP:
    e("s_add_u32 s%d, s%d, %d" % (sOFFP3, sOFFP3, 1 << 18))
    e("buffer_store_dwordx4 %s, %s, %s, s%d offen %s" % (v(vZ3, 4), v(vP3), srd(SRD_WS), sOFFP3, H3ST))
e("s_mov_b64 exec, -1")
stamp(9)
lab("L_fin")
if PAD:
    if "padx" in opts:
        e("s_getreg_b32 s%d, hwreg(HW_REG_XCC_ID, 0, 4)" % sTMP)
        e("s_cmp_lg_u32 s%d, %d" % (sTMP, int(opts["padx"])))
        e("s_cbranch_scc1 L_fin2")
    e("s_add_u32 s100, s100, %d" % (PAD * 100))
    lab("L_pad")
    e("s_memrealtime %s" % sp(sST))
    e("s_waitcnt lgkmcnt(0)")
    e("s_sub_u32 s%d, s%d, s100" % (sST, sST))
    e("s_cmp_lt_i32 s%d, 0" % sST)
    e("s_cbranch_scc1 L_pad")
lab("L_fin2")
if STAMPS:
    e("s_mov_b64 exec, -1")
    e("s_waitcnt vmcnt(0)")
    stamp(11)
    e("s_lshl_b32 s%d, s2, 4" % sTMP)
    e("s_add_u32 s%d, s%d, s%d" % (sTMP, sTMP, sWAVE))
    e("s_lshl_b32 s%d, s%d, 6" % (sTMP, sTMP))
    e("s_add_u32 s%d, s%d, %d" % (sTMP, sTMP, STAMP_OFF))
    e("v_mov_b32 %s, 0" % v(vT1))
    e("s_mov_b64 exec, 1")
    for i in range(4):
        e("buffer_store_dwordx4 %s, %s, %s, s%d offen offset:%d" % (v(vSTP + 4 * i, 4), v(vT1), srd(SRD_WS), sTMP, 16 * i))
lab("L_end")
e("s_endpgm")
lab("L_p2slow")
e("buffer_store_dwordx4 %s, %s, %s, s%d offen sc1" % (v(vZ2, 4), v(vP2), srd(SRD_WS), sOFF2))
e("s_branch L_p2done")
lab("L_codeend")

if int(opts.get("reord", 1)):
    ia = L.index("L_A:")
    ib = L.index("    s_cbranch_scc1 L_kloop") + 1
    blk = L[ia:ib] + ["    s_branch L_A2"]
    L[ia:ib] = ["L_A2:"]
    ic = L.index("L_B0:")
    L[ic:ic] = blk
hdr = open("cdna_kernels/%s.s.ref" % NAME).read().split("\n")
head = []
for ln in hdr:
    if ln.startswith("; @launch"):
        head.append("; @launch grid=(256,1,1) block=(512,1,1) lds=%d" % LDS_TOTAL)
    elif ln.startswith(";"):
        head.append(ln)
    else:
        break
out = "\n".join(head) + "\n"
out += '.amdgcn_target "amdgcn-amd-amdhsa--gfx950"\n.text\n.globl %s_kernel\n.p2align 8\n.type %s_kernel,@function\n%s_kernel:\n' % (NAME, NAME, NAME)
out += "\n".join(L) + "\n"
out += '''.section .rodata,"a"
.p2align 6
.amdhsa_kernel %s_kernel
  .amdhsa_next_free_vgpr %d
  .amdhsa_next_free_sgpr 102
  .amdhsa_accum_offset %d
  .amdhsa_group_segment_fixed_size 0
  .amdhsa_kernarg_size 104
  .amdhsa_user_sgpr_count 2
  .amdhsa_user_sgpr_kernarg_segment_ptr 1
  .amdhsa_system_sgpr_workgroup_id_x 1
  .amdhsa_float_denorm_mode_32 3
.end_amdhsa_kernel
''' % (NAME, NVGPR, NVGPR)
open(sys.argv[1], "w").write(out)
```

```python
import sys, struct, math
NAME = "recurrent_scan__sliding_block_cached__mixer_token_mlp__decode"
opts = dict(a.split("=") if "=" in a else (a, "1") for a in sys.argv[2:])
STAMPS = int(opts.get("stamps", 0))
PAD = int(opts.get("pad", 0))
PREFETCH = int(opts.get("pf", 0))
PREWRITE = int(opts.get("pw", 1))
QK = int(opts.get("qk", 4))
WOL = int(opts.get("wol", 0))
NOS = int(opts.get("nos", 1))
NOBC = int(opts.get("nobc", 1))
PV2 = int(opts.get("pv2", 1))
GLATE = int(opts.get("glate", 1))
SPF = int(opts.get("spf", 0))
DPF = int(opts.get("dpf", 0))
EPF = int(opts.get("epf", 1))
XFLIP = int(opts.get("xflip", "0"), 0)
WOF = int(opts.get("wof", 1))
XLIN = int(opts.get("xlin", 1))
B1ONLY = int(opts.get("b1only", 1))

SM = " nt" if int(opts.get("smnt", 0)) else ""
PFM = " nt" if int(opts.get("pfnt", 0)) else ""
PFLATE = int(opts.get("pflate", 1))
B1B = int(opts.get("b1b", 1))
FASTST = opts.get("fastst", "sc0")
FORCE_SLOW = int(opts.get("slow", 0))
NPIPE = int(opts.get("npipe", 4))
SLEEP = int(opts.get("sleep", 3))
THR = int(opts.get("thr", 6))
LSLEEP = int(opts.get("lsleep", 0))
QWAIT = int(opts.get("qwait", -1))
QD0 = int(opts.get("qd0", 13))
QD1 = int(opts.get("qd1", 8))
QPIPE = int(opts.get("qpipe", 0))
H3LD = opts.get("h3ld", "sc1").replace("+", " ")
H3ST = opts.get("h3st", "sc1").replace("+", " ")
ATOM = int(opts.get("atom", 0))
PRESLEEP = int(opts.get("presleep", 18))

L = []
DOC = """; ---------------------------------------------------------------------------------------------
; ---------------------------------------------------------------------------------------------
"""
def e(s): L.append("    " + s)
def lab(s): L.append(s + ":")
def c(s): L.append("    ; " + s)
def f2u(x): return struct.unpack("<I", struct.pack("<f", x))[0]
def hx(x): return "0x%08x" % (x & 0xffffffff)

XN = 0
QL = 1024
MODE = QL + 1088
HX = MODE + 16
OX = 2176
ML = 2304
YB = 2432
CMB = 2560
KBUF = 12288
KP, VP = 1040, 1056
VBUF = KBUF + 32 * KP
WQB = VBUF + 32 * VP
WOB = WQB + 16384
LDS_TOTAL = WOB + 16896
EPOCH = 0
MB1A = 1 << 17
MB1B = MB1A + (1 << 17)
MB3 = MB1B + (1 << 17)
MB2A = 1 << 20
MB2B = 2 << 20
NREP = int(opts.get("nrep", 0))
if NREP: MB3 = 3 << 20
WS_USED = (3 << 20) + NREP * (1 << 18)
STAMP_OFF = 32 << 20
WS_NREC = (33 << 20) if STAMPS else WS_USED

sWAVE, sG, sC, sP4, sPIV, sA, sB = 3, 4, 5, 6, 7, 8, 9
sTAG = 10
sSPIN, sTMP, sM0, sOFF = 12, 13, 14, 15
sE, sXP = 42, 43
SRD_A, SRD_B, SRD_C, SRD_D, SRD_WS = 44, 48, 52, 56, 60
sB2, sCNT, sAW, sMODE = 64, 65, 66, 67
sMASKQ, sMASK0, sN1, sN2, sN4, sM8 = 68, 70, 72, 74, 76, 78
sH0, sH1 = 80, 81
sT3 = 82
sOFF2, sOFF3, sSTEP = 84, 85, 86
sPC = 88
sST = 98
def srd(b): return "s[%d:%d]" % (b, b + 3)
def sp(b): return "s[%d:%d]" % (b, b + 1)
def v(a, n=1): return "v%d" % a if n == 1 else "v[%d:%d]" % (a, a + n - 1)

vL, vQ, vN, vT0, vT1, vT2 = 1, 2, 3, 4, 5, 6
vSTP = 240
NVGPR = int(opts.get("nv", 256))

def stamp(i):
    if not STAMPS: return
    e("s_waitcnt lgkmcnt(0)")
    e("s_memrealtime %s" % sp(sST))
    e("s_waitcnt lgkmcnt(0)")
    e("v_mov_b32 %s, s%d" % (v(vSTP + i), sST))

def dpp_reduce(op, regs, steps):
    for s in steps:
        pad = 2 - (len(regs) - 1)
        if pad > 0: e("s_nop %d" % (pad - 1))
        for r in regs:
            e("%s_dpp %s, %s, %s %s" % (op, v(r), v(r), v(r), s))
ROW = ["row_ror:8 row_mask:0xf bank_mask:0xf", "row_ror:4 row_mask:0xf bank_mask:0xf",
       "row_ror:2 row_mask:0xf bank_mask:0xf", "row_ror:1 row_mask:0xf bank_mask:0xf"]
XROW = ["row_bcast:15 row_mask:0xa bank_mask:0xf", "row_bcast:31 row_mask:0xc bank_mask:0xf"]
def unpack(dst, src):
    e("v_lshlrev_b32 %s, 16, %s" % (v(dst), v(src)))
    e("v_and_b32 %s, 0xffff0000, %s" % (v(dst + 1), v(src)))
def round1(r):
    e("v_cvt_pk_bf16_f32 %s, %s, %s" % (v(r), v(r), v(r)))
    e("v_and_b32 %s, 0xffff0000, %s" % (v(r), v(r)))
def round2(r, tmp):
    e("v_cvt_pk_bf16_f32 %s, %s, %s" % (v(tmp), v(r), v(r + 1)))
    unpack(r, tmp)
def ln_finish(vmean, vvar):
    e("v_max_f32 %s, 0, %s" % (v(vvar), v(vvar)))
    round1(vmean)
    round1(vvar)
    e("v_add_f32 %s, %s, %s" % (v(vvar), hx(f2u(1e-5)), v(vvar)))
    round1(vvar)
    e("v_sqrt_f32 %s, %s" % (v(vvar), v(vvar)))
    e("s_nop 0")
    round1(vvar)
    e("v_rcp_f32 %s, %s" % (v(vvar), v(vvar)))
    e("s_nop 0")
def spin_check(retry_label):
    e("s_sub_u32 s%d, s%d, 1" % (sSPIN, sSPIN))
    e("s_cbranch_scc0 %s" % retry_label)
    e("s_branch L_end")
def mksrd(b, p, n):
    e("s_mov_b64 %s, %s" % (sp(b), sp(p)))
    e("s_mov_b32 s%d, %s" % (b + 2, hx(n)))
    e("s_mov_b32 s%d, 0x00020000" % (b + 3))
def mask(r, m):
    e("s_mov_b32 s%d, %s" % (r, hx(m)))
    e("s_mov_b32 s%d, %s" % (r + 1, hx(m)))
def mktag():
    e("s_mul_i32 s%d, s%d, 0x9E3779B1" % (sTAG, sE))
    e("s_add_u32 s%d, s%d, 0x632BE5AB" % (sTAG, sTAG))
fs = (" " + FASTST) if FASTST else ""

lab("L_start")
if EPF: e("s_getpc_b64 %s" % sp(sPC))
e("s_cmp_ge_u32 s2, 256")
e("s_cbranch_scc1 L_end")
e("s_load_dwordx16 s[16:31], s[0:1], 0")
e("s_load_dwordx8 s[32:39], s[0:1], 64")
e("s_load_dwordx2 s[40:41], s[0:1], 96")
if EPF:
    NL = 4 if STAMPS else 2
    c("pull the kernel's code into L2: every workgroup fetches %d of its 128 B lines" % NL)
    e("s_lshr_b32 s%d, s2, 3" % sTMP)
    e("s_lshl_b32 s%d, s%d, %d" % (sTMP, sTMP, 9 if STAMPS else 8))
    e("v_lshl_add_u32 %s, v0, 7, s%d" % (v(35), sTMP))
    e("v_cmp_gt_u32 vcc, %d, v0" % NL)
    e("v_min_u32 %s, L_codeend-L_start-8, %s" % (v(35), v(35)))
    e("s_and_saveexec_b64 s[90:91], vcc")
    e("s_cbranch_execz L_noepf")
    e("global_load_dword %s, %s, %s" % (v(35), v(35), sp(sPC)))
    lab("L_noepf")
    e("s_mov_b64 exec, -1")
if STAMPS:
    e("s_memrealtime %s" % sp(sST))
    for i in range(16): e("v_mov_b32 %s, 0" % v(vSTP + i))
    if EPF: e("v_mov_b32 %s, s%d" % (v(vSTP + 14), sPC))
DBG = int(opts.get("dbg", 0))
if PAD or DBG: e("s_memrealtime s[100:101]")
e("v_lshrrev_b32 %s, 6, v0" % v(vT0))
e("v_and_b32 %s, 63, v0" % v(vL))
e("v_readfirstlane_b32 s%d, %s" % (sWAVE, v(vT0)))
e("v_lshrrev_b32 %s, 4, %s" % (v(vQ), v(vL)))
e("v_and_b32 %s, 15, %s" % (v(vN), v(vL)))
e("s_and_b32 s%d, s2, 7" % sG)
e("s_lshr_b32 s%d, s2, 3" % sC)
e("s_mov_b32 s%d, 0x40000" % sSPIN)
e("s_cmp_ge_u32 s%d, 4" % sWAVE)
e("s_cbranch_scc1 L_A")
vX = 8
if XLIN:
    e("v_lshlrev_b32 %s, 4, %s" % (v(vT0), v(vL)))
else:
    c("x offset: (l>>2)*64 + (l&3)*8")
    e("v_lshrrev_b32 %s, 2, %s" % (v(vT0), v(vL)))
    e("v_and_b32 %s, 3, %s" % (v(vT1), v(vL)))
    e("v_lshlrev_b32 %s, 6, %s" % (v(vT0), v(vT0)))
    e("v_lshl_add_u32 %s, %s, 3, %s" % (v(vT0), v(vT1), v(vT0)))
def xload():
    if XLIN:
        e("global_load_dwordx4 %s, %s, s[16:17]" % (v(vX, 4), v(vT0)))
    else:
        e("global_load_dwordx2 %s, %s, s[16:17]" % (v(vX, 2), v(vT0)))
        e("global_load_dwordx2 %s, %s, s[16:17] offset:32" % (v(vX + 2, 2), v(vT0)))
e("s_lshl_b32 s%d, s%d, 5" % (sP4, sG))
e("s_add_u32 s%d, s%d, s%d" % (sP4, sP4, sC))
e("s_lshl_b32 s%d, s%d, 2" % (sP4, sP4))
e("s_cmp_lg_u32 s%d, 0" % sWAVE)
e("s_cbranch_scc1 L_B0")
c("---- Q wave: issue x and wq loads ----")
e("s_setprio 3")
e("v_lshrrev_b32 %s, 3, %s" % (v(vT1), v(vL)))
e("v_lshlrev_b32 %s, 1, %s" % (v(vT2), v(vQ)))
e("v_xor_b32 %s, %s, %s" % (v(vT2), v(vT2), v(vL)))
e("v_and_b32 %s, 7, %s" % (v(vT2), v(vT2)))
e("v_lshlrev_b32 %s, 13, %s" % (v(vT1), v(vT1)))
e("v_lshl_add_u32 %s, %s, 4, %s" % (v(vT1), v(vT2), v(vT1)))
e("s_and_b32 s%d, s%d, 3" % (sOFF, sC))
e("s_lshl_b32 s%d, s%d, 20" % (sOFF, sOFF))
e("s_lshl_b32 s%d, s%d, 10" % (sTMP, sG))
e("s_add_u32 s%d, s%d, s%d" % (sOFF, sOFF, sTMP))
e("s_lshr_b32 s%d, s%d, 2" % (sTMP, sC))
e("s_lshl_b32 s%d, s%d, 7" % (sTMP, sTMP))
e("s_add_u32 s%d, s%d, s%d" % (sOFF, sOFF, sTMP))
e("s_mov_b32 m0, %d" % WQB)
e("s_mov_b32 s%d, %s" % (SRD_B + 2, hx(1 << 22)))
e("s_mov_b32 s%d, 0x00020000" % (SRD_B + 3))
WQ4 = int(opts.get("wq4", 0))
e("s_mov_b32 s%d, %d" % (sCNT, 12 if WQ4 else 16))
if WQ4: e("s_mov_b32 s%d, %d" % (sSTEP, 65536 - 1024))
vEP = 22
e("v_mov_b32 %s, 0" % v(vEP))
e("s_waitcnt lgkmcnt(0)")
if STAMPS: e("v_mov_b32 %s, s%d" % (v(vSTP), sST))
e("s_mov_b64 %s, s[22:23]" % sp(SRD_B))
xload()
e("global_load_dword %s, %s, s[40:41] offset:%d sc1%s" % (v(vEP), v(vEP), EPOCH, SM))
lab("L_wqloop")
if WQ4:
    for i in range(4):
        e("buffer_load_dwordx4 %s, %s, s%d offen offset:%d nt lds" % (v(vT1), srd(SRD_B), sOFF, 1024 * i))
        if i < 3: e("s_add_u32 s%d, s%d, s%d" % (sOFF, sOFF, sSTEP))
    e("s_add_u32 m0, m0, 4096")
    e("s_add_u32 s%d, s%d, %d" % (sOFF, sOFF, 65536 + 3072))
    e("s_sub_u32 s%d, s%d, 4" % (sCNT, sCNT))
    e("s_cbranch_scc0 L_wqloop")
else:
    e("buffer_load_dwordx4 %s, %s, s%d offen nt lds" % (v(vT1), srd(SRD_B), sOFF))
    e("s_sub_u32 s%d, s%d, 1" % (sCNT, sCNT))
    e("s_add_u32 m0, m0, 1024")
    e("s_add_u32 s%d, s%d, 65536" % (sOFF, sOFF))
    e("s_cmp_lg_u32 s%d, 0" % sCNT)
    e("s_cbranch_scc1 L_wqloop")
if QWAIT >= 0: e("s_waitcnt vmcnt(%d)" % QWAIT)
e("s_barrier")
mksrd(SRD_WS, 40, WS_NREC)
c("publish address: (n>>1)*128 + q'*32 + (n&1)*16 ; record (g*32+c)*512")
vPUB = 7
e("v_lshrrev_b32 %s, 1, %s" % (v(vT0), v(vN)))
e("v_lshlrev_b32 %s, 7, %s" % (v(vT0), v(vT0)))
e("v_lshl_add_u32 %s, %s, 5, %s" % (v(vT0), v(vQ), v(vT0)))
e("v_and_b32 %s, 1, %s" % (v(vT1), v(vN)))
e("v_lshl_add_u32 %s, %s, 4, %s" % (v(vPUB), v(vT1), v(vT0)))
e("s_lshl_b32 s%d, s%d, 7" % (sOFF, sP4))
e("s_add_u32 s%d, s%d, %d" % (sOFF, sOFF, MB1A))
mask(sM8, 0x00FF00FF)
vXW = 23
if XLIN:
    e("v_lshrrev_b32 %s, 2, %s" % (v(vXW), v(vL)))
    e("v_lshlrev_b32 %s, 6, %s" % (v(vXW), v(vXW)))
    e("v_lshl_add_u32 %s, %s, 5, %s" % (v(vXW), v(vT1), v(vXW)))
    e("v_bfe_u32 %s, %s, 1, 1" % (v(vT0), v(vL)))
    e("v_lshl_add_u32 %s, %s, 3, %s" % (v(vXW), v(vT0), v(vXW)))
vZ = 12
if PREWRITE:
    for i in range(4): e("v_mov_b32 %s, 0" % v(vZ + i))
    e("s_mov_b64 exec, %s" % sp(sM8))
    e("buffer_store_dwordx4 %s, %s, %s, s%d offen%s" % (v(vZ, 4), v(vPUB), srd(SRD_WS), sOFF, fs))
    e("s_mov_b64 exec, -1")
NQ = 1 if PREWRITE else 0
e("s_waitcnt vmcnt(%d)" % (16 + NQ))
e("s_branch L_ln1")
lab("L_B0")
c("---- B waves: issue x, w1, b1, w2 loads ----")
vW1, vB1, vW2 = 16, 22, 28
if DPF:
    c("distributed code prefetch into L2: this workgroup pulls a few lines (needs no kernarg)")
    e("s_cmp_lg_u32 s%d, 1" % sWAVE)
    e("s_cbranch_scc1 L_nodpf")
    e("s_getpc_b64 %s" % sp(sPC))
    lab("L_pc3")
    NL = 4 if STAMPS else 2 * DPF
    e("s_sub_u32 s%d, s%d, L_pc3-L_start" % (sPC, sPC))
    e("s_subb_u32 s%d, s%d, 0" % (sPC + 1, sPC + 1))
    e("s_mul_i32 s%d, s%d, %d" % (sTMP, sC, NL * 128))
    if not STAMPS: e("s_and_b32 s%d, s%d, 8191" % (sTMP, sTMP))
    e("v_lshl_add_u32 %s, %s, 7, s%d" % (v(35), v(vL), sTMP))
    e("v_min_u32 %s, L_codeend-L_start-4, %s" % (v(35), v(35)))
    e("s_mov_b64 exec, %d" % ((1 << NL) - 1))
    e("global_load_dword %s, %s, %s" % (v(35), v(35), sp(sPC)))
    e("s_mov_b64 exec, -1")
    lab("L_nodpf")
BW = int(opts.get("bw", 1))
e("v_subrev_u32 %s, 64, v0" % v(vT1))
if BW:
    e("v_lshlrev_b32 %s, 2, %s" % (v(vT2), v(vT1)))
    e("v_lshlrev_b32 %s, 4, %s" % (v(vT1), v(vT1)))
else:
    e("v_mul_u32_u24 %s, 20, %s" % (v(vT1), v(vT1)))
e("v_mov_b32 %s, s%d" % (v(33), sP4))
if NOS: e("v_mov_b32 %s, 0" % v(34))
e("s_waitcnt lgkmcnt(0)")
if STAMPS: e("v_mov_b32 %s, s%d" % (v(vSTP), sST))
if B1ONLY:
    e("s_cmp_lg_u32 s%d, 1" % sWAVE)
    e("s_cbranch_scc1 L_nox")
xload()
e("global_load_dword %s, %s, s[16:17]" % (v(33), v(33)))
if NOS:
    assert B1ONLY
    e("global_load_ushort %s, %s, s[34:35]" % (v(34), v(34)))
if B1ONLY: lab("L_nox")
for b, p, r in ((SRD_A, 28, vW1), (SRD_B, 30, vB1), (SRD_C, 32, vW2)):
    mksrd(b, p, 3584)
mksrd(SRD_WS, 40, WS_NREC)
e("v_mov_b32 %s, 0" % v(vPUB))
PR3 = int(opts.get("epr3", 0))
if PR3:
    e("s_cmp_lg_u32 s%d, 2" % sWAVE)
    e("s_cbranch_scc1 L_nopr3")
    if PR3 == 1:
        e("s_lshr_b32 s%d, s%d, 8" % (sA, sP4))
        e("s_lshl_b32 s%d, s%d, 16" % (sA, sA))
        e("s_and_b32 s%d, s%d, 0xe0" % (sB, sP4))
        e("s_lshl_b32 s%d, s%d, 2" % (sB, sB))
        e("s_add_u32 s%d, s%d, s%d" % (sA, sA, sB))
        e("s_and_b32 s%d, s%d, 0x1c" % (sB, sP4))
        e("s_lshl_b32 s%d, s%d, 11" % (sB, sB))
        e("s_add_u32 s%d, s%d, s%d" % (sA, sA, sB))
        e("v_lshlrev_b32 %s, 10, %s" % (v(34), v(vL)))
    else:
        e("s_and_b32 s%d, s%d, 3" % (sA, sC))
        e("s_lshl_b32 s%d, s%d, 16" % (sA, sA))
        e("s_lshl_b32 s%d, s%d, 13" % (sB, sG))
        e("s_add_u32 s%d, s%d, s%d" % (sA, sA, sB))
        e("s_lshr_b32 s%d, s%d, 2" % (sB, sC))
        e("s_lshl_b32 s%d, s%d, 10" % (sB, sB))
        e("s_add_u32 s%d, s%d, s%d" % (sA, sA, sB))
        e("v_and_b32 %s, 7, %s" % (v(34), v(vL)))
        e("v_lshlrev_b32 %s, 7, %s" % (v(34), v(34)))
        e("v_lshrrev_b32 %s, 3, %s" % (v(35), v(vL)))
        e("v_lshl_add_u32 %s, %s, 18, %s" % (v(34), v(35), v(34)))
    e("s_add_u32 s%d, s%d, %d" % (sA, sA, MB3))
    e("s_mov_b32 exec_lo, 0x%x" % (((1 << (8 * max(1, NREP))) - 1) & 0xffffffff))
    e("s_mov_b32 exec_hi, 0x%x" % (((1 << (8 * max(1, NREP))) - 1) >> 32))
    e("buffer_load_dword %s, %s, %s, s%d offen %s" % (v(34), v(34), srd(SRD_WS), sA, opts.get("pr3m", "sc1").replace("none", "")))
    e("s_mov_b64 exec, -1")
    lab("L_nopr3")
if BW == 2: e("s_barrier")
for b, p, r in ((SRD_A, 28, vW1), (SRD_B, 30, vB1), (SRD_C, 32, vW2)):
    e("buffer_load_dwordx4 %s, %s, %s, 0 offen" % (v(r, 4), v(vT1), srd(b)))
    if BW: e("buffer_load_dword %s, %s, %s, 0 offen offset:3072" % (v(r + 4), v(vT2), srd(b)))
    else: e("buffer_load_dword %s, %s, %s, 0 offen offset:16" % (v(r + 4), v(vT1), srd(b)))
if BW != 2: e("s_barrier")
if B1ONLY:
    e("s_cmp_lg_u32 s%d, 1" % sWAVE)
    e("s_cbranch_scc1 L_B2")
if PREFETCH:
    c("pull the kernel's code into L2 (first two workgroups of each group, wave 1)")
    e("s_cmp_ge_u32 s%d, 2" % sC)
    e("s_cbranch_scc1 L_nopf")
    e("s_cmp_lg_u32 s%d, 1" % sWAVE)
    e("s_cbranch_scc1 L_nopf")
    e("s_getpc_b64 %s" % sp(sPC))
    lab("L_pc")
    e("s_sub_u32 s%d, s%d, L_pc-L_start" % (sPC, sPC))
    e("s_subb_u32 s%d, s%d, 0" % (sPC + 1, sPC + 1))
    e("v_lshlrev_b32 %s, 7, %s" % (v(vT0), v(vL)))
    e("v_min_u32 %s, L_codeend-L_start-4, %s" % (v(vT1), v(vT0)))
    e("global_load_dword %s, %s, %s" % (v(34), v(vT1), sp(sPC)))
    if STAMPS:
        e("v_add_u32 %s, 8192, %s" % (v(vT0), v(vT0)))
        e("v_min_u32 %s, L_codeend-L_start-4, %s" % (v(vT1), v(vT0)))
        e("global_load_dword %s, %s, %s" % (v(35), v(vT1), sp(sPC)))
    e("s_waitcnt vmcnt(%d)" % (8 if STAMPS else 7))
    e("s_branch L_ln1")
    lab("L_nopf")
e("s_waitcnt vmcnt(6)")
lab("L_ln1")
c("---- LN1 (Q and B waves) ----")
stamp(1)
vF, vD, vS1, vS2, vM, vR, vXN = 36, 44, 52, 53, 54, 55, 56
for i in range(4): unpack(vF + 2 * i, vX + i)
e("v_readfirstlane_b32 s%d, %s" % (sPIV, v(vF)))
e("s_nop 1")
for i in range(8): e("v_subrev_f32 %s, s%d, %s" % (v(vD + i), sPIV, v(vF + i)))
def sums():
    e("v_add_f32 %s, %s, %s" % (v(vS1), v(vD), v(vD + 1)))
    e("v_mul_f32 %s, %s, %s" % (v(vS2), v(vD), v(vD)))
    e("v_fmac_f32 %s, %s, %s" % (v(vS2), v(vD + 1), v(vD + 1)))
    for i in range(2, 8):
        e("v_add_f32 %s, %s, %s" % (v(vS1), v(vS1), v(vD + i)))
        e("v_fmac_f32 %s, %s, %s" % (v(vS2), v(vD + i), v(vD + i)))
    dpp_reduce("v_add_f32", [vS1, vS2], ROW + XROW)
    e("s_nop 0")
    e("v_readlane_b32 s%d, %s, 63" % (sA, v(vS1)))
    e("v_readlane_b32 s%d, %s, 63" % (sB, v(vS2)))
sums()
e("v_mov_b32 %s, %s" % (v(vT0), hx(f2u(1.0 / 512))))
e("s_nop 0")
e("v_mul_f32 %s, s%d, %s" % (v(vM), sA, v(vT0)))
e("v_mul_f32 %s, s%d, %s" % (v(vR), sB, v(vT0)))
e("v_fma_f32 %s, -%s, %s, %s" % (v(vR), v(vM), v(vM), v(vR)))
e("v_add_f32 %s, s%d, %s" % (v(vM), sPIV, v(vM)))
ln_finish(vM, vR)
for i in range(8): e("v_sub_f32 %s, %s, %s" % (v(vD + i), v(vF + i), v(vM)))
for i in range(4): e("v_cvt_pk_bf16_f32 %s, %s, %s" % (v(vXN + i), v(vD + 2 * i), v(vD + 2 * i + 1)))
for i in range(4): unpack(vD + 2 * i, vXN + i)
for i in range(8): e("v_mul_f32 %s, %s, %s" % (v(vD + i), v(vD + i), v(vR)))
for i in range(4): e("v_cvt_pk_bf16_f32 %s, %s, %s" % (v(vXN + i), v(vD + 2 * i), v(vD + 2 * i + 1)))
e("s_cmp_lg_u32 s%d, 0" % sWAVE)
e("s_cbranch_scc1 L_B1")
c("======== Q wave: partial q (128 rows x 64 columns) ========")
vBF = 64
vAF = 80
vQA = 144
vAD = 60
if XLIN:
    assert XN == 0
    e("ds_write2_b64 %s, %s, %s offset0:0 offset1:2" % (v(vXW), v(vXN, 2), v(vXN + 2, 2)))
else:
    e("v_lshlrev_b32 %s, 4, %s" % (v(vT0), v(vL)))
    e("ds_write_b128 %s, %s offset:%d" % (v(vT0), v(vXN, 4), XN))
e("s_and_b32 s%d, s%d, 3" % (sTMP, sC))
e("s_lshl_b32 s%d, s%d, 8" % (sTMP, sTMP))
e("v_lshl_add_u32 %s, %s, 4, s%d" % (v(vT0), v(vQ), sTMP))
e("v_lshrrev_b32 %s, 2, %s" % (v(vT1), v(vL)))
e("v_lshlrev_b32 %s, 7, %s" % (v(vT1), v(vT1)))
e("v_bfe_u32 %s, %s, 3, 2" % (v(vT2), v(vL)))
e("v_lshl_add_u32 %s, %s, 5, %s" % (v(vT1), v(vT2), v(vT1)))
e("v_and_b32 %s, 3, %s" % (v(vT2), v(vL)))
e("v_lshl_add_u32 %s, %s, 3, %s" % (v(vT1), v(vT2), v(vT1)))
e("v_add_u32 %s, %d, %s" % (v(vAD), WQB, v(vT1)))
assert WQB % 256 == 0
for b in range(1, 4): e("v_xor_b32 %s, %d, %s" % (v(vAD + b), b << 5, v(vAD)))
e("s_waitcnt lgkmcnt(0)")
for s in range(4):
    e("ds_read_b128 %s, %s offset:%d" % (v(vBF + 4 * s, 4), v(vT0), XN + 64 * s))
e("v_readfirstlane_b32 s%d, %s" % (sE, v(vEP)))
mktag()
e("s_getreg_b32 s%d, hwreg(HW_REG_XCC_ID, 0, 4)" % (sTAG + 1))
if FORCE_SLOW: e("s_add_u32 s%d, s%d, s2" % (sTAG + 1, sTAG + 1))
e("v_mov_b32 %s, s%d" % (v(vZ + 2), sTAG))
e("v_mov_b32 %s, s%d" % (v(vZ + 3), sTAG + 1))
mask(sN1, 0xAAAAAAAA); mask(sN2, 0xCCCCCCCC); mask(sN4, 0xF0F0F0F0)
def q_reads(s):
    e("s_waitcnt vmcnt(%d)" % (12 - 4 * s + NQ))
    for b in range(4):
        for h in range(2):
            e("ds_read_b64_tr_b16 %s, %s offset:%d" % (v(vAF + 16 * s + 4 * b + 2 * h, 2), v(vAD + b), 4096 * s + 2048 * h))
def q_mfma(s, behind):
    for b in range(4):
        e("s_waitcnt lgkmcnt(%d)" % (6 - 2 * b + behind))
        e("v_mfma_f32_16x16x32_bf16 %s, %s, %s, %s" % (v(vQA + 4 * b, 4), v(vAF + 16 * s + 4 * b, 4), v(vBF + 4 * s, 4), v(vQA + 4 * b, 4) if s else "0"))
q_reads(0)
for s in range(4):
    if s < 3: q_reads(s + 1)
    q_mfma(s, 8 if s < 3 else 0)
c("gather address: (l>>3)*2048 + (l&7)*16")
vGA = 16
e("v_lshrrev_b32 %s, 3, %s" % (v(vT0), v(vL)))
e("v_and_b32 %s, 7, %s" % (v(vT1), v(vL)))
e("v_lshlrev_b32 %s, 11, %s" % (v(vGA), v(vT0)))
e("v_lshl_add_u32 %s, %s, 4, %s" % (v(vGA), v(vT1), v(vGA)))
e("s_nop 1")
for b in range(4):
    e("v_cndmask_b32 %s, %s, %s, %s" % (v(vD + 2 * b), v(vQA + 4 * b), v(vQA + 4 * b + 2), sp(sN1)))
    e("v_cndmask_b32 %s, %s, %s, %s" % (v(vD + 2 * b + 1), v(vQA + 4 * b + 1), v(vQA + 4 * b + 3), sp(sN1)))
for k in range(2):
    e("v_cndmask_b32 %s, %s, %s, %s" % (v(vD + 4 * k), v(vD + 4 * k), v(vD + 4 * k + 2), sp(sN2)))
    e("v_cndmask_b32 %s, %s, %s, %s" % (v(vD + 4 * k + 1), v(vD + 4 * k + 1), v(vD + 4 * k + 3), sp(sN2)))
e("v_cndmask_b32 %s, %s, %s, %s" % (v(vZ), v(vD), v(vD + 4), sp(sN4)))
e("v_cndmask_b32 %s, %s, %s, %s" % (v(vZ + 1), v(vD + 1), v(vD + 5), sp(sN4)))
e("s_mov_b64 exec, %s" % sp(sM8))
e("buffer_store_dwordx4 %s, %s, %s, s%d offen%s" % (v(vZ, 4), v(vPUB), srd(SRD_WS), sOFF, fs))
e("s_mov_b64 exec, -1")
if B1B: e("s_barrier")
stamp(2)
c("q LDS write address: (l>>3)*128 + (l>>4)*16 + (l&7)*4")
vQW = 17
e("v_lshlrev_b32 %s, 7, %s" % (v(vQW), v(vT0)))
e("v_lshl_add_u32 %s, %s, 4, %s" % (v(vQW), v(vQ), v(vQW)))
e("v_lshl_add_u32 %s, %s, 2, %s" % (v(vQW), v(vT1), v(vQW)))
e("v_add_u32 %s, %d, %s" % (v(vQW), QL, v(vQW)))
e("s_lshl_b32 s%d, s%d, 14" % (sOFF2, sG))
e("s_add_u32 s%d, s%d, %d" % (sOFF2, sOFF2, MB1A))
e("s_mov_b32 s%d, 0" % sCNT)
e("s_mov_b32 s%d, 1" % sMODE)
G1 = 80
G1B = 160
QS = 24
def q_loads(soff, G=G1):
    for rb in range(4):
        for k in range(QK):
            e("buffer_load_dwordx4 %s, %s, %s, s%d offen offset:%d sc1" % (v(G + 16 * rb + 4 * k, 4), v(vGA), srd(SRD_WS), soff, 512 * rb + 128 * k))
def q_sum(i, G=G1):
    rb, k = divmod(i, 4)
    if rb == 0: return
    for j in range(2):
        e("v_add_f32 %s, %s, %s" % (v(QS + 2 * k + j), v(G + 4 * k + j) if rb == 1 else v(QS + 2 * k + j), v(G + 16 * rb + 4 * k + j)))
def q_check(G, behind):
    idx = [i for i in range(16) if i % 4 < QK]
    if behind: behind = len(idx)
    for n_, i in enumerate(idx):
        e("s_waitcnt vmcnt(%d)" % (len(idx) - 1 - n_ + behind))
        e("v_cmpx_eq_u64 vcc, %s, %s" % (sp(sTAG), v(G + 4 * i + 2, 2)))
        q_sum(i, G)
    e("s_cmp_eq_u64 exec, -1")
if QD0: e("s_sleep %d" % QD0)
lab("L_qpollA")
if QPIPE:
    q_loads(sOFF2, G1)
    if QD1: e("s_sleep %d" % QD1)
    lab("L_qpollA2")
    q_loads(sOFF2, G1B)
    q_check(G1, 16)
    e("s_cbranch_scc1 L_qok")
    e("s_mov_b64 exec, -1")
    q_loads(sOFF2, G1)
    q_check(G1B, 16)
    e("s_cbranch_scc0 L_qfail")
else:
    q_loads(sOFF2, G1)
    q_check(G1, 0)
    e("s_cbranch_scc0 L_qfail")
lab("L_qok")
for k in range(4): e("v_cvt_pk_bf16_f32 %s, %s, %s" % (v(vD + k), v(QS + 2 * k), v(QS + 2 * k + 1)))
e("v_mov_b32 %s, s%d" % (v(vD + 4), sMODE))
e("v_mov_b32 %s, s%d" % (v(vD + 5), sTAG))
e("v_mov_b32 %s, %d" % (v(vD + 6), MODE))
e("ds_write2_b32 %s, %s, %s offset0:0 offset1:8" % (v(vQW), v(vD), v(vD + 1)))
e("ds_write2_b32 %s, %s, %s offset0:16 offset1:24" % (v(vQW), v(vD + 2), v(vD + 3)))
e("ds_write_b64 %s, %s" % (v(vD + 6), v(vD + 4, 2)))
e("s_waitcnt lgkmcnt(0)")
stamp(6)
e("s_barrier")
if not NOS:
    e("s_load_dword s%d, s[16:17], s%d" % (sXP, sP4))
    e("s_load_dword s%d, s[34:35], 0" % sB2)
if not NOBC:
    c("copy for other dies (always stored; not needed on the fast path)")
    e("s_cmp_lg_u32 s%d, 0" % sCNT)
    e("s_cbranch_scc1 L_qb_done")
    e("s_add_u32 s%d, s%d, %d" % (sOFF, sOFF, MB1B - MB1A))
    e("s_mov_b64 exec, %s" % sp(sM8))
    e("buffer_store_dwordx4 %s, %s, %s, s%d offen sc1" % (v(vZ, 4), v(vPUB), srd(SRD_WS), sOFF))
    e("s_mov_b64 exec, -1")
lab("L_qb_done")
if GLATE:
    for _ in range(4 if PV2 else 2): e("s_barrier")
c("g for own two columns")
vG, vXO = 18, 20
e("v_mov_b32 %s, 0" % v(vT1))
e("ds_read_b128 %s, %s offset:%d" % (v(vF, 4), v(vT1), YB))
e("ds_read_b64 %s, %s offset:%d" % (v(vF + 4, 2), v(vT1), YB + 16))
if NOS:
    e("ds_read_b64 %s, %s offset:%d" % (v(vF + 6, 2), v(vT1), HX + 8))
    e("s_waitcnt lgkmcnt(0)")
    unpack(vXO, vF + 6)
    e("v_lshlrev_b32 %s, 16, %s" % (v(vF + 7), v(vF + 7)))
else:
    e("s_waitcnt lgkmcnt(0)")
    e("s_lshl_b32 s%d, s%d, 16" % (sB2, sB2))
    e("v_mov_b32 %s, s%d" % (v(vT0), sXP))
    unpack(vXO, vT0)
e("v_add_f32 %s, %s, %s" % (v(vG), v(vF), v(vF + 2)))
e("v_add_f32 %s, %s, %s" % (v(vG + 1), v(vF + 1), v(vF + 3)))
e("v_add_f32 %s, %s, %s" % (v(vG), v(vG), v(vF + 4)))
e("v_add_f32 %s, %s, %s" % (v(vG + 1), v(vG + 1), v(vF + 5)))
round2(vG, vT1)
b2op = v(vF + 7) if NOS else "s%d" % sB2
e("v_add_f32 %s, %s, %s" % (v(vG), b2op, v(vG)))
e("v_add_f32 %s, %s, %s" % (v(vG + 1), b2op, v(vG + 1)))
round2(vG, vT1)
e("v_mul_f32 %s, %s, %s" % (v(vF), hx(f2u(-math.log2(math.e))), v(vG)))
e("v_mul_f32 %s, %s, %s" % (v(vF + 1), hx(f2u(-math.log2(math.e))), v(vG + 1)))
e("v_exp_f32 %s, %s" % (v(vF), v(vF)))
e("v_exp_f32 %s, %s" % (v(vF + 1), v(vF + 1)))
e("s_nop 0")
e("v_add_f32 %s, 1.0, %s" % (v(vF), v(vF)))
e("v_add_f32 %s, 1.0, %s" % (v(vF + 1), v(vF + 1)))
e("v_rcp_f32 %s, %s" % (v(vF), v(vF)))
e("v_rcp_f32 %s, %s" % (v(vF + 1), v(vF + 1)))
e("s_nop 0")
e("v_mul_f32 %s, %s, %s" % (v(vG), v(vG), v(vF)))
e("v_mul_f32 %s, %s, %s" % (v(vG + 1), v(vG + 1), v(vF + 1)))
round2(vG, vT1)
c("final gather address: MB3 + (p>>6)*65536 + l*1024 + (p&63)*16")
e("s_lshr_b32 s%d, s%d, 8" % (sOFF3, sP4))
e("s_lshl_b32 s%d, s%d, 16" % (sOFF3, sOFF3))
e("s_and_b32 s%d, s%d, 255" % (sTMP, sP4))
e("s_lshl_b32 s%d, s%d, 2" % (sTMP, sTMP))
e("s_add_u32 s%d, s%d, s%d" % (sOFF3, sOFF3, sTMP))
e("s_add_u32 s%d, s%d, %d" % (sOFF3, sOFF3, MB3))
e("v_lshlrev_b32 %s, 10, %s" % (v(vT1), v(vL)))
e("s_mov_b32 s%d, s%d" % (sT3, sTAG))
mksrd(SRD_A, 36, 1024)
e("v_mov_b32 %s, 0" % v(vT2))
if not GLATE:
    for _ in range(4 if PV2 else 2): e("s_barrier")
G3 = 64
if PRESLEEP: e("s_sleep %d" % PRESLEEP)
e("s_mov_b32 s%d, s%d" % (sT3 + 1, sTAG))
REP = 0
GAP = int(opts.get("gap", 6))
if NREP:
    sPEND = 94
    GR = 64
    for r in range(NREP):
        e("buffer_load_dwordx4 %s, %s, %s, s%d offen sc1" % (v(GR + 4 * r, 4), v(vT1), srd(SRD_WS), sOFF3))
        if r < NREP - 1:
            e("s_add_u32 s%d, s%d, %d" % (sOFF3, sOFF3, 1 << 18))
        if r == 0:
            e("s_mov_b64 %s, -1" % sp(sPEND))
        if r >= 1:
            pass
        LAG = int(opts.get("lag", 2))
        k = r - LAG
        if k >= 0:
            e("s_waitcnt vmcnt(%d)" % LAG)
            e("v_cmpx_eq_u64 vcc, %s, %s" % (sp(sT3), v(GR + 4 * k + 2, 2)))
            e("v_mov_b32 %s, %s" % (v(vF), v(GR + 4 * k)))
            e("v_mov_b32 %s, %s" % (v(vF + 1), v(GR + 4 * k + 1)))
            e("s_andn2_b64 %s, %s, exec" % (sp(sPEND), sp(sPEND)))
            e("s_cbranch_scc0 L_h3ok")
            e("s_mov_b64 exec, %s" % sp(sPEND))
        elif r < NREP - 1:
            e("s_sleep %d" % GAP)
    for k in range(max(0, NREP - LAG), NREP):
        e("s_waitcnt vmcnt(%d)" % (NREP - 1 - k))
        e("v_cmpx_eq_u64 vcc, %s, %s" % (sp(sT3), v(GR + 4 * k + 2, 2)))
        e("v_mov_b32 %s, %s" % (v(vF), v(GR + 4 * k)))
        e("v_mov_b32 %s, %s" % (v(vF + 1), v(GR + 4 * k + 1)))
        e("s_andn2_b64 %s, %s, exec" % (sp(sPEND), sp(sPEND)))
        e("s_cbranch_scc0 L_h3ok")
        e("s_mov_b64 exec, %s" % sp(sPEND))
lab("L_h3loop")
e("buffer_load_dwordx4 %s, %s, %s, s%d offen sc1" % (v(vF, 4), v(vT1), srd(SRD_WS), sOFF3))
e("s_waitcnt vmcnt(0)")
e("v_cmpx_ne_u64 vcc, %s, %s" % (sp(sT3), v(vF + 2, 2)))
e("s_cbranch_execz L_h3ok")
if LSLEEP: e("s_sleep %d" % LSLEEP)
spin_check("L_h3loop")
lab("L_h3ok")
e("s_mov_b64 exec, -1")
e("s_nop 2")
stamp(10)
dpp_reduce("v_add_f32", [vF, vF + 1], ROW + XROW)
round2(vF, vT0)
e("v_mul_f32 %s, %s, %s" % (v(vF), v(vF), v(vG)))
e("v_mul_f32 %s, %s, %s" % (v(vF + 1), v(vF + 1), v(vG + 1)))
round2(vF, vT0)
e("v_add_f32 %s, %s, %s" % (v(vF), v(vF), v(vXO)))
e("v_add_f32 %s, %s, %s" % (v(vF + 1), v(vF + 1), v(vXO + 1)))
e("v_cvt_pk_bf16_f32 %s, %s, %s" % (v(vT0), v(vF), v(vF + 1)))
e("s_mov_b32 exec_lo, 0"); e("s_mov_b32 exec_hi, 0x80000000")
OUTM = opts.get("outm", "").replace("+", " ")
e("buffer_store_dword %s, %s, %s, s%d offen %s" % (v(vT0), v(vT2), srd(SRD_A), sP4, OUTM))
if DBG:
    e("s_cmp_lg_u32 s%d, 0" % sC)
    e("s_cbranch_scc1 L_nodbg")
    e("s_memrealtime %s" % sp(sST))
    mksrd(SRD_B, 38, 256)
    e("s_lshl_b32 s%d, s%d, 2" % (sTMP, sG))
    e("s_waitcnt lgkmcnt(0)")
    e("s_and_b32 s100, s100, 0xfffff")
    e("s_and_b32 s%d, s%d, 0xfffff" % (sST, sST))
    e("v_mov_b32 %s, s100" % v(vF))
    e("v_mov_b32 %s, s%d" % (v(vF + 1), sST))
    e("buffer_store_dword %s, %s, %s, s%d offen" % (v(vF), v(vT2), srd(SRD_B), sTMP))
    e("buffer_store_dword %s, %s, %s, s%d offen offset:32" % (v(vF + 1), v(vT2), srd(SRD_B), sTMP))
    lab("L_nodbg")
e("s_cmp_lg_u32 s2, 0")
e("s_cbranch_scc1 L_fin")
e("buffer_store_dword %s, %s, %s, 0 offen offset:%d %s" % (v(vZ + 2), v(vT2), srd(SRD_WS), EPOCH, opts.get("epm", "sc1").replace("none", "")))
e("s_branch L_fin")
c("---- q gather retry / cross-die fallback ----")
lab("L_qfail")
e("s_mov_b64 exec, -1")
e("s_sub_u32 s%d, s%d, 1" % (sSPIN, sSPIN))
e("s_cbranch_scc1 L_end")
e("s_and_b32 s%d, s%d, 3" % (sTMP, sSPIN))
e("s_cmp_lg_u32 s%d, 0" % sTMP)
e("s_cbranch_scc1 %s" % ("L_qpollA2" if QPIPE else "L_qpollA"))
e("s_cmp_lg_u32 s%d, 0" % sCNT)
e("s_cbranch_scc1 L_qpollB")
e("s_mov_b32 s%d, 1" % sCNT)
e("s_add_u32 s%d, s%d, %d" % (sOFF, sOFF, MB1B - MB1A))
e("s_mov_b64 exec, %s" % sp(sM8))
e("buffer_store_dwordx4 %s, %s, %s, s%d offen sc1" % (v(vZ, 4), v(vPUB), srd(SRD_WS), sOFF))
e("s_mov_b64 exec, -1")
lab("L_qpollB")
e("s_add_u32 s%d, s%d, %d" % (sTMP, sOFF2, MB1B - MB1A))
q_loads(sTMP)
e("s_waitcnt vmcnt(0)")
for i in range(16): e("v_cmpx_eq_u32 vcc, s%d, %s" % (sTAG, v(G1 + 4 * i + 2)))
e("s_cmp_eq_u64 exec, -1")
e("s_mov_b64 exec, -1")
e("s_cbranch_scc0 L_qpollA")
for i in range(16): q_sum(i)
for i in range(16): e("v_cmpx_eq_u32 vcc, s%d, %s" % (sTAG + 1, v(G1 + 4 * i + 3)))
e("s_cmp_eq_u64 exec, -1")
e("s_cselect_b32 s%d, 1, 0" % sMODE)
e("s_mov_b64 exec, -1")
e("s_branch L_qok")

c("======== B waves ========")
lab("L_B1")
BB = int(opts.get("bb", 0))
if B1B and BB and not B1ONLY: e("s_barrier")
for i in range(4): unpack(vD + 2 * i, vXN + i)
sums()
unpack(vD, 33)
def norm2():
    e("v_sub_f32 %s, %s, %s" % (v(vD), v(vD), v(vM)))
    e("v_sub_f32 %s, %s, %s" % (v(vD + 1), v(vD + 1), v(vM)))
    round2(vD, vT0)
    e("v_mul_f32 %s, %s, %s" % (v(vD), v(vD), v(vR)))
    e("v_mul_f32 %s, %s, %s" % (v(vD + 1), v(vD + 1), v(vR)))
    round2(vD, vT0)
norm2()
e("v_mov_b32 %s, %s" % (v(vT0), hx(f2u(1.0 / 512))))
e("v_mul_f32 %s, s%d, %s" % (v(vM), sA, v(vT0)))
e("v_mul_f32 %s, s%d, %s" % (v(vR), sB, v(vT0)))
e("v_fma_f32 %s, -%s, %s, %s" % (v(vR), v(vM), v(vM), v(vR)))
ln_finish(vM, vR)
norm2()
if B1ONLY:
    assert B1B
    e("v_mov_b32 %s, %d" % (v(vT0), HX))
    e("ds_write_b64 %s, %s" % (v(vT0), v(vD, 2)))
    if NOS: e("ds_write2_b32 %s, %s, %s offset0:2 offset1:3" % (v(vT0), v(33), v(34)))
    e("s_waitcnt lgkmcnt(0)")
    lab("L_B2")
else:
    e("s_nop 0")
    e("v_readfirstlane_b32 s%d, %s" % (sH0, v(vD)))
    e("v_readfirstlane_b32 s%d, %s" % (sH1, v(vD + 1)))
C1 = -2.0 * math.log2(math.e) * math.sqrt(2.0 / math.pi)
C2 = C1 * 0.044715
vACC = 60
e("v_mov_b32 %s, 0" % v(vACC))
e("v_mov_b32 %s, 0" % v(vACC + 1))
e("v_mov_b32 %s, %s" % (v(vS1), hx(f2u(C1))))
e("s_mov_b32 s%d, %s" % (sTMP, hx(f2u(C2))))
e("s_mov_b32 s%d, 5" % sCNT)
e("v_mov_b32 %s, %d" % (v(vT0), HX))
if B1B and not (BB and not B1ONLY): e("s_barrier")
if B1ONLY:
    e("ds_read_b64 %s, %s" % (v(vD, 2), v(vT0)))
    e("s_waitcnt lgkmcnt(0)")
    e("v_readfirstlane_b32 s%d, %s" % (sH0, v(vD)))
    e("v_readfirstlane_b32 s%d, %s" % (sH1, v(vD + 1)))
e("s_waitcnt vmcnt(0)")
lab("L_Bloop")
unpack(vF, vW1)
unpack(vF + 2, vB1)
U, T = vD, vD + 4
for col, sh in ((0, sH0), (1, sH1)):
    e("v_mul_f32 %s, s%d, %s" % (v(U + 2 * col), sh, v(vF)))
    e("v_mul_f32 %s, s%d, %s" % (v(U + 2 * col + 1), sh, v(vF + 1)))
for col in range(2): e("v_cvt_pk_bf16_f32 %s, %s, %s" % (v(T + col), v(U + 2 * col), v(U + 2 * col + 1)))
for col in range(2): unpack(U + 2 * col, T + col)
for col in range(2):
    e("v_add_f32 %s, %s, %s" % (v(U + 2 * col), v(U + 2 * col), v(vF + 2)))
    e("v_add_f32 %s, %s, %s" % (v(U + 2 * col + 1), v(U + 2 * col + 1), v(vF + 3)))
for col in range(2): e("v_cvt_pk_bf16_f32 %s, %s, %s" % (v(T + col), v(U + 2 * col), v(U + 2 * col + 1)))
for col in range(2): unpack(U + 2 * col, T + col)
for i in range(4): e("v_mul_f32 %s, %s, %s" % (v(T + i), v(U + i), v(U + i)))
for i in range(4): e("v_fma_f32 %s, %s, s%d, %s" % (v(T + i), v(T + i), sTMP, v(vS1)))
for i in range(4): e("v_mul_f32 %s, %s, %s" % (v(T + i), v(T + i), v(U + i)))
for i in range(4): e("v_exp_f32 %s, %s" % (v(T + i), v(T + i)))
for i in range(4): e("v_add_f32 %s, 1.0, %s" % (v(T + i), v(T + i)))
for i in range(4): e("v_rcp_f32 %s, %s" % (v(T + i), v(T + i)))
for i in range(4): e("v_mul_f32 %s, %s, %s" % (v(T + i), v(T + i), v(U + i)))
for col in range(2): e("v_cvt_pk_bf16_f32 %s, %s, %s" % (v(U + col), v(T + 2 * col), v(T + 2 * col + 1)))
for col in range(2): e("v_dot2c_f32_bf16 %s, %s, %s" % (v(vACC + col), v(U + col), v(vW2)))
for r in (vW1, vB1, vW2):
    for i in range(4): e("v_mov_b32 %s, %s" % (v(r + i), v(r + i + 1)))
e("s_sub_u32 s%d, s%d, 1" % (sCNT, sCNT))
e("s_cmp_lg_u32 s%d, 0" % sCNT)
e("s_cbranch_scc1 L_Bloop")
dpp_reduce("v_add_f32", [vACC, vACC + 1], ROW + XROW)
e("s_lshl_b32 s%d, s%d, 3" % (sTMP, sWAVE))
e("v_mov_b32 %s, s%d" % (v(vT0), sTMP))
e("s_mov_b32 exec_lo, 0"); e("s_mov_b32 exec_hi, 0x80000000")
e("ds_write_b64 %s, %s offset:%d" % (v(vT0), v(vACC, 2), YB - 8))
e("s_mov_b64 exec, -1")
e("s_waitcnt lgkmcnt(0)")
e("s_endpgm")

c("======== A waves ========")
lab("L_A")
WOAT = int(opts.get("woat", 8))
vKO, vP2, vKA, vVA, vWOo, vQB, vPX, vMW, vMR = 7, 8, 9, 10, 11, 12, 13, 14, 15
vZ2 = 16
vONE, vSC, vP, vM, vR = 20, 24, 32, 36, 37
vG2A, vOXW, vOXR, vP3 = 38, 39, 40, 41
vS1, vS2 = 42, 43
vF, vD = 44, 52
vZ3 = 60
vO, vLS, vWOF = 64, 96, 100
vQF = 116
vKF, vVF = 132, 164
vWA = 196
PX = CMB
sOFFW, sOFFG = 90, 91
e("s_sub_u32 s%d, s%d, 4" % (sAW, sWAVE))
c("dma source offset: q'*256 + ((n ^ (q'<<2))*16)")
e("v_lshlrev_b32 %s, 2, %s" % (v(vKO), v(vQ)))
e("v_xor_b32 %s, %s, %s" % (v(vKO), v(vKO), v(vN)))
e("v_lshlrev_b32 %s, 4, %s" % (v(vKO), v(vKO)))
e("v_lshl_add_u32 %s, %s, 8, %s" % (v(vKO), v(vQ), v(vKO)))
e("s_lshl_b32 s%d, s%d, 23" % (sOFF, sG))
e("s_lshl_b32 s%d, s%d, 12" % (sTMP, sC))
e("s_add_u32 s%d, s%d, s%d" % (sOFF, sOFF, sTMP))
e("s_lshl_b32 s%d, s%d, 10" % (sTMP, sAW))
e("s_add_u32 s%d, s%d, s%d" % (sOFF, sOFF, sTMP))
e("s_add_u32 s%d, s%d, %d" % (sOFF, sOFF, 7340032))
e("s_mul_i32 s%d, s%d, %d" % (sM0, sAW, 8 * KP))
e("s_add_u32 s%d, s%d, %d" % (sM0, sM0, KBUF))
e("s_mov_b32 m0, s%d" % sM0)
e("s_mov_b32 s%d, 0x20000" % sSTEP)
e("s_mov_b32 s%d, s%d" % (sOFF3, sOFF))
WF = int(opts.get("wf", 0))
sM0W = 94
def wo_setup():
    if WOF:
        c("wo dma offset q'*1024 + ((n ^ (q'<<2))*16) ; rows 16aw+4i+q'")
        e("v_mul_u32_u24 %s, 768, %s" % (v(vWOo), v(vQ)))
        e("v_add_u32 %s, %s, %s" % (v(vWOo), v(vWOo), v(vKO)))
        e("s_mul_i32 s%d, s%d, %d" % (sM0W, sAW, 4 * VP))
        e("s_add_u32 s%d, s%d, %d" % (sM0W, sM0W, WOB))
    else:
        c("wo dma offset (l>>2)*1024 + (l&3)*16 ; frag address WOB + aw*4096 + (l>>2)*64 + (l&3)*8")
        e("v_lshrrev_b32 %s, 2, %s" % (v(vT2), v(vL)))
        e("v_lshlrev_b32 %s, 10, %s" % (v(vWOo), v(vT2)))
        e("v_lshl_add_u32 %s, %s, 4, %s" % (v(vWOo), v(vT0), v(vWOo)))
        e("v_lshlrev_b32 %s, 6, %s" % (v(vWA), v(vT2)))
        e("v_lshl_add_u32 %s, %s, 3, %s" % (v(vWA), v(vT0), v(vWA)))
        e("s_lshl_b32 s%d, s%d, 12" % (sM0W, sAW))
        e("s_add_u32 s%d, s%d, %d" % (sM0W, sM0W, WOB))
        e("v_add_u32 %s, s%d, %s" % (v(vWA), sM0W, v(vWA)))
    e("s_lshl_b32 s%d, s%d, 19" % (sOFFW, sG))
    e("s_lshr_b32 s%d, s%d, 2" % (sA, sC))
    e("s_lshl_b32 s%d, s%d, 16" % (sTMP, sA))
    e("s_add_u32 s%d, s%d, s%d" % (sOFFW, sOFFW, sTMP))
    e("s_and_b32 s%d, s%d, 3" % (sB, sC))
    e("s_lshl_b32 s%d, s%d, 8" % (sTMP, sB))
    e("s_add_u32 s%d, s%d, s%d" % (sOFFW, sOFFW, sTMP))
    e("s_lshl_b32 s%d, s%d, %d" % (sTMP, sAW, 14 if WOF else 6))
    e("s_add_u32 s%d, s%d, s%d" % (sOFFW, sOFFW, sTMP))
WO15 = int(opts.get("wo15", 0)); WOB2 = int(opts.get("wob2", 0))
wo_next = [0]
def wo_loads(n=4):
    while n > 0 and wo_next[0] < 4:
        i = wo_next[0]
        st = VP if WOF else 1024
        e("buffer_load_dwordx4 %s, %s, s%d offen offset:%d nt lds" % (v(vWOo), srd(SRD_C), sOFFW, st * i))
        if i < 3: e("s_add_u32 s%d, s%d, %d" % (sOFFW, sOFFW, (4096 if WOF else 16384) - st))
        wo_next[0] += 1; n -= 1
if WF:
    wo_setup()
    e("s_mov_b32 m0, s%d" % sM0W)
    e("s_mov_b32 s%d, %s" % (SRD_C + 2, hx(1 << 22)))
    e("s_mov_b32 s%d, 0x00020000" % (SRD_C + 3))
N1 = int(opts.get("n1", 4)) - WF
N1L = int(opts.get("n1l", N1)); THRL = int(opts.get("thrl", THR))
sLATE = 93
if (N1L, THRL) != (N1, THR):
    e("s_lshr_b32 s%d, s%d, 2" % (sLATE, sC))
    e("s_cmp_eq_u32 s%d, 3" % sLATE)
    e("s_cselect_b32 s%d, 1, 0" % sLATE)
    e("s_cselect_b32 s%d, %d, %d" % (sCNT, N1L, N1))
else:
    e("s_mov_b32 s%d, %d" % (sCNT, N1))
e("s_mov_b32 s%d, %s" % (SRD_A + 2, hx(1 << 26)))
e("s_mov_b32 s%d, 0x00020000" % (SRD_A + 3))
if SPF:
    c("code prefetch into L2 through the scalar path: one 64 B sector per wave")
    e("s_getpc_b64 %s" % sp(sPC))
    lab("L_pc2")
    e("s_sub_u32 s%d, s%d, L_pc2-L_start" % (sPC, sPC))
    e("s_subb_u32 s%d, s%d, 0" % (sPC + 1, sPC + 1))
    e("s_lshl_b32 s%d, s%d, 2" % (sTMP, sC))
    e("s_add_u32 s%d, s%d, s%d" % (sTMP, sTMP, sAW))
    e("s_lshl_b32 s%d, s%d, %d" % (sTMP, sTMP, 7 if STAMPS else 6))
    e("s_min_u32 s%d, s%d, L_codeend-L_start-4" % (sTMP, sTMP))
e("s_waitcnt lgkmcnt(0)")
if STAMPS: e("v_mov_b32 %s, s%d" % (v(vSTP), sST))
if SPF: e("s_load_dword s%d, %s, s%d" % (97, sp(sPC), sTMP))
e("s_mov_b64 %s, s[18:19]" % sp(SRD_A))
if WF: e("s_mov_b64 %s, s[24:25]" % sp(SRD_C))
e("s_barrier")
KSLEEP = int(opts.get("ksleep", 0))
if KSLEEP: e("s_sleep %d" % KSLEEP)
def dma_loop(name, sr, soff, step, thr):
    lab(name)
    if thr: e("s_waitcnt vmcnt(%d)" % (thr - 1))
    e("buffer_load_dwordx4 %s, %s, s%d offen nt lds" % (v(vKO), srd(sr), soff))
    e("s_sub_u32 s%d, s%d, 1" % (sCNT, sCNT))
    e("s_add_u32 m0, m0, %d" % step)
    e("s_add_u32 s%d, s%d, s%d" % (soff, soff, sSTEP))
    if XFLIP: e("s_xor_b32 s%d, s%d, 0x%x" % (soff, soff, XFLIP))
    e("s_cmp_lg_u32 s%d, 0" % sCNT)
    e("s_cbranch_scc1 %s" % name)
if WF:
    wo_loads(WF)
    e("s_mov_b32 m0, s%d" % sM0)
    e("s_nop 0")
if N1 > 0: dma_loop("L_kloop", SRD_A, sOFF, KP, 0)
lab("L_Aend1")
c("---- address setup (in the shadow of the first loads) ----")
mksrd(SRD_B, 20, 1 << 26); mksrd(SRD_WS, 40, WS_NREC); mksrd(SRD_C, 24, 1 << 22)
e("v_and_b32 %s, 3, %s" % (v(vT0), v(vN)))
e("v_lshrrev_b32 %s, 2, %s" % (v(vT1), v(vN)))
c("K frag address: KBUF + aw*8KP + (m>>2)*KP + (m&3)*256 + ((q'^(m&3))*64)")
e("v_xor_b32 %s, %s, %s" % (v(vT2), v(vT0), v(vQ)))
e("v_mul_u32_u24 %s, %d, %s" % (v(vKA), KP, v(vT1)))
e("v_lshl_add_u32 %s, %s, 8, %s" % (v(vKA), v(vT0), v(vKA)))
e("v_lshl_add_u32 %s, %s, 6, %s" % (v(vKA), v(vT2), v(vKA)))
e("v_add_u32 %s, s%d, %s" % (v(vKA), sM0, v(vKA)))
c("V frag address: VBUF + q'*VP + r*256 + cc*8 + ((aw ^ r)*64) ; r = n>>2, cc = n&3")
e("v_mul_u32_u24 %s, %d, %s" % (v(vVA), VP, v(vQ)))
e("v_lshl_add_u32 %s, %s, 8, %s" % (v(vVA), v(vT1), v(vVA)))
e("v_lshl_add_u32 %s, %s, 3, %s" % (v(vVA), v(vT0), v(vVA)))
e("v_xor_b32 %s, s%d, %s" % (v(vT2), sAW, v(vT1)))
e("v_lshl_add_u32 %s, %s, 6, %s" % (v(vVA), v(vT2), v(vVA)))
e("v_add_u32 %s, %d, %s" % (v(vVA), VBUF, v(vVA)))
c("q frag address: (n>>2)*272 + q'*64 ; P exchange: q'*64 + (n>>2)*16 ; m/l: (n>>2)*16")
e("v_mul_u32_u24 %s, 272, %s" % (v(vQB), v(vT1)))
e("v_lshl_add_u32 %s, %s, 6, %s" % (v(vQB), v(vQ), v(vQB)))
e("v_lshlrev_b32 %s, 4, %s" % (v(vMR), v(vT1)))
e("v_lshl_add_u32 %s, %s, 6, %s" % (v(vPX), v(vQ), v(vMR)))
e("s_lshl_b32 s%d, s%d, 2" % (sTMP, sAW))
e("s_add_u32 s%d, s%d, %d" % (sTMP, sTMP, ML))
e("v_add_u32 %s, s%d, %s" % (v(vMW), sTMP, v(vMR)))
e("s_lshl_b32 s%d, s%d, 8" % (sTMP, sAW))
e("v_add_u32 %s, s%d, %s" % (v(vWA + 1), sTMP, v(vPX)))
c("hop2 publish: (n>>2)*32768 + (q'>>1)*4096 + (q'&1)*64 + (n&3)*16 ; soffset g<<17 + aw<<13 + c<<7")
e("v_lshlrev_b32 %s, 15, %s" % (v(vP2), v(vT1)))
e("v_lshl_add_u32 %s, %s, 4, %s" % (v(vP2), v(vT0), v(vP2)))
e("v_lshrrev_b32 %s, 1, %s" % (v(vT2), v(vQ)))
e("v_lshl_add_u32 %s, %s, 12, %s" % (v(vP2), v(vT2), v(vP2)))
e("v_and_b32 %s, 1, %s" % (v(vT2), v(vQ)))
e("v_lshl_add_u32 %s, %s, 6, %s" % (v(vP2), v(vT2), v(vP2)))
e("s_lshl_b32 s%d, s%d, 17" % (sOFF2, sG))
e("s_add_u32 s%d, s%d, %d" % (sOFF2, sOFF2, MB2A))
c("hop2 gather region g*32 + (c>>2)*4 + aw")
e("s_and_b32 s%d, s%d, 28" % (sTMP, sC))
e("s_add_u32 s%d, s%d, s%d" % (sTMP, sTMP, sAW))
e("s_lshl_b32 s%d, s%d, 12" % (sTMP, sTMP))
e("s_add_u32 s%d, s%d, s%d" % (sOFFG, sOFF2, sTMP))
e("s_lshl_b32 s%d, s%d, 13" % (sTMP, sAW))
e("s_add_u32 s%d, s%d, s%d" % (sOFF2, sOFF2, sTMP))
e("s_lshl_b32 s%d, s%d, 7" % (sTMP, sC))
e("s_add_u32 s%d, s%d, s%d" % (sOFF2, sOFF2, sTMP))
e("v_lshlrev_b32 %s, 4, %s" % (v(vG2A), v(vL)))
c("hop 3 publish address: (n>>1)*128 + q'*32 + (n&1)*16")
e("v_lshrrev_b32 %s, 1, %s" % (v(vT2), v(vN)))
e("v_lshlrev_b32 %s, 7, %s" % (v(vP3), v(vT2)))
e("v_lshl_add_u32 %s, %s, 5, %s" % (v(vP3), v(vQ), v(vP3)))
e("v_and_b32 %s, 1, %s" % (v(vT2), v(vN)))
e("v_lshl_add_u32 %s, %s, 4, %s" % (v(vP3), v(vT2), v(vP3)))
if not WF: wo_setup()
else:
    e("s_lshr_b32 s%d, s%d, 2" % (sA, sC))
    e("s_and_b32 s%d, s%d, 3" % (sB, sC))
sOFFP3 = 92
e("s_lshl_b32 s%d, s%d, 16" % (sOFFP3, sB))
e("s_lshl_b32 s%d, s%d, 13" % (sTMP, sG))
e("s_add_u32 s%d, s%d, s%d" % (sOFFP3, sOFFP3, sTMP))
e("s_lshl_b32 s%d, s%d, 10" % (sTMP, sA))
e("s_add_u32 s%d, s%d, s%d" % (sOFFP3, sOFFP3, sTMP))
e("s_lshl_b32 s%d, s%d, 8" % (sTMP, sAW))
e("s_add_u32 s%d, s%d, s%d" % (sOFFP3, sOFFP3, sTMP))
e("s_add_u32 s%d, s%d, %d" % (sOFFP3, sOFFP3, MB3))
c("OX write: aw*32 + (l&7)*4 + (l>>5)*2 ; read q'*16")
e("v_lshlrev_b32 %s, 4, %s" % (v(vOXR), v(vQ)))
e("v_and_b32 %s, 7, %s" % (v(vT2), v(vL)))
e("s_lshl_b32 s%d, s%d, 5" % (sTMP, sAW))
e("v_lshl_add_u32 %s, %s, 2, s%d" % (v(vOXW), v(vT2), sTMP))
e("v_lshrrev_b32 %s, 5, %s" % (v(vT2), v(vL)))
e("v_lshl_add_u32 %s, %s, 1, %s" % (v(vOXW), v(vT2), v(vOXW)))
for i in range(4): e("v_mov_b32 %s, 0x3f803f80" % v(vONE + i))
mask(sMASKQ, 0x000F000F); mask(sN1, 0xAAAAAAAA); mask(sN2, 0xCCCCCCCC); mask(sMASK0, 0x000000FF); mask(sN4, 0x11111111)
e("s_mov_b32 s%d, %s" % (sA, hx(f2u(128 ** -0.5))))
e("s_mov_b32 s%d, %s" % (sB, hx(f2u(math.log2(math.e)))))
e("v_mov_b32 %s, %d" % (v(vT0), MODE))
PW3 = int(opts.get("pw3", 0))
if PW3:
    for i in range(4): e("v_mov_b32 %s, 0" % v(vZ3 + i))
    e("s_mov_b64 exec, %s" % sp(sMASKQ))
    e("buffer_store_dwordx4 %s, %s, %s, s%d offen sc1" % (v(vZ3, 4), v(vP3), srd(SRD_WS), sOFFP3))
    e("s_mov_b64 exec, -1")
if B1B: e("s_barrier")
def rest(tag, n1, thr):
    if n1 < 8:
        e("s_mov_b32 s%d, %d" % (sCNT, 8 - n1))
        dma_loop("L_kloop2" + tag, SRD_A, sOFF, KP, thr)
    e("s_mul_i32 s%d, s%d, %d" % (sTMP, sAW, 8 * VP))
    e("s_add_u32 m0, s%d, %d" % (sTMP, VBUF))
    e("s_mov_b32 s%d, 8" % sCNT)
    dma_loop("L_vloop" + tag, SRD_B, sOFF3, VP, int(opts.get("thrv", thr)))
if (N1L, THRL) != (N1, THR):
    e("s_cmp_lg_u32 s%d, 0" % sLATE)
    e("s_cbranch_scc1 L_late")
    rest("e", N1, THR)
    e("s_branch L_issued")
    lab("L_late")
    rest("l", N1L, THRL)
    lab("L_issued")
else:
    rest("", N1, THR)
e("s_mov_b32 m0, s%d" % sM0W)
stamp(15)
e("s_waitcnt vmcnt(8) lgkmcnt(0)")
for T in range(2):
    for t in range(4):
        e("ds_read_b128 %s, %s offset:%d" % (v(vKF + 16 * T + 4 * t, 4), v(vKA), 4 * KP * T + 16 * t))
wo_loads(WO15)
e("s_barrier")
for t in range(4):
    e("ds_read_b128 %s, %s offset:%d" % (v(vQF + 4 * t, 4), v(vQB), QL + 16 * t))
e("ds_read_b64 %s, %s" % (v(vZ3 + 2, 2), v(vT0)))
wo_loads(WOB2)
WOC = int(opts.get("woc", -1))
sWOD = 95
if WOC >= 0:
    e("s_getreg_b32 s%d, hwreg(HW_REG_IB_STS, 0, 4)" % sWOD)
    e("s_cmp_gt_u32 s%d, %d" % (sWOD, WOC))
    e("s_cbranch_scc1 L_wolater")
    wo_loads()
    wo_next[0] = 0
    lab("L_wolater")
for t in range(4):
    e("s_waitcnt lgkmcnt(%d)" % (4 - t))
    for T in range(2):
        e("v_mfma_f32_16x16x32_bf16 %s, %s, %s, %s" % (v(vSC + 4 * T, 4), v(vKF + 16 * T + 4 * t, 4), v(vQF + 4 * t, 4), v(vSC + 4 * T, 4) if t else "0"))
e("s_waitcnt lgkmcnt(0)")
e("v_readfirstlane_b32 s%d, %s" % (sMODE, v(vZ3 + 2)))
e("v_readfirstlane_b32 s%d, %s" % (sTAG, v(vZ3 + 3)))
e("v_mov_b32 %s, %s" % (v(vZ3 + 2), v(vZ3 + 3)))
e("v_mov_b32 %s, %s" % (v(vZ2 + 3), v(vZ3 + 3)))
e("s_nop 2")
for i in range(4): e("v_cvt_pk_bf16_f32 %s, %s, %s" % (v(vP + i), v(vSC + 2 * i), v(vSC + 2 * i + 1)))
for i in range(4): unpack(vSC + 2 * i, vP + i)
for i in range(8): e("v_mul_f32 %s, s%d, %s" % (v(vSC + i), sA, v(vSC + i)))
for i in range(4): e("v_cvt_pk_bf16_f32 %s, %s, %s" % (v(vP + i), v(vSC + 2 * i), v(vSC + 2 * i + 1)))
for i in range(4): unpack(vSC + 2 * i, vP + i)
e("v_max3_f32 %s, %s, %s, %s" % (v(vM), v(vSC), v(vSC + 1), v(vSC + 2)))
e("v_max3_f32 %s, %s, %s, %s" % (v(vR), v(vSC + 3), v(vSC + 4), v(vSC + 5)))
e("v_max3_f32 %s, %s, %s, %s" % (v(vM), v(vM), v(vSC + 6), v(vSC + 7)))
e("v_max_f32 %s, %s, %s" % (v(vM), v(vM), v(vR)))
e("v_mov_b32 %s, %s" % (v(vR), v(vM)))
e("s_nop 1")
e("v_permlane32_swap_b32 %s, %s" % (v(vM), v(vR)))
e("v_max_f32 %s, %s, %s" % (v(vM), v(vM), v(vR)))
e("v_mov_b32 %s, %s" % (v(vR), v(vM)))
e("s_nop 1")
e("v_permlane16_swap_b32 %s, %s" % (v(vM), v(vR)))
e("v_max_f32 %s, %s, %s" % (v(vM), v(vM), v(vR)))
if PV2:
    e("v_mul_f32 %s, s%d, %s" % (v(vM), sB, v(vM)))
    c("workgroup max per head")
    e("ds_write_b32 %s, %s" % (v(vMW), v(vM)))
    for i in range(8): e("v_mul_f32 %s, s%d, %s" % (v(vSC + i), sB, v(vSC + i)))
    e("s_cmp_eq_u32 s%d, 0" % sMODE)
    e("s_cselect_b32 s%d, %d, 0" % (sSTEP, MB2B - MB2A))
    e("s_add_u32 s%d, s%d, s%d" % (sOFF2, sOFF2, sSTEP))
    e("s_add_u32 s%d, s%d, s%d" % (sOFFG, sOFFG, sSTEP))
    e("s_waitcnt lgkmcnt(0)")
    e("s_barrier")
    e("ds_read_b128 %s, %s offset:%d" % (v(vF, 4), v(vMR), ML))
    e("s_waitcnt lgkmcnt(0)")
    e("v_max3_f32 %s, %s, %s, %s" % (v(vM), v(vF), v(vF + 1), v(vF + 2)))
    e("v_max_f32 %s, %s, %s" % (v(vM), v(vM), v(vF + 3)))
    for i in range(8): e("v_sub_f32 %s, %s, %s" % (v(vSC + i), v(vSC + i), v(vM)))
    for i in range(8): e("v_exp_f32 %s, %s" % (v(vSC + i), v(vSC + i)))
    e("s_nop 0")
    for i in range(4): e("v_cvt_pk_bf16_f32 %s, %s, %s" % (v(vP + i), v(vSC + 2 * i), v(vSC + 2 * i + 1)))
    e("s_mov_b64 exec, %s" % sp(sN4))
    e("ds_write_b128 %s, %s offset:%d" % (v(vWA + 1), v(vP, 4), PX))
    e("s_mov_b64 exec, -1")
    stamp(12)
    if WOAT < 8: e("s_waitcnt vmcnt(%d)" % WOAT)
    if WOC >= 0:
        e("s_cmp_gt_u32 s%d, %d" % (sWOD, WOC))
        e("s_cbranch_scc0 L_wodone")
    wo_loads(4 - WOL)
    if WOC >= 0: lab("L_wodone")
    e("s_waitcnt lgkmcnt(0)")
    e("s_barrier")
    for s_ in range(4):
        e("ds_read_b128 %s, %s offset:%d" % (v(vQF + 4 * s_, 4), v(vPX), PX + 256 * s_))
    for s_ in range(4):
        e("s_waitcnt lgkmcnt(%d)" % (3 - s_))
        e("v_mfma_f32_16x16x32_bf16 %s, %s, %s, %s" % (v(vLS, 4), v(vONE, 4), v(vQF + 4 * s_, 4), v(vLS, 4) if s_ else "0"))
    e("s_waitcnt vmcnt(%d)" % (4 - WF - WOL))
    stamp(5)
    e("s_barrier")
    for s_ in range(4):
        for dbl in range(2):
            for h in range(2):
                e("ds_read_b64_tr_b16 %s, %s offset:%d" % (v(vVF + 8 * s_ + 4 * dbl + 2 * h, 2), v(vVA), 8 * VP * s_ + 4 * VP * h + 32 * dbl))
    e("v_rcp_f32 %s, %s" % (v(vS1), v(vLS)))
    e("v_log_f32 %s, %s" % (v(vS2), v(vLS)))
    for s_ in range(4):
        for dbl in range(2):
            e("s_waitcnt lgkmcnt(%d)" % (14 - 4 * s_ - 2 * dbl))
            e("v_mfma_f32_16x16x32_bf16 %s, %s, %s, %s" % (v(vO + 4 * dbl, 4), v(vVF + 8 * s_ + 4 * dbl, 4), v(vQF + 4 * s_, 4), v(vO + 4 * dbl, 4) if s_ else "0"))
    e("v_add_f32 %s, %s, %s" % (v(vZ2 + 2), v(vM), v(vS2)))
    e("s_nop 4")
    o = vO
    e("v_cndmask_b32 %s, %s, %s, %s" % (v(vD), v(o), v(o + 2), sp(sN1)))
    e("v_cndmask_b32 %s, %s, %s, %s" % (v(vD + 1), v(o + 1), v(o + 3), sp(sN1)))
    e("v_cndmask_b32 %s, %s, %s, %s" % (v(vD + 2), v(o + 4), v(o + 6), sp(sN1)))
    e("v_cndmask_b32 %s, %s, %s, %s" % (v(vD + 3), v(o + 5), v(o + 7), sp(sN1)))
    e("v_cndmask_b32 %s, %s, %s, %s" % (v(vD), v(vD), v(vD + 2), sp(sN2)))
    e("v_cndmask_b32 %s, %s, %s, %s" % (v(vD + 1), v(vD + 1), v(vD + 3), sp(sN2)))
    e("v_mul_f32 %s, %s, %s" % (v(vZ2), v(vD), v(vS1)))
    e("v_mul_f32 %s, %s, %s" % (v(vZ2 + 1), v(vD + 1), v(vS1)))
else:
    e("v_mul_f32 %s, s%d, %s" % (v(vM), sB, v(vM)))
    for i in range(8): e("v_fma_f32 %s, %s, s%d, -%s" % (v(vSC + i), v(vSC + i), sB, v(vM)))
    for i in range(8): e("v_exp_f32 %s, %s" % (v(vSC + i), v(vSC + i)))
    e("s_nop 0")
    for i in range(4): e("v_cvt_pk_bf16_f32 %s, %s, %s" % (v(vP + i), v(vSC + 2 * i), v(vSC + 2 * i + 1)))
    c("slow mode: use the write-through mailbox")
    e("s_cmp_eq_u32 s%d, 0" % sMODE)
    e("s_cselect_b32 s%d, %d, 0" % (sSTEP, MB2B - MB2A))
    e("v_mfma_f32_16x16x32_bf16 %s, %s, %s, 0" % (v(vLS, 4), v(vONE, 4), v(vP, 4)))
    e("s_mov_b64 exec, %s" % sp(sN4))
    e("ds_write_b128 %s, %s offset:%d" % (v(vWA + 1), v(vP, 4), PX))
    e("s_add_u32 s%d, s%d, s%d" % (sOFF2, sOFF2, sSTEP))
    e("s_add_u32 s%d, s%d, s%d" % (sOFFG, sOFFG, sSTEP))
    e("s_nop 3")
    e("ds_write2_b32 %s, %s, %s offset0:0 offset1:16" % (v(vMW), v(vM), v(vLS)))
    e("s_mov_b64 exec, -1")
    stamp(12)
    if WOAT < 8: e("s_waitcnt vmcnt(%d)" % WOAT)
    wo_loads()
    e("s_waitcnt vmcnt(4) lgkmcnt(0)")
    stamp(5)
    e("s_barrier")
    e("ds_read_b128 %s, %s offset:%d" % (v(vF, 4), v(vMR), ML))
    e("ds_read_b128 %s, %s offset:%d" % (v(vF + 4, 4), v(vMR), ML + 64))
    for s_ in range(4):
        e("ds_read_b128 %s, %s offset:%d" % (v(vQF + 4 * s_, 4), v(vPX), PX + 256 * s_))
        for dbl in range(2):
            for h in range(2):
                e("ds_read_b64_tr_b16 %s, %s offset:%d" % (v(vVF + 8 * s_ + 4 * dbl + 2 * h, 2), v(vVA), 8 * VP * s_ + 4 * VP * h + 32 * dbl))
    e("s_waitcnt lgkmcnt(15)")
    e("v_max3_f32 %s, %s, %s, %s" % (v(vM), v(vF), v(vF + 1), v(vF + 2)))
    def pv(s_):
        for dbl in range(2):
            e("v_mfma_f32_16x16x32_bf16 %s, %s, %s, 0" % (v(vO + 8 * s_ + 4 * dbl, 4), v(vVF + 8 * s_ + 4 * dbl, 4), v(vQF + 4 * s_, 4)))
    def sel(s_):
        o = vO + 8 * s_
        e("v_cndmask_b32 %s, %s, %s, %s" % (v(o), v(o), v(o + 2), sp(sN1)))
        e("v_cndmask_b32 %s, %s, %s, %s" % (v(o + 1), v(o + 1), v(o + 3), sp(sN1)))
        e("v_cndmask_b32 %s, %s, %s, %s" % (v(o + 4), v(o + 4), v(o + 6), sp(sN1)))
        e("v_cndmask_b32 %s, %s, %s, %s" % (v(o + 5), v(o + 5), v(o + 7), sp(sN1)))
        e("v_cndmask_b32 %s, %s, %s, %s" % (v(o), v(o), v(o + 4), sp(sN2)))
        e("v_cndmask_b32 %s, %s, %s, %s" % (v(o + 1), v(o + 1), v(o + 5), sp(sN2)))
        if s_ == 0:
            e("v_mul_f32 %s, %s, %s" % (v(vZ2), v(vF), v(o)))
            e("v_mul_f32 %s, %s, %s" % (v(vZ2 + 1), v(vF), v(o + 1)))
        else:
            e("v_fmac_f32 %s, %s, %s" % (v(vZ2), v(vF + s_), v(o)))
            e("v_fmac_f32 %s, %s, %s" % (v(vZ2 + 1), v(vF + s_), v(o + 1)))
    pv(0)
    e("v_max_f32 %s, %s, %s" % (v(vM), v(vM), v(vF + 3)))
    for w in range(4): e("v_sub_f32 %s, %s, %s" % (v(vF + w), v(vF + w), v(vM)))
    for w in range(4): e("v_exp_f32 %s, %s" % (v(vF + w), v(vF + w)))
    e("s_waitcnt lgkmcnt(10)")
    pv(1)
    e("v_mul_f32 %s, %s, %s" % (v(vR), v(vF), v(vF + 4)))
    for w in range(1, 4): e("v_fmac_f32 %s, %s, %s" % (v(vR), v(vF + w), v(vF + 4 + w)))
    e("v_rcp_f32 %s, %s" % (v(vS1), v(vR)))
    e("v_log_f32 %s, %s" % (v(vS2), v(vR)))
    e("s_waitcnt lgkmcnt(5)")
    pv(2)
    for w in range(4): e("v_mul_f32 %s, %s, %s" % (v(vF + w), v(vF + w), v(vS1)))
    e("v_add_f32 %s, %s, %s" % (v(vZ2 + 2), v(vM), v(vS2)))
    e("s_waitcnt lgkmcnt(0)")
    pv(3)
    sel(0); sel(1); sel(2); sel(3)
e("s_cmp_eq_u32 s%d, 0" % sMODE)
e("s_cbranch_scc1 L_p2slow")
e("buffer_store_dwordx4 %s, %s, %s, s%d offen%s" % (v(vZ2, 4), v(vP2), srd(SRD_WS), sOFF2, fs))
lab("L_p2done")
stamp(7)
G2 = vKF
def h2_loads():
    for i in range(4):
        e("buffer_load_dwordx4 %s, %s, %s, s%d offen offset:%d sc1" % (v(G2 + 4 * i, 4), v(vG2A), srd(SRD_WS), sOFFG, 1024 * i))
h2_loads()
if WOL:
    wo_loads()
    e("s_waitcnt vmcnt(%d)" % WOL)
    e("s_branch L_h2chk2")
else:
    e("s_branch L_h2chk")
lab("L_h2retry")
e("s_not_b64 exec, exec")
h2_loads()
e("s_mov_b64 exec, -1")
lab("L_h2chk")
e("s_waitcnt vmcnt(0)")
lab("L_h2chk2")
for i in range(4):
    e("v_cmpx_eq_u32 vcc, s%d, %s" % (sTAG, v(G2 + 4 * i + 3)))
e("s_cmp_eq_u64 exec, -1")
e("s_cbranch_scc1 L_h2ok")
spin_check("L_h2retry")
lab("L_h2ok")
stamp(8)
A_ = [G2 + 4 * i + 2 for i in range(4)]
e("v_max3_f32 %s, %s, %s, %s" % (v(vM), v(A_[0]), v(A_[1]), v(A_[2])))
e("v_max_f32 %s, %s, %s" % (v(vM), v(vM), v(A_[3])))
e("v_mov_b32 %s, %s" % (v(vR), v(vM)))
e("s_nop 1")
e("v_permlane32_swap_b32 %s, %s" % (v(vM), v(vR)))
e("v_max_f32 %s, %s, %s" % (v(vM), v(vM), v(vR)))
e("v_mov_b32 %s, %s" % (v(vR), v(vM)))
e("s_nop 1")
e("v_permlane16_swap_b32 %s, %s" % (v(vM), v(vR)))
e("v_max_f32 %s, %s, %s" % (v(vM), v(vM), v(vR)))
dpp_reduce("v_max_f32", [vM], ROW[:1])
for i in range(4): e("v_sub_f32 %s, %s, %s" % (v(vF + i), v(A_[i]), v(vM)))
for i in range(4): e("v_exp_f32 %s, %s" % (v(vF + i), v(vF + i)))
Y0, Y1, W, W2 = vD, vD + 1, vD + 2, vD + 3
e("v_mul_f32 %s, %s, %s" % (v(Y0), v(vF), v(G2)))
e("v_mul_f32 %s, %s, %s" % (v(Y1), v(vF), v(G2 + 1)))
e("v_add_f32 %s, %s, %s" % (v(W), v(vF), v(vF + 1)))
e("v_add_f32 %s, %s, %s" % (v(W2), v(vF + 2), v(vF + 3)))
for i in range(1, 4):
    e("v_fmac_f32 %s, %s, %s" % (v(Y0), v(vF + i), v(G2 + 4 * i)))
    e("v_fmac_f32 %s, %s, %s" % (v(Y1), v(vF + i), v(G2 + 4 * i + 1)))
    if i == 1:
        e("v_add_f32 %s, %s, %s" % (v(W), v(W), v(W2)))
        e("v_mov_b32 %s, %s" % (v(W2), v(W)))
e("v_permlane32_swap_b32 %s, %s" % (v(W), v(W2)))
e("s_nop 0")
e("v_permlane32_swap_b32 %s, %s" % (v(Y0), v(Y1)))
e("v_add_f32 %s, %s, %s" % (v(W), v(W), v(W2)))
e("v_add_f32 %s, %s, %s" % (v(Y0), v(Y0), v(Y1)))
e("s_nop 1")
e("v_permlane16_swap_b32 %s, %s" % (v(Y0), v(W)))
e("v_add_f32 %s, %s, %s" % (v(Y0), v(Y0), v(W)))
dpp_reduce("v_add_f32", [Y0], ROW[:1])
e("v_rcp_f32 %s, %s" % (v(W), v(Y0)))
e("s_nop 1")
e("v_permlane16_swap_b32 %s, %s" % (v(W), v(W2)))
e("v_mul_f32 %s, %s, %s" % (v(Y0), v(Y0), v(W2)))
e("v_cvt_pk_bf16_f32 %s, %s, %s" % (v(Y0), v(Y0), v(Y0)))
e("s_mov_b64 exec, %s" % sp(sMASK0))
e("ds_write_b16 %s, %s offset:%d" % (v(vOXW), v(Y0), OX))
e("s_mov_b64 exec, -1")
e("s_waitcnt vmcnt(0) lgkmcnt(0)")
e("s_barrier")
if WOF:
    for s in range(2):
        e("ds_read_b128 %s, %s offset:%d" % (v(vF + 4 * s, 4), v(vOXR), OX + 64 * s))
        for b in range(2):
            for h in range(2):
                e("ds_read_b64_tr_b16 %s, %s offset:%d" % (v(vWOF + 8 * b + 4 * s + 2 * h, 2), v(vVA), WOB - VBUF + (8 * s + 4 * h) * VP + 32 * b))
    for s in range(2):
        for b in range(2):
            e("s_waitcnt lgkmcnt(%d)" % (7 - 5 * s - 2 * b))
            e("v_mfma_f32_16x16x32_bf16 %s, %s, %s, %s" % (v(vSC + 4 * b, 4), v(vWOF + 8 * b + 4 * s, 4), v(vF + 4 * s, 4), v(vSC + 4 * b, 4) if s else "0"))
else:
    e("ds_read_b128 %s, %s offset:%d" % (v(vF, 4), v(vOXR), OX))
    e("ds_read_b128 %s, %s offset:%d" % (v(vF + 4, 4), v(vOXR), OX + 64))
    e("s_waitcnt lgkmcnt(1)")
    for b in range(2):
        e("v_mfma_f32_16x16x32_bf16 %s, %s, %s, 0" % (v(vSC + 4 * b, 4), v(vWOF + 8 * b, 4), v(vF, 4)))
    e("s_waitcnt lgkmcnt(0)")
    for b in range(2):
        e("v_mfma_f32_16x16x32_bf16 %s, %s, %s, %s" % (v(vSC + 4 * b, 4), v(vWOF + 8 * b + 4, 4), v(vF + 4, 4), v(vSC + 4 * b, 4)))
e("s_nop 6")
e("v_cndmask_b32 %s, %s, %s, %s" % (v(vD), v(vSC), v(vSC + 2), sp(sN1)))
e("v_cndmask_b32 %s, %s, %s, %s" % (v(vD + 1), v(vSC + 1), v(vSC + 3), sp(sN1)))
e("v_cndmask_b32 %s, %s, %s, %s" % (v(vD + 2), v(vSC + 4), v(vSC + 6), sp(sN1)))
e("v_cndmask_b32 %s, %s, %s, %s" % (v(vD + 3), v(vSC + 5), v(vSC + 7), sp(sN1)))
e("v_cndmask_b32 %s, %s, %s, %s" % (v(vZ3), v(vD), v(vD + 2), sp(sN2)))
e("v_cndmask_b32 %s, %s, %s, %s" % (v(vZ3 + 1), v(vD + 1), v(vD + 3), sp(sN2)))
e("s_mov_b64 exec, %s" % sp(sMASKQ))
e("buffer_store_dwordx4 %s, %s, %s, s%d offen %s" % (v(vZ3, 4), v(vP3), srd(SRD_WS), sOFFP3, H3ST))
for r in range(1, NREP):
    e("s_add_u32 s%d, s%d, %d" % (sOFFP3, sOFFP3, 1 << 18))
    e("buffer_store_dwordx4 %s, %s, %s, s%d offen %s" % (v(vZ3, 4), v(vP3), srd(SRD_WS), sOFFP3, H3ST))
e("s_mov_b64 exec, -1")
stamp(9)
lab("L_fin")
if PAD:
    if "padx" in opts:
        e("s_getreg_b32 s%d, hwreg(HW_REG_XCC_ID, 0, 4)" % sTMP)
        e("s_cmp_lg_u32 s%d, %d" % (sTMP, int(opts["padx"])))
        e("s_cbranch_scc1 L_fin2")
    e("s_add_u32 s100, s100, %d" % (PAD * 100))
    lab("L_pad")
    e("s_memrealtime %s" % sp(sST))
    e("s_waitcnt lgkmcnt(0)")
    e("s_sub_u32 s%d, s%d, s100" % (sST, sST))
    e("s_cmp_lt_i32 s%d, 0" % sST)
    e("s_cbranch_scc1 L_pad")
lab("L_fin2")
if STAMPS:
    e("s_mov_b64 exec, -1")
    e("s_waitcnt vmcnt(0)")
    stamp(11)
    e("s_lshl_b32 s%d, s2, 4" % sTMP)
    e("s_add_u32 s%d, s%d, s%d" % (sTMP, sTMP, sWAVE))
    e("s_lshl_b32 s%d, s%d, 6" % (sTMP, sTMP))
    e("s_add_u32 s%d, s%d, %d" % (sTMP, sTMP, STAMP_OFF))
    e("v_mov_b32 %s, 0" % v(vT1))
    e("s_mov_b64 exec, 1")
    for i in range(4):
        e("buffer_store_dwordx4 %s, %s, %s, s%d offen offset:%d" % (v(vSTP + 4 * i, 4), v(vT1), srd(SRD_WS), sTMP, 16 * i))
lab("L_end")
e("s_endpgm")
lab("L_p2slow")
e("buffer_store_dwordx4 %s, %s, %s, s%d offen sc1" % (v(vZ2, 4), v(vP2), srd(SRD_WS), sOFF2))
e("s_branch L_p2done")
lab("L_codeend")

if int(opts.get("reord", 1)):
    ia = L.index("L_A:")
    ib = L.index("L_Aend1:")
    blk = L[ia:ib] + ["    s_branch L_A2"]
    L[ia:ib] = ["L_A2:"]
    ic = L.index("L_B0:")
    L[ic:ic] = blk
hdr = open("cdna_kernels/%s.s.ref" % NAME).read().split("\n")
head = []
for ln in hdr:
    if ln.startswith("; @launch"):
        head.append("; @launch grid=(256,1,1) block=(512,1,1) lds=%d" % LDS_TOTAL)
    elif ln.startswith(";"):
        head.append(ln)
    else:
        break
out = "\n".join(head) + "\n"
out += DOC
out += '.amdgcn_target "amdgcn-amd-amdhsa--gfx950"\n.text\n.globl %s_kernel\n.p2align 8\n.type %s_kernel,@function\n%s_kernel:\n' % (NAME, NAME, NAME)
out += "\n".join(L) + "\n"
out += '''.section .rodata,"a"
.p2align 6
.amdhsa_kernel %s_kernel
  .amdhsa_next_free_vgpr %d
  .amdhsa_next_free_sgpr 102
  .amdhsa_accum_offset %d
  .amdhsa_group_segment_fixed_size 0
  .amdhsa_kernarg_size 104
  .amdhsa_user_sgpr_count 2
  .amdhsa_user_sgpr_kernarg_segment_ptr 1
  .amdhsa_system_sgpr_workgroup_id_x 1
  .amdhsa_float_denorm_mode_32 3
.end_amdhsa_kernel
''' % (NAME, NVGPR, NVGPR)
open(sys.argv[1], "w").write(out)
```

```python
import sys, struct, math
NAME = "recurrent_scan__sliding_block_cached__mixer_token_mlp__decode"
opts = dict(a.split("=") if "=" in a else (a, "1") for a in sys.argv[2:])
STAMPS = int(opts.get("stamps", 0))
PAD = int(opts.get("pad", 0))
PREFETCH = int(opts.get("pf", 0))
PREWRITE = int(opts.get("pw", 1))
QK = int(opts.get("qk", 4))
WOL = int(opts.get("wol", 0))
NOS = int(opts.get("nos", 1))
NOBC = int(opts.get("nobc", 1))
PV2 = int(opts.get("pv2", 1))
GLATE = int(opts.get("glate", 1))
SPF = int(opts.get("spf", 0))
DPF = int(opts.get("dpf", 0))
EPF = int(opts.get("epf", 1))
XFLIP = int(opts.get("xflip", "0"), 0)
WOF = int(opts.get("wof", 1))
XLIN = int(opts.get("xlin", 1))
B1ONLY = int(opts.get("b1only", 1))

SM = " nt" if int(opts.get("smnt", 0)) else ""
PFM = " nt" if int(opts.get("pfnt", 0)) else ""
PFLATE = int(opts.get("pflate", 1))
B1B = int(opts.get("b1b", 1))
FASTST = opts.get("fastst", "sc0")
FORCE_SLOW = int(opts.get("slow", 0))
NPIPE = int(opts.get("npipe", 4))
SLEEP = int(opts.get("sleep", 3))
THR = int(opts.get("thr", 6))
LSLEEP = int(opts.get("lsleep", 0))
QWAIT = int(opts.get("qwait", -1))
QD0 = int(opts.get("qd0", 13))
QD1 = int(opts.get("qd1", 8))
QPIPE = int(opts.get("qpipe", 0))
H3LD = opts.get("h3ld", "sc1").replace("+", " ")
H3ST = opts.get("h3st", "sc1").replace("+", " ")
ATOM = int(opts.get("atom", 0))
PRESLEEP = int(opts.get("presleep", 18))

L = []
DOC = """; ---------------------------------------------------------------------------------------------
; Hand-offs go through d_ws as 16-byte granules that carry a per-launch tag (derived from an epoch word in
; one die do group hand-offs stay in that die's L2, otherwise write-through (sc1) mailboxes are used.
; ---------------------------------------------------------------------------------------------
"""
def e(s): L.append("    " + s)
def lab(s): L.append(s + ":")
def c(s): L.append("    ; " + s)
def f2u(x): return struct.unpack("<I", struct.pack("<f", x))[0]
def hx(x): return "0x%08x" % (x & 0xffffffff)

XN = 0
QL = 1024
MODE = QL + 1088
HX = MODE + 16
OX = 2176
ML = 2304
YB = 2432
CMB = 2560
KBUF = 12288
KP, VP = 1040, 1056
VBUF = KBUF + 32 * KP
WQB = VBUF + 32 * VP
WOB = WQB + 16384
LDS_TOTAL = WOB + 16896
EPOCH = 0
MB1A = 1 << 17
MB1B = MB1A + (1 << 17)
MB3 = MB1B + (1 << 17)
MB2A = 1 << 20
MB2B = 2 << 20
NREP = int(opts.get("nrep", 0))
if NREP: MB3 = 3 << 20
WS_USED = (3 << 20) + NREP * (1 << 18)
STAMP_OFF = 32 << 20
WS_NREC = (33 << 20) if STAMPS else WS_USED

sWAVE, sG, sC, sP4, sPIV, sA, sB = 3, 4, 5, 6, 7, 8, 9
sTAG = 10
sSPIN, sTMP, sM0, sOFF = 12, 13, 14, 15
sE, sXP = 42, 43
SRD_A, SRD_B, SRD_C, SRD_D, SRD_WS = 44, 48, 52, 56, 60
sB2, sCNT, sAW, sMODE = 64, 65, 66, 67
sMASKQ, sMASK0, sN1, sN2, sN4, sM8 = 68, 70, 72, 74, 76, 78
sH0, sH1 = 80, 81
sT3 = 82
sOFF2, sOFF3, sSTEP = 84, 85, 86
sPC = 88
sST = 98
def srd(b): return "s[%d:%d]" % (b, b + 3)
def sp(b): return "s[%d:%d]" % (b, b + 1)
def v(a, n=1): return "v%d" % a if n == 1 else "v[%d:%d]" % (a, a + n - 1)

vL, vQ, vN, vT0, vT1, vT2 = 1, 2, 3, 4, 5, 6
vSTP = 240
NVGPR = int(opts.get("nv", 256))

def stamp(i):
    if not STAMPS: return
    e("s_waitcnt lgkmcnt(0)")
    e("s_memrealtime %s" % sp(sST))
    e("s_waitcnt lgkmcnt(0)")
    e("v_mov_b32 %s, s%d" % (v(vSTP + i), sST))

def dpp_reduce(op, regs, steps):
    for s in steps:
        pad = 2 - (len(regs) - 1)
        if pad > 0: e("s_nop %d" % (pad - 1))
        for r in regs:
            e("%s_dpp %s, %s, %s %s" % (op, v(r), v(r), v(r), s))
ROW = ["row_ror:8 row_mask:0xf bank_mask:0xf", "row_ror:4 row_mask:0xf bank_mask:0xf",
       "row_ror:2 row_mask:0xf bank_mask:0xf", "row_ror:1 row_mask:0xf bank_mask:0xf"]
XROW = ["row_bcast:15 row_mask:0xa bank_mask:0xf", "row_bcast:31 row_mask:0xc bank_mask:0xf"]
def unpack(dst, src):
    e("v_lshlrev_b32 %s, 16, %s" % (v(dst), v(src)))
    e("v_and_b32 %s, 0xffff0000, %s" % (v(dst + 1), v(src)))
def round1(r):
    e("v_cvt_pk_bf16_f32 %s, %s, %s" % (v(r), v(r), v(r)))
    e("v_and_b32 %s, 0xffff0000, %s" % (v(r), v(r)))
def round2(r, tmp):
    e("v_cvt_pk_bf16_f32 %s, %s, %s" % (v(tmp), v(r), v(r + 1)))
    unpack(r, tmp)
def ln_finish(vmean, vvar):
    e("v_max_f32 %s, 0, %s" % (v(vvar), v(vvar)))
    round1(vmean)
    round1(vvar)
    e("v_add_f32 %s, %s, %s" % (v(vvar), hx(f2u(1e-5)), v(vvar)))
    round1(vvar)
    e("v_sqrt_f32 %s, %s" % (v(vvar), v(vvar)))
    e("s_nop 0")
    round1(vvar)
    e("v_rcp_f32 %s, %s" % (v(vvar), v(vvar)))
    e("s_nop 0")
def spin_check(retry_label):
    e("s_sub_u32 s%d, s%d, 1" % (sSPIN, sSPIN))
    e("s_cbranch_scc0 %s" % retry_label)
    e("s_branch L_end")
def mksrd(b, p, n):
    e("s_mov_b64 %s, %s" % (sp(b), sp(p)))
    e("s_mov_b32 s%d, %s" % (b + 2, hx(n)))
    e("s_mov_b32 s%d, 0x00020000" % (b + 3))
def mask(r, m):
    e("s_mov_b32 s%d, %s" % (r, hx(m)))
    e("s_mov_b32 s%d, %s" % (r + 1, hx(m)))
def mktag():
    e("s_mul_i32 s%d, s%d, 0x9E3779B1" % (sTAG, sE))
    e("s_add_u32 s%d, s%d, 0x632BE5AB" % (sTAG, sTAG))
fs = (" " + FASTST) if FASTST else ""

lab("L_start")
if EPF: e("s_getpc_b64 %s" % sp(sPC))
e("s_cmp_ge_u32 s2, 256")
e("s_cbranch_scc1 L_end")
e("s_load_dwordx16 s[16:31], s[0:1], 0")
e("s_load_dwordx8 s[32:39], s[0:1], 64")
e("s_load_dwordx2 s[40:41], s[0:1], 96")
if EPF:
    NL = 4 if STAMPS else 2
    c("pull the kernel's code into L2: every workgroup fetches %d of its 128 B lines" % NL)
    e("s_lshr_b32 s%d, s2, 3" % sTMP)
    e("s_lshl_b32 s%d, s%d, %d" % (sTMP, sTMP, 9 if STAMPS else 8))
    e("v_lshl_add_u32 %s, v0, 7, s%d" % (v(35), sTMP))
    e("v_cmp_gt_u32 vcc, %d, v0" % NL)
    e("v_min_u32 %s, L_codeend-L_start-8, %s" % (v(35), v(35)))
    e("s_and_saveexec_b64 s[90:91], vcc")
    e("s_cbranch_execz L_noepf")
    e("global_load_dword %s, %s, %s" % (v(35), v(35), sp(sPC)))
    lab("L_noepf")
    e("s_mov_b64 exec, -1")
if STAMPS:
    e("s_memrealtime %s" % sp(sST))
    for i in range(16): e("v_mov_b32 %s, 0" % v(vSTP + i))
    if EPF: e("v_mov_b32 %s, s%d" % (v(vSTP + 14), sPC))
DBG = int(opts.get("dbg", 0))
if PAD or DBG: e("s_memrealtime s[100:101]")
e("v_lshrrev_b32 %s, 6, v0" % v(vT0))
e("v_and_b32 %s, 63, v0" % v(vL))
e("v_readfirstlane_b32 s%d, %s" % (sWAVE, v(vT0)))
e("v_lshrrev_b32 %s, 4, %s" % (v(vQ), v(vL)))
e("v_and_b32 %s, 15, %s" % (v(vN), v(vL)))
e("s_and_b32 s%d, s2, 7" % sG)
e("s_lshr_b32 s%d, s2, 3" % sC)
e("s_mov_b32 s%d, 0x40000" % sSPIN)
e("s_cmp_ge_u32 s%d, 4" % sWAVE)
e("s_cbranch_scc1 L_A")
vX = 8
if XLIN:
    e("v_lshlrev_b32 %s, 4, %s" % (v(vT0), v(vL)))
else:
    c("x offset: (l>>2)*64 + (l&3)*8")
    e("v_lshrrev_b32 %s, 2, %s" % (v(vT0), v(vL)))
    e("v_and_b32 %s, 3, %s" % (v(vT1), v(vL)))
    e("v_lshlrev_b32 %s, 6, %s" % (v(vT0), v(vT0)))
    e("v_lshl_add_u32 %s, %s, 3, %s" % (v(vT0), v(vT1), v(vT0)))
def xload():
    if XLIN:
        e("global_load_dwordx4 %s, %s, s[16:17]" % (v(vX, 4), v(vT0)))
    else:
        e("global_load_dwordx2 %s, %s, s[16:17]" % (v(vX, 2), v(vT0)))
        e("global_load_dwordx2 %s, %s, s[16:17] offset:32" % (v(vX + 2, 2), v(vT0)))
e("s_lshl_b32 s%d, s%d, 5" % (sP4, sG))
e("s_add_u32 s%d, s%d, s%d" % (sP4, sP4, sC))
e("s_lshl_b32 s%d, s%d, 2" % (sP4, sP4))
e("s_cmp_lg_u32 s%d, 0" % sWAVE)
e("s_cbranch_scc1 L_B0")
c("---- Q wave: issue x and wq loads ----")
e("s_setprio 3")
e("v_lshrrev_b32 %s, 3, %s" % (v(vT1), v(vL)))
e("v_lshlrev_b32 %s, 1, %s" % (v(vT2), v(vQ)))
e("v_xor_b32 %s, %s, %s" % (v(vT2), v(vT2), v(vL)))
e("v_and_b32 %s, 7, %s" % (v(vT2), v(vT2)))
e("v_lshlrev_b32 %s, 13, %s" % (v(vT1), v(vT1)))
e("v_lshl_add_u32 %s, %s, 4, %s" % (v(vT1), v(vT2), v(vT1)))
e("s_and_b32 s%d, s%d, 3" % (sOFF, sC))
e("s_lshl_b32 s%d, s%d, 20" % (sOFF, sOFF))
e("s_lshl_b32 s%d, s%d, 10" % (sTMP, sG))
e("s_add_u32 s%d, s%d, s%d" % (sOFF, sOFF, sTMP))
e("s_lshr_b32 s%d, s%d, 2" % (sTMP, sC))
e("s_lshl_b32 s%d, s%d, 7" % (sTMP, sTMP))
e("s_add_u32 s%d, s%d, s%d" % (sOFF, sOFF, sTMP))
e("s_mov_b32 m0, %d" % WQB)
e("s_mov_b32 s%d, %s" % (SRD_B + 2, hx(1 << 22)))
e("s_mov_b32 s%d, 0x00020000" % (SRD_B + 3))
WQ4 = int(opts.get("wq4", 0))
e("s_mov_b32 s%d, %d" % (sCNT, 12 if WQ4 else 16))
if WQ4: e("s_mov_b32 s%d, %d" % (sSTEP, 65536 - 1024))
vEP = 22
e("v_mov_b32 %s, 0" % v(vEP))
e("s_waitcnt lgkmcnt(0)")
if STAMPS: e("v_mov_b32 %s, s%d" % (v(vSTP), sST))
e("s_mov_b64 %s, s[22:23]" % sp(SRD_B))
xload()
e("global_load_dword %s, %s, s[40:41] offset:%d sc1%s" % (v(vEP), v(vEP), EPOCH, SM))
lab("L_wqloop")
if WQ4:
    for i in range(4):
        e("buffer_load_dwordx4 %s, %s, s%d offen offset:%d nt lds" % (v(vT1), srd(SRD_B), sOFF, 1024 * i))
        if i < 3: e("s_add_u32 s%d, s%d, s%d" % (sOFF, sOFF, sSTEP))
    e("s_add_u32 m0, m0, 4096")
    e("s_add_u32 s%d, s%d, %d" % (sOFF, sOFF, 65536 + 3072))
    e("s_sub_u32 s%d, s%d, 4" % (sCNT, sCNT))
    e("s_cbranch_scc0 L_wqloop")
else:
    e("buffer_load_dwordx4 %s, %s, s%d offen nt lds" % (v(vT1), srd(SRD_B), sOFF))
    e("s_sub_u32 s%d, s%d, 1" % (sCNT, sCNT))
    e("s_add_u32 m0, m0, 1024")
    e("s_add_u32 s%d, s%d, 65536" % (sOFF, sOFF))
    e("s_cmp_lg_u32 s%d, 0" % sCNT)
    e("s_cbranch_scc1 L_wqloop")
if QWAIT >= 0: e("s_waitcnt vmcnt(%d)" % QWAIT)
e("s_barrier")
mksrd(SRD_WS, 40, WS_NREC)
c("publish address: (n>>1)*128 + q'*32 + (n&1)*16 ; record (g*32+c)*512")
vPUB = 7
e("v_lshrrev_b32 %s, 1, %s" % (v(vT0), v(vN)))
e("v_lshlrev_b32 %s, 7, %s" % (v(vT0), v(vT0)))
e("v_lshl_add_u32 %s, %s, 5, %s" % (v(vT0), v(vQ), v(vT0)))
e("v_and_b32 %s, 1, %s" % (v(vT1), v(vN)))
e("v_lshl_add_u32 %s, %s, 4, %s" % (v(vPUB), v(vT1), v(vT0)))
e("s_lshl_b32 s%d, s%d, 7" % (sOFF, sP4))
e("s_add_u32 s%d, s%d, %d" % (sOFF, sOFF, MB1A))
mask(sM8, 0x00FF00FF)
vXW = 23
if XLIN:
    e("v_lshrrev_b32 %s, 2, %s" % (v(vXW), v(vL)))
    e("v_lshlrev_b32 %s, 6, %s" % (v(vXW), v(vXW)))
    e("v_lshl_add_u32 %s, %s, 5, %s" % (v(vXW), v(vT1), v(vXW)))
    e("v_bfe_u32 %s, %s, 1, 1" % (v(vT0), v(vL)))
    e("v_lshl_add_u32 %s, %s, 3, %s" % (v(vXW), v(vT0), v(vXW)))
vZ = 12
if PREWRITE:
    for i in range(4): e("v_mov_b32 %s, 0" % v(vZ + i))
    e("s_mov_b64 exec, %s" % sp(sM8))
    e("buffer_store_dwordx4 %s, %s, %s, s%d offen%s" % (v(vZ, 4), v(vPUB), srd(SRD_WS), sOFF, fs))
    e("s_mov_b64 exec, -1")
NQ = 1 if PREWRITE else 0
e("s_waitcnt vmcnt(%d)" % (16 + NQ))
e("s_branch L_ln1")
lab("L_B0")
c("---- B waves: issue x, w1, b1, w2 loads ----")
vW1, vB1, vW2 = 16, 22, 28
if DPF:
    c("distributed code prefetch into L2: this workgroup pulls a few lines (needs no kernarg)")
    e("s_cmp_lg_u32 s%d, 1" % sWAVE)
    e("s_cbranch_scc1 L_nodpf")
    e("s_getpc_b64 %s" % sp(sPC))
    lab("L_pc3")
    NL = 4 if STAMPS else 2 * DPF
    e("s_sub_u32 s%d, s%d, L_pc3-L_start" % (sPC, sPC))
    e("s_subb_u32 s%d, s%d, 0" % (sPC + 1, sPC + 1))
    e("s_mul_i32 s%d, s%d, %d" % (sTMP, sC, NL * 128))
    if not STAMPS: e("s_and_b32 s%d, s%d, 8191" % (sTMP, sTMP))
    e("v_lshl_add_u32 %s, %s, 7, s%d" % (v(35), v(vL), sTMP))
    e("v_min_u32 %s, L_codeend-L_start-4, %s" % (v(35), v(35)))
    e("s_mov_b64 exec, %d" % ((1 << NL) - 1))
    e("global_load_dword %s, %s, %s" % (v(35), v(35), sp(sPC)))
    e("s_mov_b64 exec, -1")
    lab("L_nodpf")
BW = int(opts.get("bw", 1))
e("v_subrev_u32 %s, 64, v0" % v(vT1))
if BW:
    e("v_lshlrev_b32 %s, 2, %s" % (v(vT2), v(vT1)))
    e("v_lshlrev_b32 %s, 4, %s" % (v(vT1), v(vT1)))
else:
    e("v_mul_u32_u24 %s, 20, %s" % (v(vT1), v(vT1)))
e("v_mov_b32 %s, s%d" % (v(33), sP4))
if NOS: e("v_mov_b32 %s, 0" % v(34))
e("s_waitcnt lgkmcnt(0)")
if STAMPS: e("v_mov_b32 %s, s%d" % (v(vSTP), sST))
if B1ONLY:
    e("s_cmp_lg_u32 s%d, 1" % sWAVE)
    e("s_cbranch_scc1 L_nox")
xload()
e("global_load_dword %s, %s, s[16:17]" % (v(33), v(33)))
if NOS:
    assert B1ONLY
    e("global_load_ushort %s, %s, s[34:35]" % (v(34), v(34)))
if B1ONLY: lab("L_nox")
for b, p, r in ((SRD_A, 28, vW1), (SRD_B, 30, vB1), (SRD_C, 32, vW2)):
    mksrd(b, p, 3584)
mksrd(SRD_WS, 40, WS_NREC)
e("v_mov_b32 %s, 0" % v(vPUB))
PR3 = int(opts.get("epr3", 0))
if PR3:
    e("s_cmp_lg_u32 s%d, 2" % sWAVE)
    e("s_cbranch_scc1 L_nopr3")
    if PR3 == 1:
        e("s_lshr_b32 s%d, s%d, 8" % (sA, sP4))
        e("s_lshl_b32 s%d, s%d, 16" % (sA, sA))
        e("s_and_b32 s%d, s%d, 0xe0" % (sB, sP4))
        e("s_lshl_b32 s%d, s%d, 2" % (sB, sB))
        e("s_add_u32 s%d, s%d, s%d" % (sA, sA, sB))
        e("s_and_b32 s%d, s%d, 0x1c" % (sB, sP4))
        e("s_lshl_b32 s%d, s%d, 11" % (sB, sB))
        e("s_add_u32 s%d, s%d, s%d" % (sA, sA, sB))
        e("v_lshlrev_b32 %s, 10, %s" % (v(34), v(vL)))
    else:
        e("s_and_b32 s%d, s%d, 3" % (sA, sC))
        e("s_lshl_b32 s%d, s%d, 16" % (sA, sA))
        e("s_lshl_b32 s%d, s%d, 13" % (sB, sG))
        e("s_add_u32 s%d, s%d, s%d" % (sA, sA, sB))
        e("s_lshr_b32 s%d, s%d, 2" % (sB, sC))
        e("s_lshl_b32 s%d, s%d, 10" % (sB, sB))
        e("s_add_u32 s%d, s%d, s%d" % (sA, sA, sB))
        e("v_and_b32 %s, 7, %s" % (v(34), v(vL)))
        e("v_lshlrev_b32 %s, 7, %s" % (v(34), v(34)))
        e("v_lshrrev_b32 %s, 3, %s" % (v(35), v(vL)))
        e("v_lshl_add_u32 %s, %s, 18, %s" % (v(34), v(35), v(34)))
    e("s_add_u32 s%d, s%d, %d" % (sA, sA, MB3))
    e("s_mov_b32 exec_lo, 0x%x" % (((1 << (8 * max(1, NREP))) - 1) & 0xffffffff))
    e("s_mov_b32 exec_hi, 0x%x" % (((1 << (8 * max(1, NREP))) - 1) >> 32))
    e("buffer_load_dword %s, %s, %s, s%d offen %s" % (v(34), v(34), srd(SRD_WS), sA, opts.get("pr3m", "sc1").replace("none", "")))
    e("s_mov_b64 exec, -1")
    lab("L_nopr3")
if BW == 2: e("s_barrier")
for b, p, r in ((SRD_A, 28, vW1), (SRD_B, 30, vB1), (SRD_C, 32, vW2)):
    if int(opts.get("nob", 0)): continue
    e("buffer_load_dwordx4 %s, %s, %s, 0 offen" % (v(r, 4), v(vT1), srd(b)))
    if BW: e("buffer_load_dword %s, %s, %s, 0 offen offset:3072" % (v(r + 4), v(vT2), srd(b)))
    else: e("buffer_load_dword %s, %s, %s, 0 offen offset:16" % (v(r + 4), v(vT1), srd(b)))
if BW != 2: e("s_barrier")
if B1ONLY:
    e("s_cmp_lg_u32 s%d, 1" % sWAVE)
    e("s_cbranch_scc1 L_B2")
if PREFETCH:
    c("pull the kernel's code into L2 (first two workgroups of each group, wave 1)")
    e("s_cmp_ge_u32 s%d, 2" % sC)
    e("s_cbranch_scc1 L_nopf")
    e("s_cmp_lg_u32 s%d, 1" % sWAVE)
    e("s_cbranch_scc1 L_nopf")
    e("s_getpc_b64 %s" % sp(sPC))
    lab("L_pc")
    e("s_sub_u32 s%d, s%d, L_pc-L_start" % (sPC, sPC))
    e("s_subb_u32 s%d, s%d, 0" % (sPC + 1, sPC + 1))
    e("v_lshlrev_b32 %s, 7, %s" % (v(vT0), v(vL)))
    e("v_min_u32 %s, L_codeend-L_start-4, %s" % (v(vT1), v(vT0)))
    e("global_load_dword %s, %s, %s" % (v(34), v(vT1), sp(sPC)))
    if STAMPS:
        e("v_add_u32 %s, 8192, %s" % (v(vT0), v(vT0)))
        e("v_min_u32 %s, L_codeend-L_start-4, %s" % (v(vT1), v(vT0)))
        e("global_load_dword %s, %s, %s" % (v(35), v(vT1), sp(sPC)))
    e("s_waitcnt vmcnt(%d)" % (8 if STAMPS else 7))
    e("s_branch L_ln1")
    lab("L_nopf")
e("s_waitcnt vmcnt(%d)" % (0 if int(opts.get("nob", 0)) else 6))
lab("L_ln1")
c("---- LN1 (Q and B waves) ----")
stamp(1)
vF, vD, vS1, vS2, vM, vR, vXN = 36, 44, 52, 53, 54, 55, 56
for i in range(4): unpack(vF + 2 * i, vX + i)
e("v_readfirstlane_b32 s%d, %s" % (sPIV, v(vF)))
e("s_nop 1")
for i in range(8): e("v_subrev_f32 %s, s%d, %s" % (v(vD + i), sPIV, v(vF + i)))
def sums():
    e("v_add_f32 %s, %s, %s" % (v(vS1), v(vD), v(vD + 1)))
    e("v_mul_f32 %s, %s, %s" % (v(vS2), v(vD), v(vD)))
    e("v_fmac_f32 %s, %s, %s" % (v(vS2), v(vD + 1), v(vD + 1)))
    for i in range(2, 8):
        e("v_add_f32 %s, %s, %s" % (v(vS1), v(vS1), v(vD + i)))
        e("v_fmac_f32 %s, %s, %s" % (v(vS2), v(vD + i), v(vD + i)))
    dpp_reduce("v_add_f32", [vS1, vS2], ROW + XROW)
    e("s_nop 0")
    e("v_readlane_b32 s%d, %s, 63" % (sA, v(vS1)))
    e("v_readlane_b32 s%d, %s, 63" % (sB, v(vS2)))
sums()
e("v_mov_b32 %s, %s" % (v(vT0), hx(f2u(1.0 / 512))))
e("s_nop 0")
e("v_mul_f32 %s, s%d, %s" % (v(vM), sA, v(vT0)))
e("v_mul_f32 %s, s%d, %s" % (v(vR), sB, v(vT0)))
e("v_fma_f32 %s, -%s, %s, %s" % (v(vR), v(vM), v(vM), v(vR)))
e("v_add_f32 %s, s%d, %s" % (v(vM), sPIV, v(vM)))
ln_finish(vM, vR)
for i in range(8): e("v_sub_f32 %s, %s, %s" % (v(vD + i), v(vF + i), v(vM)))
for i in range(4): e("v_cvt_pk_bf16_f32 %s, %s, %s" % (v(vXN + i), v(vD + 2 * i), v(vD + 2 * i + 1)))
for i in range(4): unpack(vD + 2 * i, vXN + i)
for i in range(8): e("v_mul_f32 %s, %s, %s" % (v(vD + i), v(vD + i), v(vR)))
for i in range(4): e("v_cvt_pk_bf16_f32 %s, %s, %s" % (v(vXN + i), v(vD + 2 * i), v(vD + 2 * i + 1)))
e("s_cmp_lg_u32 s%d, 0" % sWAVE)
e("s_cbranch_scc1 L_B1")
c("======== Q wave: partial q (128 rows x 64 columns) ========")
vBF = 64
vAF = 80
vQA = 144
vAD = 60
if XLIN:
    assert XN == 0
    e("ds_write2_b64 %s, %s, %s offset0:0 offset1:2" % (v(vXW), v(vXN, 2), v(vXN + 2, 2)))
else:
    e("v_lshlrev_b32 %s, 4, %s" % (v(vT0), v(vL)))
    e("ds_write_b128 %s, %s offset:%d" % (v(vT0), v(vXN, 4), XN))
e("s_and_b32 s%d, s%d, 3" % (sTMP, sC))
e("s_lshl_b32 s%d, s%d, 8" % (sTMP, sTMP))
e("v_lshl_add_u32 %s, %s, 4, s%d" % (v(vT0), v(vQ), sTMP))
e("v_lshrrev_b32 %s, 2, %s" % (v(vT1), v(vL)))
e("v_lshlrev_b32 %s, 7, %s" % (v(vT1), v(vT1)))
e("v_bfe_u32 %s, %s, 3, 2" % (v(vT2), v(vL)))
e("v_lshl_add_u32 %s, %s, 5, %s" % (v(vT1), v(vT2), v(vT1)))
e("v_and_b32 %s, 3, %s" % (v(vT2), v(vL)))
e("v_lshl_add_u32 %s, %s, 3, %s" % (v(vT1), v(vT2), v(vT1)))
e("v_add_u32 %s, %d, %s" % (v(vAD), WQB, v(vT1)))
assert WQB % 256 == 0
for b in range(1, 4): e("v_xor_b32 %s, %d, %s" % (v(vAD + b), b << 5, v(vAD)))
e("s_waitcnt lgkmcnt(0)")
for s in range(4):
    e("ds_read_b128 %s, %s offset:%d" % (v(vBF + 4 * s, 4), v(vT0), XN + 64 * s))
e("v_readfirstlane_b32 s%d, %s" % (sE, v(vEP)))
mktag()
e("s_getreg_b32 s%d, hwreg(HW_REG_XCC_ID, 0, 4)" % (sTAG + 1))
if FORCE_SLOW: e("s_add_u32 s%d, s%d, s2" % (sTAG + 1, sTAG + 1))
e("v_mov_b32 %s, s%d" % (v(vZ + 2), sTAG))
e("v_mov_b32 %s, s%d" % (v(vZ + 3), sTAG + 1))
mask(sN1, 0xAAAAAAAA); mask(sN2, 0xCCCCCCCC); mask(sN4, 0xF0F0F0F0)
def q_reads(s):
    e("s_waitcnt vmcnt(%d)" % (12 - 4 * s + NQ))
    for b in range(4):
        for h in range(2):
            e("ds_read_b64_tr_b16 %s, %s offset:%d" % (v(vAF + 16 * s + 4 * b + 2 * h, 2), v(vAD + b), 4096 * s + 2048 * h))
def q_mfma(s, behind):
    for b in range(4):
        e("s_waitcnt lgkmcnt(%d)" % (6 - 2 * b + behind))
        e("v_mfma_f32_16x16x32_bf16 %s, %s, %s, %s" % (v(vQA + 4 * b, 4), v(vAF + 16 * s + 4 * b, 4), v(vBF + 4 * s, 4), v(vQA + 4 * b, 4) if s else "0"))
q_reads(0)
for s in range(4):
    if s < 3: q_reads(s + 1)
    q_mfma(s, 8 if s < 3 else 0)
c("gather address: (l>>3)*2048 + (l&7)*16")
vGA = 16
e("v_lshrrev_b32 %s, 3, %s" % (v(vT0), v(vL)))
e("v_and_b32 %s, 7, %s" % (v(vT1), v(vL)))
e("v_lshlrev_b32 %s, 11, %s" % (v(vGA), v(vT0)))
e("v_lshl_add_u32 %s, %s, 4, %s" % (v(vGA), v(vT1), v(vGA)))
e("s_nop 1")
for b in range(4):
    e("v_cndmask_b32 %s, %s, %s, %s" % (v(vD + 2 * b), v(vQA + 4 * b), v(vQA + 4 * b + 2), sp(sN1)))
    e("v_cndmask_b32 %s, %s, %s, %s" % (v(vD + 2 * b + 1), v(vQA + 4 * b + 1), v(vQA + 4 * b + 3), sp(sN1)))
for k in range(2):
    e("v_cndmask_b32 %s, %s, %s, %s" % (v(vD + 4 * k), v(vD + 4 * k), v(vD + 4 * k + 2), sp(sN2)))
    e("v_cndmask_b32 %s, %s, %s, %s" % (v(vD + 4 * k + 1), v(vD + 4 * k + 1), v(vD + 4 * k + 3), sp(sN2)))
e("v_cndmask_b32 %s, %s, %s, %s" % (v(vZ), v(vD), v(vD + 4), sp(sN4)))
e("v_cndmask_b32 %s, %s, %s, %s" % (v(vZ + 1), v(vD + 1), v(vD + 5), sp(sN4)))
e("s_mov_b64 exec, %s" % sp(sM8))
e("buffer_store_dwordx4 %s, %s, %s, s%d offen%s" % (v(vZ, 4), v(vPUB), srd(SRD_WS), sOFF, fs))
e("s_mov_b64 exec, -1")
if B1B: e("s_barrier")
stamp(2)
c("q LDS write address: (l>>3)*128 + (l>>4)*16 + (l&7)*4")
vQW = 17
e("v_lshlrev_b32 %s, 7, %s" % (v(vQW), v(vT0)))
e("v_lshl_add_u32 %s, %s, 4, %s" % (v(vQW), v(vQ), v(vQW)))
e("v_lshl_add_u32 %s, %s, 2, %s" % (v(vQW), v(vT1), v(vQW)))
e("v_add_u32 %s, %d, %s" % (v(vQW), QL, v(vQW)))
e("s_lshl_b32 s%d, s%d, 14" % (sOFF2, sG))
e("s_add_u32 s%d, s%d, %d" % (sOFF2, sOFF2, MB1A))
e("s_mov_b32 s%d, 0" % sCNT)
e("s_mov_b32 s%d, 1" % sMODE)
G1 = 80
G1B = 160
QS = 24
def q_loads(soff, G=G1):
    for rb in range(4):
        for k in range(QK):
            e("buffer_load_dwordx4 %s, %s, %s, s%d offen offset:%d sc1" % (v(G + 16 * rb + 4 * k, 4), v(vGA), srd(SRD_WS), soff, 512 * rb + 128 * k))
def q_sum(i, G=G1):
    rb, k = divmod(i, 4)
    if rb == 0: return
    for j in range(2):
        e("v_add_f32 %s, %s, %s" % (v(QS + 2 * k + j), v(G + 4 * k + j) if rb == 1 else v(QS + 2 * k + j), v(G + 16 * rb + 4 * k + j)))
def q_check(G, behind):
    idx = [i for i in range(16) if i % 4 < QK]
    if behind: behind = len(idx)
    for n_, i in enumerate(idx):
        e("s_waitcnt vmcnt(%d)" % (len(idx) - 1 - n_ + behind))
        e("v_cmpx_eq_u64 vcc, %s, %s" % (sp(sTAG), v(G + 4 * i + 2, 2)))
        q_sum(i, G)
    e("s_cmp_eq_u64 exec, -1")
if int(opts.get("noq", 0)): e("s_branch L_qok")
c("poll back-off: a gather issued before the other members have published is wasted and, as this CU's")
c("vector memory path returns in order behind the K/V stream, a retry costs a whole round trip")
if QD0: e("s_sleep %d" % QD0)
lab("L_qpollA")
if QPIPE:
    q_loads(sOFF2, G1)
    if QD1: e("s_sleep %d" % QD1)
    lab("L_qpollA2")
    q_loads(sOFF2, G1B)
    q_check(G1, 16)
    e("s_cbranch_scc1 L_qok")
    e("s_mov_b64 exec, -1")
    q_loads(sOFF2, G1)
    q_check(G1B, 16)
    e("s_cbranch_scc0 L_qfail")
else:
    q_loads(sOFF2, G1)
    q_check(G1, 0)
    e("s_cbranch_scc0 L_qfail")
lab("L_qok")
for k in range(4): e("v_cvt_pk_bf16_f32 %s, %s, %s" % (v(vD + k), v(QS + 2 * k), v(QS + 2 * k + 1)))
e("v_mov_b32 %s, s%d" % (v(vD + 4), sMODE))
e("v_mov_b32 %s, s%d" % (v(vD + 5), sTAG))
e("v_mov_b32 %s, %d" % (v(vD + 6), MODE))
e("ds_write2_b32 %s, %s, %s offset0:0 offset1:8" % (v(vQW), v(vD), v(vD + 1)))
e("ds_write2_b32 %s, %s, %s offset0:16 offset1:24" % (v(vQW), v(vD + 2), v(vD + 3)))
e("ds_write_b64 %s, %s" % (v(vD + 6), v(vD + 4, 2)))
e("s_waitcnt lgkmcnt(0)")
stamp(6)
e("s_barrier")
if not NOS:
    e("s_load_dword s%d, s[16:17], s%d" % (sXP, sP4))
    e("s_load_dword s%d, s[34:35], 0" % sB2)
if not NOBC:
    c("copy for other dies (always stored; not needed on the fast path)")
    e("s_cmp_lg_u32 s%d, 0" % sCNT)
    e("s_cbranch_scc1 L_qb_done")
    e("s_add_u32 s%d, s%d, %d" % (sOFF, sOFF, MB1B - MB1A))
    e("s_mov_b64 exec, %s" % sp(sM8))
    e("buffer_store_dwordx4 %s, %s, %s, s%d offen sc1" % (v(vZ, 4), v(vPUB), srd(SRD_WS), sOFF))
    e("s_mov_b64 exec, -1")
lab("L_qb_done")
if GLATE:
    for _ in range(4 if PV2 else 2): e("s_barrier")
c("g for own two columns")
vG, vXO = 18, 20
e("v_mov_b32 %s, 0" % v(vT1))
e("ds_read_b128 %s, %s offset:%d" % (v(vF, 4), v(vT1), YB))
e("ds_read_b64 %s, %s offset:%d" % (v(vF + 4, 2), v(vT1), YB + 16))
if NOS:
    e("ds_read_b64 %s, %s offset:%d" % (v(vF + 6, 2), v(vT1), HX + 8))
    e("s_waitcnt lgkmcnt(0)")
    unpack(vXO, vF + 6)
    e("v_lshlrev_b32 %s, 16, %s" % (v(vF + 7), v(vF + 7)))
else:
    e("s_waitcnt lgkmcnt(0)")
    e("s_lshl_b32 s%d, s%d, 16" % (sB2, sB2))
    e("v_mov_b32 %s, s%d" % (v(vT0), sXP))
    unpack(vXO, vT0)
e("v_add_f32 %s, %s, %s" % (v(vG), v(vF), v(vF + 2)))
e("v_add_f32 %s, %s, %s" % (v(vG + 1), v(vF + 1), v(vF + 3)))
e("v_add_f32 %s, %s, %s" % (v(vG), v(vG), v(vF + 4)))
e("v_add_f32 %s, %s, %s" % (v(vG + 1), v(vG + 1), v(vF + 5)))
round2(vG, vT1)
b2op = v(vF + 7) if NOS else "s%d" % sB2
e("v_add_f32 %s, %s, %s" % (v(vG), b2op, v(vG)))
e("v_add_f32 %s, %s, %s" % (v(vG + 1), b2op, v(vG + 1)))
round2(vG, vT1)
e("v_mul_f32 %s, %s, %s" % (v(vF), hx(f2u(-math.log2(math.e))), v(vG)))
e("v_mul_f32 %s, %s, %s" % (v(vF + 1), hx(f2u(-math.log2(math.e))), v(vG + 1)))
e("v_exp_f32 %s, %s" % (v(vF), v(vF)))
e("v_exp_f32 %s, %s" % (v(vF + 1), v(vF + 1)))
e("s_nop 0")
e("v_add_f32 %s, 1.0, %s" % (v(vF), v(vF)))
e("v_add_f32 %s, 1.0, %s" % (v(vF + 1), v(vF + 1)))
e("v_rcp_f32 %s, %s" % (v(vF), v(vF)))
e("v_rcp_f32 %s, %s" % (v(vF + 1), v(vF + 1)))
e("s_nop 0")
e("v_mul_f32 %s, %s, %s" % (v(vG), v(vG), v(vF)))
e("v_mul_f32 %s, %s, %s" % (v(vG + 1), v(vG + 1), v(vF + 1)))
round2(vG, vT1)
c("final gather address: MB3 + (p>>6)*65536 + l*1024 + (p&63)*16")
e("s_lshr_b32 s%d, s%d, 8" % (sOFF3, sP4))
e("s_lshl_b32 s%d, s%d, 16" % (sOFF3, sOFF3))
e("s_and_b32 s%d, s%d, 255" % (sTMP, sP4))
e("s_lshl_b32 s%d, s%d, 2" % (sTMP, sTMP))
e("s_add_u32 s%d, s%d, s%d" % (sOFF3, sOFF3, sTMP))
e("s_add_u32 s%d, s%d, %d" % (sOFF3, sOFF3, MB3))
e("v_lshlrev_b32 %s, 10, %s" % (v(vT1), v(vL)))
e("s_mov_b32 s%d, s%d" % (sT3, sTAG))
mksrd(SRD_A, 36, 1024)
e("v_mov_b32 %s, 0" % v(vT2))
if not GLATE:
    for _ in range(4 if PV2 else 2): e("s_barrier")
G3 = 64
c("poll back-off: polling lines that are not written yet slows the producers' write-through stores down")
if PRESLEEP: e("s_sleep %d" % PRESLEEP)
e("s_mov_b32 s%d, s%d" % (sT3 + 1, sTAG))
REP = 0
GAP = int(opts.get("gap", 6))
if NREP:
    sPEND = 94
    GR = 64
    for r in range(NREP):
        e("buffer_load_dwordx4 %s, %s, %s, s%d offen sc1" % (v(GR + 4 * r, 4), v(vT1), srd(SRD_WS), sOFF3))
        if r < NREP - 1:
            e("s_add_u32 s%d, s%d, %d" % (sOFF3, sOFF3, 1 << 18))
        if r == 0:
            e("s_mov_b64 %s, -1" % sp(sPEND))
        if r >= 1:
            pass
        LAG = int(opts.get("lag", 2))
        k = r - LAG
        if k >= 0:
            e("s_waitcnt vmcnt(%d)" % LAG)
            e("v_cmpx_eq_u64 vcc, %s, %s" % (sp(sT3), v(GR + 4 * k + 2, 2)))
            e("v_mov_b32 %s, %s" % (v(vF), v(GR + 4 * k)))
            e("v_mov_b32 %s, %s" % (v(vF + 1), v(GR + 4 * k + 1)))
            e("s_andn2_b64 %s, %s, exec" % (sp(sPEND), sp(sPEND)))
            e("s_cbranch_scc0 L_h3ok")
            e("s_mov_b64 exec, %s" % sp(sPEND))
        elif r < NREP - 1:
            e("s_sleep %d" % GAP)
    for k in range(max(0, NREP - LAG), NREP):
        e("s_waitcnt vmcnt(%d)" % (NREP - 1 - k))
        e("v_cmpx_eq_u64 vcc, %s, %s" % (sp(sT3), v(GR + 4 * k + 2, 2)))
        e("v_mov_b32 %s, %s" % (v(vF), v(GR + 4 * k)))
        e("v_mov_b32 %s, %s" % (v(vF + 1), v(GR + 4 * k + 1)))
        e("s_andn2_b64 %s, %s, exec" % (sp(sPEND), sp(sPEND)))
        e("s_cbranch_scc0 L_h3ok")
        e("s_mov_b64 exec, %s" % sp(sPEND))
lab("L_h3loop")
e("buffer_load_dwordx4 %s, %s, %s, s%d offen sc1" % (v(vF, 4), v(vT1), srd(SRD_WS), sOFF3))
e("s_waitcnt vmcnt(0)")
e("v_cmpx_ne_u64 vcc, %s, %s" % (sp(sT3), v(vF + 2, 2)))
e("s_cbranch_execz L_h3ok")
if LSLEEP: e("s_sleep %d" % LSLEEP)
spin_check("L_h3loop")
lab("L_h3ok")
e("s_mov_b64 exec, -1")
e("s_nop 2")
stamp(10)
dpp_reduce("v_add_f32", [vF, vF + 1], ROW + XROW)
round2(vF, vT0)
e("v_mul_f32 %s, %s, %s" % (v(vF), v(vF), v(vG)))
e("v_mul_f32 %s, %s, %s" % (v(vF + 1), v(vF + 1), v(vG + 1)))
round2(vF, vT0)
e("v_add_f32 %s, %s, %s" % (v(vF), v(vF), v(vXO)))
e("v_add_f32 %s, %s, %s" % (v(vF + 1), v(vF + 1), v(vXO + 1)))
e("v_cvt_pk_bf16_f32 %s, %s, %s" % (v(vT0), v(vF), v(vF + 1)))
e("s_mov_b32 exec_lo, 0"); e("s_mov_b32 exec_hi, 0x80000000")
OUTM = opts.get("outm", "").replace("+", " ")
e("buffer_store_dword %s, %s, %s, s%d offen %s" % (v(vT0), v(vT2), srd(SRD_A), sP4, OUTM))
if DBG:
    e("s_cmp_lg_u32 s%d, 0" % sC)
    e("s_cbranch_scc1 L_nodbg")
    e("s_memrealtime %s" % sp(sST))
    mksrd(SRD_B, 38, 256)
    e("s_lshl_b32 s%d, s%d, 2" % (sTMP, sG))
    e("s_waitcnt lgkmcnt(0)")
    e("s_and_b32 s100, s100, 0xfffff")
    e("s_and_b32 s%d, s%d, 0xfffff" % (sST, sST))
    e("v_mov_b32 %s, s100" % v(vF))
    e("v_mov_b32 %s, s%d" % (v(vF + 1), sST))
    e("buffer_store_dword %s, %s, %s, s%d offen" % (v(vF), v(vT2), srd(SRD_B), sTMP))
    e("buffer_store_dword %s, %s, %s, s%d offen offset:32" % (v(vF + 1), v(vT2), srd(SRD_B), sTMP))
    lab("L_nodbg")
e("s_cmp_lg_u32 s2, 0")
e("s_cbranch_scc1 L_fin")
e("buffer_store_dword %s, %s, %s, 0 offen offset:%d %s" % (v(vZ + 2), v(vT2), srd(SRD_WS), EPOCH, opts.get("epm", "sc1").replace("none", "")))
e("s_branch L_fin")
c("---- q gather retry / cross-die fallback ----")
lab("L_qfail")
e("s_mov_b64 exec, -1")
e("s_sub_u32 s%d, s%d, 1" % (sSPIN, sSPIN))
e("s_cbranch_scc1 L_end")
e("s_and_b32 s%d, s%d, 3" % (sTMP, sSPIN))
e("s_cmp_lg_u32 s%d, 0" % sTMP)
e("s_cbranch_scc1 %s" % ("L_qpollA2" if QPIPE else "L_qpollA"))
e("s_cmp_lg_u32 s%d, 0" % sCNT)
e("s_cbranch_scc1 L_qpollB")
e("s_mov_b32 s%d, 1" % sCNT)
e("s_add_u32 s%d, s%d, %d" % (sOFF, sOFF, MB1B - MB1A))
e("s_mov_b64 exec, %s" % sp(sM8))
e("buffer_store_dwordx4 %s, %s, %s, s%d offen sc1" % (v(vZ, 4), v(vPUB), srd(SRD_WS), sOFF))
e("s_mov_b64 exec, -1")
lab("L_qpollB")
e("s_add_u32 s%d, s%d, %d" % (sTMP, sOFF2, MB1B - MB1A))
q_loads(sTMP)
e("s_waitcnt vmcnt(0)")
for i in range(16): e("v_cmpx_eq_u32 vcc, s%d, %s" % (sTAG, v(G1 + 4 * i + 2)))
e("s_cmp_eq_u64 exec, -1")
e("s_mov_b64 exec, -1")
e("s_cbranch_scc0 L_qpollA")
for i in range(16): q_sum(i)
for i in range(16): e("v_cmpx_eq_u32 vcc, s%d, %s" % (sTAG + 1, v(G1 + 4 * i + 3)))
e("s_cmp_eq_u64 exec, -1")
e("s_cselect_b32 s%d, 1, 0" % sMODE)
e("s_mov_b64 exec, -1")
e("s_branch L_qok")

c("======== B waves ========")
lab("L_B1")
BB = int(opts.get("bb", 0))
if B1B and BB and not B1ONLY: e("s_barrier")
for i in range(4): unpack(vD + 2 * i, vXN + i)
sums()
unpack(vD, 33)
def norm2():
    e("v_sub_f32 %s, %s, %s" % (v(vD), v(vD), v(vM)))
    e("v_sub_f32 %s, %s, %s" % (v(vD + 1), v(vD + 1), v(vM)))
    round2(vD, vT0)
    e("v_mul_f32 %s, %s, %s" % (v(vD), v(vD), v(vR)))
    e("v_mul_f32 %s, %s, %s" % (v(vD + 1), v(vD + 1), v(vR)))
    round2(vD, vT0)
norm2()
e("v_mov_b32 %s, %s" % (v(vT0), hx(f2u(1.0 / 512))))
e("v_mul_f32 %s, s%d, %s" % (v(vM), sA, v(vT0)))
e("v_mul_f32 %s, s%d, %s" % (v(vR), sB, v(vT0)))
e("v_fma_f32 %s, -%s, %s, %s" % (v(vR), v(vM), v(vM), v(vR)))
ln_finish(vM, vR)
norm2()
if B1ONLY:
    assert B1B
    e("v_mov_b32 %s, %d" % (v(vT0), HX))
    e("ds_write_b64 %s, %s" % (v(vT0), v(vD, 2)))
    if NOS: e("ds_write2_b32 %s, %s, %s offset0:2 offset1:3" % (v(vT0), v(33), v(34)))
    e("s_waitcnt lgkmcnt(0)")
    lab("L_B2")
else:
    e("s_nop 0")
    e("v_readfirstlane_b32 s%d, %s" % (sH0, v(vD)))
    e("v_readfirstlane_b32 s%d, %s" % (sH1, v(vD + 1)))
C1 = -2.0 * math.log2(math.e) * math.sqrt(2.0 / math.pi)
C2 = C1 * 0.044715
vACC = 60
e("v_mov_b32 %s, 0" % v(vACC))
e("v_mov_b32 %s, 0" % v(vACC + 1))
e("v_mov_b32 %s, %s" % (v(vS1), hx(f2u(C1))))
e("s_mov_b32 s%d, %s" % (sTMP, hx(f2u(C2))))
e("s_mov_b32 s%d, 5" % sCNT)
e("v_mov_b32 %s, %d" % (v(vT0), HX))
if B1B and not (BB and not B1ONLY): e("s_barrier")
if B1ONLY:
    e("ds_read_b64 %s, %s" % (v(vD, 2), v(vT0)))
    e("s_waitcnt lgkmcnt(0)")
    e("v_readfirstlane_b32 s%d, %s" % (sH0, v(vD)))
    e("v_readfirstlane_b32 s%d, %s" % (sH1, v(vD + 1)))
e("s_waitcnt vmcnt(0)")
lab("L_Bloop")
unpack(vF, vW1)
unpack(vF + 2, vB1)
U, T = vD, vD + 4
for col, sh in ((0, sH0), (1, sH1)):
    e("v_mul_f32 %s, s%d, %s" % (v(U + 2 * col), sh, v(vF)))
    e("v_mul_f32 %s, s%d, %s" % (v(U + 2 * col + 1), sh, v(vF + 1)))
for col in range(2): e("v_cvt_pk_bf16_f32 %s, %s, %s" % (v(T + col), v(U + 2 * col), v(U + 2 * col + 1)))
for col in range(2): unpack(U + 2 * col, T + col)
for col in range(2):
    e("v_add_f32 %s, %s, %s" % (v(U + 2 * col), v(U + 2 * col), v(vF + 2)))
    e("v_add_f32 %s, %s, %s" % (v(U + 2 * col + 1), v(U + 2 * col + 1), v(vF + 3)))
for col in range(2): e("v_cvt_pk_bf16_f32 %s, %s, %s" % (v(T + col), v(U + 2 * col), v(U + 2 * col + 1)))
for col in range(2): unpack(U + 2 * col, T + col)
for i in range(4): e("v_mul_f32 %s, %s, %s" % (v(T + i), v(U + i), v(U + i)))
for i in range(4): e("v_fma_f32 %s, %s, s%d, %s" % (v(T + i), v(T + i), sTMP, v(vS1)))
for i in range(4): e("v_mul_f32 %s, %s, %s" % (v(T + i), v(T + i), v(U + i)))
for i in range(4): e("v_exp_f32 %s, %s" % (v(T + i), v(T + i)))
for i in range(4): e("v_add_f32 %s, 1.0, %s" % (v(T + i), v(T + i)))
for i in range(4): e("v_rcp_f32 %s, %s" % (v(T + i), v(T + i)))
for i in range(4): e("v_mul_f32 %s, %s, %s" % (v(T + i), v(T + i), v(U + i)))
for col in range(2): e("v_cvt_pk_bf16_f32 %s, %s, %s" % (v(U + col), v(T + 2 * col), v(T + 2 * col + 1)))
for col in range(2): e("v_dot2c_f32_bf16 %s, %s, %s" % (v(vACC + col), v(U + col), v(vW2)))
for r in (vW1, vB1, vW2):
    for i in range(4): e("v_mov_b32 %s, %s" % (v(r + i), v(r + i + 1)))
e("s_sub_u32 s%d, s%d, 1" % (sCNT, sCNT))
e("s_cmp_lg_u32 s%d, 0" % sCNT)
e("s_cbranch_scc1 L_Bloop")
dpp_reduce("v_add_f32", [vACC, vACC + 1], ROW + XROW)
e("s_lshl_b32 s%d, s%d, 3" % (sTMP, sWAVE))
e("v_mov_b32 %s, s%d" % (v(vT0), sTMP))
e("s_mov_b32 exec_lo, 0"); e("s_mov_b32 exec_hi, 0x80000000")
e("ds_write_b64 %s, %s offset:%d" % (v(vT0), v(vACC, 2), YB - 8))
e("s_mov_b64 exec, -1")
e("s_waitcnt lgkmcnt(0)")
e("s_endpgm")

c("======== A waves ========")
lab("L_A")
WOAT = int(opts.get("woat", 8))
vKO, vP2, vKA, vVA, vWOo, vQB, vPX, vMW, vMR = 7, 8, 9, 10, 11, 12, 13, 14, 15
vZ2 = 16
vONE, vSC, vP, vM, vR = 20, 24, 32, 36, 37
vG2A, vOXW, vOXR, vP3 = 38, 39, 40, 41
vS1, vS2 = 42, 43
vF, vD = 44, 52
vZ3 = 60
vO, vLS, vWOF = 64, 96, 100
vQF = 116
vKF, vVF = 132, 164
vWA = 196
PX = CMB
sOFFW, sOFFG = 90, 91
e("s_sub_u32 s%d, s%d, 4" % (sAW, sWAVE))
c("dma source offset: q'*256 + ((n ^ (q'<<2))*16)")
e("v_lshlrev_b32 %s, 2, %s" % (v(vKO), v(vQ)))
e("v_xor_b32 %s, %s, %s" % (v(vKO), v(vKO), v(vN)))
e("v_lshlrev_b32 %s, 4, %s" % (v(vKO), v(vKO)))
e("v_lshl_add_u32 %s, %s, 8, %s" % (v(vKO), v(vQ), v(vKO)))
e("s_lshl_b32 s%d, s%d, 23" % (sOFF, sG))
e("s_lshl_b32 s%d, s%d, 12" % (sTMP, sC))
e("s_add_u32 s%d, s%d, s%d" % (sOFF, sOFF, sTMP))
e("s_lshl_b32 s%d, s%d, 10" % (sTMP, sAW))
e("s_add_u32 s%d, s%d, s%d" % (sOFF, sOFF, sTMP))
e("s_add_u32 s%d, s%d, %d" % (sOFF, sOFF, 7340032))
e("s_mul_i32 s%d, s%d, %d" % (sM0, sAW, 8 * KP))
e("s_add_u32 s%d, s%d, %d" % (sM0, sM0, KBUF))
e("s_mov_b32 m0, s%d" % sM0)
e("s_mov_b32 s%d, 0x20000" % sSTEP)
e("s_mov_b32 s%d, s%d" % (sOFF3, sOFF))
WF = int(opts.get("wf", 0))
sM0W = 94
def wo_setup():
    if WOF:
        c("wo dma offset q'*1024 + ((n ^ (q'<<2))*16) ; rows 16aw+4i+q'")
        e("v_mul_u32_u24 %s, 768, %s" % (v(vWOo), v(vQ)))
        e("v_add_u32 %s, %s, %s" % (v(vWOo), v(vWOo), v(vKO)))
        e("s_mul_i32 s%d, s%d, %d" % (sM0W, sAW, 4 * VP))
        e("s_add_u32 s%d, s%d, %d" % (sM0W, sM0W, WOB))
    else:
        c("wo dma offset (l>>2)*1024 + (l&3)*16 ; frag address WOB + aw*4096 + (l>>2)*64 + (l&3)*8")
        e("v_lshrrev_b32 %s, 2, %s" % (v(vT2), v(vL)))
        e("v_lshlrev_b32 %s, 10, %s" % (v(vWOo), v(vT2)))
        e("v_lshl_add_u32 %s, %s, 4, %s" % (v(vWOo), v(vT0), v(vWOo)))
        e("v_lshlrev_b32 %s, 6, %s" % (v(vWA), v(vT2)))
        e("v_lshl_add_u32 %s, %s, 3, %s" % (v(vWA), v(vT0), v(vWA)))
        e("s_lshl_b32 s%d, s%d, 12" % (sM0W, sAW))
        e("s_add_u32 s%d, s%d, %d" % (sM0W, sM0W, WOB))
        e("v_add_u32 %s, s%d, %s" % (v(vWA), sM0W, v(vWA)))
    e("s_lshl_b32 s%d, s%d, 19" % (sOFFW, sG))
    e("s_lshr_b32 s%d, s%d, 2" % (sA, sC))
    e("s_lshl_b32 s%d, s%d, 16" % (sTMP, sA))
    e("s_add_u32 s%d, s%d, s%d" % (sOFFW, sOFFW, sTMP))
    e("s_and_b32 s%d, s%d, 3" % (sB, sC))
    e("s_lshl_b32 s%d, s%d, 8" % (sTMP, sB))
    e("s_add_u32 s%d, s%d, s%d" % (sOFFW, sOFFW, sTMP))
    e("s_lshl_b32 s%d, s%d, %d" % (sTMP, sAW, 14 if WOF else 6))
    e("s_add_u32 s%d, s%d, s%d" % (sOFFW, sOFFW, sTMP))
WO15 = int(opts.get("wo15", 0)); WOB2 = int(opts.get("wob2", 0))
wo_next = [0]
def wo_loads(n=4):
    while n > 0 and wo_next[0] < 4:
        i = wo_next[0]
        st = VP if WOF else 1024
        e("buffer_load_dwordx4 %s, %s, s%d offen offset:%d nt lds" % (v(vWOo), srd(SRD_C), sOFFW, st * i))
        if i < 3: e("s_add_u32 s%d, s%d, %d" % (sOFFW, sOFFW, (4096 if WOF else 16384) - st))
        wo_next[0] += 1; n -= 1
if WF:
    wo_setup()
    e("s_mov_b32 m0, s%d" % sM0W)
    e("s_mov_b32 s%d, %s" % (SRD_C + 2, hx(1 << 22)))
    e("s_mov_b32 s%d, 0x00020000" % (SRD_C + 3))
N1 = int(opts.get("n1", 4)) - WF
N1L = int(opts.get("n1l", N1)); THRL = int(opts.get("thrl", THR))
sLATE = 93
if (N1L, THRL) != (N1, THR):
    e("s_lshr_b32 s%d, s%d, 2" % (sLATE, sC))
    e("s_cmp_eq_u32 s%d, 3" % sLATE)
    e("s_cselect_b32 s%d, 1, 0" % sLATE)
    e("s_cselect_b32 s%d, %d, %d" % (sCNT, N1L, N1))
else:
    e("s_mov_b32 s%d, %d" % (sCNT, N1))
e("s_mov_b32 s%d, %s" % (SRD_A + 2, hx(1 << 26)))
e("s_mov_b32 s%d, 0x00020000" % (SRD_A + 3))
if SPF:
    c("code prefetch into L2 through the scalar path: one 64 B sector per wave")
    e("s_getpc_b64 %s" % sp(sPC))
    lab("L_pc2")
    e("s_sub_u32 s%d, s%d, L_pc2-L_start" % (sPC, sPC))
    e("s_subb_u32 s%d, s%d, 0" % (sPC + 1, sPC + 1))
    e("s_lshl_b32 s%d, s%d, 2" % (sTMP, sC))
    e("s_add_u32 s%d, s%d, s%d" % (sTMP, sTMP, sAW))
    e("s_lshl_b32 s%d, s%d, %d" % (sTMP, sTMP, 7 if STAMPS else 6))
    e("s_min_u32 s%d, s%d, L_codeend-L_start-4" % (sTMP, sTMP))
e("s_waitcnt lgkmcnt(0)")
if STAMPS: e("v_mov_b32 %s, s%d" % (v(vSTP), sST))
if SPF: e("s_load_dword s%d, %s, s%d" % (97, sp(sPC), sTMP))
e("s_mov_b64 %s, s[18:19]" % sp(SRD_A))
if WF: e("s_mov_b64 %s, s[24:25]" % sp(SRD_C))
e("s_barrier")
KSLEEP = int(opts.get("ksleep", 0))
if KSLEEP: e("s_sleep %d" % KSLEEP)
def dma_loop(name, sr, soff, step, thr):
    lab(name)
    if thr: e("s_waitcnt vmcnt(%d)" % (thr - 1))
    e("buffer_load_dwordx4 %s, %s, s%d offen nt lds" % (v(vKO), srd(sr), soff))
    e("s_sub_u32 s%d, s%d, 1" % (sCNT, sCNT))
    e("s_add_u32 m0, m0, %d" % step)
    e("s_add_u32 s%d, s%d, s%d" % (soff, soff, sSTEP))
    if XFLIP: e("s_xor_b32 s%d, s%d, 0x%x" % (soff, soff, XFLIP))
    e("s_cmp_lg_u32 s%d, 0" % sCNT)
    e("s_cbranch_scc1 %s" % name)
if WF:
    wo_loads(WF)
    e("s_mov_b32 m0, s%d" % sM0)
    e("s_nop 0")
if N1 > 0: dma_loop("L_kloop", SRD_A, sOFF, KP, 0)
lab("L_Aend1")
c("---- address setup (in the shadow of the first loads) ----")
mksrd(SRD_B, 20, 1 << 26); mksrd(SRD_WS, 40, WS_NREC); mksrd(SRD_C, 24, 1 << 22)
e("v_and_b32 %s, 3, %s" % (v(vT0), v(vN)))
e("v_lshrrev_b32 %s, 2, %s" % (v(vT1), v(vN)))
c("K frag address: KBUF + aw*8KP + (m>>2)*KP + (m&3)*256 + ((q'^(m&3))*64)")
e("v_xor_b32 %s, %s, %s" % (v(vT2), v(vT0), v(vQ)))
e("v_mul_u32_u24 %s, %d, %s" % (v(vKA), KP, v(vT1)))
e("v_lshl_add_u32 %s, %s, 8, %s" % (v(vKA), v(vT0), v(vKA)))
e("v_lshl_add_u32 %s, %s, 6, %s" % (v(vKA), v(vT2), v(vKA)))
e("v_add_u32 %s, s%d, %s" % (v(vKA), sM0, v(vKA)))
c("V frag address: VBUF + q'*VP + r*256 + cc*8 + ((aw ^ r)*64) ; r = n>>2, cc = n&3")
e("v_mul_u32_u24 %s, %d, %s" % (v(vVA), VP, v(vQ)))
e("v_lshl_add_u32 %s, %s, 8, %s" % (v(vVA), v(vT1), v(vVA)))
e("v_lshl_add_u32 %s, %s, 3, %s" % (v(vVA), v(vT0), v(vVA)))
e("v_xor_b32 %s, s%d, %s" % (v(vT2), sAW, v(vT1)))
e("v_lshl_add_u32 %s, %s, 6, %s" % (v(vVA), v(vT2), v(vVA)))
e("v_add_u32 %s, %d, %s" % (v(vVA), VBUF, v(vVA)))
c("q frag address: (n>>2)*272 + q'*64 ; P exchange: q'*64 + (n>>2)*16 ; m/l: (n>>2)*16")
e("v_mul_u32_u24 %s, 272, %s" % (v(vQB), v(vT1)))
e("v_lshl_add_u32 %s, %s, 6, %s" % (v(vQB), v(vQ), v(vQB)))
e("v_lshlrev_b32 %s, 4, %s" % (v(vMR), v(vT1)))
e("v_lshl_add_u32 %s, %s, 6, %s" % (v(vPX), v(vQ), v(vMR)))
e("s_lshl_b32 s%d, s%d, 2" % (sTMP, sAW))
e("s_add_u32 s%d, s%d, %d" % (sTMP, sTMP, ML))
e("v_add_u32 %s, s%d, %s" % (v(vMW), sTMP, v(vMR)))
e("s_lshl_b32 s%d, s%d, 8" % (sTMP, sAW))
e("v_add_u32 %s, s%d, %s" % (v(vWA + 1), sTMP, v(vPX)))
c("hop2 publish: (n>>2)*32768 + (q'>>1)*4096 + (q'&1)*64 + (n&3)*16 ; soffset g<<17 + aw<<13 + c<<7")
e("v_lshlrev_b32 %s, 15, %s" % (v(vP2), v(vT1)))
e("v_lshl_add_u32 %s, %s, 4, %s" % (v(vP2), v(vT0), v(vP2)))
e("v_lshrrev_b32 %s, 1, %s" % (v(vT2), v(vQ)))
e("v_lshl_add_u32 %s, %s, 12, %s" % (v(vP2), v(vT2), v(vP2)))
e("v_and_b32 %s, 1, %s" % (v(vT2), v(vQ)))
e("v_lshl_add_u32 %s, %s, 6, %s" % (v(vP2), v(vT2), v(vP2)))
e("s_lshl_b32 s%d, s%d, 17" % (sOFF2, sG))
e("s_add_u32 s%d, s%d, %d" % (sOFF2, sOFF2, MB2A))
c("hop2 gather region g*32 + (c>>2)*4 + aw")
e("s_and_b32 s%d, s%d, 28" % (sTMP, sC))
e("s_add_u32 s%d, s%d, s%d" % (sTMP, sTMP, sAW))
e("s_lshl_b32 s%d, s%d, 12" % (sTMP, sTMP))
e("s_add_u32 s%d, s%d, s%d" % (sOFFG, sOFF2, sTMP))
e("s_lshl_b32 s%d, s%d, 13" % (sTMP, sAW))
e("s_add_u32 s%d, s%d, s%d" % (sOFF2, sOFF2, sTMP))
e("s_lshl_b32 s%d, s%d, 7" % (sTMP, sC))
e("s_add_u32 s%d, s%d, s%d" % (sOFF2, sOFF2, sTMP))
e("v_lshlrev_b32 %s, 4, %s" % (v(vG2A), v(vL)))
c("hop 3 publish address: (n>>1)*128 + q'*32 + (n&1)*16")
e("v_lshrrev_b32 %s, 1, %s" % (v(vT2), v(vN)))
e("v_lshlrev_b32 %s, 7, %s" % (v(vP3), v(vT2)))
e("v_lshl_add_u32 %s, %s, 5, %s" % (v(vP3), v(vQ), v(vP3)))
e("v_and_b32 %s, 1, %s" % (v(vT2), v(vN)))
e("v_lshl_add_u32 %s, %s, 4, %s" % (v(vP3), v(vT2), v(vP3)))
if not WF: wo_setup()
else:
    e("s_lshr_b32 s%d, s%d, 2" % (sA, sC))
    e("s_and_b32 s%d, s%d, 3" % (sB, sC))
sOFFP3 = 92
e("s_lshl_b32 s%d, s%d, 16" % (sOFFP3, sB))
e("s_lshl_b32 s%d, s%d, 13" % (sTMP, sG))
e("s_add_u32 s%d, s%d, s%d" % (sOFFP3, sOFFP3, sTMP))
e("s_lshl_b32 s%d, s%d, 10" % (sTMP, sA))
e("s_add_u32 s%d, s%d, s%d" % (sOFFP3, sOFFP3, sTMP))
e("s_lshl_b32 s%d, s%d, 8" % (sTMP, sAW))
e("s_add_u32 s%d, s%d, s%d" % (sOFFP3, sOFFP3, sTMP))
e("s_add_u32 s%d, s%d, %d" % (sOFFP3, sOFFP3, MB3))
c("OX write: aw*32 + (l&7)*4 + (l>>5)*2 ; read q'*16")
e("v_lshlrev_b32 %s, 4, %s" % (v(vOXR), v(vQ)))
e("v_and_b32 %s, 7, %s" % (v(vT2), v(vL)))
e("s_lshl_b32 s%d, s%d, 5" % (sTMP, sAW))
e("v_lshl_add_u32 %s, %s, 2, s%d" % (v(vOXW), v(vT2), sTMP))
e("v_lshrrev_b32 %s, 5, %s" % (v(vT2), v(vL)))
e("v_lshl_add_u32 %s, %s, 1, %s" % (v(vOXW), v(vT2), v(vOXW)))
for i in range(4): e("v_mov_b32 %s, 0x3f803f80" % v(vONE + i))
mask(sMASKQ, 0x000F000F); mask(sN1, 0xAAAAAAAA); mask(sN2, 0xCCCCCCCC); mask(sMASK0, 0x000000FF); mask(sN4, 0x11111111)
e("s_mov_b32 s%d, %s" % (sA, hx(f2u(128 ** -0.5))))
e("s_mov_b32 s%d, %s" % (sB, hx(f2u(math.log2(math.e)))))
e("v_mov_b32 %s, %d" % (v(vT0), MODE))
PW2 = opts.get("pw2", "none")
if PW2 == "off": PW2 = None
if PW2 is not None:
    for i in range(4): e("v_mov_b32 %s, 0" % v(vZ2 + i))
    e("buffer_store_dwordx4 %s, %s, %s, s%d offen %s" % (v(vZ2, 4), v(vP2), srd(SRD_WS), sOFF2, PW2.replace("none", "")))
PW3 = int(opts.get("pw3", 0))
if PW3:
    for i in range(4): e("v_mov_b32 %s, 0" % v(vZ3 + i))
    e("s_mov_b64 exec, %s" % sp(sMASKQ))
    e("buffer_store_dwordx4 %s, %s, %s, s%d offen sc1" % (v(vZ3, 4), v(vP3), srd(SRD_WS), sOFFP3))
    e("s_mov_b64 exec, -1")
if B1B: e("s_barrier")
def rest(tag, n1, thr):
    if n1 < 8:
        e("s_mov_b32 s%d, %d" % (sCNT, 8 - n1))
        dma_loop("L_kloop2" + tag, SRD_A, sOFF, KP, thr)
    e("s_mul_i32 s%d, s%d, %d" % (sTMP, sAW, 8 * VP))
    e("s_add_u32 m0, s%d, %d" % (sTMP, VBUF))
    e("s_mov_b32 s%d, 8" % sCNT)
    dma_loop("L_vloop" + tag, SRD_B, sOFF3, VP, int(opts.get("thrv", thr)))
if (N1L, THRL) != (N1, THR):
    e("s_cmp_lg_u32 s%d, 0" % sLATE)
    e("s_cbranch_scc1 L_late")
    rest("e", N1, THR)
    e("s_branch L_issued")
    lab("L_late")
    rest("l", N1L, THRL)
    lab("L_issued")
else:
    rest("", N1, THR)
e("s_mov_b32 m0, s%d" % sM0W)
stamp(15)
e("s_waitcnt vmcnt(8) lgkmcnt(0)")
for T in range(2):
    for t in range(4):
        e("ds_read_b128 %s, %s offset:%d" % (v(vKF + 16 * T + 4 * t, 4), v(vKA), 4 * KP * T + 16 * t))
wo_loads(WO15)
e("s_barrier")
for t in range(4):
    e("ds_read_b128 %s, %s offset:%d" % (v(vQF + 4 * t, 4), v(vQB), QL + 16 * t))
e("ds_read_b64 %s, %s" % (v(vZ3 + 2, 2), v(vT0)))
wo_loads(WOB2)
WOC = int(opts.get("woc", -1))
sWOD = 95
if WOC >= 0:
    e("s_getreg_b32 s%d, hwreg(HW_REG_IB_STS, 0, 4)" % sWOD)
    e("s_cmp_gt_u32 s%d, %d" % (sWOD, WOC))
    e("s_cbranch_scc1 L_wolater")
    wo_loads()
    wo_next[0] = 0
    lab("L_wolater")
for t in range(4):
    e("s_waitcnt lgkmcnt(%d)" % (4 - t))
    for T in range(2):
        e("v_mfma_f32_16x16x32_bf16 %s, %s, %s, %s" % (v(vSC + 4 * T, 4), v(vKF + 16 * T + 4 * t, 4), v(vQF + 4 * t, 4), v(vSC + 4 * T, 4) if t else "0"))
e("s_waitcnt lgkmcnt(0)")
e("v_readfirstlane_b32 s%d, %s" % (sMODE, v(vZ3 + 2)))
e("v_readfirstlane_b32 s%d, %s" % (sTAG, v(vZ3 + 3)))
e("v_mov_b32 %s, %s" % (v(vZ3 + 2), v(vZ3 + 3)))
e("v_mov_b32 %s, %s" % (v(vZ2 + 3), v(vZ3 + 3)))
e("s_nop 2")
for i in range(4): e("v_cvt_pk_bf16_f32 %s, %s, %s" % (v(vP + i), v(vSC + 2 * i), v(vSC + 2 * i + 1)))
for i in range(4): unpack(vSC + 2 * i, vP + i)
for i in range(8): e("v_mul_f32 %s, s%d, %s" % (v(vSC + i), sA, v(vSC + i)))
for i in range(4): e("v_cvt_pk_bf16_f32 %s, %s, %s" % (v(vP + i), v(vSC + 2 * i), v(vSC + 2 * i + 1)))
for i in range(4): unpack(vSC + 2 * i, vP + i)
e("v_max3_f32 %s, %s, %s, %s" % (v(vM), v(vSC), v(vSC + 1), v(vSC + 2)))
e("v_max3_f32 %s, %s, %s, %s" % (v(vR), v(vSC + 3), v(vSC + 4), v(vSC + 5)))
e("v_max3_f32 %s, %s, %s, %s" % (v(vM), v(vM), v(vSC + 6), v(vSC + 7)))
e("v_max_f32 %s, %s, %s" % (v(vM), v(vM), v(vR)))
e("v_mov_b32 %s, %s" % (v(vR), v(vM)))
e("s_nop 1")
e("v_permlane32_swap_b32 %s, %s" % (v(vM), v(vR)))
e("v_max_f32 %s, %s, %s" % (v(vM), v(vM), v(vR)))
e("v_mov_b32 %s, %s" % (v(vR), v(vM)))
e("s_nop 1")
e("v_permlane16_swap_b32 %s, %s" % (v(vM), v(vR)))
e("v_max_f32 %s, %s, %s" % (v(vM), v(vM), v(vR)))
if PV2:
    e("v_mul_f32 %s, s%d, %s" % (v(vM), sB, v(vM)))
    c("workgroup max per head")
    e("ds_write_b32 %s, %s" % (v(vMW), v(vM)))
    for i in range(8): e("v_mul_f32 %s, s%d, %s" % (v(vSC + i), sB, v(vSC + i)))
    e("s_cmp_eq_u32 s%d, 0" % sMODE)
    e("s_cselect_b32 s%d, %d, 0" % (sSTEP, MB2B - MB2A))
    e("s_add_u32 s%d, s%d, s%d" % (sOFF2, sOFF2, sSTEP))
    e("s_add_u32 s%d, s%d, s%d" % (sOFFG, sOFFG, sSTEP))
    e("s_waitcnt lgkmcnt(0)")
    e("s_barrier")
    e("ds_read_b128 %s, %s offset:%d" % (v(vF, 4), v(vMR), ML))
    e("s_waitcnt lgkmcnt(0)")
    e("v_max3_f32 %s, %s, %s, %s" % (v(vM), v(vF), v(vF + 1), v(vF + 2)))
    e("v_max_f32 %s, %s, %s" % (v(vM), v(vM), v(vF + 3)))
    for i in range(8): e("v_sub_f32 %s, %s, %s" % (v(vSC + i), v(vSC + i), v(vM)))
    for i in range(8): e("v_exp_f32 %s, %s" % (v(vSC + i), v(vSC + i)))
    e("s_nop 0")
    for i in range(4): e("v_cvt_pk_bf16_f32 %s, %s, %s" % (v(vP + i), v(vSC + 2 * i), v(vSC + 2 * i + 1)))
    e("s_mov_b64 exec, %s" % sp(sN4))
    e("ds_write_b128 %s, %s offset:%d" % (v(vWA + 1), v(vP, 4), PX))
    e("s_mov_b64 exec, -1")
    stamp(12)
    if WOAT < 8: e("s_waitcnt vmcnt(%d)" % WOAT)
    if WOC >= 0:
        e("s_cmp_gt_u32 s%d, %d" % (sWOD, WOC))
        e("s_cbranch_scc0 L_wodone")
    wo_loads(4 - WOL)
    if WOC >= 0: lab("L_wodone")
    e("s_waitcnt lgkmcnt(0)")
    e("s_barrier")
    for s_ in range(4):
        e("ds_read_b128 %s, %s offset:%d" % (v(vQF + 4 * s_, 4), v(vPX), PX + 256 * s_))
    for s_ in range(4):
        e("s_waitcnt lgkmcnt(%d)" % (3 - s_))
        e("v_mfma_f32_16x16x32_bf16 %s, %s, %s, %s" % (v(vLS, 4), v(vONE, 4), v(vQF + 4 * s_, 4), v(vLS, 4) if s_ else "0"))
    e("s_waitcnt vmcnt(%d)" % (4 - WF - WOL))
    stamp(5)
    e("s_barrier")
    for s_ in range(4):
        for dbl in range(2):
            for h in range(2):
                e("ds_read_b64_tr_b16 %s, %s offset:%d" % (v(vVF + 8 * s_ + 4 * dbl + 2 * h, 2), v(vVA), 8 * VP * s_ + 4 * VP * h + 32 * dbl))
    e("v_rcp_f32 %s, %s" % (v(vS1), v(vLS)))
    e("v_log_f32 %s, %s" % (v(vS2), v(vLS)))
    for s_ in range(4):
        for dbl in range(2):
            e("s_waitcnt lgkmcnt(%d)" % (14 - 4 * s_ - 2 * dbl))
            e("v_mfma_f32_16x16x32_bf16 %s, %s, %s, %s" % (v(vO + 4 * dbl, 4), v(vVF + 8 * s_ + 4 * dbl, 4), v(vQF + 4 * s_, 4), v(vO + 4 * dbl, 4) if s_ else "0"))
    e("v_add_f32 %s, %s, %s" % (v(vZ2 + 2), v(vM), v(vS2)))
    e("s_nop 4")
    o = vO
    e("v_cndmask_b32 %s, %s, %s, %s" % (v(vD), v(o), v(o + 2), sp(sN1)))
    e("v_cndmask_b32 %s, %s, %s, %s" % (v(vD + 1), v(o + 1), v(o + 3), sp(sN1)))
    e("v_cndmask_b32 %s, %s, %s, %s" % (v(vD + 2), v(o + 4), v(o + 6), sp(sN1)))
    e("v_cndmask_b32 %s, %s, %s, %s" % (v(vD + 3), v(o + 5), v(o + 7), sp(sN1)))
    e("v_cndmask_b32 %s, %s, %s, %s" % (v(vD), v(vD), v(vD + 2), sp(sN2)))
    e("v_cndmask_b32 %s, %s, %s, %s" % (v(vD + 1), v(vD + 1), v(vD + 3), sp(sN2)))
    e("v_mul_f32 %s, %s, %s" % (v(vZ2), v(vD), v(vS1)))
    e("v_mul_f32 %s, %s, %s" % (v(vZ2 + 1), v(vD + 1), v(vS1)))
else:
    e("v_mul_f32 %s, s%d, %s" % (v(vM), sB, v(vM)))
    for i in range(8): e("v_fma_f32 %s, %s, s%d, -%s" % (v(vSC + i), v(vSC + i), sB, v(vM)))
    for i in range(8): e("v_exp_f32 %s, %s" % (v(vSC + i), v(vSC + i)))
    e("s_nop 0")
    for i in range(4): e("v_cvt_pk_bf16_f32 %s, %s, %s" % (v(vP + i), v(vSC + 2 * i), v(vSC + 2 * i + 1)))
    c("slow mode: use the write-through mailbox")
    e("s_cmp_eq_u32 s%d, 0" % sMODE)
    e("s_cselect_b32 s%d, %d, 0" % (sSTEP, MB2B - MB2A))
    e("v_mfma_f32_16x16x32_bf16 %s, %s, %s, 0" % (v(vLS, 4), v(vONE, 4), v(vP, 4)))
    e("s_mov_b64 exec, %s" % sp(sN4))
    e("ds_write_b128 %s, %s offset:%d" % (v(vWA + 1), v(vP, 4), PX))
    e("s_add_u32 s%d, s%d, s%d" % (sOFF2, sOFF2, sSTEP))
    e("s_add_u32 s%d, s%d, s%d" % (sOFFG, sOFFG, sSTEP))
    e("s_nop 3")
    e("ds_write2_b32 %s, %s, %s offset0:0 offset1:16" % (v(vMW), v(vM), v(vLS)))
    e("s_mov_b64 exec, -1")
    stamp(12)
    if WOAT < 8: e("s_waitcnt vmcnt(%d)" % WOAT)
    wo_loads()
    e("s_waitcnt vmcnt(4) lgkmcnt(0)")
    stamp(5)
    e("s_barrier")
    e("ds_read_b128 %s, %s offset:%d" % (v(vF, 4), v(vMR), ML))
    e("ds_read_b128 %s, %s offset:%d" % (v(vF + 4, 4), v(vMR), ML + 64))
    for s_ in range(4):
        e("ds_read_b128 %s, %s offset:%d" % (v(vQF + 4 * s_, 4), v(vPX), PX + 256 * s_))
        for dbl in range(2):
            for h in range(2):
                e("ds_read_b64_tr_b16 %s, %s offset:%d" % (v(vVF + 8 * s_ + 4 * dbl + 2 * h, 2), v(vVA), 8 * VP * s_ + 4 * VP * h + 32 * dbl))
    e("s_waitcnt lgkmcnt(15)")
    e("v_max3_f32 %s, %s, %s, %s" % (v(vM), v(vF), v(vF + 1), v(vF + 2)))
    def pv(s_):
        for dbl in range(2):
            e("v_mfma_f32_16x16x32_bf16 %s, %s, %s, 0" % (v(vO + 8 * s_ + 4 * dbl, 4), v(vVF + 8 * s_ + 4 * dbl, 4), v(vQF + 4 * s_, 4)))
    def sel(s_):
        o = vO + 8 * s_
        e("v_cndmask_b32 %s, %s, %s, %s" % (v(o), v(o), v(o + 2), sp(sN1)))
        e("v_cndmask_b32 %s, %s, %s, %s" % (v(o + 1), v(o + 1), v(o + 3), sp(sN1)))
        e("v_cndmask_b32 %s, %s, %s, %s" % (v(o + 4), v(o + 4), v(o + 6), sp(sN1)))
        e("v_cndmask_b32 %s, %s, %s, %s" % (v(o + 5), v(o + 5), v(o + 7), sp(sN1)))
        e("v_cndmask_b32 %s, %s, %s, %s" % (v(o), v(o), v(o + 4), sp(sN2)))
        e("v_cndmask_b32 %s, %s, %s, %s" % (v(o + 1), v(o + 1), v(o + 5), sp(sN2)))
        if s_ == 0:
            e("v_mul_f32 %s, %s, %s" % (v(vZ2), v(vF), v(o)))
            e("v_mul_f32 %s, %s, %s" % (v(vZ2 + 1), v(vF), v(o + 1)))
        else:
            e("v_fmac_f32 %s, %s, %s" % (v(vZ2), v(vF + s_), v(o)))
            e("v_fmac_f32 %s, %s, %s" % (v(vZ2 + 1), v(vF + s_), v(o + 1)))
    pv(0)
    e("v_max_f32 %s, %s, %s" % (v(vM), v(vM), v(vF + 3)))
    for w in range(4): e("v_sub_f32 %s, %s, %s" % (v(vF + w), v(vF + w), v(vM)))
    for w in range(4): e("v_exp_f32 %s, %s" % (v(vF + w), v(vF + w)))
    e("s_waitcnt lgkmcnt(10)")
    pv(1)
    e("v_mul_f32 %s, %s, %s" % (v(vR), v(vF), v(vF + 4)))
    for w in range(1, 4): e("v_fmac_f32 %s, %s, %s" % (v(vR), v(vF + w), v(vF + 4 + w)))
    e("v_rcp_f32 %s, %s" % (v(vS1), v(vR)))
    e("v_log_f32 %s, %s" % (v(vS2), v(vR)))
    e("s_waitcnt lgkmcnt(5)")
    pv(2)
    for w in range(4): e("v_mul_f32 %s, %s, %s" % (v(vF + w), v(vF + w), v(vS1)))
    e("v_add_f32 %s, %s, %s" % (v(vZ2 + 2), v(vM), v(vS2)))
    e("s_waitcnt lgkmcnt(0)")
    pv(3)
    sel(0); sel(1); sel(2); sel(3)
e("s_cmp_eq_u32 s%d, 0" % sMODE)
e("s_cbranch_scc1 L_p2slow")
e("buffer_store_dwordx4 %s, %s, %s, s%d offen%s" % (v(vZ2, 4), v(vP2), srd(SRD_WS), sOFF2, fs))
lab("L_p2done")
stamp(7)
G2 = vKF
def h2_loads():
    for i in range(4):
        e("buffer_load_dwordx4 %s, %s, %s, s%d offen offset:%d sc1" % (v(G2 + 4 * i, 4), v(vG2A), srd(SRD_WS), sOFFG, 1024 * i))
H2D = int(opts.get("h2d", 0)); H2N = int(opts.get("h2n", 1))
H2W = int(opts.get("h2w", 3))
if H2W >= 0: e("s_waitcnt vmcnt(%d)" % H2W)
for _ in range(H2N):
    if H2D: e("s_sleep %d" % H2D)
    h2_loads()
if WOL:
    wo_loads()
    e("s_waitcnt vmcnt(%d)" % WOL)
    e("s_branch L_h2chk2")
else:
    e("s_branch L_h2chk")
lab("L_h2retry")
e("s_not_b64 exec, exec")
h2_loads()
e("s_mov_b64 exec, -1")
lab("L_h2chk")
e("s_waitcnt vmcnt(0)")
lab("L_h2chk2")
for i in range(4):
    e("v_cmpx_eq_u32 vcc, s%d, %s" % (sTAG, v(G2 + 4 * i + 3)))
e("s_cmp_eq_u64 exec, -1")
e("s_cbranch_scc1 L_h2ok")
spin_check("L_h2retry")
lab("L_h2ok")
stamp(8)
A_ = [G2 + 4 * i + 2 for i in range(4)]
e("v_max3_f32 %s, %s, %s, %s" % (v(vM), v(A_[0]), v(A_[1]), v(A_[2])))
e("v_max_f32 %s, %s, %s" % (v(vM), v(vM), v(A_[3])))
e("v_mov_b32 %s, %s" % (v(vR), v(vM)))
e("s_nop 1")
e("v_permlane32_swap_b32 %s, %s" % (v(vM), v(vR)))
e("v_max_f32 %s, %s, %s" % (v(vM), v(vM), v(vR)))
e("v_mov_b32 %s, %s" % (v(vR), v(vM)))
e("s_nop 1")
e("v_permlane16_swap_b32 %s, %s" % (v(vM), v(vR)))
e("v_max_f32 %s, %s, %s" % (v(vM), v(vM), v(vR)))
dpp_reduce("v_max_f32", [vM], ROW[:1])
for i in range(4): e("v_sub_f32 %s, %s, %s" % (v(vF + i), v(A_[i]), v(vM)))
for i in range(4): e("v_exp_f32 %s, %s" % (v(vF + i), v(vF + i)))
Y0, Y1, W, W2 = vD, vD + 1, vD + 2, vD + 3
e("v_mul_f32 %s, %s, %s" % (v(Y0), v(vF), v(G2)))
e("v_mul_f32 %s, %s, %s" % (v(Y1), v(vF), v(G2 + 1)))
e("v_add_f32 %s, %s, %s" % (v(W), v(vF), v(vF + 1)))
e("v_add_f32 %s, %s, %s" % (v(W2), v(vF + 2), v(vF + 3)))
for i in range(1, 4):
    e("v_fmac_f32 %s, %s, %s" % (v(Y0), v(vF + i), v(G2 + 4 * i)))
    e("v_fmac_f32 %s, %s, %s" % (v(Y1), v(vF + i), v(G2 + 4 * i + 1)))
    if i == 1:
        e("v_add_f32 %s, %s, %s" % (v(W), v(W), v(W2)))
        e("v_mov_b32 %s, %s" % (v(W2), v(W)))
e("v_permlane32_swap_b32 %s, %s" % (v(W), v(W2)))
e("s_nop 0")
e("v_permlane32_swap_b32 %s, %s" % (v(Y0), v(Y1)))
e("v_add_f32 %s, %s, %s" % (v(W), v(W), v(W2)))
e("v_add_f32 %s, %s, %s" % (v(Y0), v(Y0), v(Y1)))
e("s_nop 1")
e("v_permlane16_swap_b32 %s, %s" % (v(Y0), v(W)))
e("v_add_f32 %s, %s, %s" % (v(Y0), v(Y0), v(W)))
dpp_reduce("v_add_f32", [Y0], ROW[:1])
e("v_rcp_f32 %s, %s" % (v(W), v(Y0)))
e("s_nop 1")
e("v_permlane16_swap_b32 %s, %s" % (v(W), v(W2)))
e("v_mul_f32 %s, %s, %s" % (v(Y0), v(Y0), v(W2)))
e("v_cvt_pk_bf16_f32 %s, %s, %s" % (v(Y0), v(Y0), v(Y0)))
e("s_mov_b64 exec, %s" % sp(sMASK0))
e("ds_write_b16 %s, %s offset:%d" % (v(vOXW), v(Y0), OX))
e("s_mov_b64 exec, -1")
e("s_waitcnt vmcnt(0) lgkmcnt(0)")
e("s_barrier")
if WOF:
    for s in range(2):
        e("ds_read_b128 %s, %s offset:%d" % (v(vF + 4 * s, 4), v(vOXR), OX + 64 * s))
        for b in range(2):
            for h in range(2):
                e("ds_read_b64_tr_b16 %s, %s offset:%d" % (v(vWOF + 8 * b + 4 * s + 2 * h, 2), v(vVA), WOB - VBUF + (8 * s + 4 * h) * VP + 32 * b))
    for s in range(2):
        for b in range(2):
            e("s_waitcnt lgkmcnt(%d)" % (7 - 5 * s - 2 * b))
            e("v_mfma_f32_16x16x32_bf16 %s, %s, %s, %s" % (v(vSC + 4 * b, 4), v(vWOF + 8 * b + 4 * s, 4), v(vF + 4 * s, 4), v(vSC + 4 * b, 4) if s else "0"))
else:
    e("ds_read_b128 %s, %s offset:%d" % (v(vF, 4), v(vOXR), OX))
    e("ds_read_b128 %s, %s offset:%d" % (v(vF + 4, 4), v(vOXR), OX + 64))
    e("s_waitcnt lgkmcnt(1)")
    for b in range(2):
        e("v_mfma_f32_16x16x32_bf16 %s, %s, %s, 0" % (v(vSC + 4 * b, 4), v(vWOF + 8 * b, 4), v(vF, 4)))
    e("s_waitcnt lgkmcnt(0)")
    for b in range(2):
        e("v_mfma_f32_16x16x32_bf16 %s, %s, %s, %s" % (v(vSC + 4 * b, 4), v(vWOF + 8 * b + 4, 4), v(vF + 4, 4), v(vSC + 4 * b, 4)))
e("s_nop 6")
e("v_cndmask_b32 %s, %s, %s, %s" % (v(vD), v(vSC), v(vSC + 2), sp(sN1)))
e("v_cndmask_b32 %s, %s, %s, %s" % (v(vD + 1), v(vSC + 1), v(vSC + 3), sp(sN1)))
e("v_cndmask_b32 %s, %s, %s, %s" % (v(vD + 2), v(vSC + 4), v(vSC + 6), sp(sN1)))
e("v_cndmask_b32 %s, %s, %s, %s" % (v(vD + 3), v(vSC + 5), v(vSC + 7), sp(sN1)))
e("v_cndmask_b32 %s, %s, %s, %s" % (v(vZ3), v(vD), v(vD + 2), sp(sN2)))
e("v_cndmask_b32 %s, %s, %s, %s" % (v(vZ3 + 1), v(vD + 1), v(vD + 3), sp(sN2)))
e("s_mov_b64 exec, %s" % sp(sMASKQ))
e("buffer_store_dwordx4 %s, %s, %s, s%d offen %s" % (v(vZ3, 4), v(vP3), srd(SRD_WS), sOFFP3, H3ST))
for r in range(1, NREP):
    e("s_add_u32 s%d, s%d, %d" % (sOFFP3, sOFFP3, 1 << 18))
    e("buffer_store_dwordx4 %s, %s, %s, s%d offen %s" % (v(vZ3, 4), v(vP3), srd(SRD_WS), sOFFP3, H3ST))
e("s_mov_b64 exec, -1")
stamp(9)
lab("L_fin")
if PAD:
    if "padx" in opts:
        e("s_getreg_b32 s%d, hwreg(HW_REG_XCC_ID, 0, 4)" % sTMP)
        e("s_cmp_lg_u32 s%d, %d" % (sTMP, int(opts["padx"])))
        e("s_cbranch_scc1 L_fin2")
    e("s_add_u32 s100, s100, %d" % (PAD * 100))
    lab("L_pad")
    e("s_memrealtime %s" % sp(sST))
    e("s_waitcnt lgkmcnt(0)")
    e("s_sub_u32 s%d, s%d, s100" % (sST, sST))
    e("s_cmp_lt_i32 s%d, 0" % sST)
    e("s_cbranch_scc1 L_pad")
lab("L_fin2")
if STAMPS:
    e("s_mov_b64 exec, -1")
    e("s_waitcnt vmcnt(0)")
    stamp(11)
    e("s_lshl_b32 s%d, s2, 4" % sTMP)
    e("s_add_u32 s%d, s%d, s%d" % (sTMP, sTMP, sWAVE))
    e("s_lshl_b32 s%d, s%d, 6" % (sTMP, sTMP))
    e("s_add_u32 s%d, s%d, %d" % (sTMP, sTMP, STAMP_OFF))
    e("v_mov_b32 %s, 0" % v(vT1))
    e("s_mov_b64 exec, 1")
    for i in range(4):
        e("buffer_store_dwordx4 %s, %s, %s, s%d offen offset:%d" % (v(vSTP + 4 * i, 4), v(vT1), srd(SRD_WS), sTMP, 16 * i))
lab("L_end")
e("s_endpgm")
lab("L_p2slow")
e("buffer_store_dwordx4 %s, %s, %s, s%d offen sc1" % (v(vZ2, 4), v(vP2), srd(SRD_WS), sOFF2))
e("s_branch L_p2done")
lab("L_codeend")

if int(opts.get("reord", 1)):
    ia = L.index("L_A:")
    ib = L.index("L_Aend1:")
    blk = L[ia:ib] + ["    s_branch L_A2"]
    L[ia:ib] = ["L_A2:"]
    ic = L.index("L_B0:")
    L[ic:ic] = blk
hdr = open("cdna_kernels/%s.s.ref" % NAME).read().split("\n")
head = []
for ln in hdr:
    if ln.startswith("; @launch"):
        head.append("; @launch grid=(256,1,1) block=(512,1,1) lds=%d" % LDS_TOTAL)
    elif ln.startswith(";"):
        head.append(ln)
    else:
        break
out = "\n".join(head) + "\n"
out += DOC
out += '.amdgcn_target "amdgcn-amd-amdhsa--gfx950"\n.text\n.globl %s_kernel\n.p2align 8\n.type %s_kernel,@function\n%s_kernel:\n' % (NAME, NAME, NAME)
out += "\n".join(L) + "\n"
out += '''.section .rodata,"a"
.p2align 6
.amdhsa_kernel %s_kernel
  .amdhsa_next_free_vgpr %d
  .amdhsa_next_free_sgpr 102
  .amdhsa_accum_offset %d
  .amdhsa_group_segment_fixed_size 0
  .amdhsa_kernarg_size 104
  .amdhsa_user_sgpr_count 2
  .amdhsa_user_sgpr_kernarg_segment_ptr 1
  .amdhsa_system_sgpr_workgroup_id_x 1
  .amdhsa_float_denorm_mode_32 3
.end_amdhsa_kernel
''' % (NAME, NVGPR, NVGPR)
open(sys.argv[1], "w").write(out)
```

```python
import sys, struct, math
NAME = "recurrent_scan__sliding_block_cached__mixer_token_mlp__decode"
opts = dict(a.split("=") if "=" in a else (a, "1") for a in sys.argv[2:])
STAMPS = int(opts.get("stamps", 0))
PAD = int(opts.get("pad", 0))
PREFETCH = int(opts.get("pf", 0))
PREWRITE = int(opts.get("pw", 2))
QK = int(opts.get("qk", 4))
H2B = int(opts.get("h2b", 1))
WOL = int(opts.get("wol", 0))
NOS = int(opts.get("nos", 1))
NOBC = int(opts.get("nobc", 1))
PV2 = int(opts.get("pv2", 1))
GLATE = int(opts.get("glate", 1))
SPF = int(opts.get("spf", 0))
DPF = int(opts.get("dpf", 0))
EPF = int(opts.get("epf", 1))
XFLIP = int(opts.get("xflip", "0"), 0)
WOF = int(opts.get("wof", 1))
XLIN = int(opts.get("xlin", 1))
B1ONLY = int(opts.get("b1only", 1))

SM = " nt" if int(opts.get("smnt", 0)) else ""
PFM = " nt" if int(opts.get("pfnt", 0)) else ""
PFLATE = int(opts.get("pflate", 1))
B1B = int(opts.get("b1b", 1))
FASTST = opts.get("fastst", "")
FORCE_SLOW = int(opts.get("slow", 0))
NPIPE = int(opts.get("npipe", 4))
SLEEP = int(opts.get("sleep", 3))
THR = int(opts.get("thr", 6))
LSLEEP = int(opts.get("lsleep", 0))
QWAIT = int(opts.get("qwait", -1))
QD0 = int(opts.get("qd0", 13))
QD1 = int(opts.get("qd1", 8))
QPIPE = int(opts.get("qpipe", 0))
H3LD = opts.get("h3ld", "sc1").replace("+", " ")
H3ST = opts.get("h3st", "sc1").replace("+", " ")
ATOM = int(opts.get("atom", 0))
PRESLEEP = int(opts.get("presleep", 18))

L = []
DOC = """; ---------------------------------------------------------------------------------------------
; Hand-offs go through d_ws as 16-byte granules that carry a per-launch tag (derived from an epoch word in
; one die do group hand-offs stay in that die's L2, otherwise write-through (sc1) mailboxes are used.
; ---------------------------------------------------------------------------------------------
"""
def e(s): L.append("    " + s)
def lab(s): L.append(s + ":")
def c(s): L.append("    ; " + s)
def f2u(x): return struct.unpack("<I", struct.pack("<f", x))[0]
def hx(x): return "0x%08x" % (x & 0xffffffff)

XN = 0
QL = 1024
MODE = QL + 1088
HX = MODE + 16
OX = 2176
ML = 2304
YB = 2432
CMB = 2560
KBUF = 12288
KP, VP = 1040, 1056
VBUF = KBUF + 32 * KP
WQB = VBUF + 32 * VP
WOB = WQB + 16384
LDS_TOTAL = WOB + 16896
EPOCH = 0
MB1A = 1 << 17
MB1B = MB1A + (1 << 17)
MB3 = MB1B + (1 << 17)
MB2A = 1 << 20
MB2B = 2 << 20
NREP = int(opts.get("nrep", 0))
if NREP: MB3 = 3 << 20
WS_USED = (3 << 20) + NREP * (1 << 18)
STAMP_OFF = 32 << 20
WS_NREC = (33 << 20) if STAMPS else WS_USED

sWAVE, sG, sC, sP4, sPIV, sA, sB = 3, 4, 5, 6, 7, 8, 9
sTAG = 10
sSPIN, sTMP, sM0, sOFF = 12, 13, 14, 15
sE, sXP = 42, 43
SRD_A, SRD_B, SRD_C, SRD_D, SRD_WS = 44, 48, 52, 56, 60
sB2, sCNT, sAW, sMODE = 64, 65, 66, 67
sMASKQ, sMASK0, sN1, sN2, sN4, sM8 = 68, 70, 72, 74, 76, 78
sH0, sH1 = 80, 81
sT3 = 82
sOFF2, sOFF3, sSTEP = 84, 85, 86
sPC = 88
sST = 98
def srd(b): return "s[%d:%d]" % (b, b + 3)
def sp(b): return "s[%d:%d]" % (b, b + 1)
def v(a, n=1): return "v%d" % a if n == 1 else "v[%d:%d]" % (a, a + n - 1)

vL, vQ, vN, vT0, vT1, vT2 = 1, 2, 3, 4, 5, 6
vSTP = 240
NVGPR = int(opts.get("nv", 256))

def stamp(i):
    if not STAMPS: return
    e("s_waitcnt lgkmcnt(0)")
    e("s_memrealtime %s" % sp(sST))
    e("s_waitcnt lgkmcnt(0)")
    e("v_mov_b32 %s, s%d" % (v(vSTP + i), sST))

def dpp_reduce(op, regs, steps):
    for s in steps:
        pad = 2 - (len(regs) - 1)
        if pad > 0: e("s_nop %d" % (pad - 1))
        for r in regs:
            e("%s_dpp %s, %s, %s %s" % (op, v(r), v(r), v(r), s))
ROW = ["row_ror:8 row_mask:0xf bank_mask:0xf", "row_ror:4 row_mask:0xf bank_mask:0xf",
       "row_ror:2 row_mask:0xf bank_mask:0xf", "row_ror:1 row_mask:0xf bank_mask:0xf"]
XROW = ["row_bcast:15 row_mask:0xa bank_mask:0xf", "row_bcast:31 row_mask:0xc bank_mask:0xf"]
def unpack(dst, src):
    e("v_lshlrev_b32 %s, 16, %s" % (v(dst), v(src)))
    e("v_and_b32 %s, 0xffff0000, %s" % (v(dst + 1), v(src)))
def round1(r):
    e("v_cvt_pk_bf16_f32 %s, %s, %s" % (v(r), v(r), v(r)))
    e("v_and_b32 %s, 0xffff0000, %s" % (v(r), v(r)))
def round2(r, tmp):
    e("v_cvt_pk_bf16_f32 %s, %s, %s" % (v(tmp), v(r), v(r + 1)))
    unpack(r, tmp)
def ln_finish(vmean, vvar):
    e("v_max_f32 %s, 0, %s" % (v(vvar), v(vvar)))
    round1(vmean)
    round1(vvar)
    e("v_add_f32 %s, %s, %s" % (v(vvar), hx(f2u(1e-5)), v(vvar)))
    round1(vvar)
    e("v_sqrt_f32 %s, %s" % (v(vvar), v(vvar)))
    e("s_nop 0")
    round1(vvar)
    e("v_rcp_f32 %s, %s" % (v(vvar), v(vvar)))
    e("s_nop 0")
def spin_check(retry_label):
    e("s_sub_u32 s%d, s%d, 1" % (sSPIN, sSPIN))
    e("s_cbranch_scc0 %s" % retry_label)
    e("s_branch L_end")
def mksrd(b, p, n):
    e("s_mov_b64 %s, %s" % (sp(b), sp(p)))
    e("s_mov_b32 s%d, %s" % (b + 2, hx(n)))
    e("s_mov_b32 s%d, 0x00020000" % (b + 3))
def mask(r, m):
    e("s_mov_b32 s%d, %s" % (r, hx(m)))
    e("s_mov_b32 s%d, %s" % (r + 1, hx(m)))
def mktag():
    e("s_mul_i32 s%d, s%d, 0x9E3779B1" % (sTAG, sE))
    e("s_add_u32 s%d, s%d, 0x632BE5AB" % (sTAG, sTAG))
fs = (" " + FASTST) if FASTST else ""

lab("L_start")
if EPF: e("s_getpc_b64 %s" % sp(sPC))
e("s_cmp_ge_u32 s2, 256")
e("s_cbranch_scc1 L_end")
e("s_load_dwordx16 s[16:31], s[0:1], 0")
e("s_load_dwordx8 s[32:39], s[0:1], 64")
e("s_load_dwordx2 s[40:41], s[0:1], 96")
if EPF:
    NL = 4 if STAMPS else 2
    c("pull the kernel's code into L2: every workgroup fetches %d of its 128 B lines" % NL)
    e("s_lshr_b32 s%d, s2, 3" % sTMP)
    e("s_lshl_b32 s%d, s%d, %d" % (sTMP, sTMP, 9 if STAMPS else 8))
    e("v_lshl_add_u32 %s, v0, 7, s%d" % (v(35), sTMP))
    e("v_cmp_gt_u32 vcc, %d, v0" % NL)
    e("v_min_u32 %s, L_codeend-L_start-8, %s" % (v(35), v(35)))
    e("s_and_saveexec_b64 s[90:91], vcc")
    e("s_cbranch_execz L_noepf")
    e("global_load_dword %s, %s, %s%s" % (v(35), v(35), sp(sPC), PFM))
    lab("L_noepf")
    e("s_mov_b64 exec, -1")
if STAMPS:
    e("s_memrealtime %s" % sp(sST))
    for i in range(16): e("v_mov_b32 %s, 0" % v(vSTP + i))
    if EPF: e("v_mov_b32 %s, s%d" % (v(vSTP + 14), sPC))
DBG = int(opts.get("dbg", 0))
if PAD or DBG: e("s_memrealtime s[100:101]")
e("v_lshrrev_b32 %s, 6, v0" % v(vT0))
e("v_and_b32 %s, 63, v0" % v(vL))
e("v_readfirstlane_b32 s%d, %s" % (sWAVE, v(vT0)))
e("v_lshrrev_b32 %s, 4, %s" % (v(vQ), v(vL)))
e("v_and_b32 %s, 15, %s" % (v(vN), v(vL)))
e("s_and_b32 s%d, s2, 7" % sG)
e("s_lshr_b32 s%d, s2, 3" % sC)
e("s_mov_b32 s%d, 0x40000" % sSPIN)
e("s_cmp_ge_u32 s%d, 4" % sWAVE)
e("s_cbranch_scc1 L_A")
vX = 8
if XLIN:
    e("v_lshlrev_b32 %s, 4, %s" % (v(vT0), v(vL)))
else:
    c("x offset: (l>>2)*64 + (l&3)*8")
    e("v_lshrrev_b32 %s, 2, %s" % (v(vT0), v(vL)))
    e("v_and_b32 %s, 3, %s" % (v(vT1), v(vL)))
    e("v_lshlrev_b32 %s, 6, %s" % (v(vT0), v(vT0)))
    e("v_lshl_add_u32 %s, %s, 3, %s" % (v(vT0), v(vT1), v(vT0)))
def xload():
    if XLIN:
        e("global_load_dwordx4 %s, %s, s[16:17]" % (v(vX, 4), v(vT0)))
    else:
        e("global_load_dwordx2 %s, %s, s[16:17]" % (v(vX, 2), v(vT0)))
        e("global_load_dwordx2 %s, %s, s[16:17] offset:32" % (v(vX + 2, 2), v(vT0)))
e("s_lshl_b32 s%d, s%d, 5" % (sP4, sG))
e("s_add_u32 s%d, s%d, s%d" % (sP4, sP4, sC))
e("s_lshl_b32 s%d, s%d, 2" % (sP4, sP4))
e("s_cmp_lg_u32 s%d, 0" % sWAVE)
e("s_cbranch_scc1 L_B0")
c("---- Q wave: issue x and wq loads ----")
e("s_setprio 3")
e("v_lshrrev_b32 %s, 3, %s" % (v(vT1), v(vL)))
e("v_lshlrev_b32 %s, 1, %s" % (v(vT2), v(vQ)))
e("v_xor_b32 %s, %s, %s" % (v(vT2), v(vT2), v(vL)))
e("v_and_b32 %s, 7, %s" % (v(vT2), v(vT2)))
e("v_lshlrev_b32 %s, 13, %s" % (v(vT1), v(vT1)))
e("v_lshl_add_u32 %s, %s, 4, %s" % (v(vT1), v(vT2), v(vT1)))
e("s_and_b32 s%d, s%d, 3" % (sOFF, sC))
e("s_lshl_b32 s%d, s%d, 20" % (sOFF, sOFF))
e("s_lshl_b32 s%d, s%d, 10" % (sTMP, sG))
e("s_add_u32 s%d, s%d, s%d" % (sOFF, sOFF, sTMP))
e("s_lshr_b32 s%d, s%d, 2" % (sTMP, sC))
e("s_lshl_b32 s%d, s%d, 7" % (sTMP, sTMP))
e("s_add_u32 s%d, s%d, s%d" % (sOFF, sOFF, sTMP))
e("s_mov_b32 m0, %d" % WQB)
e("s_mov_b32 s%d, %s" % (SRD_B + 2, hx(1 << 22)))
e("s_mov_b32 s%d, 0x00020000" % (SRD_B + 3))
WQ4 = int(opts.get("wq4", 0))
e("s_mov_b32 s%d, %d" % (sCNT, 12 if WQ4 else 16))
if WQ4: e("s_mov_b32 s%d, %d" % (sSTEP, 65536 - 1024))
vEP = 22
e("v_mov_b32 %s, 0" % v(vEP))
e("s_waitcnt lgkmcnt(0)")
if STAMPS: e("v_mov_b32 %s, s%d" % (v(vSTP), sST))
e("s_mov_b64 %s, s[22:23]" % sp(SRD_B))
xload()
e("global_load_dword %s, %s, s[40:41] offset:%d sc1%s" % (v(vEP), v(vEP), EPOCH, SM))
lab("L_wqloop")
if WQ4:
    for i in range(4):
        e("buffer_load_dwordx4 %s, %s, s%d offen offset:%d nt lds" % (v(vT1), srd(SRD_B), sOFF, 1024 * i))
        if i < 3: e("s_add_u32 s%d, s%d, s%d" % (sOFF, sOFF, sSTEP))
    e("s_add_u32 m0, m0, 4096")
    e("s_add_u32 s%d, s%d, %d" % (sOFF, sOFF, 65536 + 3072))
    e("s_sub_u32 s%d, s%d, 4" % (sCNT, sCNT))
    e("s_cbranch_scc0 L_wqloop")
else:
    e("buffer_load_dwordx4 %s, %s, s%d offen nt lds" % (v(vT1), srd(SRD_B), sOFF))
    e("s_sub_u32 s%d, s%d, 1" % (sCNT, sCNT))
    e("s_add_u32 m0, m0, 1024")
    e("s_add_u32 s%d, s%d, 65536" % (sOFF, sOFF))
    e("s_cmp_lg_u32 s%d, 0" % sCNT)
    e("s_cbranch_scc1 L_wqloop")
if QWAIT >= 0: e("s_waitcnt vmcnt(%d)" % QWAIT)
e("s_barrier")
mksrd(SRD_WS, 40, WS_NREC)
c("publish address: (n>>1)*128 + q'*32 + (n&1)*16 ; record (g*32+c)*512")
vPUB = 7
e("v_lshrrev_b32 %s, 1, %s" % (v(vT0), v(vN)))
e("v_lshlrev_b32 %s, 7, %s" % (v(vT0), v(vT0)))
e("v_lshl_add_u32 %s, %s, 5, %s" % (v(vT0), v(vQ), v(vT0)))
e("v_and_b32 %s, 1, %s" % (v(vT1), v(vN)))
e("v_lshl_add_u32 %s, %s, 4, %s" % (v(vPUB), v(vT1), v(vT0)))
e("s_lshl_b32 s%d, s%d, 7" % (sOFF, sP4))
e("s_add_u32 s%d, s%d, %d" % (sOFF, sOFF, MB1A))
mask(sM8, 0x00FF00FF)
vXW = 23
if XLIN:
    e("v_lshrrev_b32 %s, 2, %s" % (v(vXW), v(vL)))
    e("v_lshlrev_b32 %s, 6, %s" % (v(vXW), v(vXW)))
    e("v_lshl_add_u32 %s, %s, 5, %s" % (v(vXW), v(vT1), v(vXW)))
    e("v_bfe_u32 %s, %s, 1, 1" % (v(vT0), v(vL)))
    e("v_lshl_add_u32 %s, %s, 3, %s" % (v(vXW), v(vT0), v(vXW)))
vZ = 12
if PREWRITE == 2:
    e("v_lshlrev_b32 %s, 4, %s" % (v(vT0), v(vL)))
    e("s_mov_b32 exec_hi, 0")
    e("buffer_load_dwordx4 %s, %s, %s, s%d offen nt" % (v(28, 4), v(vT0), srd(SRD_WS), sOFF))
    e("s_mov_b64 exec, -1")
elif PREWRITE:
    for i in range(4): e("v_mov_b32 %s, 0" % v(vZ + i))
    e("s_mov_b64 exec, %s" % sp(sM8))
    e("buffer_store_dwordx4 %s, %s, %s, s%d offen%s" % (v(vZ, 4), v(vPUB), srd(SRD_WS), sOFF, fs))
    e("s_mov_b64 exec, -1")
NQ = 1 if PREWRITE else 0
e("s_waitcnt vmcnt(%d)" % (16 + NQ))
e("s_branch L_ln1")
lab("L_B0")
c("---- B waves: issue x, w1, b1, w2 loads ----")
vW1, vB1, vW2 = 16, 22, 28
if DPF:
    c("distributed code prefetch into L2: this workgroup pulls a few lines (needs no kernarg)")
    e("s_cmp_lg_u32 s%d, 1" % sWAVE)
    e("s_cbranch_scc1 L_nodpf")
    e("s_getpc_b64 %s" % sp(sPC))
    lab("L_pc3")
    NL = 4 if STAMPS else 2 * DPF
    e("s_sub_u32 s%d, s%d, L_pc3-L_start" % (sPC, sPC))
    e("s_subb_u32 s%d, s%d, 0" % (sPC + 1, sPC + 1))
    e("s_mul_i32 s%d, s%d, %d" % (sTMP, sC, NL * 128))
    if not STAMPS: e("s_and_b32 s%d, s%d, 8191" % (sTMP, sTMP))
    e("v_lshl_add_u32 %s, %s, 7, s%d" % (v(35), v(vL), sTMP))
    e("v_min_u32 %s, L_codeend-L_start-4, %s" % (v(35), v(35)))
    e("s_mov_b64 exec, %d" % ((1 << NL) - 1))
    e("global_load_dword %s, %s, %s" % (v(35), v(35), sp(sPC)))
    e("s_mov_b64 exec, -1")
    lab("L_nodpf")
BW = int(opts.get("bw", 1))
e("v_subrev_u32 %s, 64, v0" % v(vT1))
if BW:
    e("v_lshlrev_b32 %s, 2, %s" % (v(vT2), v(vT1)))
    e("v_lshlrev_b32 %s, 4, %s" % (v(vT1), v(vT1)))
else:
    e("v_mul_u32_u24 %s, 20, %s" % (v(vT1), v(vT1)))
e("v_mov_b32 %s, s%d" % (v(33), sP4))
if NOS: e("v_mov_b32 %s, 0" % v(34))
e("s_waitcnt lgkmcnt(0)")
if STAMPS: e("v_mov_b32 %s, s%d" % (v(vSTP), sST))
if B1ONLY:
    e("s_cmp_lg_u32 s%d, 1" % sWAVE)
    e("s_cbranch_scc1 L_nox")
xload()
e("global_load_dword %s, %s, s[16:17]" % (v(33), v(33)))
if NOS:
    assert B1ONLY
    e("global_load_ushort %s, %s, s[34:35]" % (v(34), v(34)))
if B1ONLY: lab("L_nox")
for b, p, r in ((SRD_A, 28, vW1), (SRD_B, 30, vB1), (SRD_C, 32, vW2)):
    mksrd(b, p, 3584)
mksrd(SRD_WS, 40, WS_NREC)
e("v_mov_b32 %s, 0" % v(vPUB))
PR3 = int(opts.get("epr3", 0))
if PR3:
    e("s_cmp_lg_u32 s%d, 2" % sWAVE)
    e("s_cbranch_scc1 L_nopr3")
    if PR3 == 1:
        e("s_lshr_b32 s%d, s%d, 8" % (sA, sP4))
        e("s_lshl_b32 s%d, s%d, 16" % (sA, sA))
        e("s_and_b32 s%d, s%d, 0xe0" % (sB, sP4))
        e("s_lshl_b32 s%d, s%d, 2" % (sB, sB))
        e("s_add_u32 s%d, s%d, s%d" % (sA, sA, sB))
        e("s_and_b32 s%d, s%d, 0x1c" % (sB, sP4))
        e("s_lshl_b32 s%d, s%d, 11" % (sB, sB))
        e("s_add_u32 s%d, s%d, s%d" % (sA, sA, sB))
        e("v_lshlrev_b32 %s, 10, %s" % (v(34), v(vL)))
    else:
        e("s_and_b32 s%d, s%d, 3" % (sA, sC))
        e("s_lshl_b32 s%d, s%d, 16" % (sA, sA))
        e("s_lshl_b32 s%d, s%d, 13" % (sB, sG))
        e("s_add_u32 s%d, s%d, s%d" % (sA, sA, sB))
        e("s_lshr_b32 s%d, s%d, 2" % (sB, sC))
        e("s_lshl_b32 s%d, s%d, 10" % (sB, sB))
        e("s_add_u32 s%d, s%d, s%d" % (sA, sA, sB))
        e("v_and_b32 %s, 7, %s" % (v(34), v(vL)))
        e("v_lshlrev_b32 %s, 7, %s" % (v(34), v(34)))
        e("v_lshrrev_b32 %s, 3, %s" % (v(35), v(vL)))
        e("v_lshl_add_u32 %s, %s, 18, %s" % (v(34), v(35), v(34)))
    e("s_add_u32 s%d, s%d, %d" % (sA, sA, MB3))
    e("s_mov_b32 exec_lo, 0x%x" % (((1 << (8 * max(1, NREP))) - 1) & 0xffffffff))
    e("s_mov_b32 exec_hi, 0x%x" % (((1 << (8 * max(1, NREP))) - 1) >> 32))
    e("buffer_load_dword %s, %s, %s, s%d offen %s" % (v(34), v(34), srd(SRD_WS), sA, opts.get("pr3m", "sc1").replace("none", "")))
    e("s_mov_b64 exec, -1")
    lab("L_nopr3")
if BW == 2: e("s_barrier")
for b, p, r in ((SRD_A, 28, vW1), (SRD_B, 30, vB1), (SRD_C, 32, vW2)):
    if int(opts.get("nob", 0)): continue
    e("buffer_load_dwordx4 %s, %s, %s, 0 offen" % (v(r, 4), v(vT1), srd(b)))
    if BW: e("buffer_load_dword %s, %s, %s, 0 offen offset:3072" % (v(r + 4), v(vT2), srd(b)))
    else: e("buffer_load_dword %s, %s, %s, 0 offen offset:16" % (v(r + 4), v(vT1), srd(b)))
if BW != 2: e("s_barrier")
PRO = int(opts.get("pro", 0))
if PRO:
    e("s_cmp_lg_u32 s%d, 3" % sWAVE)
    e("s_cbranch_scc1 L_nopro")
    if PRO == 2:
        e("s_cmp_lg_u32 s%d, 0" % sC)
        e("s_cbranch_scc1 L_nopro")
    e("global_load_dword %s, %s, s[36:37] nt" % (v(33), v(33)))
    lab("L_nopro")
if B1ONLY:
    e("s_cmp_lg_u32 s%d, 1" % sWAVE)
    e("s_cbranch_scc1 L_B2")
if PREFETCH:
    c("pull the kernel's code into L2 (first two workgroups of each group, wave 1)")
    e("s_cmp_ge_u32 s%d, 2" % sC)
    e("s_cbranch_scc1 L_nopf")
    e("s_cmp_lg_u32 s%d, 1" % sWAVE)
    e("s_cbranch_scc1 L_nopf")
    e("s_getpc_b64 %s" % sp(sPC))
    lab("L_pc")
    e("s_sub_u32 s%d, s%d, L_pc-L_start" % (sPC, sPC))
    e("s_subb_u32 s%d, s%d, 0" % (sPC + 1, sPC + 1))
    e("v_lshlrev_b32 %s, 7, %s" % (v(vT0), v(vL)))
    e("v_min_u32 %s, L_codeend-L_start-4, %s" % (v(vT1), v(vT0)))
    e("global_load_dword %s, %s, %s" % (v(34), v(vT1), sp(sPC)))
    if STAMPS:
        e("v_add_u32 %s, 8192, %s" % (v(vT0), v(vT0)))
        e("v_min_u32 %s, L_codeend-L_start-4, %s" % (v(vT1), v(vT0)))
        e("global_load_dword %s, %s, %s" % (v(35), v(vT1), sp(sPC)))
    e("s_waitcnt vmcnt(%d)" % (8 if STAMPS else 7))
    e("s_branch L_ln1")
    lab("L_nopf")
e("s_waitcnt vmcnt(%d)" % (0 if int(opts.get("nob", 0)) else 6))
lab("L_ln1")
c("---- LN1 (Q and B waves) ----")
stamp(1)
vF, vD, vS1, vS2, vM, vR, vXN = 36, 44, 52, 53, 54, 55, 56
for i in range(4): unpack(vF + 2 * i, vX + i)
e("v_readfirstlane_b32 s%d, %s" % (sPIV, v(vF)))
e("s_nop 1")
for i in range(8): e("v_subrev_f32 %s, s%d, %s" % (v(vD + i), sPIV, v(vF + i)))
def sums():
    e("v_add_f32 %s, %s, %s" % (v(vS1), v(vD), v(vD + 1)))
    e("v_mul_f32 %s, %s, %s" % (v(vS2), v(vD), v(vD)))
    e("v_fmac_f32 %s, %s, %s" % (v(vS2), v(vD + 1), v(vD + 1)))
    for i in range(2, 8):
        e("v_add_f32 %s, %s, %s" % (v(vS1), v(vS1), v(vD + i)))
        e("v_fmac_f32 %s, %s, %s" % (v(vS2), v(vD + i), v(vD + i)))
    dpp_reduce("v_add_f32", [vS1, vS2], ROW + XROW)
    e("s_nop 0")
    e("v_readlane_b32 s%d, %s, 63" % (sA, v(vS1)))
    e("v_readlane_b32 s%d, %s, 63" % (sB, v(vS2)))
sums()
e("v_mov_b32 %s, %s" % (v(vT0), hx(f2u(1.0 / 512))))
e("s_nop 0")
e("v_mul_f32 %s, s%d, %s" % (v(vM), sA, v(vT0)))
e("v_mul_f32 %s, s%d, %s" % (v(vR), sB, v(vT0)))
e("v_fma_f32 %s, -%s, %s, %s" % (v(vR), v(vM), v(vM), v(vR)))
e("v_add_f32 %s, s%d, %s" % (v(vM), sPIV, v(vM)))
ln_finish(vM, vR)
for i in range(8): e("v_sub_f32 %s, %s, %s" % (v(vD + i), v(vF + i), v(vM)))
for i in range(4): e("v_cvt_pk_bf16_f32 %s, %s, %s" % (v(vXN + i), v(vD + 2 * i), v(vD + 2 * i + 1)))
for i in range(4): unpack(vD + 2 * i, vXN + i)
for i in range(8): e("v_mul_f32 %s, %s, %s" % (v(vD + i), v(vD + i), v(vR)))
for i in range(4): e("v_cvt_pk_bf16_f32 %s, %s, %s" % (v(vXN + i), v(vD + 2 * i), v(vD + 2 * i + 1)))
e("s_cmp_lg_u32 s%d, 0" % sWAVE)
e("s_cbranch_scc1 L_B1")
c("======== Q wave: partial q (128 rows x 64 columns) ========")
vBF = 64
vAF = 80
vQA = 144
vAD = 60
if XLIN:
    assert XN == 0
    e("ds_write2_b64 %s, %s, %s offset0:0 offset1:2" % (v(vXW), v(vXN, 2), v(vXN + 2, 2)))
else:
    e("v_lshlrev_b32 %s, 4, %s" % (v(vT0), v(vL)))
    e("ds_write_b128 %s, %s offset:%d" % (v(vT0), v(vXN, 4), XN))
e("s_and_b32 s%d, s%d, 3" % (sTMP, sC))
e("s_lshl_b32 s%d, s%d, 8" % (sTMP, sTMP))
e("v_lshl_add_u32 %s, %s, 4, s%d" % (v(vT0), v(vQ), sTMP))
e("v_lshrrev_b32 %s, 2, %s" % (v(vT1), v(vL)))
e("v_lshlrev_b32 %s, 7, %s" % (v(vT1), v(vT1)))
e("v_bfe_u32 %s, %s, 3, 2" % (v(vT2), v(vL)))
e("v_lshl_add_u32 %s, %s, 5, %s" % (v(vT1), v(vT2), v(vT1)))
e("v_and_b32 %s, 3, %s" % (v(vT2), v(vL)))
e("v_lshl_add_u32 %s, %s, 3, %s" % (v(vT1), v(vT2), v(vT1)))
e("v_add_u32 %s, %d, %s" % (v(vAD), WQB, v(vT1)))
assert WQB % 256 == 0
for b in range(1, 4): e("v_xor_b32 %s, %d, %s" % (v(vAD + b), b << 5, v(vAD)))
e("s_waitcnt lgkmcnt(0)")
for s in range(4):
    e("ds_read_b128 %s, %s offset:%d" % (v(vBF + 4 * s, 4), v(vT0), XN + 64 * s))
e("v_readfirstlane_b32 s%d, %s" % (sE, v(vEP)))
mktag()
e("s_getreg_b32 s%d, hwreg(HW_REG_XCC_ID, 0, 4)" % (sTAG + 1))
if FORCE_SLOW: e("s_add_u32 s%d, s%d, s2" % (sTAG + 1, sTAG + 1))
e("v_mov_b32 %s, s%d" % (v(vZ + 2), sTAG))
e("v_mov_b32 %s, s%d" % (v(vZ + 3), sTAG + 1))
mask(sN1, 0xAAAAAAAA); mask(sN2, 0xCCCCCCCC); mask(sN4, 0xF0F0F0F0)
def q_reads(s):
    e("s_waitcnt vmcnt(%d)" % (12 - 4 * s + NQ))
    for b in range(4):
        for h in range(2):
            e("ds_read_b64_tr_b16 %s, %s offset:%d" % (v(vAF + 16 * s + 4 * b + 2 * h, 2), v(vAD + b), 4096 * s + 2048 * h))
def q_mfma(s, behind):
    for b in range(4):
        e("s_waitcnt lgkmcnt(%d)" % (6 - 2 * b + behind))
        e("v_mfma_f32_16x16x32_bf16 %s, %s, %s, %s" % (v(vQA + 4 * b, 4), v(vAF + 16 * s + 4 * b, 4), v(vBF + 4 * s, 4), v(vQA + 4 * b, 4) if s else "0"))
q_reads(0)
for s in range(4):
    if s < 3: q_reads(s + 1)
    q_mfma(s, 8 if s < 3 else 0)
c("gather address: (l>>3)*2048 + (l&7)*16")
vGA = 16
e("v_lshrrev_b32 %s, 3, %s" % (v(vT0), v(vL)))
e("v_and_b32 %s, 7, %s" % (v(vT1), v(vL)))
e("v_lshlrev_b32 %s, 11, %s" % (v(vGA), v(vT0)))
e("v_lshl_add_u32 %s, %s, 4, %s" % (v(vGA), v(vT1), v(vGA)))
e("s_nop 1")
for b in range(4):
    e("v_cndmask_b32 %s, %s, %s, %s" % (v(vD + 2 * b), v(vQA + 4 * b), v(vQA + 4 * b + 2), sp(sN1)))
    e("v_cndmask_b32 %s, %s, %s, %s" % (v(vD + 2 * b + 1), v(vQA + 4 * b + 1), v(vQA + 4 * b + 3), sp(sN1)))
for k in range(2):
    e("v_cndmask_b32 %s, %s, %s, %s" % (v(vD + 4 * k), v(vD + 4 * k), v(vD + 4 * k + 2), sp(sN2)))
    e("v_cndmask_b32 %s, %s, %s, %s" % (v(vD + 4 * k + 1), v(vD + 4 * k + 1), v(vD + 4 * k + 3), sp(sN2)))
e("v_cndmask_b32 %s, %s, %s, %s" % (v(vZ), v(vD), v(vD + 4), sp(sN4)))
e("v_cndmask_b32 %s, %s, %s, %s" % (v(vZ + 1), v(vD + 1), v(vD + 5), sp(sN4)))
e("s_mov_b64 exec, %s" % sp(sM8))
e("buffer_store_dwordx4 %s, %s, %s, s%d offen%s" % (v(vZ, 4), v(vPUB), srd(SRD_WS), sOFF, fs))
e("s_mov_b64 exec, -1")
if B1B: e("s_barrier")
stamp(2)
c("q LDS write address: (l>>3)*128 + (l>>4)*16 + (l&7)*4")
vQW = 17
e("v_lshlrev_b32 %s, 7, %s" % (v(vQW), v(vT0)))
e("v_lshl_add_u32 %s, %s, 4, %s" % (v(vQW), v(vQ), v(vQW)))
e("v_lshl_add_u32 %s, %s, 2, %s" % (v(vQW), v(vT1), v(vQW)))
e("v_add_u32 %s, %d, %s" % (v(vQW), QL, v(vQW)))
e("s_lshl_b32 s%d, s%d, 14" % (sOFF2, sG))
e("s_add_u32 s%d, s%d, %d" % (sOFF2, sOFF2, MB1A))
e("s_mov_b32 s%d, 0" % sCNT)
e("s_mov_b32 s%d, 1" % sMODE)
G1 = 80
G1B = 160
QS = 24
def q_loads(soff, G=G1):
    for rb in range(4):
        for k in range(QK):
            e("buffer_load_dwordx4 %s, %s, %s, s%d offen offset:%d sc1" % (v(G + 16 * rb + 4 * k, 4), v(vGA), srd(SRD_WS), soff, 512 * rb + 128 * k))
def q_sum(i, G=G1):
    rb, k = divmod(i, 4)
    if rb == 0: return
    for j in range(2):
        e("v_add_f32 %s, %s, %s" % (v(QS + 2 * k + j), v(G + 4 * k + j) if rb == 1 else v(QS + 2 * k + j), v(G + 16 * rb + 4 * k + j)))
def q_check(G, behind):
    idx = [i for i in range(16) if i % 4 < QK]
    if behind: behind = len(idx)
    for n_, i in enumerate(idx):
        e("s_waitcnt vmcnt(%d)" % (len(idx) - 1 - n_ + behind))
        e("v_cmpx_eq_u64 vcc, %s, %s" % (sp(sTAG), v(G + 4 * i + 2, 2)))
        q_sum(i, G)
    e("s_cmp_eq_u64 exec, -1")
if int(opts.get("noq", 0)): e("s_branch L_qok")
c("poll back-off: a gather issued before the other members have published is wasted and, as this CU's")
c("vector memory path returns in order behind the K/V stream, a retry costs a whole round trip")
if QD0: e("s_sleep %d" % QD0)
lab("L_qpollA")
if QPIPE:
    q_loads(sOFF2, G1)
    if QD1: e("s_sleep %d" % QD1)
    lab("L_qpollA2")
    q_loads(sOFF2, G1B)
    q_check(G1, 16)
    e("s_cbranch_scc1 L_qok")
    e("s_mov_b64 exec, -1")
    q_loads(sOFF2, G1)
    q_check(G1B, 16)
    e("s_cbranch_scc0 L_qfail")
else:
    q_loads(sOFF2, G1)
    q_check(G1, 0)
    e("s_cbranch_scc0 L_qfail")
lab("L_qok")
for k in range(4): e("v_cvt_pk_bf16_f32 %s, %s, %s" % (v(vD + k), v(QS + 2 * k), v(QS + 2 * k + 1)))
e("v_mov_b32 %s, s%d" % (v(vD + 4), sMODE))
e("v_mov_b32 %s, s%d" % (v(vD + 5), sTAG))
e("v_mov_b32 %s, %d" % (v(vD + 6), MODE))
e("ds_write2_b32 %s, %s, %s offset0:0 offset1:8" % (v(vQW), v(vD), v(vD + 1)))
e("ds_write2_b32 %s, %s, %s offset0:16 offset1:24" % (v(vQW), v(vD + 2), v(vD + 3)))
e("ds_write_b64 %s, %s" % (v(vD + 6), v(vD + 4, 2)))
e("s_waitcnt lgkmcnt(0)")
stamp(6)
e("s_barrier")
if not NOS:
    e("s_load_dword s%d, s[16:17], s%d" % (sXP, sP4))
    e("s_load_dword s%d, s[34:35], 0" % sB2)
if not NOBC:
    c("copy for other dies (always stored; not needed on the fast path)")
    e("s_cmp_lg_u32 s%d, 0" % sCNT)
    e("s_cbranch_scc1 L_qb_done")
    e("s_add_u32 s%d, s%d, %d" % (sOFF, sOFF, MB1B - MB1A))
    e("s_mov_b64 exec, %s" % sp(sM8))
    e("buffer_store_dwordx4 %s, %s, %s, s%d offen sc1" % (v(vZ, 4), v(vPUB), srd(SRD_WS), sOFF))
    e("s_mov_b64 exec, -1")
lab("L_qb_done")
if GLATE:
    for _ in range(4 if PV2 else 2): e("s_barrier")
c("g for own two columns")
vG, vXO = 18, 20
e("v_mov_b32 %s, 0" % v(vT1))
e("ds_read_b128 %s, %s offset:%d" % (v(vF, 4), v(vT1), YB))
e("ds_read_b64 %s, %s offset:%d" % (v(vF + 4, 2), v(vT1), YB + 16))
if NOS:
    e("ds_read_b64 %s, %s offset:%d" % (v(vF + 6, 2), v(vT1), HX + 8))
    e("s_waitcnt lgkmcnt(0)")
    unpack(vXO, vF + 6)
    e("v_lshlrev_b32 %s, 16, %s" % (v(vF + 7), v(vF + 7)))
else:
    e("s_waitcnt lgkmcnt(0)")
    e("s_lshl_b32 s%d, s%d, 16" % (sB2, sB2))
    e("v_mov_b32 %s, s%d" % (v(vT0), sXP))
    unpack(vXO, vT0)
e("v_add_f32 %s, %s, %s" % (v(vG), v(vF), v(vF + 2)))
e("v_add_f32 %s, %s, %s" % (v(vG + 1), v(vF + 1), v(vF + 3)))
e("v_add_f32 %s, %s, %s" % (v(vG), v(vG), v(vF + 4)))
e("v_add_f32 %s, %s, %s" % (v(vG + 1), v(vG + 1), v(vF + 5)))
round2(vG, vT1)
b2op = v(vF + 7) if NOS else "s%d" % sB2
e("v_add_f32 %s, %s, %s" % (v(vG), b2op, v(vG)))
e("v_add_f32 %s, %s, %s" % (v(vG + 1), b2op, v(vG + 1)))
round2(vG, vT1)
e("v_mul_f32 %s, %s, %s" % (v(vF), hx(f2u(-math.log2(math.e))), v(vG)))
e("v_mul_f32 %s, %s, %s" % (v(vF + 1), hx(f2u(-math.log2(math.e))), v(vG + 1)))
e("v_exp_f32 %s, %s" % (v(vF), v(vF)))
e("v_exp_f32 %s, %s" % (v(vF + 1), v(vF + 1)))
e("s_nop 0")
e("v_add_f32 %s, 1.0, %s" % (v(vF), v(vF)))
e("v_add_f32 %s, 1.0, %s" % (v(vF + 1), v(vF + 1)))
e("v_rcp_f32 %s, %s" % (v(vF), v(vF)))
e("v_rcp_f32 %s, %s" % (v(vF + 1), v(vF + 1)))
e("s_nop 0")
e("v_mul_f32 %s, %s, %s" % (v(vG), v(vG), v(vF)))
e("v_mul_f32 %s, %s, %s" % (v(vG + 1), v(vG + 1), v(vF + 1)))
round2(vG, vT1)
c("final gather address: MB3 + (p>>6)*65536 + l*1024 + (p&63)*16")
e("s_lshr_b32 s%d, s%d, 8" % (sOFF3, sP4))
e("s_lshl_b32 s%d, s%d, 16" % (sOFF3, sOFF3))
e("s_and_b32 s%d, s%d, 255" % (sTMP, sP4))
e("s_lshl_b32 s%d, s%d, 2" % (sTMP, sTMP))
e("s_add_u32 s%d, s%d, s%d" % (sOFF3, sOFF3, sTMP))
e("s_add_u32 s%d, s%d, %d" % (sOFF3, sOFF3, MB3))
e("v_lshlrev_b32 %s, 10, %s" % (v(vT1), v(vL)))
e("s_mov_b32 s%d, s%d" % (sT3, sTAG))
mksrd(SRD_A, 36, 1024)
e("v_mov_b32 %s, 0" % v(vT2))
if not GLATE:
    for _ in range(4 if PV2 else 2): e("s_barrier")
G3 = 64
c("poll back-off: polling lines that are not written yet slows the producers' write-through stores down")
if PRESLEEP: e("s_sleep %d" % PRESLEEP)
e("s_mov_b32 s%d, s%d" % (sT3 + 1, sTAG))
REP = 0
GAP = int(opts.get("gap", 6))
if NREP:
    sPEND = 94
    GR = 64
    for r in range(NREP):
        e("buffer_load_dwordx4 %s, %s, %s, s%d offen sc1" % (v(GR + 4 * r, 4), v(vT1), srd(SRD_WS), sOFF3))
        if r < NREP - 1:
            e("s_add_u32 s%d, s%d, %d" % (sOFF3, sOFF3, 1 << 18))
        if r == 0:
            e("s_mov_b64 %s, -1" % sp(sPEND))
        if r >= 1:
            pass
        LAG = int(opts.get("lag", 2))
        k = r - LAG
        if k >= 0:
            e("s_waitcnt vmcnt(%d)" % LAG)
            e("v_cmpx_eq_u64 vcc, %s, %s" % (sp(sT3), v(GR + 4 * k + 2, 2)))
            e("v_mov_b32 %s, %s" % (v(vF), v(GR + 4 * k)))
            e("v_mov_b32 %s, %s" % (v(vF + 1), v(GR + 4 * k + 1)))
            e("s_andn2_b64 %s, %s, exec" % (sp(sPEND), sp(sPEND)))
            e("s_cbranch_scc0 L_h3ok")
            e("s_mov_b64 exec, %s" % sp(sPEND))
        elif r < NREP - 1:
            e("s_sleep %d" % GAP)
    for k in range(max(0, NREP - LAG), NREP):
        e("s_waitcnt vmcnt(%d)" % (NREP - 1 - k))
        e("v_cmpx_eq_u64 vcc, %s, %s" % (sp(sT3), v(GR + 4 * k + 2, 2)))
        e("v_mov_b32 %s, %s" % (v(vF), v(GR + 4 * k)))
        e("v_mov_b32 %s, %s" % (v(vF + 1), v(GR + 4 * k + 1)))
        e("s_andn2_b64 %s, %s, exec" % (sp(sPEND), sp(sPEND)))
        e("s_cbranch_scc0 L_h3ok")
        e("s_mov_b64 exec, %s" % sp(sPEND))
lab("L_h3loop")
e("buffer_load_dwordx4 %s, %s, %s, s%d offen %s" % (v(vF, 4), v(vT1), srd(SRD_WS), sOFF3, H3LD))
e("s_waitcnt vmcnt(0)")
e("v_cmpx_ne_u64 vcc, %s, %s" % (sp(sT3), v(vF + 2, 2)))
e("s_cbranch_execz L_h3ok")
if LSLEEP: e("s_sleep %d" % LSLEEP)
spin_check("L_h3loop")
lab("L_h3ok")
e("s_mov_b64 exec, -1")
e("s_nop 2")
stamp(10)
dpp_reduce("v_add_f32", [vF, vF + 1], ROW + XROW)
round2(vF, vT0)
e("v_mul_f32 %s, %s, %s" % (v(vF), v(vF), v(vG)))
e("v_mul_f32 %s, %s, %s" % (v(vF + 1), v(vF + 1), v(vG + 1)))
round2(vF, vT0)
e("v_add_f32 %s, %s, %s" % (v(vF), v(vF), v(vXO)))
e("v_add_f32 %s, %s, %s" % (v(vF + 1), v(vF + 1), v(vXO + 1)))
e("v_cvt_pk_bf16_f32 %s, %s, %s" % (v(vT0), v(vF), v(vF + 1)))
e("s_mov_b32 exec_lo, 0"); e("s_mov_b32 exec_hi, 0x80000000")
OUTM = opts.get("outm", "").replace("+", " ")
e("buffer_store_dword %s, %s, %s, s%d offen %s" % (v(vT0), v(vT2), srd(SRD_A), sP4, OUTM))
if DBG:
    e("s_cmp_lg_u32 s%d, 0" % sC)
    e("s_cbranch_scc1 L_nodbg")
    e("s_memrealtime %s" % sp(sST))
    mksrd(SRD_B, 38, 256)
    e("s_lshl_b32 s%d, s%d, 2" % (sTMP, sG))
    e("s_waitcnt lgkmcnt(0)")
    e("s_and_b32 s100, s100, 0xfffff")
    e("s_and_b32 s%d, s%d, 0xfffff" % (sST, sST))
    e("v_mov_b32 %s, s100" % v(vF))
    e("v_mov_b32 %s, s%d" % (v(vF + 1), sST))
    e("buffer_store_dword %s, %s, %s, s%d offen" % (v(vF), v(vT2), srd(SRD_B), sTMP))
    e("buffer_store_dword %s, %s, %s, s%d offen offset:32" % (v(vF + 1), v(vT2), srd(SRD_B), sTMP))
    lab("L_nodbg")
e("s_cmp_lg_u32 s2, 0")
e("s_cbranch_scc1 L_fin")
e("buffer_store_dword %s, %s, %s, 0 offen offset:%d %s" % (v(vZ + 2), v(vT2), srd(SRD_WS), EPOCH, opts.get("epm", "sc1").replace("none", "")))
e("s_branch L_fin")
c("---- q gather retry / cross-die fallback ----")
lab("L_qfail")
e("s_mov_b64 exec, -1")
e("s_sub_u32 s%d, s%d, 1" % (sSPIN, sSPIN))
e("s_cbranch_scc1 L_end")
e("s_and_b32 s%d, s%d, 3" % (sTMP, sSPIN))
e("s_cmp_lg_u32 s%d, 0" % sTMP)
e("s_cbranch_scc1 %s" % ("L_qpollA2" if QPIPE else "L_qpollA"))
e("s_cmp_lg_u32 s%d, 0" % sCNT)
e("s_cbranch_scc1 L_qpollB")
e("s_mov_b32 s%d, 1" % sCNT)
e("s_add_u32 s%d, s%d, %d" % (sOFF, sOFF, MB1B - MB1A))
e("s_mov_b64 exec, %s" % sp(sM8))
e("buffer_store_dwordx4 %s, %s, %s, s%d offen sc1" % (v(vZ, 4), v(vPUB), srd(SRD_WS), sOFF))
e("s_mov_b64 exec, -1")
lab("L_qpollB")
e("s_add_u32 s%d, s%d, %d" % (sTMP, sOFF2, MB1B - MB1A))
q_loads(sTMP)
e("s_waitcnt vmcnt(0)")
for i in range(16): e("v_cmpx_eq_u32 vcc, s%d, %s" % (sTAG, v(G1 + 4 * i + 2)))
e("s_cmp_eq_u64 exec, -1")
e("s_mov_b64 exec, -1")
e("s_cbranch_scc0 L_qpollA")
for i in range(16): q_sum(i)
for i in range(16): e("v_cmpx_eq_u32 vcc, s%d, %s" % (sTAG + 1, v(G1 + 4 * i + 3)))
e("s_cmp_eq_u64 exec, -1")
e("s_cselect_b32 s%d, 1, 0" % sMODE)
e("s_mov_b64 exec, -1")
e("s_branch L_qok")

c("======== B waves ========")
lab("L_B1")
BB = int(opts.get("bb", 0))
if B1B and BB and not B1ONLY: e("s_barrier")
for i in range(4): unpack(vD + 2 * i, vXN + i)
sums()
unpack(vD, 33)
def norm2():
    e("v_sub_f32 %s, %s, %s" % (v(vD), v(vD), v(vM)))
    e("v_sub_f32 %s, %s, %s" % (v(vD + 1), v(vD + 1), v(vM)))
    round2(vD, vT0)
    e("v_mul_f32 %s, %s, %s" % (v(vD), v(vD), v(vR)))
    e("v_mul_f32 %s, %s, %s" % (v(vD + 1), v(vD + 1), v(vR)))
    round2(vD, vT0)
norm2()
e("v_mov_b32 %s, %s" % (v(vT0), hx(f2u(1.0 / 512))))
e("v_mul_f32 %s, s%d, %s" % (v(vM), sA, v(vT0)))
e("v_mul_f32 %s, s%d, %s" % (v(vR), sB, v(vT0)))
e("v_fma_f32 %s, -%s, %s, %s" % (v(vR), v(vM), v(vM), v(vR)))
ln_finish(vM, vR)
norm2()
if B1ONLY:
    assert B1B
    e("v_mov_b32 %s, %d" % (v(vT0), HX))
    e("ds_write_b64 %s, %s" % (v(vT0), v(vD, 2)))
    if NOS: e("ds_write2_b32 %s, %s, %s offset0:2 offset1:3" % (v(vT0), v(33), v(34)))
    e("s_waitcnt lgkmcnt(0)")
    lab("L_B2")
else:
    e("s_nop 0")
    e("v_readfirstlane_b32 s%d, %s" % (sH0, v(vD)))
    e("v_readfirstlane_b32 s%d, %s" % (sH1, v(vD + 1)))
C1 = -2.0 * math.log2(math.e) * math.sqrt(2.0 / math.pi)
C2 = C1 * 0.044715
vACC = 60
e("v_mov_b32 %s, 0" % v(vACC))
e("v_mov_b32 %s, 0" % v(vACC + 1))
e("v_mov_b32 %s, %s" % (v(vS1), hx(f2u(C1))))
e("s_mov_b32 s%d, %s" % (sTMP, hx(f2u(C2))))
e("s_mov_b32 s%d, 5" % sCNT)
e("v_mov_b32 %s, %d" % (v(vT0), HX))
if B1B and not (BB and not B1ONLY): e("s_barrier")
if B1ONLY:
    e("ds_read_b64 %s, %s" % (v(vD, 2), v(vT0)))
    e("s_waitcnt lgkmcnt(0)")
    e("v_readfirstlane_b32 s%d, %s" % (sH0, v(vD)))
    e("v_readfirstlane_b32 s%d, %s" % (sH1, v(vD + 1)))
e("s_waitcnt vmcnt(0)")
lab("L_Bloop")
unpack(vF, vW1)
unpack(vF + 2, vB1)
U, T = vD, vD + 4
for col, sh in ((0, sH0), (1, sH1)):
    e("v_mul_f32 %s, s%d, %s" % (v(U + 2 * col), sh, v(vF)))
    e("v_mul_f32 %s, s%d, %s" % (v(U + 2 * col + 1), sh, v(vF + 1)))
for col in range(2): e("v_cvt_pk_bf16_f32 %s, %s, %s" % (v(T + col), v(U + 2 * col), v(U + 2 * col + 1)))
for col in range(2): unpack(U + 2 * col, T + col)
for col in range(2):
    e("v_add_f32 %s, %s, %s" % (v(U + 2 * col), v(U + 2 * col), v(vF + 2)))
    e("v_add_f32 %s, %s, %s" % (v(U + 2 * col + 1), v(U + 2 * col + 1), v(vF + 3)))
for col in range(2): e("v_cvt_pk_bf16_f32 %s, %s, %s" % (v(T + col), v(U + 2 * col), v(U + 2 * col + 1)))
for col in range(2): unpack(U + 2 * col, T + col)
for i in range(4): e("v_mul_f32 %s, %s, %s" % (v(T + i), v(U + i), v(U + i)))
for i in range(4): e("v_fma_f32 %s, %s, s%d, %s" % (v(T + i), v(T + i), sTMP, v(vS1)))
for i in range(4): e("v_mul_f32 %s, %s, %s" % (v(T + i), v(T + i), v(U + i)))
for i in range(4): e("v_exp_f32 %s, %s" % (v(T + i), v(T + i)))
for i in range(4): e("v_add_f32 %s, 1.0, %s" % (v(T + i), v(T + i)))
for i in range(4): e("v_rcp_f32 %s, %s" % (v(T + i), v(T + i)))
for i in range(4): e("v_mul_f32 %s, %s, %s" % (v(T + i), v(T + i), v(U + i)))
for col in range(2): e("v_cvt_pk_bf16_f32 %s, %s, %s" % (v(U + col), v(T + 2 * col), v(T + 2 * col + 1)))
for col in range(2): e("v_dot2c_f32_bf16 %s, %s, %s" % (v(vACC + col), v(U + col), v(vW2)))
for r in (vW1, vB1, vW2):
    for i in range(4): e("v_mov_b32 %s, %s" % (v(r + i), v(r + i + 1)))
e("s_sub_u32 s%d, s%d, 1" % (sCNT, sCNT))
e("s_cmp_lg_u32 s%d, 0" % sCNT)
e("s_cbranch_scc1 L_Bloop")
dpp_reduce("v_add_f32", [vACC, vACC + 1], ROW + XROW)
e("s_lshl_b32 s%d, s%d, 3" % (sTMP, sWAVE))
e("v_mov_b32 %s, s%d" % (v(vT0), sTMP))
e("s_mov_b32 exec_lo, 0"); e("s_mov_b32 exec_hi, 0x80000000")
e("ds_write_b64 %s, %s offset:%d" % (v(vT0), v(vACC, 2), YB - 8))
e("s_mov_b64 exec, -1")
e("s_waitcnt lgkmcnt(0)")
e("s_endpgm")

c("======== A waves ========")
lab("L_A")
WOAT = int(opts.get("woat", 8))
vKO, vP2, vKA, vVA, vWOo, vQB, vPX, vMW, vMR = 7, 8, 9, 10, 11, 12, 13, 14, 15
vZ2 = 16
vONE, vSC, vP, vM, vR = 20, 24, 32, 36, 37
vG2A, vOXW, vOXR, vP3 = 38, 39, 40, 41
vS1, vS2 = 42, 43
vF, vD = 44, 52
vZ3 = 60
vO, vLS, vWOF = 64, 96, 100
vQF = 116
vKF, vVF = 132, 164
vWA = 196
PX = CMB
sOFFW, sOFFG = 90, 91
e("s_sub_u32 s%d, s%d, 4" % (sAW, sWAVE))
c("dma source offset: q'*256 + ((n ^ (q'<<2))*16)")
e("v_lshlrev_b32 %s, 2, %s" % (v(vKO), v(vQ)))
e("v_xor_b32 %s, %s, %s" % (v(vKO), v(vKO), v(vN)))
e("v_lshlrev_b32 %s, 4, %s" % (v(vKO), v(vKO)))
e("v_lshl_add_u32 %s, %s, 8, %s" % (v(vKO), v(vQ), v(vKO)))
e("s_lshl_b32 s%d, s%d, 23" % (sOFF, sG))
e("s_lshl_b32 s%d, s%d, 12" % (sTMP, sC))
e("s_add_u32 s%d, s%d, s%d" % (sOFF, sOFF, sTMP))
e("s_lshl_b32 s%d, s%d, 10" % (sTMP, sAW))
e("s_add_u32 s%d, s%d, s%d" % (sOFF, sOFF, sTMP))
e("s_add_u32 s%d, s%d, %d" % (sOFF, sOFF, 7340032))
e("s_mul_i32 s%d, s%d, %d" % (sM0, sAW, 8 * KP))
e("s_add_u32 s%d, s%d, %d" % (sM0, sM0, KBUF))
e("s_mov_b32 m0, s%d" % sM0)
e("s_mov_b32 s%d, 0x20000" % sSTEP)
e("s_mov_b32 s%d, s%d" % (sOFF3, sOFF))
WF = int(opts.get("wf", 0))
sM0W = 94
def wo_setup():
    if WOF:
        c("wo dma offset q'*1024 + ((n ^ (q'<<2))*16) ; rows 16aw+4i+q'")
        e("v_mul_u32_u24 %s, 768, %s" % (v(vWOo), v(vQ)))
        e("v_add_u32 %s, %s, %s" % (v(vWOo), v(vWOo), v(vKO)))
        e("s_mul_i32 s%d, s%d, %d" % (sM0W, sAW, 4 * VP))
        e("s_add_u32 s%d, s%d, %d" % (sM0W, sM0W, WOB))
    else:
        c("wo dma offset (l>>2)*1024 + (l&3)*16 ; frag address WOB + aw*4096 + (l>>2)*64 + (l&3)*8")
        e("v_lshrrev_b32 %s, 2, %s" % (v(vT2), v(vL)))
        e("v_lshlrev_b32 %s, 10, %s" % (v(vWOo), v(vT2)))
        e("v_lshl_add_u32 %s, %s, 4, %s" % (v(vWOo), v(vT0), v(vWOo)))
        e("v_lshlrev_b32 %s, 6, %s" % (v(vWA), v(vT2)))
        e("v_lshl_add_u32 %s, %s, 3, %s" % (v(vWA), v(vT0), v(vWA)))
        e("s_lshl_b32 s%d, s%d, 12" % (sM0W, sAW))
        e("s_add_u32 s%d, s%d, %d" % (sM0W, sM0W, WOB))
        e("v_add_u32 %s, s%d, %s" % (v(vWA), sM0W, v(vWA)))
    e("s_lshl_b32 s%d, s%d, 19" % (sOFFW, sG))
    e("s_lshr_b32 s%d, s%d, 2" % (sA, sC))
    e("s_lshl_b32 s%d, s%d, 16" % (sTMP, sA))
    e("s_add_u32 s%d, s%d, s%d" % (sOFFW, sOFFW, sTMP))
    e("s_and_b32 s%d, s%d, 3" % (sB, sC))
    e("s_lshl_b32 s%d, s%d, 8" % (sTMP, sB))
    e("s_add_u32 s%d, s%d, s%d" % (sOFFW, sOFFW, sTMP))
    e("s_lshl_b32 s%d, s%d, %d" % (sTMP, sAW, 14 if WOF else 6))
    e("s_add_u32 s%d, s%d, s%d" % (sOFFW, sOFFW, sTMP))
WO15 = int(opts.get("wo15", 0)); WOB2 = int(opts.get("wob2", 0))
wo_next = [0]
def wo_loads(n=4):
    while n > 0 and wo_next[0] < 4:
        i = wo_next[0]
        st = VP if WOF else 1024
        e("buffer_load_dwordx4 %s, %s, s%d offen offset:%d nt lds" % (v(vWOo), srd(SRD_C), sOFFW, st * i))
        if i < 3: e("s_add_u32 s%d, s%d, %d" % (sOFFW, sOFFW, (4096 if WOF else 16384) - st))
        wo_next[0] += 1; n -= 1
if WF:
    wo_setup()
    e("s_mov_b32 m0, s%d" % sM0W)
    e("s_mov_b32 s%d, %s" % (SRD_C + 2, hx(1 << 22)))
    e("s_mov_b32 s%d, 0x00020000" % (SRD_C + 3))
N1 = int(opts.get("n1", 4)) - WF
N1L = int(opts.get("n1l", N1)); THRL = int(opts.get("thrl", THR))
sLATE = 93
if (N1L, THRL) != (N1, THR):
    e("s_lshr_b32 s%d, s%d, 2" % (sLATE, sC))
    e("s_cmp_eq_u32 s%d, 3" % sLATE)
    e("s_cselect_b32 s%d, 1, 0" % sLATE)
    e("s_cselect_b32 s%d, %d, %d" % (sCNT, N1L, N1))
else:
    e("s_mov_b32 s%d, %d" % (sCNT, N1))
e("s_mov_b32 s%d, %s" % (SRD_A + 2, hx(1 << 26)))
e("s_mov_b32 s%d, 0x00020000" % (SRD_A + 3))
if SPF:
    c("code prefetch into L2 through the scalar path: one 64 B sector per wave")
    e("s_getpc_b64 %s" % sp(sPC))
    lab("L_pc2")
    e("s_sub_u32 s%d, s%d, L_pc2-L_start" % (sPC, sPC))
    e("s_subb_u32 s%d, s%d, 0" % (sPC + 1, sPC + 1))
    e("s_lshl_b32 s%d, s%d, 2" % (sTMP, sC))
    e("s_add_u32 s%d, s%d, s%d" % (sTMP, sTMP, sAW))
    e("s_lshl_b32 s%d, s%d, %d" % (sTMP, sTMP, 7 if STAMPS else 6))
    e("s_min_u32 s%d, s%d, L_codeend-L_start-4" % (sTMP, sTMP))
e("s_waitcnt lgkmcnt(0)")
if STAMPS: e("v_mov_b32 %s, s%d" % (v(vSTP), sST))
if SPF: e("s_load_dword s%d, %s, s%d" % (97, sp(sPC), sTMP))
e("s_mov_b64 %s, s[18:19]" % sp(SRD_A))
if WF: e("s_mov_b64 %s, s[24:25]" % sp(SRD_C))
e("s_barrier")
KSLEEP = int(opts.get("ksleep", 0))
if KSLEEP: e("s_sleep %d" % KSLEEP)
def dma_loop(name, sr, soff, step, thr):
    lab(name)
    if thr: e("s_waitcnt vmcnt(%d)" % (thr - 1))
    e("buffer_load_dwordx4 %s, %s, s%d offen nt lds" % (v(vKO), srd(sr), soff))
    e("s_sub_u32 s%d, s%d, 1" % (sCNT, sCNT))
    e("s_add_u32 m0, m0, %d" % step)
    e("s_add_u32 s%d, s%d, s%d" % (soff, soff, sSTEP))
    if XFLIP: e("s_xor_b32 s%d, s%d, 0x%x" % (soff, soff, XFLIP))
    e("s_cmp_lg_u32 s%d, 0" % sCNT)
    e("s_cbranch_scc1 %s" % name)
if WF:
    wo_loads(WF)
    e("s_mov_b32 m0, s%d" % sM0)
    e("s_nop 0")
if N1 > 0: dma_loop("L_kloop", SRD_A, sOFF, KP, 0)
lab("L_Aend1")
c("---- address setup (in the shadow of the first loads) ----")
mksrd(SRD_B, 20, 1 << 26); mksrd(SRD_WS, 40, WS_NREC); mksrd(SRD_C, 24, 1 << 22)
e("v_and_b32 %s, 3, %s" % (v(vT0), v(vN)))
e("v_lshrrev_b32 %s, 2, %s" % (v(vT1), v(vN)))
c("K frag address: KBUF + aw*8KP + (m>>2)*KP + (m&3)*256 + ((q'^(m&3))*64)")
e("v_xor_b32 %s, %s, %s" % (v(vT2), v(vT0), v(vQ)))
e("v_mul_u32_u24 %s, %d, %s" % (v(vKA), KP, v(vT1)))
e("v_lshl_add_u32 %s, %s, 8, %s" % (v(vKA), v(vT0), v(vKA)))
e("v_lshl_add_u32 %s, %s, 6, %s" % (v(vKA), v(vT2), v(vKA)))
e("v_add_u32 %s, s%d, %s" % (v(vKA), sM0, v(vKA)))
c("V frag address: VBUF + q'*VP + r*256 + cc*8 + ((aw ^ r)*64) ; r = n>>2, cc = n&3")
e("v_mul_u32_u24 %s, %d, %s" % (v(vVA), VP, v(vQ)))
e("v_lshl_add_u32 %s, %s, 8, %s" % (v(vVA), v(vT1), v(vVA)))
e("v_lshl_add_u32 %s, %s, 3, %s" % (v(vVA), v(vT0), v(vVA)))
e("v_xor_b32 %s, s%d, %s" % (v(vT2), sAW, v(vT1)))
e("v_lshl_add_u32 %s, %s, 6, %s" % (v(vVA), v(vT2), v(vVA)))
e("v_add_u32 %s, %d, %s" % (v(vVA), VBUF, v(vVA)))
c("q frag address: (n>>2)*272 + q'*64 ; P exchange: q'*64 + (n>>2)*16 ; m/l: (n>>2)*16")
e("v_mul_u32_u24 %s, 272, %s" % (v(vQB), v(vT1)))
e("v_lshl_add_u32 %s, %s, 6, %s" % (v(vQB), v(vQ), v(vQB)))
e("v_lshlrev_b32 %s, 4, %s" % (v(vMR), v(vT1)))
e("v_lshl_add_u32 %s, %s, 6, %s" % (v(vPX), v(vQ), v(vMR)))
e("s_lshl_b32 s%d, s%d, 2" % (sTMP, sAW))
e("s_add_u32 s%d, s%d, %d" % (sTMP, sTMP, ML))
e("v_add_u32 %s, s%d, %s" % (v(vMW), sTMP, v(vMR)))
e("s_lshl_b32 s%d, s%d, 8" % (sTMP, sAW))
e("v_add_u32 %s, s%d, %s" % (v(vWA + 1), sTMP, v(vPX)))
if H2B:
    c("hop2 publish: (n>>2)*16384 + (q'>>1)*2048 + (q'&1)*32 + (n&1)*16 ; soffset g<<16 + aw<<12 + c<<6")
    e("v_lshlrev_b32 %s, 14, %s" % (v(vP2), v(vT1)))
    e("v_and_b32 %s, 1, %s" % (v(vT2), v(vN)))
    e("v_lshl_add_u32 %s, %s, 4, %s" % (v(vP2), v(vT2), v(vP2)))
    e("v_lshrrev_b32 %s, 1, %s" % (v(vT2), v(vQ)))
    e("v_lshl_add_u32 %s, %s, 11, %s" % (v(vP2), v(vT2), v(vP2)))
    e("v_and_b32 %s, 1, %s" % (v(vT2), v(vQ)))
    e("v_lshl_add_u32 %s, %s, 5, %s" % (v(vP2), v(vT2), v(vP2)))
    e("s_lshl_b32 s%d, s%d, 16" % (sOFF2, sG))
    e("s_add_u32 s%d, s%d, %d" % (sOFF2, sOFF2, MB2A))
    c("hop2 gather region g*32 + (c>>2)*4 + aw (2 KiB each)")
    e("s_and_b32 s%d, s%d, 28" % (sTMP, sC))
    e("s_add_u32 s%d, s%d, s%d" % (sTMP, sTMP, sAW))
    e("s_lshl_b32 s%d, s%d, 11" % (sTMP, sTMP))
    e("s_add_u32 s%d, s%d, s%d" % (sOFFG, sOFF2, sTMP))
    e("s_lshl_b32 s%d, s%d, 12" % (sTMP, sAW))
    e("s_add_u32 s%d, s%d, s%d" % (sOFF2, sOFF2, sTMP))
    e("s_lshl_b32 s%d, s%d, 6" % (sTMP, sC))
    e("s_add_u32 s%d, s%d, s%d" % (sOFF2, sOFF2, sTMP))
else:
    c("hop2 publish: (n>>2)*32768 + (q'>>1)*4096 + (q'&1)*64 + (n&3)*16 ; soffset g<<17 + aw<<13 + c<<7")
    e("v_lshlrev_b32 %s, 15, %s" % (v(vP2), v(vT1)))
    e("v_lshl_add_u32 %s, %s, 4, %s" % (v(vP2), v(vT0), v(vP2)))
    e("v_lshrrev_b32 %s, 1, %s" % (v(vT2), v(vQ)))
    e("v_lshl_add_u32 %s, %s, 12, %s" % (v(vP2), v(vT2), v(vP2)))
    e("v_and_b32 %s, 1, %s" % (v(vT2), v(vQ)))
    e("v_lshl_add_u32 %s, %s, 6, %s" % (v(vP2), v(vT2), v(vP2)))
    e("s_lshl_b32 s%d, s%d, 17" % (sOFF2, sG))
    e("s_add_u32 s%d, s%d, %d" % (sOFF2, sOFF2, MB2A))
    c("hop2 gather region g*32 + (c>>2)*4 + aw")
    e("s_and_b32 s%d, s%d, 28" % (sTMP, sC))
    e("s_add_u32 s%d, s%d, s%d" % (sTMP, sTMP, sAW))
    e("s_lshl_b32 s%d, s%d, 12" % (sTMP, sTMP))
    e("s_add_u32 s%d, s%d, s%d" % (sOFFG, sOFF2, sTMP))
    e("s_lshl_b32 s%d, s%d, 13" % (sTMP, sAW))
    e("s_add_u32 s%d, s%d, s%d" % (sOFF2, sOFF2, sTMP))
    e("s_lshl_b32 s%d, s%d, 7" % (sTMP, sC))
    e("s_add_u32 s%d, s%d, s%d" % (sOFF2, sOFF2, sTMP))
e("v_lshlrev_b32 %s, 4, %s" % (v(vG2A), v(vL)))
c("hop 3 publish address: (n>>1)*128 + q'*32 + (n&1)*16")
e("v_lshrrev_b32 %s, 1, %s" % (v(vT2), v(vN)))
e("v_lshlrev_b32 %s, 7, %s" % (v(vP3), v(vT2)))
e("v_lshl_add_u32 %s, %s, 5, %s" % (v(vP3), v(vQ), v(vP3)))
e("v_and_b32 %s, 1, %s" % (v(vT2), v(vN)))
e("v_lshl_add_u32 %s, %s, 4, %s" % (v(vP3), v(vT2), v(vP3)))
if not WF: wo_setup()
else:
    e("s_lshr_b32 s%d, s%d, 2" % (sA, sC))
    e("s_and_b32 s%d, s%d, 3" % (sB, sC))
sOFFP3 = 92
e("s_lshl_b32 s%d, s%d, 16" % (sOFFP3, sB))
e("s_lshl_b32 s%d, s%d, 13" % (sTMP, sG))
e("s_add_u32 s%d, s%d, s%d" % (sOFFP3, sOFFP3, sTMP))
e("s_lshl_b32 s%d, s%d, 10" % (sTMP, sA))
e("s_add_u32 s%d, s%d, s%d" % (sOFFP3, sOFFP3, sTMP))
e("s_lshl_b32 s%d, s%d, 8" % (sTMP, sAW))
e("s_add_u32 s%d, s%d, s%d" % (sOFFP3, sOFFP3, sTMP))
e("s_add_u32 s%d, s%d, %d" % (sOFFP3, sOFFP3, MB3))
c("OX write: aw*32 + (l&7)*4 + (l>>5)*2 ; read q'*16")
e("v_lshlrev_b32 %s, 4, %s" % (v(vOXR), v(vQ)))
if H2B:
    e("s_lshl_b32 s%d, s%d, 5" % (sTMP, sAW))
    e("v_lshl_add_u32 %s, %s, 3, s%d" % (v(vOXW), v(vT0), sTMP))
    e("v_and_b32 %s, 1, %s" % (v(vT2), v(vQ)))
    e("v_lshl_add_u32 %s, %s, 2, %s" % (v(vOXW), v(vT2), v(vOXW)))
    e("v_lshrrev_b32 %s, 1, %s" % (v(vT2), v(vQ)))
    e("v_lshl_add_u32 %s, %s, 1, %s" % (v(vOXW), v(vT2), v(vOXW)))
else:
    e("v_and_b32 %s, 7, %s" % (v(vT2), v(vL)))
    e("s_lshl_b32 s%d, s%d, 5" % (sTMP, sAW))
    e("v_lshl_add_u32 %s, %s, 2, s%d" % (v(vOXW), v(vT2), sTMP))
    e("v_lshrrev_b32 %s, 5, %s" % (v(vT2), v(vL)))
    e("v_lshl_add_u32 %s, %s, 1, %s" % (v(vOXW), v(vT2), v(vOXW)))
for i in range(4): e("v_mov_b32 %s, 0x3f803f80" % v(vONE + i))
mask(sMASKQ, 0x000F000F); mask(sN1, 0xAAAAAAAA); mask(sN2, 0xCCCCCCCC); mask(sMASK0, 0x33333333 if H2B else 0x000000FF); mask(sN4, 0x11111111)
e("s_mov_b32 s%d, %s" % (sA, hx(f2u(128 ** -0.5))))
e("s_mov_b32 s%d, %s" % (sB, hx(f2u(math.log2(math.e)))))
e("v_mov_b32 %s, %d" % (v(vT0), MODE))
PW2 = opts.get("pw2", "off")
if PW2 == "off": PW2 = None
if PW2 is not None:
    for i in range(4): e("v_mov_b32 %s, 0" % v(vZ2 + i))
    if H2B: e("s_mov_b64 exec, %s" % sp(sMASK0))
    e("buffer_store_dwordx4 %s, %s, %s, s%d offen %s" % (v(vZ2, 4), v(vP2), srd(SRD_WS), sOFF2, PW2.replace("none", "")))
    if H2B: e("s_mov_b64 exec, -1")
PR2 = opts.get("pr2", "nt")
if PR2 == "off": PR2 = None
if PR2 is not None:
    c("pre-read this wave's share of the group's mailbox lines: 4 lines per wave")
    e("s_lshl_b32 s%d, s%d, 16" % (sTMP, sG))
    e("s_lshl_b32 s%d, s%d, 11" % (sH0, sC))
    e("s_add_u32 s%d, s%d, s%d" % (sTMP, sTMP, sH0))
    e("s_lshl_b32 s%d, s%d, 9" % (sH0, sAW))
    e("s_add_u32 s%d, s%d, s%d" % (sTMP, sTMP, sH0))
    e("s_add_u32 s%d, s%d, %d" % (sTMP, sTMP, MB2A))
    e("s_mov_b32 exec_hi, 0")
    e("buffer_load_dwordx4 %s, %s, %s, s%d offen %s" % (v(vO, 4), v(vG2A), srd(SRD_WS), sTMP, PR2.replace("none", "")))
    e("s_mov_b64 exec, -1")
PW3 = int(opts.get("pw3", 0))
if PW3:
    for i in range(4): e("v_mov_b32 %s, 0" % v(vZ3 + i))
    e("s_mov_b64 exec, %s" % sp(sMASKQ))
    e("buffer_store_dwordx4 %s, %s, %s, s%d offen sc1" % (v(vZ3, 4), v(vP3), srd(SRD_WS), sOFFP3))
    e("s_mov_b64 exec, -1")
if B1B: e("s_barrier")
def rest(tag, n1, thr):
    if n1 < 8:
        e("s_mov_b32 s%d, %d" % (sCNT, 8 - n1))
        dma_loop("L_kloop2" + tag, SRD_A, sOFF, KP, thr)
    e("s_mul_i32 s%d, s%d, %d" % (sTMP, sAW, 8 * VP))
    e("s_add_u32 m0, s%d, %d" % (sTMP, VBUF))
    e("s_mov_b32 s%d, 8" % sCNT)
    dma_loop("L_vloop" + tag, SRD_B, sOFF3, VP, int(opts.get("thrv", thr)))
if (N1L, THRL) != (N1, THR):
    e("s_cmp_lg_u32 s%d, 0" % sLATE)
    e("s_cbranch_scc1 L_late")
    rest("e", N1, THR)
    e("s_branch L_issued")
    lab("L_late")
    rest("l", N1L, THRL)
    lab("L_issued")
else:
    rest("", N1, THR)
e("s_mov_b32 m0, s%d" % sM0W)
stamp(15)
e("s_waitcnt vmcnt(8) lgkmcnt(0)")
for T in range(2):
    for t in range(4):
        e("ds_read_b128 %s, %s offset:%d" % (v(vKF + 16 * T + 4 * t, 4), v(vKA), 4 * KP * T + 16 * t))
wo_loads(WO15)
e("s_barrier")
for t in range(4):
    e("ds_read_b128 %s, %s offset:%d" % (v(vQF + 4 * t, 4), v(vQB), QL + 16 * t))
e("ds_read_b64 %s, %s" % (v(vZ3 + 2, 2), v(vT0)))
wo_loads(WOB2)
WOC = int(opts.get("woc", -1))
sWOD = 95
if WOC >= 0:
    e("s_getreg_b32 s%d, hwreg(HW_REG_IB_STS, 0, 4)" % sWOD)
    e("s_cmp_gt_u32 s%d, %d" % (sWOD, WOC))
    e("s_cbranch_scc1 L_wolater")
    wo_loads()
    wo_next[0] = 0
    lab("L_wolater")
for t in range(4):
    e("s_waitcnt lgkmcnt(%d)" % (4 - t))
    for T in range(2):
        e("v_mfma_f32_16x16x32_bf16 %s, %s, %s, %s" % (v(vSC + 4 * T, 4), v(vKF + 16 * T + 4 * t, 4), v(vQF + 4 * t, 4), v(vSC + 4 * T, 4) if t else "0"))
e("s_waitcnt lgkmcnt(0)")
e("v_readfirstlane_b32 s%d, %s" % (sMODE, v(vZ3 + 2)))
e("v_readfirstlane_b32 s%d, %s" % (sTAG, v(vZ3 + 3)))
e("v_mov_b32 %s, %s" % (v(vZ3 + 2), v(vZ3 + 3)))
e("v_mov_b32 %s, %s" % (v(vZ2 + 3), v(vZ3 + 3)))
e("s_nop 2")
for i in range(4): e("v_cvt_pk_bf16_f32 %s, %s, %s" % (v(vP + i), v(vSC + 2 * i), v(vSC + 2 * i + 1)))
for i in range(4): unpack(vSC + 2 * i, vP + i)
for i in range(8): e("v_mul_f32 %s, s%d, %s" % (v(vSC + i), sA, v(vSC + i)))
for i in range(4): e("v_cvt_pk_bf16_f32 %s, %s, %s" % (v(vP + i), v(vSC + 2 * i), v(vSC + 2 * i + 1)))
for i in range(4): unpack(vSC + 2 * i, vP + i)
e("v_max3_f32 %s, %s, %s, %s" % (v(vM), v(vSC), v(vSC + 1), v(vSC + 2)))
e("v_max3_f32 %s, %s, %s, %s" % (v(vR), v(vSC + 3), v(vSC + 4), v(vSC + 5)))
e("v_max3_f32 %s, %s, %s, %s" % (v(vM), v(vM), v(vSC + 6), v(vSC + 7)))
e("v_max_f32 %s, %s, %s" % (v(vM), v(vM), v(vR)))
e("v_mov_b32 %s, %s" % (v(vR), v(vM)))
e("s_nop 1")
e("v_permlane32_swap_b32 %s, %s" % (v(vM), v(vR)))
e("v_max_f32 %s, %s, %s" % (v(vM), v(vM), v(vR)))
e("v_mov_b32 %s, %s" % (v(vR), v(vM)))
e("s_nop 1")
e("v_permlane16_swap_b32 %s, %s" % (v(vM), v(vR)))
e("v_max_f32 %s, %s, %s" % (v(vM), v(vM), v(vR)))
if PV2:
    e("v_mul_f32 %s, s%d, %s" % (v(vM), sB, v(vM)))
    c("workgroup max per head")
    e("ds_write_b32 %s, %s" % (v(vMW), v(vM)))
    for i in range(8): e("v_mul_f32 %s, s%d, %s" % (v(vSC + i), sB, v(vSC + i)))
    e("s_cmp_eq_u32 s%d, 0" % sMODE)
    e("s_cselect_b32 s%d, %d, 0" % (sSTEP, MB2B - MB2A))
    e("s_add_u32 s%d, s%d, s%d" % (sOFF2, sOFF2, sSTEP))
    e("s_add_u32 s%d, s%d, s%d" % (sOFFG, sOFFG, sSTEP))
    e("s_waitcnt lgkmcnt(0)")
    e("s_barrier")
    e("ds_read_b128 %s, %s offset:%d" % (v(vF, 4), v(vMR), ML))
    e("s_waitcnt lgkmcnt(0)")
    e("v_max3_f32 %s, %s, %s, %s" % (v(vM), v(vF), v(vF + 1), v(vF + 2)))
    e("v_max_f32 %s, %s, %s" % (v(vM), v(vM), v(vF + 3)))
    for i in range(8): e("v_sub_f32 %s, %s, %s" % (v(vSC + i), v(vSC + i), v(vM)))
    for i in range(8): e("v_exp_f32 %s, %s" % (v(vSC + i), v(vSC + i)))
    e("s_nop 0")
    for i in range(4): e("v_cvt_pk_bf16_f32 %s, %s, %s" % (v(vP + i), v(vSC + 2 * i), v(vSC + 2 * i + 1)))
    e("s_mov_b64 exec, %s" % sp(sN4))
    e("ds_write_b128 %s, %s offset:%d" % (v(vWA + 1), v(vP, 4), PX))
    e("s_mov_b64 exec, -1")
    stamp(12)
    if WOAT < 8: e("s_waitcnt vmcnt(%d)" % WOAT)
    if WOC >= 0:
        e("s_cmp_gt_u32 s%d, %d" % (sWOD, WOC))
        e("s_cbranch_scc0 L_wodone")
    wo_loads(4 - WOL)
    if WOC >= 0: lab("L_wodone")
    e("s_waitcnt lgkmcnt(0)")
    e("s_barrier")
    for s_ in range(4):
        e("ds_read_b128 %s, %s offset:%d" % (v(vQF + 4 * s_, 4), v(vPX), PX + 256 * s_))
    for s_ in range(4):
        e("s_waitcnt lgkmcnt(%d)" % (3 - s_))
        e("v_mfma_f32_16x16x32_bf16 %s, %s, %s, %s" % (v(vLS, 4), v(vONE, 4), v(vQF + 4 * s_, 4), v(vLS, 4) if s_ else "0"))
    e("s_waitcnt vmcnt(%d)" % (4 - WF - WOL))
    stamp(5)
    e("s_barrier")
    for s_ in range(4):
        for dbl in range(2):
            for h in range(2):
                e("ds_read_b64_tr_b16 %s, %s offset:%d" % (v(vVF + 8 * s_ + 4 * dbl + 2 * h, 2), v(vVA), 8 * VP * s_ + 4 * VP * h + 32 * dbl))
    e("v_rcp_f32 %s, %s" % (v(vS1), v(vLS)))
    e("v_log_f32 %s, %s" % (v(vS2), v(vLS)))
    for s_ in range(4):
        for dbl in range(2):
            e("s_waitcnt lgkmcnt(%d)" % (14 - 4 * s_ - 2 * dbl))
            e("v_mfma_f32_16x16x32_bf16 %s, %s, %s, %s" % (v(vO + 4 * dbl, 4), v(vVF + 8 * s_ + 4 * dbl, 4), v(vQF + 4 * s_, 4), v(vO + 4 * dbl, 4) if s_ else "0"))
    e("v_add_f32 %s, %s, %s" % (v(vZ2 + 2), v(vM), v(vS2)))
    if H2B:
        e("s_nop 6")
        o = vO
        for r in range(4): e("v_cndmask_b32 %s, %s, %s, %s" % (v(vD + r), v(o + r), v(o + 4 + r), sp(sN1)))
        for r in range(4): e("v_mul_f32 %s, %s, %s" % (v(vD + r), v(vD + r), v(vS1)))
        e("v_cvt_pk_bf16_f32 %s, %s, %s" % (v(vZ2), v(vD), v(vD + 1)))
        e("v_cvt_pk_bf16_f32 %s, %s, %s" % (v(vZ2 + 1), v(vD + 2), v(vD + 3)))
        e("s_mov_b64 exec, %s" % sp(sMASK0))
    else:
        e("s_nop 4")
        o = vO
        e("v_cndmask_b32 %s, %s, %s, %s" % (v(vD), v(o), v(o + 2), sp(sN1)))
        e("v_cndmask_b32 %s, %s, %s, %s" % (v(vD + 1), v(o + 1), v(o + 3), sp(sN1)))
        e("v_cndmask_b32 %s, %s, %s, %s" % (v(vD + 2), v(o + 4), v(o + 6), sp(sN1)))
        e("v_cndmask_b32 %s, %s, %s, %s" % (v(vD + 3), v(o + 5), v(o + 7), sp(sN1)))
        e("v_cndmask_b32 %s, %s, %s, %s" % (v(vD), v(vD), v(vD + 2), sp(sN2)))
        e("v_cndmask_b32 %s, %s, %s, %s" % (v(vD + 1), v(vD + 1), v(vD + 3), sp(sN2)))
        e("v_mul_f32 %s, %s, %s" % (v(vZ2), v(vD), v(vS1)))
        e("v_mul_f32 %s, %s, %s" % (v(vZ2 + 1), v(vD + 1), v(vS1)))
else:
    e("v_mul_f32 %s, s%d, %s" % (v(vM), sB, v(vM)))
    for i in range(8): e("v_fma_f32 %s, %s, s%d, -%s" % (v(vSC + i), v(vSC + i), sB, v(vM)))
    for i in range(8): e("v_exp_f32 %s, %s" % (v(vSC + i), v(vSC + i)))
    e("s_nop 0")
    for i in range(4): e("v_cvt_pk_bf16_f32 %s, %s, %s" % (v(vP + i), v(vSC + 2 * i), v(vSC + 2 * i + 1)))
    c("slow mode: use the write-through mailbox")
    e("s_cmp_eq_u32 s%d, 0" % sMODE)
    e("s_cselect_b32 s%d, %d, 0" % (sSTEP, MB2B - MB2A))
    e("v_mfma_f32_16x16x32_bf16 %s, %s, %s, 0" % (v(vLS, 4), v(vONE, 4), v(vP, 4)))
    e("s_mov_b64 exec, %s" % sp(sN4))
    e("ds_write_b128 %s, %s offset:%d" % (v(vWA + 1), v(vP, 4), PX))
    e("s_add_u32 s%d, s%d, s%d" % (sOFF2, sOFF2, sSTEP))
    e("s_add_u32 s%d, s%d, s%d" % (sOFFG, sOFFG, sSTEP))
    e("s_nop 3")
    e("ds_write2_b32 %s, %s, %s offset0:0 offset1:16" % (v(vMW), v(vM), v(vLS)))
    e("s_mov_b64 exec, -1")
    stamp(12)
    if WOAT < 8: e("s_waitcnt vmcnt(%d)" % WOAT)
    wo_loads()
    e("s_waitcnt vmcnt(4) lgkmcnt(0)")
    stamp(5)
    e("s_barrier")
    e("ds_read_b128 %s, %s offset:%d" % (v(vF, 4), v(vMR), ML))
    e("ds_read_b128 %s, %s offset:%d" % (v(vF + 4, 4), v(vMR), ML + 64))
    for s_ in range(4):
        e("ds_read_b128 %s, %s offset:%d" % (v(vQF + 4 * s_, 4), v(vPX), PX + 256 * s_))
        for dbl in range(2):
            for h in range(2):
                e("ds_read_b64_tr_b16 %s, %s offset:%d" % (v(vVF + 8 * s_ + 4 * dbl + 2 * h, 2), v(vVA), 8 * VP * s_ + 4 * VP * h + 32 * dbl))
    e("s_waitcnt lgkmcnt(15)")
    e("v_max3_f32 %s, %s, %s, %s" % (v(vM), v(vF), v(vF + 1), v(vF + 2)))
    def pv(s_):
        for dbl in range(2):
            e("v_mfma_f32_16x16x32_bf16 %s, %s, %s, 0" % (v(vO + 8 * s_ + 4 * dbl, 4), v(vVF + 8 * s_ + 4 * dbl, 4), v(vQF + 4 * s_, 4)))
    def sel(s_):
        o = vO + 8 * s_
        e("v_cndmask_b32 %s, %s, %s, %s" % (v(o), v(o), v(o + 2), sp(sN1)))
        e("v_cndmask_b32 %s, %s, %s, %s" % (v(o + 1), v(o + 1), v(o + 3), sp(sN1)))
        e("v_cndmask_b32 %s, %s, %s, %s" % (v(o + 4), v(o + 4), v(o + 6), sp(sN1)))
        e("v_cndmask_b32 %s, %s, %s, %s" % (v(o + 5), v(o + 5), v(o + 7), sp(sN1)))
        e("v_cndmask_b32 %s, %s, %s, %s" % (v(o), v(o), v(o + 4), sp(sN2)))
        e("v_cndmask_b32 %s, %s, %s, %s" % (v(o + 1), v(o + 1), v(o + 5), sp(sN2)))
        if s_ == 0:
            e("v_mul_f32 %s, %s, %s" % (v(vZ2), v(vF), v(o)))
            e("v_mul_f32 %s, %s, %s" % (v(vZ2 + 1), v(vF), v(o + 1)))
        else:
            e("v_fmac_f32 %s, %s, %s" % (v(vZ2), v(vF + s_), v(o)))
            e("v_fmac_f32 %s, %s, %s" % (v(vZ2 + 1), v(vF + s_), v(o + 1)))
    pv(0)
    e("v_max_f32 %s, %s, %s" % (v(vM), v(vM), v(vF + 3)))
    for w in range(4): e("v_sub_f32 %s, %s, %s" % (v(vF + w), v(vF + w), v(vM)))
    for w in range(4): e("v_exp_f32 %s, %s" % (v(vF + w), v(vF + w)))
    e("s_waitcnt lgkmcnt(10)")
    pv(1)
    e("v_mul_f32 %s, %s, %s" % (v(vR), v(vF), v(vF + 4)))
    for w in range(1, 4): e("v_fmac_f32 %s, %s, %s" % (v(vR), v(vF + w), v(vF + 4 + w)))
    e("v_rcp_f32 %s, %s" % (v(vS1), v(vR)))
    e("v_log_f32 %s, %s" % (v(vS2), v(vR)))
    e("s_waitcnt lgkmcnt(5)")
    pv(2)
    for w in range(4): e("v_mul_f32 %s, %s, %s" % (v(vF + w), v(vF + w), v(vS1)))
    e("v_add_f32 %s, %s, %s" % (v(vZ2 + 2), v(vM), v(vS2)))
    e("s_waitcnt lgkmcnt(0)")
    pv(3)
    sel(0); sel(1); sel(2); sel(3)
e("s_cmp_eq_u32 s%d, 0" % sMODE)
e("s_cbranch_scc1 L_p2slow")
e("buffer_store_dwordx4 %s, %s, %s, s%d offen%s" % (v(vZ2, 4), v(vP2), srd(SRD_WS), sOFF2, fs))
lab("L_p2done")
if H2B: e("s_mov_b64 exec, -1")
NH2 = 2 if H2B else 4
stamp(7)
G2 = vKF
def h2_loads():
    for i in range(NH2):
        e("buffer_load_dwordx4 %s, %s, %s, s%d offen offset:%d sc1" % (v(G2 + 4 * i, 4), v(vG2A), srd(SRD_WS), sOFFG, 1024 * i))
H2D = int(opts.get("h2d", 0)); H2N = int(opts.get("h2n", 1))
H2W = int(opts.get("h2w", 3))
if H2W >= 0: e("s_waitcnt vmcnt(%d)" % H2W)
for _ in range(H2N):
    if H2D: e("s_sleep %d" % H2D)
    h2_loads()
if WOL:
    wo_loads()
    e("s_waitcnt vmcnt(%d)" % WOL)
    e("s_branch L_h2chk2")
else:
    e("s_branch L_h2chk")
lab("L_h2retry")
e("s_not_b64 exec, exec")
h2_loads()
e("s_mov_b64 exec, -1")
lab("L_h2chk")
e("s_waitcnt vmcnt(0)")
lab("L_h2chk2")
for i in range(NH2):
    e("v_cmpx_eq_u32 vcc, s%d, %s" % (sTAG, v(G2 + 4 * i + 3)))
e("s_cmp_eq_u64 exec, -1")
e("s_cbranch_scc1 L_h2ok")
spin_check("L_h2retry")
lab("L_h2ok")
stamp(8)
if H2B:
    X = vVF
    e("v_max_f32 %s, %s, %s" % (v(vM), v(G2 + 2), v(G2 + 6)))
    unpack(X, G2)
    e("v_mov_b32 %s, %s" % (v(vR), v(vM)))
    unpack(X + 2, G2 + 1)
    e("v_permlane32_swap_b32 %s, %s" % (v(vM), v(vR)))
    e("v_max_f32 %s, %s, %s" % (v(vM), v(vM), v(vR)))
    e("v_mov_b32 %s, %s" % (v(vR), v(vM)))
    unpack(X + 4, G2 + 4)
    e("v_permlane16_swap_b32 %s, %s" % (v(vM), v(vR)))
    e("v_max_f32 %s, %s, %s" % (v(vM), v(vM), v(vR)))
    unpack(X + 6, G2 + 5)
    e("v_max_f32_dpp %s, %s, %s %s" % (v(vM), v(vM), v(vM), ROW[0]))
    e("s_nop 1")
    e("v_max_f32_dpp %s, %s, %s %s" % (v(vM), v(vM), v(vM), ROW[1]))
    e("v_sub_f32 %s, %s, %s" % (v(vF), v(G2 + 2), v(vM)))
    e("v_sub_f32 %s, %s, %s" % (v(vF + 1), v(G2 + 6), v(vM)))
    e("v_exp_f32 %s, %s" % (v(vF), v(vF)))
    e("v_exp_f32 %s, %s" % (v(vF + 1), v(vF + 1)))
    Y, W, W2 = vD, vD + 4, vD + 5
    e("v_mul_f32 %s, %s, %s" % (v(Y), v(vF), v(X)))
    e("v_add_f32 %s, %s, %s" % (v(W), v(vF), v(vF + 1)))
    e("v_add_f32 %s, %s, %s" % (v(W2), v(vF), v(vF + 1)))
    for r in range(1, 4): e("v_mul_f32 %s, %s, %s" % (v(Y + r), v(vF), v(X + r)))
    e("v_permlane32_swap_b32 %s, %s" % (v(W), v(W2)))
    e("v_fmac_f32 %s, %s, %s" % (v(Y), v(vF + 1), v(X + 4)))
    e("v_fmac_f32 %s, %s, %s" % (v(Y + 1), v(vF + 1), v(X + 5)))
    e("v_add_f32 %s, %s, %s" % (v(vS1), v(W), v(W2)))
    e("v_add_f32 %s, %s, %s" % (v(vS2), v(W), v(W2)))
    e("v_fmac_f32 %s, %s, %s" % (v(Y + 2), v(vF + 1), v(X + 6)))
    e("v_fmac_f32 %s, %s, %s" % (v(Y + 3), v(vF + 1), v(X + 7)))
    e("v_permlane32_swap_b32 %s, %s" % (v(Y), v(Y + 1)))
    e("v_permlane16_swap_b32 %s, %s" % (v(vS1), v(vS2)))
    e("v_permlane32_swap_b32 %s, %s" % (v(Y + 2), v(Y + 3)))
    e("v_add_f32 %s, %s, %s" % (v(Y), v(Y), v(Y + 1)))
    e("v_add_f32 %s, %s, %s" % (v(Y + 2), v(Y + 2), v(Y + 3)))
    e("v_add_f32 %s, %s, %s" % (v(W), v(vS1), v(vS2)))
    e("s_nop 0")
    e("v_permlane16_swap_b32 %s, %s" % (v(Y), v(Y + 2)))
    e("v_add_f32_dpp %s, %s, %s %s" % (v(W), v(W), v(W), ROW[0]))
    e("v_add_f32 %s, %s, %s" % (v(Y), v(Y), v(Y + 2)))
    e("s_nop 0")
    e("v_add_f32_dpp %s, %s, %s %s" % (v(W), v(W), v(W), ROW[1]))
    e("v_add_f32_dpp %s, %s, %s %s" % (v(Y), v(Y), v(Y), ROW[0]))
    e("v_rcp_f32 %s, %s" % (v(W), v(W)))
    e("s_nop 0")
    e("v_add_f32_dpp %s, %s, %s %s" % (v(Y), v(Y), v(Y), ROW[1]))
    e("v_mul_f32 %s, %s, %s" % (v(Y), v(Y), v(W)))
    e("v_cvt_pk_bf16_f32 %s, %s, %s" % (v(Y), v(Y), v(Y)))
    e("s_mov_b64 exec, %s" % sp(sMASKQ))
    e("ds_write_b16 %s, %s offset:%d" % (v(vOXW), v(Y), OX))
else:
    A_ = [G2 + 4 * i + 2 for i in range(4)]
    e("v_max3_f32 %s, %s, %s, %s" % (v(vM), v(A_[0]), v(A_[1]), v(A_[2])))
    e("v_max_f32 %s, %s, %s" % (v(vM), v(vM), v(A_[3])))
    e("v_mov_b32 %s, %s" % (v(vR), v(vM)))
    e("s_nop 1")
    e("v_permlane32_swap_b32 %s, %s" % (v(vM), v(vR)))
    e("v_max_f32 %s, %s, %s" % (v(vM), v(vM), v(vR)))
    e("v_mov_b32 %s, %s" % (v(vR), v(vM)))
    e("s_nop 1")
    e("v_permlane16_swap_b32 %s, %s" % (v(vM), v(vR)))
    e("v_max_f32 %s, %s, %s" % (v(vM), v(vM), v(vR)))
    dpp_reduce("v_max_f32", [vM], ROW[:1])
    for i in range(4): e("v_sub_f32 %s, %s, %s" % (v(vF + i), v(A_[i]), v(vM)))
    for i in range(4): e("v_exp_f32 %s, %s" % (v(vF + i), v(vF + i)))
    Y0, Y1, W, W2 = vD, vD + 1, vD + 2, vD + 3
    e("v_mul_f32 %s, %s, %s" % (v(Y0), v(vF), v(G2)))
    e("v_mul_f32 %s, %s, %s" % (v(Y1), v(vF), v(G2 + 1)))
    e("v_add_f32 %s, %s, %s" % (v(W), v(vF), v(vF + 1)))
    e("v_add_f32 %s, %s, %s" % (v(W2), v(vF + 2), v(vF + 3)))
    for i in range(1, 4):
        e("v_fmac_f32 %s, %s, %s" % (v(Y0), v(vF + i), v(G2 + 4 * i)))
        e("v_fmac_f32 %s, %s, %s" % (v(Y1), v(vF + i), v(G2 + 4 * i + 1)))
        if i == 1:
            e("v_add_f32 %s, %s, %s" % (v(W), v(W), v(W2)))
            e("v_mov_b32 %s, %s" % (v(W2), v(W)))
    e("v_permlane32_swap_b32 %s, %s" % (v(W), v(W2)))
    e("s_nop 0")
    e("v_permlane32_swap_b32 %s, %s" % (v(Y0), v(Y1)))
    e("v_add_f32 %s, %s, %s" % (v(W), v(W), v(W2)))
    e("v_add_f32 %s, %s, %s" % (v(Y0), v(Y0), v(Y1)))
    e("s_nop 1")
    e("v_permlane16_swap_b32 %s, %s" % (v(Y0), v(W)))
    e("v_add_f32 %s, %s, %s" % (v(Y0), v(Y0), v(W)))
    dpp_reduce("v_add_f32", [Y0], ROW[:1])
    e("v_rcp_f32 %s, %s" % (v(W), v(Y0)))
    e("s_nop 1")
    e("v_permlane16_swap_b32 %s, %s" % (v(W), v(W2)))
    e("v_mul_f32 %s, %s, %s" % (v(Y0), v(Y0), v(W2)))
    e("v_cvt_pk_bf16_f32 %s, %s, %s" % (v(Y0), v(Y0), v(Y0)))
    e("s_mov_b64 exec, %s" % sp(sMASK0))
    e("ds_write_b16 %s, %s offset:%d" % (v(vOXW), v(Y0), OX))
e("s_mov_b64 exec, -1")
e("s_waitcnt vmcnt(0) lgkmcnt(0)")
e("s_barrier")
if WOF:
    for s in range(2):
        e("ds_read_b128 %s, %s offset:%d" % (v(vF + 4 * s, 4), v(vOXR), OX + 64 * s))
        for b in range(2):
            for h in range(2):
                e("ds_read_b64_tr_b16 %s, %s offset:%d" % (v(vWOF + 8 * b + 4 * s + 2 * h, 2), v(vVA), WOB - VBUF + (8 * s + 4 * h) * VP + 32 * b))
    for s in range(2):
        for b in range(2):
            e("s_waitcnt lgkmcnt(%d)" % (7 - 5 * s - 2 * b))
            e("v_mfma_f32_16x16x32_bf16 %s, %s, %s, %s" % (v(vSC + 4 * b, 4), v(vWOF + 8 * b + 4 * s, 4), v(vF + 4 * s, 4), v(vSC + 4 * b, 4) if s else "0"))
else:
    e("ds_read_b128 %s, %s offset:%d" % (v(vF, 4), v(vOXR), OX))
    e("ds_read_b128 %s, %s offset:%d" % (v(vF + 4, 4), v(vOXR), OX + 64))
    e("s_waitcnt lgkmcnt(1)")
    for b in range(2):
        e("v_mfma_f32_16x16x32_bf16 %s, %s, %s, 0" % (v(vSC + 4 * b, 4), v(vWOF + 8 * b, 4), v(vF, 4)))
    e("s_waitcnt lgkmcnt(0)")
    for b in range(2):
        e("v_mfma_f32_16x16x32_bf16 %s, %s, %s, %s" % (v(vSC + 4 * b, 4), v(vWOF + 8 * b + 4, 4), v(vF + 4, 4), v(vSC + 4 * b, 4)))
e("s_nop 6")
e("v_cndmask_b32 %s, %s, %s, %s" % (v(vD), v(vSC), v(vSC + 2), sp(sN1)))
e("v_cndmask_b32 %s, %s, %s, %s" % (v(vD + 1), v(vSC + 1), v(vSC + 3), sp(sN1)))
e("v_cndmask_b32 %s, %s, %s, %s" % (v(vD + 2), v(vSC + 4), v(vSC + 6), sp(sN1)))
e("v_cndmask_b32 %s, %s, %s, %s" % (v(vD + 3), v(vSC + 5), v(vSC + 7), sp(sN1)))
e("v_cndmask_b32 %s, %s, %s, %s" % (v(vZ3), v(vD), v(vD + 2), sp(sN2)))
e("v_cndmask_b32 %s, %s, %s, %s" % (v(vZ3 + 1), v(vD + 1), v(vD + 3), sp(sN2)))
e("s_mov_b64 exec, %s" % sp(sMASKQ))
e("buffer_store_dwordx4 %s, %s, %s, s%d offen %s" % (v(vZ3, 4), v(vP3), srd(SRD_WS), sOFFP3, H3ST))
for r in range(1, NREP):
    e("s_add_u32 s%d, s%d, %d" % (sOFFP3, sOFFP3, 1 << 18))
    e("buffer_store_dwordx4 %s, %s, %s, s%d offen %s" % (v(vZ3, 4), v(vP3), srd(SRD_WS), sOFFP3, H3ST))
e("s_mov_b64 exec, -1")
stamp(9)
lab("L_fin")
if PAD:
    if "padx" in opts:
        e("s_getreg_b32 s%d, hwreg(HW_REG_XCC_ID, 0, 4)" % sTMP)
        e("s_cmp_lg_u32 s%d, %d" % (sTMP, int(opts["padx"])))
        e("s_cbranch_scc1 L_fin2")
    e("s_add_u32 s100, s100, %d" % (PAD * 100))
    lab("L_pad")
    e("s_memrealtime %s" % sp(sST))
    e("s_waitcnt lgkmcnt(0)")
    e("s_sub_u32 s%d, s%d, s100" % (sST, sST))
    e("s_cmp_lt_i32 s%d, 0" % sST)
    e("s_cbranch_scc1 L_pad")
lab("L_fin2")
if STAMPS:
    e("s_mov_b64 exec, -1")
    e("s_waitcnt vmcnt(0)")
    stamp(11)
    e("s_lshl_b32 s%d, s2, 4" % sTMP)
    e("s_add_u32 s%d, s%d, s%d" % (sTMP, sTMP, sWAVE))
    e("s_lshl_b32 s%d, s%d, 6" % (sTMP, sTMP))
    e("s_add_u32 s%d, s%d, %d" % (sTMP, sTMP, STAMP_OFF))
    e("v_mov_b32 %s, 0" % v(vT1))
    e("s_mov_b64 exec, 1")
    for i in range(4):
        e("buffer_store_dwordx4 %s, %s, %s, s%d offen offset:%d" % (v(vSTP + 4 * i, 4), v(vT1), srd(SRD_WS), sTMP, 16 * i))
lab("L_end")
e("s_endpgm")
lab("L_p2slow")
e("buffer_store_dwordx4 %s, %s, %s, s%d offen sc1" % (v(vZ2, 4), v(vP2), srd(SRD_WS), sOFF2))
e("s_branch L_p2done")
lab("L_codeend")

if int(opts.get("reord", 1)):
    ia = L.index("L_A:")
    ib = L.index("L_Aend1:")
    blk = L[ia:ib] + ["    s_branch L_A2"]
    L[ia:ib] = ["L_A2:"]
    ic = L.index("L_B0:")
    L[ic:ic] = blk
hdr = open("cdna_kernels/%s.s.ref" % NAME).read().split("\n")
head = []
for ln in hdr:
    if ln.startswith("; @launch"):
        head.append("; @launch grid=(256,1,1) block=(512,1,1) lds=%d" % LDS_TOTAL)
    elif ln.startswith(";"):
        head.append(ln)
    else:
        break
out = "\n".join(head) + "\n"
out += DOC
out += '.amdgcn_target "amdgcn-amd-amdhsa--gfx950"\n.text\n.globl %s_kernel\n.p2align 8\n.type %s_kernel,@function\n%s_kernel:\n' % (NAME, NAME, NAME)
out += "\n".join(L) + "\n"
out += '''.section .rodata,"a"
.p2align 6
.amdhsa_kernel %s_kernel
  .amdhsa_next_free_vgpr %d
  .amdhsa_next_free_sgpr 102
  .amdhsa_accum_offset %d
  .amdhsa_group_segment_fixed_size 0
  .amdhsa_kernarg_size 104
  .amdhsa_user_sgpr_count 2
  .amdhsa_user_sgpr_kernarg_segment_ptr 1
  .amdhsa_system_sgpr_workgroup_id_x 1
  .amdhsa_float_denorm_mode_32 3
.end_amdhsa_kernel
''' % (NAME, NVGPR, NVGPR)
open(sys.argv[1], "w").write(out)
```

```python
import sys, struct, math
NAME = "recurrent_scan__sliding_block_cached__mixer_token_mlp__decode"
opts = dict(a.split("=") if "=" in a else (a, "1") for a in sys.argv[2:])
STAMPS = int(opts.get("stamps", 0))
PAD = int(opts.get("pad", 0))
PREFETCH = int(opts.get("pf", 0))
PREWRITE = int(opts.get("pw", 2))
QK = int(opts.get("qk", 4))
QS_ = int(opts.get("qs", 1))
VLAST = int(opts.get("vlast", 0))
WOQ = int(opts.get("woq", 0))
QM = int(opts.get("qm", 0))
sPQ = 92
PAT = int(opts.get("pat", 2))
SHC = int(opts.get("shc", 15)); SHW = int(opts.get("shw", 13)); SHI = int(opts.get("shi", 10))
RC = int(opts.get("rc", 1)); RW = int(opts.get("rw", 1)); RG = int(opts.get("rg", 1)); RV = int(opts.get("rv", 0))
H2B = int(opts.get("h2b", 1))
WOL = int(opts.get("wol", 0))
NOS = int(opts.get("nos", 1))
NOBC = int(opts.get("nobc", 1))
PV2 = int(opts.get("pv2", 1))
GLATE = int(opts.get("glate", 1))
SPF = int(opts.get("spf", 0))
DPF = int(opts.get("dpf", 0))
EPF = int(opts.get("epf", 1))
XFLIP = int(opts.get("xflip", "0"), 0)
WOF = int(opts.get("wof", 1))
XLIN = int(opts.get("xlin", 1))
B1ONLY = int(opts.get("b1only", 1))

SM = " nt" if int(opts.get("smnt", 0)) else ""
PFM = " nt" if int(opts.get("pfnt", 0)) else ""
PFLATE = int(opts.get("pflate", 1))
B1B = int(opts.get("b1b", 1))
FASTST = opts.get("fastst", "")
FORCE_SLOW = int(opts.get("slow", 0))
NPIPE = int(opts.get("npipe", 4))
SLEEP = int(opts.get("sleep", 3))
THR = int(opts.get("thr", 4))
LSLEEP = int(opts.get("lsleep", 0))
QWAIT = int(opts.get("qwait", -1))
QD0 = int(opts.get("qd0", 12))
QD1 = int(opts.get("qd1", 8))
QPIPE = int(opts.get("qpipe", 0))
H3LD = opts.get("h3ld", "sc1").replace("+", " ")
H3ST = opts.get("h3st", "sc1").replace("+", " ")
ATOM = int(opts.get("atom", 0))
PRESLEEP = int(opts.get("presleep", 15))

L = []
DOC = """; ---------------------------------------------------------------------------------------------
; Hand-offs go through d_ws as 16-byte granules that carry a per-launch tag (derived from an epoch word in
; one die do group hand-offs stay in that die's L2, otherwise write-through (sc1) mailboxes are used.
; ---------------------------------------------------------------------------------------------
"""
def e(s): L.append("    " + s)
def lab(s): L.append(s + ":")
def c(s): L.append("    ; " + s)
def f2u(x): return struct.unpack("<I", struct.pack("<f", x))[0]
def hx(x): return "0x%08x" % (x & 0xffffffff)

XN = 0
QL = 1024
MODE = QL + 1088
HX = MODE + 16
FLAG = MODE + 8
OX = 2176
ML = 2304
YB = 2432
CMB = 2560
KBUF = 12288
KP, VP = 1040, 1056
VBUF = KBUF + 32 * KP
WQB = VBUF + 32 * VP
WOB = WQB + 16384
LDS_TOTAL = WOB + 16896
EPOCH = 0
MB1A = 1 << 17
MB1B = MB1A + (1 << 17)
MB3 = MB1B + (1 << 17)
MB2A = 1 << 20
MB2B = 2 << 20
NREP = int(opts.get("nrep", 0))
if NREP: MB3 = 3 << 20
WS_USED = (3 << 20) + NREP * (1 << 18)
STAMP_OFF = 32 << 20
WS_NREC = (33 << 20) if STAMPS else WS_USED

sWAVE, sG, sC, sP4, sPIV, sA, sB = 3, 4, 5, 6, 7, 8, 9
sTAG = 10
sSPIN, sTMP, sM0, sOFF = 12, 13, 14, 15
sE, sXP = 42, 43
SRD_A, SRD_B, SRD_C, SRD_D, SRD_WS = 44, 48, 52, 56, 60
sB2, sCNT, sAW, sMODE = 64, 65, 66, 67
sMASKQ, sMASK0, sN1, sN2, sN4, sM8 = 68, 70, 72, 74, 76, 78
sH0, sH1 = 80, 81
sT3 = 82
sOFF2, sOFF3, sSTEP = 84, 85, 86
sPC = 88
sST = 98
def srd(b): return "s[%d:%d]" % (b, b + 3)
def sp(b): return "s[%d:%d]" % (b, b + 1)
def v(a, n=1): return "v%d" % a if n == 1 else "v[%d:%d]" % (a, a + n - 1)

vL, vQ, vN, vT0, vT1, vT2 = 1, 2, 3, 4, 5, 6
vSTP = 240
NVGPR = int(opts.get("nv", 256))

def stamp(i):
    if not STAMPS: return
    e("s_waitcnt lgkmcnt(0)")
    e("s_memrealtime %s" % sp(sST))
    e("s_waitcnt lgkmcnt(0)")
    e("v_mov_b32 %s, s%d" % (v(vSTP + i), sST))

def dpp_reduce(op, regs, steps):
    for s in steps:
        pad = 2 - (len(regs) - 1)
        if pad > 0: e("s_nop %d" % (pad - 1))
        for r in regs:
            e("%s_dpp %s, %s, %s %s" % (op, v(r), v(r), v(r), s))
ROW = ["row_ror:8 row_mask:0xf bank_mask:0xf", "row_ror:4 row_mask:0xf bank_mask:0xf",
       "row_ror:2 row_mask:0xf bank_mask:0xf", "row_ror:1 row_mask:0xf bank_mask:0xf"]
XROW = ["row_bcast:15 row_mask:0xa bank_mask:0xf", "row_bcast:31 row_mask:0xc bank_mask:0xf"]
def unpack(dst, src):
    e("v_lshlrev_b32 %s, 16, %s" % (v(dst), v(src)))
    e("v_and_b32 %s, 0xffff0000, %s" % (v(dst + 1), v(src)))
def round1(r):
    e("v_cvt_pk_bf16_f32 %s, %s, %s" % (v(r), v(r), v(r)))
    e("v_and_b32 %s, 0xffff0000, %s" % (v(r), v(r)))
def round2(r, tmp):
    e("v_cvt_pk_bf16_f32 %s, %s, %s" % (v(tmp), v(r), v(r + 1)))
    unpack(r, tmp)
def ln_finish(vmean, vvar):
    e("v_max_f32 %s, 0, %s" % (v(vvar), v(vvar)))
    round1(vmean)
    round1(vvar)
    e("v_add_f32 %s, %s, %s" % (v(vvar), hx(f2u(1e-5)), v(vvar)))
    round1(vvar)
    e("v_sqrt_f32 %s, %s" % (v(vvar), v(vvar)))
    e("s_nop 0")
    round1(vvar)
    e("v_rcp_f32 %s, %s" % (v(vvar), v(vvar)))
    e("s_nop 0")
def spin_check(retry_label):
    e("s_sub_u32 s%d, s%d, 1" % (sSPIN, sSPIN))
    e("s_cbranch_scc0 %s" % retry_label)
    e("s_branch L_end")
def mksrd(b, p, n):
    e("s_mov_b64 %s, %s" % (sp(b), sp(p)))
    e("s_mov_b32 s%d, %s" % (b + 2, hx(n)))
    e("s_mov_b32 s%d, 0x00020000" % (b + 3))
def mask(r, m):
    e("s_mov_b32 s%d, %s" % (r, hx(m)))
    e("s_mov_b32 s%d, %s" % (r + 1, hx(m)))
def mktag():
    e("s_mul_i32 s%d, s%d, 0x9E3779B1" % (sTAG, sE))
    e("s_add_u32 s%d, s%d, 0x632BE5AB" % (sTAG, sTAG))
fs = (" " + FASTST) if FASTST else ""

lab("L_start")
if EPF: e("s_getpc_b64 %s" % sp(sPC))
e("s_cmp_ge_u32 s2, 256")
e("s_cbranch_scc1 L_end")
e("s_load_dwordx16 s[16:31], s[0:1], 0")
e("s_load_dwordx8 s[32:39], s[0:1], 64")
e("s_load_dwordx2 s[40:41], s[0:1], 96")
if EPF:
    NL = 4 if STAMPS else 2
    c("pull the kernel's code into L2: every workgroup fetches %d of its 128 B lines" % NL)
    e("s_lshr_b32 s%d, s2, 3" % sTMP)
    e("s_lshl_b32 s%d, s%d, %d" % (sTMP, sTMP, 9 if STAMPS else 8))
    e("v_lshl_add_u32 %s, v0, 7, s%d" % (v(35), sTMP))
    e("v_cmp_gt_u32 vcc, %d, v0" % NL)
    e("v_min_u32 %s, L_codeend-L_start-8, %s" % (v(35), v(35)))
    e("s_and_saveexec_b64 s[90:91], vcc")
    e("s_cbranch_execz L_noepf")
    e("global_load_dword %s, %s, %s%s" % (v(35), v(35), sp(sPC), PFM))
    lab("L_noepf")
    e("s_mov_b64 exec, -1")
if STAMPS:
    e("s_memrealtime %s" % sp(sST))
    for i in range(16): e("v_mov_b32 %s, 0" % v(vSTP + i))
    if EPF: e("v_mov_b32 %s, s%d" % (v(vSTP + 14), sPC))
DBG = int(opts.get("dbg", 0))
if PAD or DBG: e("s_memrealtime s[100:101]")
e("v_lshrrev_b32 %s, 6, v0" % v(vT0))
e("v_and_b32 %s, 63, v0" % v(vL))
e("v_readfirstlane_b32 s%d, %s" % (sWAVE, v(vT0)))
e("v_lshrrev_b32 %s, 4, %s" % (v(vQ), v(vL)))
e("v_and_b32 %s, 15, %s" % (v(vN), v(vL)))
e("s_and_b32 s%d, s2, 7" % sG)
e("s_lshr_b32 s%d, s2, 3" % sC)
e("s_mov_b32 s%d, 0x40000" % sSPIN)
e("s_cmp_ge_u32 s%d, 4" % sWAVE)
e("s_cbranch_scc1 L_A")
vX = 8
if XLIN:
    e("v_lshlrev_b32 %s, 4, %s" % (v(vT0), v(vL)))
else:
    c("x offset: (l>>2)*64 + (l&3)*8")
    e("v_lshrrev_b32 %s, 2, %s" % (v(vT0), v(vL)))
    e("v_and_b32 %s, 3, %s" % (v(vT1), v(vL)))
    e("v_lshlrev_b32 %s, 6, %s" % (v(vT0), v(vT0)))
    e("v_lshl_add_u32 %s, %s, 3, %s" % (v(vT0), v(vT1), v(vT0)))
def xload():
    if XLIN:
        e("global_load_dwordx4 %s, %s, s[16:17]" % (v(vX, 4), v(vT0)))
    else:
        e("global_load_dwordx2 %s, %s, s[16:17]" % (v(vX, 2), v(vT0)))
        e("global_load_dwordx2 %s, %s, s[16:17] offset:32" % (v(vX + 2, 2), v(vT0)))
e("s_lshl_b32 s%d, s%d, 5" % (sP4, sG))
e("s_add_u32 s%d, s%d, s%d" % (sP4, sP4, sC))
e("s_lshl_b32 s%d, s%d, 2" % (sP4, sP4))
e("s_cmp_lg_u32 s%d, 0" % sWAVE)
e("s_cbranch_scc1 L_B0")
c("---- Q wave: issue x and wq loads ----")
e("s_setprio 3")
e("v_lshrrev_b32 %s, 3, %s" % (v(vT1), v(vL)))
e("v_lshlrev_b32 %s, 1, %s" % (v(vT2), v(vQ)))
e("v_xor_b32 %s, %s, %s" % (v(vT2), v(vT2), v(vL)))
e("v_and_b32 %s, 7, %s" % (v(vT2), v(vT2)))
e("v_lshlrev_b32 %s, 13, %s" % (v(vT1), v(vT1)))
e("v_lshl_add_u32 %s, %s, 4, %s" % (v(vT1), v(vT2), v(vT1)))
e("s_and_b32 s%d, s%d, 3" % (sOFF, sC))
e("s_lshl_b32 s%d, s%d, 20" % (sOFF, sOFF))
e("s_lshl_b32 s%d, s%d, 10" % (sTMP, sG))
e("s_add_u32 s%d, s%d, s%d" % (sOFF, sOFF, sTMP))
e("s_lshr_b32 s%d, s%d, 2" % (sTMP, sC))
e("s_lshl_b32 s%d, s%d, 7" % (sTMP, sTMP))
e("s_add_u32 s%d, s%d, s%d" % (sOFF, sOFF, sTMP))
e("s_mov_b32 m0, %d" % WQB)
e("s_mov_b32 s%d, %s" % (SRD_B + 2, hx(1 << 22)))
e("s_mov_b32 s%d, 0x00020000" % (SRD_B + 3))
WQ4 = int(opts.get("wq4", 0))
e("s_mov_b32 s%d, %d" % (sCNT, 12 if WQ4 else 16))
if WQ4: e("s_mov_b32 s%d, %d" % (sSTEP, 65536 - 1024))
vEP = 22
e("v_mov_b32 %s, 0" % v(vEP))
e("s_waitcnt lgkmcnt(0)")
if STAMPS: e("v_mov_b32 %s, s%d" % (v(vSTP), sST))
e("s_mov_b64 %s, s[22:23]" % sp(SRD_B))
xload()
e("global_load_dword %s, %s, s[40:41] offset:%d sc1%s" % (v(vEP), v(vEP), EPOCH, SM))
lab("L_wqloop")
if WQ4:
    for i in range(4):
        e("buffer_load_dwordx4 %s, %s, s%d offen offset:%d nt lds" % (v(vT1), srd(SRD_B), sOFF, 1024 * i))
        if i < 3: e("s_add_u32 s%d, s%d, s%d" % (sOFF, sOFF, sSTEP))
    e("s_add_u32 m0, m0, 4096")
    e("s_add_u32 s%d, s%d, %d" % (sOFF, sOFF, 65536 + 3072))
    e("s_sub_u32 s%d, s%d, 4" % (sCNT, sCNT))
    e("s_cbranch_scc0 L_wqloop")
else:
    e("buffer_load_dwordx4 %s, %s, s%d offen nt lds" % (v(vT1), srd(SRD_B), sOFF))
    e("s_sub_u32 s%d, s%d, 1" % (sCNT, sCNT))
    e("s_add_u32 m0, m0, 1024")
    e("s_add_u32 s%d, s%d, 65536" % (sOFF, sOFF))
    e("s_cmp_lg_u32 s%d, 0" % sCNT)
    e("s_cbranch_scc1 L_wqloop")
if QWAIT >= 0: e("s_waitcnt vmcnt(%d)" % QWAIT)
e("s_barrier")
mksrd(SRD_WS, 40, WS_NREC)
c("publish address: (n>>1)*128 + q'*32 + (n&1)*16 ; record (g*32+c)*512")
vPUB = 7
e("v_lshrrev_b32 %s, 1, %s" % (v(vT0), v(vN)))
e("v_lshlrev_b32 %s, 7, %s" % (v(vT0), v(vT0)))
e("v_lshl_add_u32 %s, %s, 5, %s" % (v(vT0), v(vQ), v(vT0)))
e("v_and_b32 %s, 1, %s" % (v(vT1), v(vN)))
e("v_lshl_add_u32 %s, %s, 4, %s" % (v(vPUB), v(vT1), v(vT0)))
e("s_lshl_b32 s%d, s%d, 7" % (sOFF, sP4))
e("s_add_u32 s%d, s%d, %d" % (sOFF, sOFF, MB1A))
mask(sM8, 0x00FF00FF)
vXW = 23
if XLIN:
    e("v_lshrrev_b32 %s, 2, %s" % (v(vXW), v(vL)))
    e("v_lshlrev_b32 %s, 6, %s" % (v(vXW), v(vXW)))
    e("v_lshl_add_u32 %s, %s, 5, %s" % (v(vXW), v(vT1), v(vXW)))
    e("v_bfe_u32 %s, %s, 1, 1" % (v(vT0), v(vL)))
    e("v_lshl_add_u32 %s, %s, 3, %s" % (v(vXW), v(vT0), v(vXW)))
vZ = 12
if PREWRITE == 2:
    e("v_lshlrev_b32 %s, 4, %s" % (v(vT0), v(vL)))
    e("s_mov_b32 exec_hi, 0")
    e("buffer_load_dwordx4 %s, %s, %s, s%d offen nt" % (v(28, 4), v(vT0), srd(SRD_WS), sOFF))
    e("s_mov_b64 exec, -1")
elif PREWRITE:
    for i in range(4): e("v_mov_b32 %s, 0" % v(vZ + i))
    e("s_mov_b64 exec, %s" % sp(sM8))
    e("buffer_store_dwordx4 %s, %s, %s, s%d offen%s" % (v(vZ, 4), v(vPUB), srd(SRD_WS), sOFF, fs))
    e("s_mov_b64 exec, -1")
NQ = 1 if PREWRITE else 0
e("s_waitcnt vmcnt(%d)" % (16 + NQ))
e("s_branch L_ln1")
lab("L_B0")
c("---- B waves: issue x, w1, b1, w2 loads ----")
vW1, vB1, vW2 = 16, 22, 28
if DPF:
    c("distributed code prefetch into L2: this workgroup pulls a few lines (needs no kernarg)")
    e("s_cmp_lg_u32 s%d, 1" % sWAVE)
    e("s_cbranch_scc1 L_nodpf")
    e("s_getpc_b64 %s" % sp(sPC))
    lab("L_pc3")
    NL = 4 if STAMPS else 2 * DPF
    e("s_sub_u32 s%d, s%d, L_pc3-L_start" % (sPC, sPC))
    e("s_subb_u32 s%d, s%d, 0" % (sPC + 1, sPC + 1))
    e("s_mul_i32 s%d, s%d, %d" % (sTMP, sC, NL * 128))
    if not STAMPS: e("s_and_b32 s%d, s%d, 8191" % (sTMP, sTMP))
    e("v_lshl_add_u32 %s, %s, 7, s%d" % (v(35), v(vL), sTMP))
    e("v_min_u32 %s, L_codeend-L_start-4, %s" % (v(35), v(35)))
    e("s_mov_b64 exec, %d" % ((1 << NL) - 1))
    e("global_load_dword %s, %s, %s" % (v(35), v(35), sp(sPC)))
    e("s_mov_b64 exec, -1")
    lab("L_nodpf")
BW = int(opts.get("bw", 1))
e("v_subrev_u32 %s, 64, v0" % v(vT1))
if BW:
    e("v_lshlrev_b32 %s, 2, %s" % (v(vT2), v(vT1)))
    e("v_lshlrev_b32 %s, 4, %s" % (v(vT1), v(vT1)))
else:
    e("v_mul_u32_u24 %s, 20, %s" % (v(vT1), v(vT1)))
e("v_mov_b32 %s, s%d" % (v(33), sP4))
if NOS: e("v_mov_b32 %s, 0" % v(34))
e("s_waitcnt lgkmcnt(0)")
if STAMPS: e("v_mov_b32 %s, s%d" % (v(vSTP), sST))
if B1ONLY:
    e("s_cmp_lg_u32 s%d, 1" % sWAVE)
    e("s_cbranch_scc1 L_nox")
xload()
e("global_load_dword %s, %s, s[16:17]" % (v(33), v(33)))
if NOS:
    assert B1ONLY
    e("global_load_ushort %s, %s, s[34:35]" % (v(34), v(34)))
if B1ONLY: lab("L_nox")
for b, p, r in ((SRD_A, 28, vW1), (SRD_B, 30, vB1), (SRD_C, 32, vW2)):
    mksrd(b, p, 3584)
mksrd(SRD_WS, 40, WS_NREC)
e("v_mov_b32 %s, 0" % v(vPUB))
PR3 = int(opts.get("epr3", 0))
if PR3:
    e("s_cmp_lg_u32 s%d, 2" % sWAVE)
    e("s_cbranch_scc1 L_nopr3")
    if PR3 == 1:
        e("s_lshr_b32 s%d, s%d, 8" % (sA, sP4))
        e("s_lshl_b32 s%d, s%d, 16" % (sA, sA))
        e("s_and_b32 s%d, s%d, 0xe0" % (sB, sP4))
        e("s_lshl_b32 s%d, s%d, 2" % (sB, sB))
        e("s_add_u32 s%d, s%d, s%d" % (sA, sA, sB))
        e("s_and_b32 s%d, s%d, 0x1c" % (sB, sP4))
        e("s_lshl_b32 s%d, s%d, 11" % (sB, sB))
        e("s_add_u32 s%d, s%d, s%d" % (sA, sA, sB))
        e("v_lshlrev_b32 %s, 10, %s" % (v(34), v(vL)))
    else:
        e("s_and_b32 s%d, s%d, 3" % (sA, sC))
        e("s_lshl_b32 s%d, s%d, 16" % (sA, sA))
        e("s_lshl_b32 s%d, s%d, 13" % (sB, sG))
        e("s_add_u32 s%d, s%d, s%d" % (sA, sA, sB))
        e("s_lshr_b32 s%d, s%d, 2" % (sB, sC))
        e("s_lshl_b32 s%d, s%d, 10" % (sB, sB))
        e("s_add_u32 s%d, s%d, s%d" % (sA, sA, sB))
        e("v_and_b32 %s, 7, %s" % (v(34), v(vL)))
        e("v_lshlrev_b32 %s, 7, %s" % (v(34), v(34)))
        e("v_lshrrev_b32 %s, 3, %s" % (v(35), v(vL)))
        e("v_lshl_add_u32 %s, %s, 18, %s" % (v(34), v(35), v(34)))
    e("s_add_u32 s%d, s%d, %d" % (sA, sA, MB3))
    e("s_mov_b32 exec_lo, 0x%x" % (((1 << (8 * max(1, NREP))) - 1) & 0xffffffff))
    e("s_mov_b32 exec_hi, 0x%x" % (((1 << (8 * max(1, NREP))) - 1) >> 32))
    e("buffer_load_dword %s, %s, %s, s%d offen %s" % (v(34), v(34), srd(SRD_WS), sA, opts.get("pr3m", "sc1").replace("none", "")))
    e("s_mov_b64 exec, -1")
    lab("L_nopr3")
if BW == 2: e("s_barrier")
for b, p, r in ((SRD_A, 28, vW1), (SRD_B, 30, vB1), (SRD_C, 32, vW2)):
    if int(opts.get("nob", 0)): continue
    e("buffer_load_dwordx4 %s, %s, %s, 0 offen" % (v(r, 4), v(vT1), srd(b)))
    if BW: e("buffer_load_dword %s, %s, %s, 0 offen offset:3072" % (v(r + 4), v(vT2), srd(b)))
    else: e("buffer_load_dword %s, %s, %s, 0 offen offset:16" % (v(r + 4), v(vT1), srd(b)))
if BW != 2: e("s_barrier")
PRO = int(opts.get("pro", 0))
if PRO:
    e("s_cmp_lg_u32 s%d, 3" % sWAVE)
    e("s_cbranch_scc1 L_nopro")
    if PRO == 2:
        e("s_cmp_lg_u32 s%d, 0" % sC)
        e("s_cbranch_scc1 L_nopro")
    e("global_load_dword %s, %s, s[36:37] nt" % (v(33), v(33)))
    lab("L_nopro")
if B1ONLY:
    e("s_cmp_lg_u32 s%d, 1" % sWAVE)
    e("s_cbranch_scc1 L_B2")
if PREFETCH:
    c("pull the kernel's code into L2 (first two workgroups of each group, wave 1)")
    e("s_cmp_ge_u32 s%d, 2" % sC)
    e("s_cbranch_scc1 L_nopf")
    e("s_cmp_lg_u32 s%d, 1" % sWAVE)
    e("s_cbranch_scc1 L_nopf")
    e("s_getpc_b64 %s" % sp(sPC))
    lab("L_pc")
    e("s_sub_u32 s%d, s%d, L_pc-L_start" % (sPC, sPC))
    e("s_subb_u32 s%d, s%d, 0" % (sPC + 1, sPC + 1))
    e("v_lshlrev_b32 %s, 7, %s" % (v(vT0), v(vL)))
    e("v_min_u32 %s, L_codeend-L_start-4, %s" % (v(vT1), v(vT0)))
    e("global_load_dword %s, %s, %s" % (v(34), v(vT1), sp(sPC)))
    if STAMPS:
        e("v_add_u32 %s, 8192, %s" % (v(vT0), v(vT0)))
        e("v_min_u32 %s, L_codeend-L_start-4, %s" % (v(vT1), v(vT0)))
        e("global_load_dword %s, %s, %s" % (v(35), v(vT1), sp(sPC)))
    e("s_waitcnt vmcnt(%d)" % (8 if STAMPS else 7))
    e("s_branch L_ln1")
    lab("L_nopf")
e("s_waitcnt vmcnt(%d)" % (0 if int(opts.get("nob", 0)) else 6))
lab("L_ln1")
c("---- LN1 (Q and B waves) ----")
stamp(1)
vF, vD, vS1, vS2, vM, vR, vXN = 36, 44, 52, 53, 54, 55, 56
for i in range(4): unpack(vF + 2 * i, vX + i)
e("v_readfirstlane_b32 s%d, %s" % (sPIV, v(vF)))
e("s_nop 1")
for i in range(8): e("v_subrev_f32 %s, s%d, %s" % (v(vD + i), sPIV, v(vF + i)))
def sums():
    e("v_add_f32 %s, %s, %s" % (v(vS1), v(vD), v(vD + 1)))
    e("v_mul_f32 %s, %s, %s" % (v(vS2), v(vD), v(vD)))
    e("v_fmac_f32 %s, %s, %s" % (v(vS2), v(vD + 1), v(vD + 1)))
    for i in range(2, 8):
        e("v_add_f32 %s, %s, %s" % (v(vS1), v(vS1), v(vD + i)))
        e("v_fmac_f32 %s, %s, %s" % (v(vS2), v(vD + i), v(vD + i)))
    dpp_reduce("v_add_f32", [vS1, vS2], ROW + XROW)
    e("s_nop 0")
    e("v_readlane_b32 s%d, %s, 63" % (sA, v(vS1)))
    e("v_readlane_b32 s%d, %s, 63" % (sB, v(vS2)))
sums()
e("v_mov_b32 %s, %s" % (v(vT0), hx(f2u(1.0 / 512))))
e("s_nop 0")
e("v_mul_f32 %s, s%d, %s" % (v(vM), sA, v(vT0)))
e("v_mul_f32 %s, s%d, %s" % (v(vR), sB, v(vT0)))
e("v_fma_f32 %s, -%s, %s, %s" % (v(vR), v(vM), v(vM), v(vR)))
e("v_add_f32 %s, s%d, %s" % (v(vM), sPIV, v(vM)))
ln_finish(vM, vR)
for i in range(8): e("v_sub_f32 %s, %s, %s" % (v(vD + i), v(vF + i), v(vM)))
for i in range(4): e("v_cvt_pk_bf16_f32 %s, %s, %s" % (v(vXN + i), v(vD + 2 * i), v(vD + 2 * i + 1)))
for i in range(4): unpack(vD + 2 * i, vXN + i)
for i in range(8): e("v_mul_f32 %s, %s, %s" % (v(vD + i), v(vD + i), v(vR)))
for i in range(4): e("v_cvt_pk_bf16_f32 %s, %s, %s" % (v(vXN + i), v(vD + 2 * i), v(vD + 2 * i + 1)))
e("s_cmp_lg_u32 s%d, 0" % sWAVE)
e("s_cbranch_scc1 L_B1")
c("======== Q wave: partial q (128 rows x 64 columns) ========")
vBF = 64
vAF = 80
vQA = 144
vAD = 60
if XLIN:
    assert XN == 0
    e("ds_write2_b64 %s, %s, %s offset0:0 offset1:2" % (v(vXW), v(vXN, 2), v(vXN + 2, 2)))
else:
    e("v_lshlrev_b32 %s, 4, %s" % (v(vT0), v(vL)))
    e("ds_write_b128 %s, %s offset:%d" % (v(vT0), v(vXN, 4), XN))
if WOQ:
    e("v_mov_b32 %s, 0" % v(vT0))
    e("ds_write_b32 %s, %s offset:%d" % (v(vT0), v(vT0), FLAG))
e("s_and_b32 s%d, s%d, 3" % (sTMP, sC))
e("s_lshl_b32 s%d, s%d, 8" % (sTMP, sTMP))
e("v_lshl_add_u32 %s, %s, 4, s%d" % (v(vT0), v(vQ), sTMP))
e("v_lshrrev_b32 %s, 2, %s" % (v(vT1), v(vL)))
e("v_lshlrev_b32 %s, 7, %s" % (v(vT1), v(vT1)))
e("v_bfe_u32 %s, %s, 3, 2" % (v(vT2), v(vL)))
e("v_lshl_add_u32 %s, %s, 5, %s" % (v(vT1), v(vT2), v(vT1)))
e("v_and_b32 %s, 3, %s" % (v(vT2), v(vL)))
e("v_lshl_add_u32 %s, %s, 3, %s" % (v(vT1), v(vT2), v(vT1)))
e("v_add_u32 %s, %d, %s" % (v(vAD), WQB, v(vT1)))
assert WQB % 256 == 0
for b in range(1, 4): e("v_xor_b32 %s, %d, %s" % (v(vAD + b), b << 5, v(vAD)))
e("s_waitcnt lgkmcnt(0)")
for s in range(4):
    e("ds_read_b128 %s, %s offset:%d" % (v(vBF + 4 * s, 4), v(vT0), XN + 64 * s))
e("v_readfirstlane_b32 s%d, %s" % (sE, v(vEP)))
mktag()
e("s_getreg_b32 s%d, hwreg(HW_REG_XCC_ID, 0, 4)" % (sTAG + 1))
if FORCE_SLOW: e("s_add_u32 s%d, s%d, s2" % (sTAG + 1, sTAG + 1))
e("v_mov_b32 %s, s%d" % (v(vZ + 2), sTAG))
e("v_mov_b32 %s, s%d" % (v(vZ + 3), sTAG + 1))
mask(sN1, 0xAAAAAAAA); mask(sN2, 0xCCCCCCCC); mask(sN4, 0xF0F0F0F0)
def q_reads(s):
    e("s_waitcnt vmcnt(%d)" % (12 - 4 * s + NQ))
    for b in range(4):
        for h in range(2):
            e("ds_read_b64_tr_b16 %s, %s offset:%d" % (v(vAF + 16 * s + 4 * b + 2 * h, 2), v(vAD + b), 4096 * s + 2048 * h))
def q_mfma(s, behind):
    for b in range(4):
        e("s_waitcnt lgkmcnt(%d)" % (6 - 2 * b + behind))
        e("v_mfma_f32_16x16x32_bf16 %s, %s, %s, %s" % (v(vQA + 4 * b, 4), v(vAF + 16 * s + 4 * b, 4), v(vBF + 4 * s, 4), v(vQA + 4 * b, 4) if s else "0"))
q_reads(0)
for s in range(4):
    if s < 3: q_reads(s + 1)
    q_mfma(s, 8 if s < 3 else 0)
c("gather address: (l>>3)*2048 + (l&7)*16")
vGA = 16
e("v_lshrrev_b32 %s, 3, %s" % (v(vT0), v(vL)))
e("v_and_b32 %s, 7, %s" % (v(vT1), v(vL)))
e("v_lshlrev_b32 %s, 11, %s" % (v(vGA), v(vT0)))
e("v_lshl_add_u32 %s, %s, 4, %s" % (v(vGA), v(vT1), v(vGA)))
e("s_nop 1")
for b in range(4):
    e("v_cndmask_b32 %s, %s, %s, %s" % (v(vD + 2 * b), v(vQA + 4 * b), v(vQA + 4 * b + 2), sp(sN1)))
    e("v_cndmask_b32 %s, %s, %s, %s" % (v(vD + 2 * b + 1), v(vQA + 4 * b + 1), v(vQA + 4 * b + 3), sp(sN1)))
for k in range(2):
    e("v_cndmask_b32 %s, %s, %s, %s" % (v(vD + 4 * k), v(vD + 4 * k), v(vD + 4 * k + 2), sp(sN2)))
    e("v_cndmask_b32 %s, %s, %s, %s" % (v(vD + 4 * k + 1), v(vD + 4 * k + 1), v(vD + 4 * k + 3), sp(sN2)))
e("v_cndmask_b32 %s, %s, %s, %s" % (v(vZ), v(vD), v(vD + 4), sp(sN4)))
e("v_cndmask_b32 %s, %s, %s, %s" % (v(vZ + 1), v(vD + 1), v(vD + 5), sp(sN4)))
e("s_mov_b64 exec, %s" % sp(sM8))
e("buffer_store_dwordx4 %s, %s, %s, s%d offen%s" % (v(vZ, 4), v(vPUB), srd(SRD_WS), sOFF, fs))
e("s_mov_b64 exec, -1")
if B1B: e("s_barrier")
stamp(2)
c("q LDS write address: (l>>3)*128 + (l>>4)*16 + (l&7)*4")
vQW = 17
e("v_lshlrev_b32 %s, 7, %s" % (v(vQW), v(vT0)))
e("v_lshl_add_u32 %s, %s, 4, %s" % (v(vQW), v(vQ), v(vQW)))
e("v_lshl_add_u32 %s, %s, 2, %s" % (v(vQW), v(vT1), v(vQW)))
e("v_add_u32 %s, %d, %s" % (v(vQW), QL, v(vQW)))
e("s_lshl_b32 s%d, s%d, 14" % (sOFF2, sG))
e("s_add_u32 s%d, s%d, %d" % (sOFF2, sOFF2, MB1A))
e("s_mov_b32 s%d, 0" % sCNT)
e("s_mov_b32 s%d, 1" % sMODE)
if QM: e("s_mov_b64 %s, -1" % sp(sPQ))
G1 = 80
G1B = 160
QS = 24
def q_loads(soff, G=G1):
    for rb in range(4):
        for k in range(QK):
            e("buffer_load_dwordx4 %s, %s, %s, s%d offen offset:%d sc1" % (v(G + 16 * rb + 4 * k, 4), v(vGA), srd(SRD_WS), soff, 512 * rb + 128 * k))
def q_sum(i, G=G1):
    rb, k = divmod(i, 4)
    if rb == 0: return
    for j in range(2):
        e("v_add_f32 %s, %s, %s" % (v(QS + 2 * k + j), v(G + 4 * k + j) if rb == 1 else v(QS + 2 * k + j), v(G + 16 * rb + 4 * k + j)))
def q_check(G, behind):
    idx = [i for i in range(16) if i % 4 < QK]
    if behind: behind = len(idx)
    for n_, i in enumerate(idx):
        e("s_waitcnt vmcnt(%d)" % (len(idx) - 1 - n_ + behind))
        e("v_cmpx_eq_u64 vcc, %s, %s" % (sp(sTAG), v(G + 4 * i + 2, 2)))
        q_sum(i, G)
    e("s_cmp_eq_u64 exec, -1")
if int(opts.get("noq", 0)): e("s_branch L_qok")
c("poll back-off: a gather issued before the other members have published is wasted and, as this CU's")
c("vector memory path returns in order behind the K/V stream, a retry costs a whole round trip")
QD3 = int(opts.get("qd3", QD0))
if QD3 != QD0:
    e("s_sleep %d" % QD3)
    e("s_lshr_b32 s%d, s%d, 2" % (sTMP, sC))
    e("s_cmp_eq_u32 s%d, 3" % sTMP)
    e("s_cbranch_scc1 L_qpollA")
    e("s_sleep %d" % (QD0 - QD3))
elif QD0: e("s_sleep %d" % QD0)
lab("L_qpollA")
if QPIPE:
    q_loads(sOFF2, G1)
    if QD1: e("s_sleep %d" % QD1)
    lab("L_qpollA2")
    q_loads(sOFF2, G1B)
    q_check(G1, 16)
    e("s_cbranch_scc1 L_qok")
    e("s_mov_b64 exec, -1")
    q_loads(sOFF2, G1)
    q_check(G1B, 16)
    e("s_cbranch_scc0 L_qfail")
else:
    if QM: e("s_mov_b64 exec, %s" % sp(sPQ))
    q_loads(sOFF2, G1)
    if QM: e("s_mov_b64 exec, -1")
    q_check(G1, 0)
    e("s_cbranch_scc0 L_qfail")
lab("L_qok")
for k in range(4): e("v_cvt_pk_bf16_f32 %s, %s, %s" % (v(vD + k), v(QS + 2 * k), v(QS + 2 * k + 1)))
e("v_mov_b32 %s, s%d" % (v(vD + 4), sMODE))
e("v_mov_b32 %s, s%d" % (v(vD + 5), sTAG))
e("v_mov_b32 %s, %d" % (v(vD + 6), MODE))
e("ds_write2_b32 %s, %s, %s offset0:0 offset1:8" % (v(vQW), v(vD), v(vD + 1)))
e("ds_write2_b32 %s, %s, %s offset0:16 offset1:24" % (v(vQW), v(vD + 2), v(vD + 3)))
e("ds_write_b64 %s, %s" % (v(vD + 6), v(vD + 4, 2)))
if WOQ: e("ds_write_b32 %s, %s offset:8" % (v(vD + 6), v(vD + 6)))
e("s_waitcnt lgkmcnt(0)")
stamp(6)
e("s_barrier")
if not NOS:
    e("s_load_dword s%d, s[16:17], s%d" % (sXP, sP4))
    e("s_load_dword s%d, s[34:35], 0" % sB2)
if not NOBC:
    c("copy for other dies (always stored; not needed on the fast path)")
    e("s_cmp_lg_u32 s%d, 0" % sCNT)
    e("s_cbranch_scc1 L_qb_done")
    e("s_add_u32 s%d, s%d, %d" % (sOFF, sOFF, MB1B - MB1A))
    e("s_mov_b64 exec, %s" % sp(sM8))
    e("buffer_store_dwordx4 %s, %s, %s, s%d offen sc1" % (v(vZ, 4), v(vPUB), srd(SRD_WS), sOFF))
    e("s_mov_b64 exec, -1")
lab("L_qb_done")
if GLATE:
    for _ in range(4 if PV2 else 2): e("s_barrier")
c("g for own two columns")
vG, vXO = 18, 20
e("v_mov_b32 %s, 0" % v(vT1))
e("ds_read_b128 %s, %s offset:%d" % (v(vF, 4), v(vT1), YB))
e("ds_read_b64 %s, %s offset:%d" % (v(vF + 4, 2), v(vT1), YB + 16))
if NOS:
    e("ds_read_b64 %s, %s offset:%d" % (v(vF + 6, 2), v(vT1), HX + 8))
    e("s_waitcnt lgkmcnt(0)")
    unpack(vXO, vF + 6)
    e("v_lshlrev_b32 %s, 16, %s" % (v(vF + 7), v(vF + 7)))
else:
    e("s_waitcnt lgkmcnt(0)")
    e("s_lshl_b32 s%d, s%d, 16" % (sB2, sB2))
    e("v_mov_b32 %s, s%d" % (v(vT0), sXP))
    unpack(vXO, vT0)
e("v_add_f32 %s, %s, %s" % (v(vG), v(vF), v(vF + 2)))
e("v_add_f32 %s, %s, %s" % (v(vG + 1), v(vF + 1), v(vF + 3)))
e("v_add_f32 %s, %s, %s" % (v(vG), v(vG), v(vF + 4)))
e("v_add_f32 %s, %s, %s" % (v(vG + 1), v(vG + 1), v(vF + 5)))
round2(vG, vT1)
b2op = v(vF + 7) if NOS else "s%d" % sB2
e("v_add_f32 %s, %s, %s" % (v(vG), b2op, v(vG)))
e("v_add_f32 %s, %s, %s" % (v(vG + 1), b2op, v(vG + 1)))
round2(vG, vT1)
e("v_mul_f32 %s, %s, %s" % (v(vF), hx(f2u(-math.log2(math.e))), v(vG)))
e("v_mul_f32 %s, %s, %s" % (v(vF + 1), hx(f2u(-math.log2(math.e))), v(vG + 1)))
e("v_exp_f32 %s, %s" % (v(vF), v(vF)))
e("v_exp_f32 %s, %s" % (v(vF + 1), v(vF + 1)))
e("s_nop 0")
e("v_add_f32 %s, 1.0, %s" % (v(vF), v(vF)))
e("v_add_f32 %s, 1.0, %s" % (v(vF + 1), v(vF + 1)))
e("v_rcp_f32 %s, %s" % (v(vF), v(vF)))
e("v_rcp_f32 %s, %s" % (v(vF + 1), v(vF + 1)))
e("s_nop 0")
e("v_mul_f32 %s, %s, %s" % (v(vG), v(vG), v(vF)))
e("v_mul_f32 %s, %s, %s" % (v(vG + 1), v(vG + 1), v(vF + 1)))
round2(vG, vT1)
c("final gather address: MB3 + (p>>6)*65536 + l*1024 + (p&63)*16")
e("s_lshr_b32 s%d, s%d, 8" % (sOFF3, sP4))
e("s_lshl_b32 s%d, s%d, 16" % (sOFF3, sOFF3))
e("s_and_b32 s%d, s%d, 255" % (sTMP, sP4))
e("s_lshl_b32 s%d, s%d, 2" % (sTMP, sTMP))
e("s_add_u32 s%d, s%d, s%d" % (sOFF3, sOFF3, sTMP))
e("s_add_u32 s%d, s%d, %d" % (sOFF3, sOFF3, MB3))
e("v_lshlrev_b32 %s, 10, %s" % (v(vT1), v(vL)))
e("s_mov_b32 s%d, s%d" % (sT3, sTAG))
mksrd(SRD_A, 36, 1024)
e("v_mov_b32 %s, 0" % v(vT2))
if not GLATE:
    for _ in range(4 if PV2 else 2): e("s_barrier")
G3 = 64
c("poll back-off: polling lines that are not written yet slows the producers' write-through stores down")
if PRESLEEP: e("s_sleep %d" % PRESLEEP)
e("s_mov_b32 s%d, s%d" % (sT3 + 1, sTAG))
REP = 0
GAP = int(opts.get("gap", 6))
if NREP:
    sPEND = 94
    GR = 64
    for r in range(NREP):
        e("buffer_load_dwordx4 %s, %s, %s, s%d offen sc1" % (v(GR + 4 * r, 4), v(vT1), srd(SRD_WS), sOFF3))
        if r < NREP - 1:
            e("s_add_u32 s%d, s%d, %d" % (sOFF3, sOFF3, 1 << 18))
        if r == 0:
            e("s_mov_b64 %s, -1" % sp(sPEND))
        if r >= 1:
            pass
        LAG = int(opts.get("lag", 2))
        k = r - LAG
        if k >= 0:
            e("s_waitcnt vmcnt(%d)" % LAG)
            e("v_cmpx_eq_u64 vcc, %s, %s" % (sp(sT3), v(GR + 4 * k + 2, 2)))
            e("v_mov_b32 %s, %s" % (v(vF), v(GR + 4 * k)))
            e("v_mov_b32 %s, %s" % (v(vF + 1), v(GR + 4 * k + 1)))
            e("s_andn2_b64 %s, %s, exec" % (sp(sPEND), sp(sPEND)))
            e("s_cbranch_scc0 L_h3ok")
            e("s_mov_b64 exec, %s" % sp(sPEND))
        elif r < NREP - 1:
            e("s_sleep %d" % GAP)
    for k in range(max(0, NREP - LAG), NREP):
        e("s_waitcnt vmcnt(%d)" % (NREP - 1 - k))
        e("v_cmpx_eq_u64 vcc, %s, %s" % (sp(sT3), v(GR + 4 * k + 2, 2)))
        e("v_mov_b32 %s, %s" % (v(vF), v(GR + 4 * k)))
        e("v_mov_b32 %s, %s" % (v(vF + 1), v(GR + 4 * k + 1)))
        e("s_andn2_b64 %s, %s, exec" % (sp(sPEND), sp(sPEND)))
        e("s_cbranch_scc0 L_h3ok")
        e("s_mov_b64 exec, %s" % sp(sPEND))
lab("L_h3loop")
e("buffer_load_dwordx4 %s, %s, %s, s%d offen %s" % (v(vF, 4), v(vT1), srd(SRD_WS), sOFF3, H3LD))
e("s_waitcnt vmcnt(0)")
e("v_cmpx_ne_u64 vcc, %s, %s" % (sp(sT3), v(vF + 2, 2)))
e("s_cbranch_execz L_h3ok")
if LSLEEP: e("s_sleep %d" % LSLEEP)
spin_check("L_h3loop")
lab("L_h3ok")
e("s_mov_b64 exec, -1")
e("s_nop 2")
stamp(10)
dpp_reduce("v_add_f32", [vF, vF + 1], ROW + XROW)
round2(vF, vT0)
e("v_mul_f32 %s, %s, %s" % (v(vF), v(vF), v(vG)))
e("v_mul_f32 %s, %s, %s" % (v(vF + 1), v(vF + 1), v(vG + 1)))
round2(vF, vT0)
e("v_add_f32 %s, %s, %s" % (v(vF), v(vF), v(vXO)))
e("v_add_f32 %s, %s, %s" % (v(vF + 1), v(vF + 1), v(vXO + 1)))
e("v_cvt_pk_bf16_f32 %s, %s, %s" % (v(vT0), v(vF), v(vF + 1)))
e("s_mov_b32 exec_lo, 0"); e("s_mov_b32 exec_hi, 0x80000000")
OUTM = opts.get("outm", "").replace("+", " ")
e("buffer_store_dword %s, %s, %s, s%d offen %s" % (v(vT0), v(vT2), srd(SRD_A), sP4, OUTM))
if DBG:
    e("s_cmp_lg_u32 s%d, 0" % sC)
    e("s_cbranch_scc1 L_nodbg")
    e("s_memrealtime %s" % sp(sST))
    mksrd(SRD_B, 38, 256)
    e("s_lshl_b32 s%d, s%d, 2" % (sTMP, sG))
    e("s_waitcnt lgkmcnt(0)")
    e("s_and_b32 s100, s100, 0xfffff")
    e("s_and_b32 s%d, s%d, 0xfffff" % (sST, sST))
    e("v_mov_b32 %s, s100" % v(vF))
    e("v_mov_b32 %s, s%d" % (v(vF + 1), sST))
    e("buffer_store_dword %s, %s, %s, s%d offen" % (v(vF), v(vT2), srd(SRD_B), sTMP))
    e("buffer_store_dword %s, %s, %s, s%d offen offset:32" % (v(vF + 1), v(vT2), srd(SRD_B), sTMP))
    lab("L_nodbg")
e("s_cmp_lg_u32 s2, 0")
e("s_cbranch_scc1 L_fin")
e("buffer_store_dword %s, %s, %s, 0 offen offset:%d %s" % (v(vZ + 2), v(vT2), srd(SRD_WS), EPOCH, opts.get("epm", "sc1").replace("none", "")))
e("s_branch L_fin")
c("---- q gather retry / cross-die fallback ----")
lab("L_qfail")
if QM: e("s_not_b64 %s, exec" % sp(sPQ))
e("s_mov_b64 exec, -1")
e("s_sub_u32 s%d, s%d, 1" % (sSPIN, sSPIN))
e("s_cbranch_scc1 L_end")
e("s_and_b32 s%d, s%d, 3" % (sTMP, sSPIN))
e("s_cmp_lg_u32 s%d, 0" % sTMP)
e("s_cbranch_scc1 %s" % ("L_qpollA2" if QPIPE else "L_qpollA"))
e("s_cmp_lg_u32 s%d, 0" % sCNT)
e("s_cbranch_scc1 L_qpollB")
e("s_mov_b32 s%d, 1" % sCNT)
e("s_add_u32 s%d, s%d, %d" % (sOFF, sOFF, MB1B - MB1A))
e("s_mov_b64 exec, %s" % sp(sM8))
e("buffer_store_dwordx4 %s, %s, %s, s%d offen sc1" % (v(vZ, 4), v(vPUB), srd(SRD_WS), sOFF))
e("s_mov_b64 exec, -1")
lab("L_qpollB")
if QM: e("s_mov_b64 %s, -1" % sp(sPQ))
e("s_add_u32 s%d, s%d, %d" % (sTMP, sOFF2, MB1B - MB1A))
q_loads(sTMP)
e("s_waitcnt vmcnt(0)")
for i in range(16): e("v_cmpx_eq_u32 vcc, s%d, %s" % (sTAG, v(G1 + 4 * i + 2)))
e("s_cmp_eq_u64 exec, -1")
e("s_mov_b64 exec, -1")
e("s_cbranch_scc0 L_qpollA")
for i in range(16): q_sum(i)
for i in range(16): e("v_cmpx_eq_u32 vcc, s%d, %s" % (sTAG + 1, v(G1 + 4 * i + 3)))
e("s_cmp_eq_u64 exec, -1")
e("s_cselect_b32 s%d, 1, 0" % sMODE)
e("s_mov_b64 exec, -1")
e("s_branch L_qok")

c("======== B waves ========")
lab("L_B1")
BB = int(opts.get("bb", 0))
if B1B and BB and not B1ONLY: e("s_barrier")
for i in range(4): unpack(vD + 2 * i, vXN + i)
sums()
unpack(vD, 33)
def norm2():
    e("v_sub_f32 %s, %s, %s" % (v(vD), v(vD), v(vM)))
    e("v_sub_f32 %s, %s, %s" % (v(vD + 1), v(vD + 1), v(vM)))
    round2(vD, vT0)
    e("v_mul_f32 %s, %s, %s" % (v(vD), v(vD), v(vR)))
    e("v_mul_f32 %s, %s, %s" % (v(vD + 1), v(vD + 1), v(vR)))
    round2(vD, vT0)
norm2()
e("v_mov_b32 %s, %s" % (v(vT0), hx(f2u(1.0 / 512))))
e("v_mul_f32 %s, s%d, %s" % (v(vM), sA, v(vT0)))
e("v_mul_f32 %s, s%d, %s" % (v(vR), sB, v(vT0)))
e("v_fma_f32 %s, -%s, %s, %s" % (v(vR), v(vM), v(vM), v(vR)))
ln_finish(vM, vR)
norm2()
if B1ONLY:
    assert B1B
    e("v_mov_b32 %s, %d" % (v(vT0), HX))
    e("ds_write_b64 %s, %s" % (v(vT0), v(vD, 2)))
    if NOS: e("ds_write2_b32 %s, %s, %s offset0:2 offset1:3" % (v(vT0), v(33), v(34)))
    e("s_waitcnt lgkmcnt(0)")
    lab("L_B2")
else:
    e("s_nop 0")
    e("v_readfirstlane_b32 s%d, %s" % (sH0, v(vD)))
    e("v_readfirstlane_b32 s%d, %s" % (sH1, v(vD + 1)))
C1 = -2.0 * math.log2(math.e) * math.sqrt(2.0 / math.pi)
C2 = C1 * 0.044715
vACC = 60
e("v_mov_b32 %s, 0" % v(vACC))
e("v_mov_b32 %s, 0" % v(vACC + 1))
e("v_mov_b32 %s, %s" % (v(vS1), hx(f2u(C1))))
e("s_mov_b32 s%d, %s" % (sTMP, hx(f2u(C2))))
e("s_mov_b32 s%d, 5" % sCNT)
e("v_mov_b32 %s, %d" % (v(vT0), HX))
if B1B and not (BB and not B1ONLY): e("s_barrier")
if B1ONLY:
    e("ds_read_b64 %s, %s" % (v(vD, 2), v(vT0)))
    e("s_waitcnt lgkmcnt(0)")
    e("v_readfirstlane_b32 s%d, %s" % (sH0, v(vD)))
    e("v_readfirstlane_b32 s%d, %s" % (sH1, v(vD + 1)))
e("s_waitcnt vmcnt(0)")
lab("L_Bloop")
unpack(vF, vW1)
unpack(vF + 2, vB1)
U, T = vD, vD + 4
for col, sh in ((0, sH0), (1, sH1)):
    e("v_mul_f32 %s, s%d, %s" % (v(U + 2 * col), sh, v(vF)))
    e("v_mul_f32 %s, s%d, %s" % (v(U + 2 * col + 1), sh, v(vF + 1)))
for col in range(2): e("v_cvt_pk_bf16_f32 %s, %s, %s" % (v(T + col), v(U + 2 * col), v(U + 2 * col + 1)))
for col in range(2): unpack(U + 2 * col, T + col)
for col in range(2):
    e("v_add_f32 %s, %s, %s" % (v(U + 2 * col), v(U + 2 * col), v(vF + 2)))
    e("v_add_f32 %s, %s, %s" % (v(U + 2 * col + 1), v(U + 2 * col + 1), v(vF + 3)))
for col in range(2): e("v_cvt_pk_bf16_f32 %s, %s, %s" % (v(T + col), v(U + 2 * col), v(U + 2 * col + 1)))
for col in range(2): unpack(U + 2 * col, T + col)
for i in range(4): e("v_mul_f32 %s, %s, %s" % (v(T + i), v(U + i), v(U + i)))
for i in range(4): e("v_fma_f32 %s, %s, s%d, %s" % (v(T + i), v(T + i), sTMP, v(vS1)))
for i in range(4): e("v_mul_f32 %s, %s, %s" % (v(T + i), v(T + i), v(U + i)))
for i in range(4): e("v_exp_f32 %s, %s" % (v(T + i), v(T + i)))
for i in range(4): e("v_add_f32 %s, 1.0, %s" % (v(T + i), v(T + i)))
for i in range(4): e("v_rcp_f32 %s, %s" % (v(T + i), v(T + i)))
for i in range(4): e("v_mul_f32 %s, %s, %s" % (v(T + i), v(T + i), v(U + i)))
for col in range(2): e("v_cvt_pk_bf16_f32 %s, %s, %s" % (v(U + col), v(T + 2 * col), v(T + 2 * col + 1)))
for col in range(2): e("v_dot2c_f32_bf16 %s, %s, %s" % (v(vACC + col), v(U + col), v(vW2)))
for r in (vW1, vB1, vW2):
    for i in range(4): e("v_mov_b32 %s, %s" % (v(r + i), v(r + i + 1)))
e("s_sub_u32 s%d, s%d, 1" % (sCNT, sCNT))
e("s_cmp_lg_u32 s%d, 0" % sCNT)
e("s_cbranch_scc1 L_Bloop")
dpp_reduce("v_add_f32", [vACC, vACC + 1], ROW + XROW)
e("s_lshl_b32 s%d, s%d, 3" % (sTMP, sWAVE))
e("v_mov_b32 %s, s%d" % (v(vT0), sTMP))
e("s_mov_b32 exec_lo, 0"); e("s_mov_b32 exec_hi, 0x80000000")
e("ds_write_b64 %s, %s offset:%d" % (v(vT0), v(vACC, 2), YB - 8))
e("s_mov_b64 exec, -1")
e("s_waitcnt lgkmcnt(0)")
e("s_endpgm")

c("======== A waves ========")
lab("L_A")
WOAT = int(opts.get("woat", 8))
vKO, vP2, vKA, vVA, vWOo, vQB, vPX, vMW, vMR = 7, 8, 9, 10, 11, 12, 13, 14, 15
vZ2 = 16
vONE, vSC, vP, vM, vR = 20, 24, 32, 36, 37
vG2A, vOXW, vOXR, vP3 = 38, 39, 40, 41
vS1, vS2 = 42, 43
vF, vD = 44, 52
vZ3 = 60
vO, vLS, vWOF = 64, 96, 100
vQF = 116
vKF, vVF = 132, 164
vWA = 196
PX = CMB
sOFFW, sOFFG = 90, 91
e("s_sub_u32 s%d, s%d, 4" % (sAW, sWAVE))
c("dma source offset: q'*256 + ((n ^ (q'<<2))*16)")
e("v_lshlrev_b32 %s, 2, %s" % (v(vKO), v(vQ)))
e("v_xor_b32 %s, %s, %s" % (v(vKO), v(vKO), v(vN)))
e("v_lshlrev_b32 %s, 4, %s" % (v(vKO), v(vKO)))
e("v_lshl_add_u32 %s, %s, 8, %s" % (v(vKO), v(vQ), v(vKO)))
e("s_lshl_b32 s%d, s%d, 23" % (sOFF, sG))
e("s_lshl_b32 s%d, s%d, %d" % (sTMP, sC, SHC if PAT == 2 else 12))
e("s_add_u32 s%d, s%d, s%d" % (sOFF, sOFF, sTMP))
e("s_lshl_b32 s%d, s%d, %d" % (sTMP, sAW, SHW if PAT == 2 else 10))
e("s_add_u32 s%d, s%d, s%d" % (sOFF, sOFF, sTMP))
e("s_add_u32 s%d, s%d, %d" % (sOFF, sOFF, 7340032))
e("s_mul_i32 s%d, s%d, %d" % (sM0, sAW, 8 * KP))
e("s_add_u32 s%d, s%d, %d" % (sM0, sM0, KBUF))
e("s_mov_b32 m0, s%d" % sM0)
e("s_mov_b32 s%d, 0x20000" % sSTEP)
e("s_mov_b32 s%d, s%d" % (sOFF3, sOFF))
WF = int(opts.get("wf", 0))
sM0W = 94
def wo_setup():
    if WOF:
        c("wo dma offset q'*1024 + ((n ^ (q'<<2))*16) ; rows 16aw+4i+q'")
        e("v_mul_u32_u24 %s, 768, %s" % (v(vWOo), v(vQ)))
        e("v_add_u32 %s, %s, %s" % (v(vWOo), v(vWOo), v(vKO)))
        e("s_mul_i32 s%d, s%d, %d" % (sM0W, sAW, 4 * VP))
        e("s_add_u32 s%d, s%d, %d" % (sM0W, sM0W, WOB))
    else:
        c("wo dma offset (l>>2)*1024 + (l&3)*16 ; frag address WOB + aw*4096 + (l>>2)*64 + (l&3)*8")
        e("v_lshrrev_b32 %s, 2, %s" % (v(vT2), v(vL)))
        e("v_lshlrev_b32 %s, 10, %s" % (v(vWOo), v(vT2)))
        e("v_lshl_add_u32 %s, %s, 4, %s" % (v(vWOo), v(vT0), v(vWOo)))
        e("v_lshlrev_b32 %s, 6, %s" % (v(vWA), v(vT2)))
        e("v_lshl_add_u32 %s, %s, 3, %s" % (v(vWA), v(vT0), v(vWA)))
        e("s_lshl_b32 s%d, s%d, 12" % (sM0W, sAW))
        e("s_add_u32 s%d, s%d, %d" % (sM0W, sM0W, WOB))
        e("v_add_u32 %s, s%d, %s" % (v(vWA), sM0W, v(vWA)))
    e("s_lshl_b32 s%d, s%d, 19" % (sOFFW, sG))
    e("s_lshr_b32 s%d, s%d, 2" % (sA, sC))
    e("s_lshl_b32 s%d, s%d, 16" % (sTMP, sA))
    e("s_add_u32 s%d, s%d, s%d" % (sOFFW, sOFFW, sTMP))
    e("s_and_b32 s%d, s%d, 3" % (sB, sC))
    e("s_lshl_b32 s%d, s%d, 8" % (sTMP, sB))
    e("s_add_u32 s%d, s%d, s%d" % (sOFFW, sOFFW, sTMP))
    e("s_lshl_b32 s%d, s%d, %d" % (sTMP, sAW, 14 if WOF else 6))
    e("s_add_u32 s%d, s%d, s%d" % (sOFFW, sOFFW, sTMP))
WO15 = int(opts.get("wo15", 0)); WOB2 = int(opts.get("wob2", 0))
wo_next = [0]
def wo_loads(n=4):
    while n > 0 and wo_next[0] < 4:
        i = wo_next[0]
        st = VP if WOF else 1024
        e("buffer_load_dwordx4 %s, %s, s%d offen offset:%d nt lds" % (v(vWOo), srd(SRD_C), sOFFW, st * i))
        if i < 3: e("s_add_u32 s%d, s%d, %d" % (sOFFW, sOFFW, (4096 if WOF else 16384) - st))
        wo_next[0] += 1; n -= 1
if WF:
    wo_setup()
    e("s_mov_b32 m0, s%d" % sM0W)
    e("s_mov_b32 s%d, %s" % (SRD_C + 2, hx(1 << 22)))
    e("s_mov_b32 s%d, 0x00020000" % (SRD_C + 3))
N1 = int(opts.get("n1", 4)) - WF
N1L = int(opts.get("n1l", N1)); THRL = int(opts.get("thrl", THR))
sLATE = 93
if (N1L, THRL) != (N1, THR):
    e("s_lshr_b32 s%d, s%d, 2" % (sLATE, sC))
    e("s_cmp_eq_u32 s%d, 3" % sLATE)
    e("s_cselect_b32 s%d, 1, 0" % sLATE)
    e("s_cselect_b32 s%d, %d, %d" % (sCNT, N1L, N1))
else:
    e("s_mov_b32 s%d, %d" % (sCNT, N1))
e("s_mov_b32 s%d, %s" % (SRD_A + 2, hx(1 << 26)))
e("s_mov_b32 s%d, 0x00020000" % (SRD_A + 3))
if SPF:
    c("code prefetch into L2 through the scalar path: one 64 B sector per wave")
    e("s_getpc_b64 %s" % sp(sPC))
    lab("L_pc2")
    e("s_sub_u32 s%d, s%d, L_pc2-L_start" % (sPC, sPC))
    e("s_subb_u32 s%d, s%d, 0" % (sPC + 1, sPC + 1))
    e("s_lshl_b32 s%d, s%d, 2" % (sTMP, sC))
    e("s_add_u32 s%d, s%d, s%d" % (sTMP, sTMP, sAW))
    e("s_lshl_b32 s%d, s%d, %d" % (sTMP, sTMP, 7 if STAMPS else 6))
    e("s_min_u32 s%d, s%d, L_codeend-L_start-4" % (sTMP, sTMP))
e("s_waitcnt lgkmcnt(0)")
if STAMPS: e("v_mov_b32 %s, s%d" % (v(vSTP), sST))
if SPF: e("s_load_dword s%d, %s, s%d" % (97, sp(sPC), sTMP))
e("s_mov_b64 %s, s[18:19]" % sp(SRD_A))
if WF: e("s_mov_b64 %s, s[24:25]" % sp(SRD_C))
e("s_barrier")
KSLEEP = int(opts.get("ksleep", 0))
if KSLEEP: e("s_sleep %d" % KSLEEP)
sIDX, sLB, sCUR = 96, 97, 87
def dma_loop(name, sr, soff, step, thr):
    lab(name)
    if PAT == 2:
        e("s_and_b32 s%d, s%d, 7" % (sIDX, sIDX))
        e("s_mul_i32 s%d, s%d, %d" % (sCUR, sIDX, step))
        e("s_add_u32 m0, s%d, s%d" % (sCUR, sLB))
        e("s_lshl_b32 s%d, s%d, %d" % (sCUR, sIDX, SHI))
        e("s_add_u32 s%d, s%d, s%d" % (sCUR, sCUR, soff))
        e("s_add_u32 s%d, s%d, 1" % (sIDX, sIDX))
        if thr: e("s_waitcnt vmcnt(%d)" % (thr - 1))
        e("buffer_load_dwordx4 %s, %s, s%d offen nt lds" % (v(vKO), srd(sr), sCUR))
        e("s_sub_u32 s%d, s%d, 1" % (sCNT, sCNT))
        e("s_cmp_lg_u32 s%d, 0" % sCNT)
        e("s_cbranch_scc1 %s" % name)
        return
    if thr: e("s_waitcnt vmcnt(%d)" % (thr - 1))
    e("buffer_load_dwordx4 %s, %s, s%d offen nt lds" % (v(vKO), srd(sr), soff))
    e("s_sub_u32 s%d, s%d, 1" % (sCNT, sCNT))
    e("s_add_u32 m0, m0, %d" % step)
    e("s_add_u32 s%d, s%d, s%d" % (soff, soff, sSTEP))
    if XFLIP: e("s_xor_b32 s%d, s%d, 0x%x" % (soff, soff, XFLIP))
    e("s_cmp_lg_u32 s%d, 0" % sCNT)
    e("s_cbranch_scc1 %s" % name)
if PAT == 2:
    if (RC, RW, RG) == (1, 1, 1):
        e("s_add_u32 s%d, s%d, s%d" % (sIDX, sC, sAW))
        e("s_add_u32 s%d, s%d, s%d" % (sIDX, sIDX, sG))
    else:
        e("s_mul_i32 s%d, s%d, %d" % (sIDX, sC, RC))
        e("s_mul_i32 s%d, s%d, %d" % (sCUR, sAW, RW))
        e("s_add_u32 s%d, s%d, s%d" % (sIDX, sIDX, sCUR))
        e("s_mul_i32 s%d, s%d, %d" % (sCUR, sG, RG))
        e("s_add_u32 s%d, s%d, s%d" % (sIDX, sIDX, sCUR))
    e("s_mov_b32 s%d, s%d" % (sLB, sM0))
if WF:
    wo_loads(WF)
    e("s_mov_b32 m0, s%d" % sM0)
    e("s_nop 0")
if N1 > 0: dma_loop("L_kloop", SRD_A, sOFF, KP, 0)
lab("L_Aend1")
c("---- address setup (in the shadow of the first loads) ----")
mksrd(SRD_B, 20, 1 << 26); mksrd(SRD_WS, 40, WS_NREC); mksrd(SRD_C, 24, 1 << 22)
e("v_and_b32 %s, 3, %s" % (v(vT0), v(vN)))
e("v_lshrrev_b32 %s, 2, %s" % (v(vT1), v(vN)))
c("K frag address: KBUF + aw*8KP + (m>>2)*KP + (m&3)*256 + ((q'^(m&3))*64)")
e("v_xor_b32 %s, %s, %s" % (v(vT2), v(vT0), v(vQ)))
e("v_mul_u32_u24 %s, %d, %s" % (v(vKA), KP, v(vT1)))
e("v_lshl_add_u32 %s, %s, 8, %s" % (v(vKA), v(vT0), v(vKA)))
e("v_lshl_add_u32 %s, %s, 6, %s" % (v(vKA), v(vT2), v(vKA)))
e("v_add_u32 %s, s%d, %s" % (v(vKA), sM0, v(vKA)))
c("V frag address: VBUF + q'*VP + r*256 + cc*8 + ((aw ^ r)*64) ; r = n>>2, cc = n&3")
e("v_mul_u32_u24 %s, %d, %s" % (v(vVA), VP, v(vQ)))
e("v_lshl_add_u32 %s, %s, 8, %s" % (v(vVA), v(vT1), v(vVA)))
e("v_lshl_add_u32 %s, %s, 3, %s" % (v(vVA), v(vT0), v(vVA)))
e("v_xor_b32 %s, s%d, %s" % (v(vT2), sAW, v(vT1)))
e("v_lshl_add_u32 %s, %s, 6, %s" % (v(vVA), v(vT2), v(vVA)))
e("v_add_u32 %s, %d, %s" % (v(vVA), VBUF, v(vVA)))
c("q frag address: (n>>2)*272 + q'*64 ; P exchange: q'*64 + (n>>2)*16 ; m/l: (n>>2)*16")
e("v_mul_u32_u24 %s, 272, %s" % (v(vQB), v(vT1)))
e("v_lshl_add_u32 %s, %s, 6, %s" % (v(vQB), v(vQ), v(vQB)))
e("v_lshlrev_b32 %s, 4, %s" % (v(vMR), v(vT1)))
e("v_lshl_add_u32 %s, %s, 6, %s" % (v(vPX), v(vQ), v(vMR)))
e("s_lshl_b32 s%d, s%d, 2" % (sTMP, sAW))
e("s_add_u32 s%d, s%d, %d" % (sTMP, sTMP, ML))
e("v_add_u32 %s, s%d, %s" % (v(vMW), sTMP, v(vMR)))
e("s_lshl_b32 s%d, s%d, 8" % (sTMP, sAW))
if QS_: e("v_lshl_add_u32 %s, %s, 2, s%d" % (v(vWA + 1), v(vL), sTMP))
else: e("v_add_u32 %s, s%d, %s" % (v(vWA + 1), sTMP, v(vPX)))
if H2B:
    c("hop2 publish: (n>>2)*16384 + (q'>>1)*2048 + (q'&1)*32 + (n&1)*16 ; soffset g<<16 + aw<<12 + c<<6")
    e("v_lshlrev_b32 %s, 14, %s" % (v(vP2), v(vT1)))
    e("v_and_b32 %s, 1, %s" % (v(vT2), v(vN)))
    e("v_lshl_add_u32 %s, %s, 4, %s" % (v(vP2), v(vT2), v(vP2)))
    e("v_lshrrev_b32 %s, 1, %s" % (v(vT2), v(vQ)))
    e("v_lshl_add_u32 %s, %s, 11, %s" % (v(vP2), v(vT2), v(vP2)))
    e("v_and_b32 %s, 1, %s" % (v(vT2), v(vQ)))
    e("v_lshl_add_u32 %s, %s, 5, %s" % (v(vP2), v(vT2), v(vP2)))
    e("s_lshl_b32 s%d, s%d, 16" % (sOFF2, sG))
    e("s_add_u32 s%d, s%d, %d" % (sOFF2, sOFF2, MB2A))
    c("hop2 gather region g*32 + (c>>2)*4 + aw (2 KiB each)")
    e("s_and_b32 s%d, s%d, 28" % (sTMP, sC))
    e("s_add_u32 s%d, s%d, s%d" % (sTMP, sTMP, sAW))
    e("s_lshl_b32 s%d, s%d, 11" % (sTMP, sTMP))
    e("s_add_u32 s%d, s%d, s%d" % (sOFFG, sOFF2, sTMP))
    e("s_lshl_b32 s%d, s%d, 12" % (sTMP, sAW))
    e("s_add_u32 s%d, s%d, s%d" % (sOFF2, sOFF2, sTMP))
    e("s_lshl_b32 s%d, s%d, 6" % (sTMP, sC))
    e("s_add_u32 s%d, s%d, s%d" % (sOFF2, sOFF2, sTMP))
else:
    c("hop2 publish: (n>>2)*32768 + (q'>>1)*4096 + (q'&1)*64 + (n&3)*16 ; soffset g<<17 + aw<<13 + c<<7")
    e("v_lshlrev_b32 %s, 15, %s" % (v(vP2), v(vT1)))
    e("v_lshl_add_u32 %s, %s, 4, %s" % (v(vP2), v(vT0), v(vP2)))
    e("v_lshrrev_b32 %s, 1, %s" % (v(vT2), v(vQ)))
    e("v_lshl_add_u32 %s, %s, 12, %s" % (v(vP2), v(vT2), v(vP2)))
    e("v_and_b32 %s, 1, %s" % (v(vT2), v(vQ)))
    e("v_lshl_add_u32 %s, %s, 6, %s" % (v(vP2), v(vT2), v(vP2)))
    e("s_lshl_b32 s%d, s%d, 17" % (sOFF2, sG))
    e("s_add_u32 s%d, s%d, %d" % (sOFF2, sOFF2, MB2A))
    c("hop2 gather region g*32 + (c>>2)*4 + aw")
    e("s_and_b32 s%d, s%d, 28" % (sTMP, sC))
    e("s_add_u32 s%d, s%d, s%d" % (sTMP, sTMP, sAW))
    e("s_lshl_b32 s%d, s%d, 12" % (sTMP, sTMP))
    e("s_add_u32 s%d, s%d, s%d" % (sOFFG, sOFF2, sTMP))
    e("s_lshl_b32 s%d, s%d, 13" % (sTMP, sAW))
    e("s_add_u32 s%d, s%d, s%d" % (sOFF2, sOFF2, sTMP))
    e("s_lshl_b32 s%d, s%d, 7" % (sTMP, sC))
    e("s_add_u32 s%d, s%d, s%d" % (sOFF2, sOFF2, sTMP))
e("v_lshlrev_b32 %s, 4, %s" % (v(vG2A), v(vL)))
c("hop 3 publish address: (n>>1)*128 + q'*32 + (n&1)*16")
e("v_lshrrev_b32 %s, 1, %s" % (v(vT2), v(vN)))
e("v_lshlrev_b32 %s, 7, %s" % (v(vP3), v(vT2)))
e("v_lshl_add_u32 %s, %s, 5, %s" % (v(vP3), v(vQ), v(vP3)))
e("v_and_b32 %s, 1, %s" % (v(vT2), v(vN)))
e("v_lshl_add_u32 %s, %s, 4, %s" % (v(vP3), v(vT2), v(vP3)))
if not WF: wo_setup()
else:
    e("s_lshr_b32 s%d, s%d, 2" % (sA, sC))
    e("s_and_b32 s%d, s%d, 3" % (sB, sC))
sOFFP3 = 92
e("s_lshl_b32 s%d, s%d, 16" % (sOFFP3, sB))
e("s_lshl_b32 s%d, s%d, 13" % (sTMP, sG))
e("s_add_u32 s%d, s%d, s%d" % (sOFFP3, sOFFP3, sTMP))
e("s_lshl_b32 s%d, s%d, 10" % (sTMP, sA))
e("s_add_u32 s%d, s%d, s%d" % (sOFFP3, sOFFP3, sTMP))
e("s_lshl_b32 s%d, s%d, 8" % (sTMP, sAW))
e("s_add_u32 s%d, s%d, s%d" % (sOFFP3, sOFFP3, sTMP))
e("s_add_u32 s%d, s%d, %d" % (sOFFP3, sOFFP3, MB3))
c("OX write: aw*32 + (l&7)*4 + (l>>5)*2 ; read q'*16")
e("v_lshlrev_b32 %s, 4, %s" % (v(vOXR), v(vQ)))
if H2B:
    e("s_lshl_b32 s%d, s%d, 5" % (sTMP, sAW))
    e("v_lshl_add_u32 %s, %s, 3, s%d" % (v(vOXW), v(vT0), sTMP))
    e("v_and_b32 %s, 1, %s" % (v(vT2), v(vQ)))
    e("v_lshl_add_u32 %s, %s, 2, %s" % (v(vOXW), v(vT2), v(vOXW)))
    e("v_lshrrev_b32 %s, 1, %s" % (v(vT2), v(vQ)))
    e("v_lshl_add_u32 %s, %s, 1, %s" % (v(vOXW), v(vT2), v(vOXW)))
else:
    e("v_and_b32 %s, 7, %s" % (v(vT2), v(vL)))
    e("s_lshl_b32 s%d, s%d, 5" % (sTMP, sAW))
    e("v_lshl_add_u32 %s, %s, 2, s%d" % (v(vOXW), v(vT2), sTMP))
    e("v_lshrrev_b32 %s, 5, %s" % (v(vT2), v(vL)))
    e("v_lshl_add_u32 %s, %s, 1, %s" % (v(vOXW), v(vT2), v(vOXW)))
for i in range(4): e("v_mov_b32 %s, 0x3f803f80" % v(vONE + i))
mask(sMASKQ, 0x000F000F); mask(sN1, 0xAAAAAAAA); mask(sN2, 0xCCCCCCCC); mask(sMASK0, 0x33333333 if H2B else 0x000000FF); mask(sN4, 0x11111111)
e("s_mov_b32 s%d, %s" % (sA, hx(f2u(128 ** -0.5))))
e("s_mov_b32 s%d, %s" % (sB, hx(f2u(math.log2(math.e)))))
e("v_mov_b32 %s, %d" % (v(vT0), MODE))
PW2 = opts.get("pw2", "off")
if PW2 == "off": PW2 = None
if PW2 is not None:
    for i in range(4): e("v_mov_b32 %s, 0" % v(vZ2 + i))
    if H2B: e("s_mov_b64 exec, %s" % sp(sMASK0))
    e("buffer_store_dwordx4 %s, %s, %s, s%d offen %s" % (v(vZ2, 4), v(vP2), srd(SRD_WS), sOFF2, PW2.replace("none", "")))
    if H2B: e("s_mov_b64 exec, -1")
PR2 = opts.get("pr2", "nt")
if PR2 == "off": PR2 = None
if PR2 is not None:
    c("pre-read this wave's share of the group's mailbox lines: 4 lines per wave")
    e("s_lshl_b32 s%d, s%d, 16" % (sTMP, sG))
    e("s_lshl_b32 s%d, s%d, 11" % (sH0, sC))
    e("s_add_u32 s%d, s%d, s%d" % (sTMP, sTMP, sH0))
    e("s_lshl_b32 s%d, s%d, 9" % (sH0, sAW))
    e("s_add_u32 s%d, s%d, s%d" % (sTMP, sTMP, sH0))
    e("s_add_u32 s%d, s%d, %d" % (sTMP, sTMP, MB2A))
    e("s_mov_b32 exec_hi, 0")
    e("buffer_load_dwordx4 %s, %s, %s, s%d offen %s" % (v(vO, 4), v(vG2A), srd(SRD_WS), sTMP, PR2.replace("none", "")))
    e("s_mov_b64 exec, -1")
PW3 = int(opts.get("pw3", 0))
if PW3:
    for i in range(4): e("v_mov_b32 %s, 0" % v(vZ3 + i))
    e("s_mov_b64 exec, %s" % sp(sMASKQ))
    e("buffer_store_dwordx4 %s, %s, %s, s%d offen sc1" % (v(vZ3, 4), v(vP3), srd(SRD_WS), sOFFP3))
    e("s_mov_b64 exec, -1")
if B1B: e("s_barrier")
def rest(tag, n1, thr):
    if n1 < 8:
        e("s_mov_b32 s%d, %d" % (sCNT, 8 - n1))
        dma_loop("L_kloop2" + tag, SRD_A, sOFF, KP, thr)
    e("s_mul_i32 s%d, s%d, %d" % (sTMP, sAW, 8 * VP))
    e("s_add_u32 m0, s%d, %d" % (sTMP, VBUF))
    if PAT == 2:
        e("s_add_u32 s%d, s%d, %d" % (sLB, sTMP, VBUF))
        if RV: e("s_add_u32 s%d, s%d, %d" % (sIDX, sIDX, RV))
    e("s_mov_b32 s%d, %d" % (sCNT, 8 - VLAST))
    dma_loop("L_vloop" + tag, SRD_B, sOFF3, VP, int(opts.get("thrv", 6)))
    if VLAST:
        e("s_mov_b32 s%d, %d" % (sCNT, VLAST))
        dma_loop("L_vloopb" + tag, SRD_B, sOFF3, VP, 0)
if (N1L, THRL) != (N1, THR):
    e("s_cmp_lg_u32 s%d, 0" % sLATE)
    e("s_cbranch_scc1 L_late")
    rest("e", N1, THR)
    e("s_branch L_issued")
    lab("L_late")
    rest("l", N1L, THRL)
    lab("L_issued")
else:
    rest("", N1, THR)
e("s_mov_b32 m0, s%d" % sM0W)
stamp(15)
if WOQ: e("ds_read_b32 %s, %s offset:8" % (v(vT1), v(vT0)))
e("s_waitcnt vmcnt(8) lgkmcnt(0)")
for T in range(2):
    for t in range(4):
        e("ds_read_b128 %s, %s offset:%d" % (v(vKF + 16 * T + 4 * t, 4), v(vKA), 4 * KP * T + 16 * t))
wo_loads(WO15)
if WOQ:
    e("v_readfirstlane_b32 s95, %s" % v(vT1))
    e("s_cmp_eq_u32 s95, 0")
    e("s_cbranch_scc1 L_woq1")
    wo_loads()
    wo_next[0] = 0
    lab("L_woq1")
e("s_barrier")
for t in range(4):
    e("ds_read_b128 %s, %s offset:%d" % (v(vQF + 4 * t, 4), v(vQB), QL + 16 * t))
e("ds_read_b64 %s, %s" % (v(vZ3 + 2, 2), v(vT0)))
wo_loads(WOB2)
WOC = int(opts.get("woc", -1))
sWOD = 95
if WOC >= 0:
    e("s_getreg_b32 s%d, hwreg(HW_REG_IB_STS, 0, 4)" % sWOD)
    e("s_cmp_gt_u32 s%d, %d" % (sWOD, WOC))
    e("s_cbranch_scc1 L_wolater")
    wo_loads()
    wo_next[0] = 0
    lab("L_wolater")
for t in range(4):
    e("s_waitcnt lgkmcnt(%d)" % (4 - t))
    for T in range(2):
        e("v_mfma_f32_16x16x32_bf16 %s, %s, %s, %s" % (v(vSC + 4 * T, 4), v(vKF + 16 * T + 4 * t, 4), v(vQF + 4 * t, 4), v(vSC + 4 * T, 4) if t else "0"))
e("s_waitcnt lgkmcnt(0)")
e("v_readfirstlane_b32 s%d, %s" % (sMODE, v(vZ3 + 2)))
e("v_readfirstlane_b32 s%d, %s" % (sTAG, v(vZ3 + 3)))
e("v_mov_b32 %s, %s" % (v(vZ3 + 2), v(vZ3 + 3)))
e("v_mov_b32 %s, %s" % (v(vZ2 + 3), v(vZ3 + 3)))
e("s_nop 2")
NSC = 2 if QS_ else 8
if QS_:
    c("the four lanes that hold the same head take two of the eight scores each")
    e("v_cndmask_b32 %s, %s, %s, %s" % (v(vSC), v(vSC), v(vSC + 2), sp(sN1)))
    e("v_cndmask_b32 %s, %s, %s, %s" % (v(vSC + 1), v(vSC + 1), v(vSC + 3), sp(sN1)))
    e("v_cndmask_b32 %s, %s, %s, %s" % (v(vSC + 4), v(vSC + 4), v(vSC + 6), sp(sN1)))
    e("v_cndmask_b32 %s, %s, %s, %s" % (v(vSC + 5), v(vSC + 5), v(vSC + 7), sp(sN1)))
    e("v_cndmask_b32 %s, %s, %s, %s" % (v(vSC), v(vSC), v(vSC + 4), sp(sN2)))
    e("v_cndmask_b32 %s, %s, %s, %s" % (v(vSC + 1), v(vSC + 1), v(vSC + 5), sp(sN2)))
    round2(vSC, vP)
    for i in range(2): e("v_mul_f32 %s, s%d, %s" % (v(vSC + i), sA, v(vSC + i)))
    round2(vSC, vP)
    e("v_max_f32 %s, %s, %s" % (v(vM), v(vSC), v(vSC + 1)))
    dpp_reduce("v_max_f32", [vM], ["quad_perm:[1,0,3,2] row_mask:0xf bank_mask:0xf", "quad_perm:[2,3,0,1] row_mask:0xf bank_mask:0xf"])
else:
    for i in range(4): e("v_cvt_pk_bf16_f32 %s, %s, %s" % (v(vP + i), v(vSC + 2 * i), v(vSC + 2 * i + 1)))
    for i in range(4): unpack(vSC + 2 * i, vP + i)
    for i in range(8): e("v_mul_f32 %s, s%d, %s" % (v(vSC + i), sA, v(vSC + i)))
    for i in range(4): e("v_cvt_pk_bf16_f32 %s, %s, %s" % (v(vP + i), v(vSC + 2 * i), v(vSC + 2 * i + 1)))
    for i in range(4): unpack(vSC + 2 * i, vP + i)
    e("v_max3_f32 %s, %s, %s, %s" % (v(vM), v(vSC), v(vSC + 1), v(vSC + 2)))
    e("v_max3_f32 %s, %s, %s, %s" % (v(vR), v(vSC + 3), v(vSC + 4), v(vSC + 5)))
    e("v_max3_f32 %s, %s, %s, %s" % (v(vM), v(vM), v(vSC + 6), v(vSC + 7)))
    e("v_max_f32 %s, %s, %s" % (v(vM), v(vM), v(vR)))
e("v_mov_b32 %s, %s" % (v(vR), v(vM)))
e("s_nop 1")
e("v_permlane32_swap_b32 %s, %s" % (v(vM), v(vR)))
e("v_max_f32 %s, %s, %s" % (v(vM), v(vM), v(vR)))
e("v_mov_b32 %s, %s" % (v(vR), v(vM)))
e("s_nop 1")
e("v_permlane16_swap_b32 %s, %s" % (v(vM), v(vR)))
e("v_max_f32 %s, %s, %s" % (v(vM), v(vM), v(vR)))
if PV2:
    e("v_mul_f32 %s, s%d, %s" % (v(vM), sB, v(vM)))
    c("workgroup max per head")
    e("ds_write_b32 %s, %s" % (v(vMW), v(vM)))
    for i in range(NSC): e("v_mul_f32 %s, s%d, %s" % (v(vSC + i), sB, v(vSC + i)))
    e("s_cmp_eq_u32 s%d, 0" % sMODE)
    e("s_cselect_b32 s%d, %d, 0" % (sSTEP, MB2B - MB2A))
    e("s_add_u32 s%d, s%d, s%d" % (sOFF2, sOFF2, sSTEP))
    e("s_add_u32 s%d, s%d, s%d" % (sOFFG, sOFFG, sSTEP))
    e("s_waitcnt lgkmcnt(0)")
    e("s_barrier")
    e("ds_read_b128 %s, %s offset:%d" % (v(vF, 4), v(vMR), ML))
    e("s_waitcnt lgkmcnt(0)")
    e("v_max3_f32 %s, %s, %s, %s" % (v(vM), v(vF), v(vF + 1), v(vF + 2)))
    e("v_max_f32 %s, %s, %s" % (v(vM), v(vM), v(vF + 3)))
    for i in range(NSC): e("v_sub_f32 %s, %s, %s" % (v(vSC + i), v(vSC + i), v(vM)))
    for i in range(NSC): e("v_exp_f32 %s, %s" % (v(vSC + i), v(vSC + i)))
    e("s_nop 0")
    for i in range(NSC // 2): e("v_cvt_pk_bf16_f32 %s, %s, %s" % (v(vP + i), v(vSC + 2 * i), v(vSC + 2 * i + 1)))
    if QS_:
        e("ds_write_b32 %s, %s offset:%d" % (v(vWA + 1), v(vP), PX))
    else:
        e("s_mov_b64 exec, %s" % sp(sN4))
        e("ds_write_b128 %s, %s offset:%d" % (v(vWA + 1), v(vP, 4), PX))
        e("s_mov_b64 exec, -1")
    stamp(12)
    if WOAT < 8: e("s_waitcnt vmcnt(%d)" % WOAT)
    if WOC >= 0:
        e("s_cmp_gt_u32 s%d, %d" % (sWOD, WOC))
        e("s_cbranch_scc0 L_wodone")
    if WOQ:
        e("s_cmp_lg_u32 s95, 0")
        e("s_cbranch_scc1 L_wodone")
    wo_loads(4 - WOL)
    if WOC >= 0 or WOQ: lab("L_wodone")
    e("s_waitcnt lgkmcnt(0)")
    e("s_barrier")
    for s_ in range(4):
        e("ds_read_b128 %s, %s offset:%d" % (v(vQF + 4 * s_, 4), v(vPX), PX + 256 * s_))
    for s_ in range(4):
        e("s_waitcnt lgkmcnt(%d)" % (3 - s_))
        e("v_mfma_f32_16x16x32_bf16 %s, %s, %s, %s" % (v(vLS, 4), v(vONE, 4), v(vQF + 4 * s_, 4), v(vLS, 4) if s_ else "0"))
    e("s_waitcnt vmcnt(%d)" % (4 - WF - WOL))
    stamp(5)
    e("s_barrier")
    for s_ in range(4):
        for dbl in range(2):
            for h in range(2):
                e("ds_read_b64_tr_b16 %s, %s offset:%d" % (v(vVF + 8 * s_ + 4 * dbl + 2 * h, 2), v(vVA), 8 * VP * s_ + 4 * VP * h + 32 * dbl))
    e("v_rcp_f32 %s, %s" % (v(vS1), v(vLS)))
    e("v_log_f32 %s, %s" % (v(vS2), v(vLS)))
    for s_ in range(4):
        for dbl in range(2):
            e("s_waitcnt lgkmcnt(%d)" % (14 - 4 * s_ - 2 * dbl))
            e("v_mfma_f32_16x16x32_bf16 %s, %s, %s, %s" % (v(vO + 4 * dbl, 4), v(vVF + 8 * s_ + 4 * dbl, 4), v(vQF + 4 * s_, 4), v(vO + 4 * dbl, 4) if s_ else "0"))
    e("v_add_f32 %s, %s, %s" % (v(vZ2 + 2), v(vM), v(vS2)))
    if H2B:
        e("s_nop 6")
        o = vO
        for r in range(4): e("v_cndmask_b32 %s, %s, %s, %s" % (v(vD + r), v(o + r), v(o + 4 + r), sp(sN1)))
        for r in range(4): e("v_mul_f32 %s, %s, %s" % (v(vD + r), v(vD + r), v(vS1)))
        e("v_cvt_pk_bf16_f32 %s, %s, %s" % (v(vZ2), v(vD), v(vD + 1)))
        e("v_cvt_pk_bf16_f32 %s, %s, %s" % (v(vZ2 + 1), v(vD + 2), v(vD + 3)))
        e("s_mov_b64 exec, %s" % sp(sMASK0))
    else:
        e("s_nop 4")
        o = vO
        e("v_cndmask_b32 %s, %s, %s, %s" % (v(vD), v(o), v(o + 2), sp(sN1)))
        e("v_cndmask_b32 %s, %s, %s, %s" % (v(vD + 1), v(o + 1), v(o + 3), sp(sN1)))
        e("v_cndmask_b32 %s, %s, %s, %s" % (v(vD + 2), v(o + 4), v(o + 6), sp(sN1)))
        e("v_cndmask_b32 %s, %s, %s, %s" % (v(vD + 3), v(o + 5), v(o + 7), sp(sN1)))
        e("v_cndmask_b32 %s, %s, %s, %s" % (v(vD), v(vD), v(vD + 2), sp(sN2)))
        e("v_cndmask_b32 %s, %s, %s, %s" % (v(vD + 1), v(vD + 1), v(vD + 3), sp(sN2)))
        e("v_mul_f32 %s, %s, %s" % (v(vZ2), v(vD), v(vS1)))
        e("v_mul_f32 %s, %s, %s" % (v(vZ2 + 1), v(vD + 1), v(vS1)))
else:
    e("v_mul_f32 %s, s%d, %s" % (v(vM), sB, v(vM)))
    for i in range(8): e("v_fma_f32 %s, %s, s%d, -%s" % (v(vSC + i), v(vSC + i), sB, v(vM)))
    for i in range(8): e("v_exp_f32 %s, %s" % (v(vSC + i), v(vSC + i)))
    e("s_nop 0")
    for i in range(4): e("v_cvt_pk_bf16_f32 %s, %s, %s" % (v(vP + i), v(vSC + 2 * i), v(vSC + 2 * i + 1)))
    c("slow mode: use the write-through mailbox")
    e("s_cmp_eq_u32 s%d, 0" % sMODE)
    e("s_cselect_b32 s%d, %d, 0" % (sSTEP, MB2B - MB2A))
    e("v_mfma_f32_16x16x32_bf16 %s, %s, %s, 0" % (v(vLS, 4), v(vONE, 4), v(vP, 4)))
    e("s_mov_b64 exec, %s" % sp(sN4))
    e("ds_write_b128 %s, %s offset:%d" % (v(vWA + 1), v(vP, 4), PX))
    e("s_add_u32 s%d, s%d, s%d" % (sOFF2, sOFF2, sSTEP))
    e("s_add_u32 s%d, s%d, s%d" % (sOFFG, sOFFG, sSTEP))
    e("s_nop 3")
    e("ds_write2_b32 %s, %s, %s offset0:0 offset1:16" % (v(vMW), v(vM), v(vLS)))
    e("s_mov_b64 exec, -1")
    stamp(12)
    if WOAT < 8: e("s_waitcnt vmcnt(%d)" % WOAT)
    wo_loads()
    e("s_waitcnt vmcnt(4) lgkmcnt(0)")
    stamp(5)
    e("s_barrier")
    e("ds_read_b128 %s, %s offset:%d" % (v(vF, 4), v(vMR), ML))
    e("ds_read_b128 %s, %s offset:%d" % (v(vF + 4, 4), v(vMR), ML + 64))
    for s_ in range(4):
        e("ds_read_b128 %s, %s offset:%d" % (v(vQF + 4 * s_, 4), v(vPX), PX + 256 * s_))
        for dbl in range(2):
            for h in range(2):
                e("ds_read_b64_tr_b16 %s, %s offset:%d" % (v(vVF + 8 * s_ + 4 * dbl + 2 * h, 2), v(vVA), 8 * VP * s_ + 4 * VP * h + 32 * dbl))
    e("s_waitcnt lgkmcnt(15)")
    e("v_max3_f32 %s, %s, %s, %s" % (v(vM), v(vF), v(vF + 1), v(vF + 2)))
    def pv(s_):
        for dbl in range(2):
            e("v_mfma_f32_16x16x32_bf16 %s, %s, %s, 0" % (v(vO + 8 * s_ + 4 * dbl, 4), v(vVF + 8 * s_ + 4 * dbl, 4), v(vQF + 4 * s_, 4)))
    def sel(s_):
        o = vO + 8 * s_
        e("v_cndmask_b32 %s, %s, %s, %s" % (v(o), v(o), v(o + 2), sp(sN1)))
        e("v_cndmask_b32 %s, %s, %s, %s" % (v(o + 1), v(o + 1), v(o + 3), sp(sN1)))
        e("v_cndmask_b32 %s, %s, %s, %s" % (v(o + 4), v(o + 4), v(o + 6), sp(sN1)))
        e("v_cndmask_b32 %s, %s, %s, %s" % (v(o + 5), v(o + 5), v(o + 7), sp(sN1)))
        e("v_cndmask_b32 %s, %s, %s, %s" % (v(o), v(o), v(o + 4), sp(sN2)))
        e("v_cndmask_b32 %s, %s, %s, %s" % (v(o + 1), v(o + 1), v(o + 5), sp(sN2)))
        if s_ == 0:
            e("v_mul_f32 %s, %s, %s" % (v(vZ2), v(vF), v(o)))
            e("v_mul_f32 %s, %s, %s" % (v(vZ2 + 1), v(vF), v(o + 1)))
        else:
            e("v_fmac_f32 %s, %s, %s" % (v(vZ2), v(vF + s_), v(o)))
            e("v_fmac_f32 %s, %s, %s" % (v(vZ2 + 1), v(vF + s_), v(o + 1)))
    pv(0)
    e("v_max_f32 %s, %s, %s" % (v(vM), v(vM), v(vF + 3)))
    for w in range(4): e("v_sub_f32 %s, %s, %s" % (v(vF + w), v(vF + w), v(vM)))
    for w in range(4): e("v_exp_f32 %s, %s" % (v(vF + w), v(vF + w)))
    e("s_waitcnt lgkmcnt(10)")
    pv(1)
    e("v_mul_f32 %s, %s, %s" % (v(vR), v(vF), v(vF + 4)))
    for w in range(1, 4): e("v_fmac_f32 %s, %s, %s" % (v(vR), v(vF + w), v(vF + 4 + w)))
    e("v_rcp_f32 %s, %s" % (v(vS1), v(vR)))
    e("v_log_f32 %s, %s" % (v(vS2), v(vR)))
    e("s_waitcnt lgkmcnt(5)")
    pv(2)
    for w in range(4): e("v_mul_f32 %s, %s, %s" % (v(vF + w), v(vF + w), v(vS1)))
    e("v_add_f32 %s, %s, %s" % (v(vZ2 + 2), v(vM), v(vS2)))
    e("s_waitcnt lgkmcnt(0)")
    pv(3)
    sel(0); sel(1); sel(2); sel(3)
e("s_cmp_eq_u32 s%d, 0" % sMODE)
e("s_cbranch_scc1 L_p2slow")
e("buffer_store_dwordx4 %s, %s, %s, s%d offen%s" % (v(vZ2, 4), v(vP2), srd(SRD_WS), sOFF2, fs))
lab("L_p2done")
if H2B: e("s_mov_b64 exec, -1")
NH2 = 2 if H2B else 4
stamp(7)
G2 = vKF
def h2_loads():
    for i in range(NH2):
        e("buffer_load_dwordx4 %s, %s, %s, s%d offen offset:%d sc1" % (v(G2 + 4 * i, 4), v(vG2A), srd(SRD_WS), sOFFG, 1024 * i))
H2D = int(opts.get("h2d", 0)); H2N = int(opts.get("h2n", 1))
H2W = int(opts.get("h2w", 3))
if H2W >= 0: e("s_waitcnt vmcnt(%d)" % H2W)
for _ in range(H2N):
    if H2D: e("s_sleep %d" % H2D)
    h2_loads()
if WOL:
    wo_loads()
    e("s_waitcnt vmcnt(%d)" % WOL)
    e("s_branch L_h2chk2")
else:
    e("s_branch L_h2chk")
lab("L_h2retry")
e("s_not_b64 exec, exec")
h2_loads()
e("s_mov_b64 exec, -1")
lab("L_h2chk")
e("s_waitcnt vmcnt(0)")
if STAMPS:
    e("v_readfirstlane_b32 s%d, %s" % (sTMP, v(vSTP + 13)))
    e("s_cmp_lg_u32 s%d, 0" % sTMP)
    e("s_cbranch_scc1 L_h2chk2")
    stamp(13)
lab("L_h2chk2")
for i in range(NH2):
    e("v_cmpx_eq_u32 vcc, s%d, %s" % (sTAG, v(G2 + 4 * i + 3)))
e("s_cmp_eq_u64 exec, -1")
e("s_cbranch_scc1 L_h2ok")
spin_check("L_h2retry")
lab("L_h2ok")
stamp(8)
if H2B:
    X = vVF
    e("v_max_f32 %s, %s, %s" % (v(vM), v(G2 + 2), v(G2 + 6)))
    unpack(X, G2)
    e("v_mov_b32 %s, %s" % (v(vR), v(vM)))
    unpack(X + 2, G2 + 1)
    e("v_permlane32_swap_b32 %s, %s" % (v(vM), v(vR)))
    e("v_max_f32 %s, %s, %s" % (v(vM), v(vM), v(vR)))
    e("v_mov_b32 %s, %s" % (v(vR), v(vM)))
    unpack(X + 4, G2 + 4)
    e("v_permlane16_swap_b32 %s, %s" % (v(vM), v(vR)))
    e("v_max_f32 %s, %s, %s" % (v(vM), v(vM), v(vR)))
    unpack(X + 6, G2 + 5)
    e("v_max_f32_dpp %s, %s, %s %s" % (v(vM), v(vM), v(vM), ROW[0]))
    e("s_nop 1")
    e("v_max_f32_dpp %s, %s, %s %s" % (v(vM), v(vM), v(vM), ROW[1]))
    e("v_sub_f32 %s, %s, %s" % (v(vF), v(G2 + 2), v(vM)))
    e("v_sub_f32 %s, %s, %s" % (v(vF + 1), v(G2 + 6), v(vM)))
    e("v_exp_f32 %s, %s" % (v(vF), v(vF)))
    e("v_exp_f32 %s, %s" % (v(vF + 1), v(vF + 1)))
    Y, W, W2 = vD, vD + 4, vD + 5
    e("v_mul_f32 %s, %s, %s" % (v(Y), v(vF), v(X)))
    e("v_add_f32 %s, %s, %s" % (v(W), v(vF), v(vF + 1)))
    e("v_add_f32 %s, %s, %s" % (v(W2), v(vF), v(vF + 1)))
    for r in range(1, 4): e("v_mul_f32 %s, %s, %s" % (v(Y + r), v(vF), v(X + r)))
    e("v_permlane32_swap_b32 %s, %s" % (v(W), v(W2)))
    e("v_fmac_f32 %s, %s, %s" % (v(Y), v(vF + 1), v(X + 4)))
    e("v_fmac_f32 %s, %s, %s" % (v(Y + 1), v(vF + 1), v(X + 5)))
    e("v_add_f32 %s, %s, %s" % (v(vS1), v(W), v(W2)))
    e("v_add_f32 %s, %s, %s" % (v(vS2), v(W), v(W2)))
    e("v_fmac_f32 %s, %s, %s" % (v(Y + 2), v(vF + 1), v(X + 6)))
    e("v_fmac_f32 %s, %s, %s" % (v(Y + 3), v(vF + 1), v(X + 7)))
    e("v_permlane32_swap_b32 %s, %s" % (v(Y), v(Y + 1)))
    e("v_permlane16_swap_b32 %s, %s" % (v(vS1), v(vS2)))
    e("v_permlane32_swap_b32 %s, %s" % (v(Y + 2), v(Y + 3)))
    e("v_add_f32 %s, %s, %s" % (v(Y), v(Y), v(Y + 1)))
    e("v_add_f32 %s, %s, %s" % (v(Y + 2), v(Y + 2), v(Y + 3)))
    e("v_add_f32 %s, %s, %s" % (v(W), v(vS1), v(vS2)))
    e("s_nop 0")
    e("v_permlane16_swap_b32 %s, %s" % (v(Y), v(Y + 2)))
    e("v_add_f32_dpp %s, %s, %s %s" % (v(W), v(W), v(W), ROW[0]))
    e("v_add_f32 %s, %s, %s" % (v(Y), v(Y), v(Y + 2)))
    e("s_nop 0")
    e("v_add_f32_dpp %s, %s, %s %s" % (v(W), v(W), v(W), ROW[1]))
    e("v_add_f32_dpp %s, %s, %s %s" % (v(Y), v(Y), v(Y), ROW[0]))
    e("v_rcp_f32 %s, %s" % (v(W), v(W)))
    e("s_nop 0")
    e("v_add_f32_dpp %s, %s, %s %s" % (v(Y), v(Y), v(Y), ROW[1]))
    e("v_mul_f32 %s, %s, %s" % (v(Y), v(Y), v(W)))
    e("v_cvt_pk_bf16_f32 %s, %s, %s" % (v(Y), v(Y), v(Y)))
    e("s_mov_b64 exec, %s" % sp(sMASKQ))
    e("ds_write_b16 %s, %s offset:%d" % (v(vOXW), v(Y), OX))
else:
    A_ = [G2 + 4 * i + 2 for i in range(4)]
    e("v_max3_f32 %s, %s, %s, %s" % (v(vM), v(A_[0]), v(A_[1]), v(A_[2])))
    e("v_max_f32 %s, %s, %s" % (v(vM), v(vM), v(A_[3])))
    e("v_mov_b32 %s, %s" % (v(vR), v(vM)))
    e("s_nop 1")
    e("v_permlane32_swap_b32 %s, %s" % (v(vM), v(vR)))
    e("v_max_f32 %s, %s, %s" % (v(vM), v(vM), v(vR)))
    e("v_mov_b32 %s, %s" % (v(vR), v(vM)))
    e("s_nop 1")
    e("v_permlane16_swap_b32 %s, %s" % (v(vM), v(vR)))
    e("v_max_f32 %s, %s, %s" % (v(vM), v(vM), v(vR)))
    dpp_reduce("v_max_f32", [vM], ROW[:1])
    for i in range(4): e("v_sub_f32 %s, %s, %s" % (v(vF + i), v(A_[i]), v(vM)))
    for i in range(4): e("v_exp_f32 %s, %s" % (v(vF + i), v(vF + i)))
    Y0, Y1, W, W2 = vD, vD + 1, vD + 2, vD + 3
    e("v_mul_f32 %s, %s, %s" % (v(Y0), v(vF), v(G2)))
    e("v_mul_f32 %s, %s, %s" % (v(Y1), v(vF), v(G2 + 1)))
    e("v_add_f32 %s, %s, %s" % (v(W), v(vF), v(vF + 1)))
    e("v_add_f32 %s, %s, %s" % (v(W2), v(vF + 2), v(vF + 3)))
    for i in range(1, 4):
        e("v_fmac_f32 %s, %s, %s" % (v(Y0), v(vF + i), v(G2 + 4 * i)))
        e("v_fmac_f32 %s, %s, %s" % (v(Y1), v(vF + i), v(G2 + 4 * i + 1)))
        if i == 1:
            e("v_add_f32 %s, %s, %s" % (v(W), v(W), v(W2)))
            e("v_mov_b32 %s, %s" % (v(W2), v(W)))
    e("v_permlane32_swap_b32 %s, %s" % (v(W), v(W2)))
    e("s_nop 0")
    e("v_permlane32_swap_b32 %s, %s" % (v(Y0), v(Y1)))
    e("v_add_f32 %s, %s, %s" % (v(W), v(W), v(W2)))
    e("v_add_f32 %s, %s, %s" % (v(Y0), v(Y0), v(Y1)))
    e("s_nop 1")
    e("v_permlane16_swap_b32 %s, %s" % (v(Y0), v(W)))
    e("v_add_f32 %s, %s, %s" % (v(Y0), v(Y0), v(W)))
    dpp_reduce("v_add_f32", [Y0], ROW[:1])
    e("v_rcp_f32 %s, %s" % (v(W), v(Y0)))
    e("s_nop 1")
    e("v_permlane16_swap_b32 %s, %s" % (v(W), v(W2)))
    e("v_mul_f32 %s, %s, %s" % (v(Y0), v(Y0), v(W2)))
    e("v_cvt_pk_bf16_f32 %s, %s, %s" % (v(Y0), v(Y0), v(Y0)))
    e("s_mov_b64 exec, %s" % sp(sMASK0))
    e("ds_write_b16 %s, %s offset:%d" % (v(vOXW), v(Y0), OX))
e("s_mov_b64 exec, -1")
e("s_waitcnt vmcnt(0) lgkmcnt(0)")
e("s_barrier")
if WOF:
    for s in range(2):
        e("ds_read_b128 %s, %s offset:%d" % (v(vF + 4 * s, 4), v(vOXR), OX + 64 * s))
        for b in range(2):
            for h in range(2):
                e("ds_read_b64_tr_b16 %s, %s offset:%d" % (v(vWOF + 8 * b + 4 * s + 2 * h, 2), v(vVA), WOB - VBUF + (8 * s + 4 * h) * VP + 32 * b))
    for s in range(2):
        for b in range(2):
            e("s_waitcnt lgkmcnt(%d)" % (7 - 5 * s - 2 * b))
            e("v_mfma_f32_16x16x32_bf16 %s, %s, %s, %s" % (v(vSC + 4 * b, 4), v(vWOF + 8 * b + 4 * s, 4), v(vF + 4 * s, 4), v(vSC + 4 * b, 4) if s else "0"))
else:
    e("ds_read_b128 %s, %s offset:%d" % (v(vF, 4), v(vOXR), OX))
    e("ds_read_b128 %s, %s offset:%d" % (v(vF + 4, 4), v(vOXR), OX + 64))
    e("s_waitcnt lgkmcnt(1)")
    for b in range(2):
        e("v_mfma_f32_16x16x32_bf16 %s, %s, %s, 0" % (v(vSC + 4 * b, 4), v(vWOF + 8 * b, 4), v(vF, 4)))
    e("s_waitcnt lgkmcnt(0)")
    for b in range(2):
        e("v_mfma_f32_16x16x32_bf16 %s, %s, %s, %s" % (v(vSC + 4 * b, 4), v(vWOF + 8 * b + 4, 4), v(vF + 4, 4), v(vSC + 4 * b, 4)))
e("s_nop 6")
e("v_cndmask_b32 %s, %s, %s, %s" % (v(vD), v(vSC), v(vSC + 2), sp(sN1)))
e("v_cndmask_b32 %s, %s, %s, %s" % (v(vD + 1), v(vSC + 1), v(vSC + 3), sp(sN1)))
e("v_cndmask_b32 %s, %s, %s, %s" % (v(vD + 2), v(vSC + 4), v(vSC + 6), sp(sN1)))
e("v_cndmask_b32 %s, %s, %s, %s" % (v(vD + 3), v(vSC + 5), v(vSC + 7), sp(sN1)))
e("v_cndmask_b32 %s, %s, %s, %s" % (v(vZ3), v(vD), v(vD + 2), sp(sN2)))
e("v_cndmask_b32 %s, %s, %s, %s" % (v(vZ3 + 1), v(vD + 1), v(vD + 3), sp(sN2)))
e("s_mov_b64 exec, %s" % sp(sMASKQ))
e("buffer_store_dwordx4 %s, %s, %s, s%d offen %s" % (v(vZ3, 4), v(vP3), srd(SRD_WS), sOFFP3, H3ST))
for r in range(1, NREP):
    e("s_add_u32 s%d, s%d, %d" % (sOFFP3, sOFFP3, 1 << 18))
    e("buffer_store_dwordx4 %s, %s, %s, s%d offen %s" % (v(vZ3, 4), v(vP3), srd(SRD_WS), sOFFP3, H3ST))
e("s_mov_b64 exec, -1")
stamp(9)
lab("L_fin")
if PAD:
    if "padx" in opts:
        e("s_getreg_b32 s%d, hwreg(HW_REG_XCC_ID, 0, 4)" % sTMP)
        e("s_cmp_lg_u32 s%d, %d" % (sTMP, int(opts["padx"])))
        e("s_cbranch_scc1 L_fin2")
    e("s_add_u32 s100, s100, %d" % (PAD * 100))
    lab("L_pad")
    e("s_memrealtime %s" % sp(sST))
    e("s_waitcnt lgkmcnt(0)")
    e("s_sub_u32 s%d, s%d, s100" % (sST, sST))
    e("s_cmp_lt_i32 s%d, 0" % sST)
    e("s_cbranch_scc1 L_pad")
lab("L_fin2")
if STAMPS:
    e("s_mov_b64 exec, -1")
    e("s_waitcnt vmcnt(0)")
    stamp(11)
    e("s_lshl_b32 s%d, s2, 4" % sTMP)
    e("s_add_u32 s%d, s%d, s%d" % (sTMP, sTMP, sWAVE))
    e("s_lshl_b32 s%d, s%d, 6" % (sTMP, sTMP))
    e("s_add_u32 s%d, s%d, %d" % (sTMP, sTMP, STAMP_OFF))
    e("v_mov_b32 %s, 0" % v(vT1))
    e("s_mov_b64 exec, 1")
    for i in range(4):
        e("buffer_store_dwordx4 %s, %s, %s, s%d offen offset:%d" % (v(vSTP + 4 * i, 4), v(vT1), srd(SRD_WS), sTMP, 16 * i))
lab("L_end")
e("s_endpgm")
lab("L_p2slow")
e("buffer_store_dwordx4 %s, %s, %s, s%d offen sc1" % (v(vZ2, 4), v(vP2), srd(SRD_WS), sOFF2))
e("s_branch L_p2done")
lab("L_codeend")

if int(opts.get("reord", 1)):
    ia = L.index("L_A:")
    ib = L.index("L_Aend1:")
    blk = L[ia:ib] + ["    s_branch L_A2"]
    L[ia:ib] = ["L_A2:"]
    ic = L.index("L_B0:")
    L[ic:ic] = blk
hdr = open("cdna_kernels/%s.s.ref" % NAME).read().split("\n")
head = []
for ln in hdr:
    if ln.startswith("; @launch"):
        head.append("; @launch grid=(256,1,1) block=(512,1,1) lds=%d" % LDS_TOTAL)
    elif ln.startswith(";"):
        head.append(ln)
    else:
        break
out = "\n".join(head) + "\n"
out += DOC
out += '.amdgcn_target "amdgcn-amd-amdhsa--gfx950"\n.text\n.globl %s_kernel\n.p2align 8\n.type %s_kernel,@function\n%s_kernel:\n' % (NAME, NAME, NAME)
out += "\n".join(L) + "\n"
out += '''.section .rodata,"a"
.p2align 6
.amdhsa_kernel %s_kernel
  .amdhsa_next_free_vgpr %d
  .amdhsa_next_free_sgpr 102
  .amdhsa_accum_offset %d
  .amdhsa_group_segment_fixed_size 0
  .amdhsa_kernarg_size 104
  .amdhsa_user_sgpr_count 2
  .amdhsa_user_sgpr_kernarg_segment_ptr 1
  .amdhsa_system_sgpr_workgroup_id_x 1
  .amdhsa_float_denorm_mode_32 3
.end_amdhsa_kernel
''' % (NAME, NVGPR, NVGPR)
open(sys.argv[1], "w").write(out)
```
